```python
import torch

def _softmax(x, axis=-1):
    return torch.softmax(x, dim=axis)
def _gelu(x):
    return torch.nn.functional.gelu(x, approximate="tanh")
def _silu(x):
    return torch.nn.functional.silu(x)
def _sigmoid(x):
    return torch.sigmoid(x)
def _layernorm(x, axis=-1, eps=1e-5):
    m = x.mean(dim=axis, keepdim=True)
    v = x.var(dim=axis, keepdim=True, unbiased=False)
    return (x - m) / torch.sqrt(v + eps)
def _scatter_add(tgt, idx, src, axis=0):
    return tgt.clone().index_add_(axis, idx, src)
def _segment_sum(src, seg, n):
    out = torch.zeros((n,) + src.shape[1:], dtype=src.dtype)
    return out.index_add_(0, seg, src)
def _pad(x, pw):
    flat = tuple(v for pair in reversed(pw) for v in pair)
    return torch.nn.functional.pad(x, flat)

kernel_name = 'sequential_preLN__compressed_kv_cla__dense_activation_silu__decode'

def setup_inputs():

    _w = (lambda a: (lambda t: t.to(torch.bfloat16) if t.is_floating_point() else t)(torch.as_tensor(a)))
    def _A_setup():
        B, H, Sq, Sk, D, M = 4, 32, 1, 4096, 128, 640
        Dc = 4 * D
        return {
            "x": _w((lambda *s: torch.randn(*s, dtype=torch.bfloat16) * 0.05)(B, Sq, M)),
            "c_kv": _w((lambda *s: torch.randn(*s, dtype=torch.bfloat16) * 0.8)(B, Sk, Dc)),
            "w_q": _w((lambda *s: torch.randn(*s, dtype=torch.bfloat16) * 3.2)(M, H, D) * (M ** -0.5)),
            "w_uk": _w((lambda *s: torch.randn(*s, dtype=torch.bfloat16) * 3.2)(Dc, H, D) * (Dc ** -0.5)),
            "w_uv": _w((lambda *s: torch.randn(*s, dtype=torch.bfloat16) * 0.8)(Dc, H, D) * (Dc ** -0.5)),
            "w_o": _w((lambda *s: torch.randn(*s, dtype=torch.bfloat16) * 0.8)(H, D, M) * ((H * D) ** -0.5)),
        }
    _A_in = _A_setup()

    def _B_setup():
        B, S, D, F = 4, 1, 640, 1728
        return {
            "x": _w((lambda *s: torch.randn(*s, dtype=torch.bfloat16) * 0.05)(B, S, D)),
            "w1": _w((lambda *s: torch.randn(*s, dtype=torch.bfloat16) * 3.2)(D, F) * (D ** -0.5)),
            "w2": _w((lambda *s: torch.randn(*s, dtype=torch.bfloat16) * 0.8)(F, D) * (F ** -0.5)),
        }
    _B_in = _B_setup()

    return {
        "A_x": _A_in["x"],
        "A_c_kv": _A_in["c_kv"],
        "A_w_q": _A_in["w_q"],
        "A_w_uk": _A_in["w_uk"],
        "A_w_uv": _A_in["w_uv"],
        "A_w_o": _A_in["w_o"],
        "B_x": _B_in["x"],
        "B_w1": _B_in["w1"],
        "B_w2": _B_in["w2"],
    }

def reference(A_x, A_c_kv, A_w_q, A_w_uk, A_w_uv, A_w_o, B_x, B_w1, B_w2):
    def _A_ref(x, c_kv, w_q, w_uk, w_uv, w_o):
        B, Sq, M = x.shape[0], x.shape[1], x.shape[2]
        Sk = c_kv.shape[1]
        H, D = w_q.shape[1], w_q.shape[2]
        q = torch.einsum("bqm,mhd->bhqd", x, w_q)
        k = torch.einsum("bkc,chd->bhkd", c_kv, w_uk)
        v = torch.einsum("bkc,chd->bhkd", c_kv, w_uv)
        scores = torch.einsum("bhqd,bhkd->bhqk", q, k) * (D ** -0.5)
        off = Sk - Sq
        qi = torch.arange(Sq)[:, None]
        kj = torch.arange(Sk)[None, :]
        cmask = kj <= (qi + off)
        scores = torch.where(cmask[None, None], scores, -1e9)
        p = _softmax(scores, axis=-1)
        ctx = torch.einsum("bhqk,bhkd->bhqd", p, v)
        return torch.einsum("bhqd,hdm->bqm", ctx, w_o)

    def _B_ref(x, w1, w2):
        h = torch.einsum("bsd,df->bsf", x, w1)
        h = _silu(h)
        out = torch.einsum("bsf,fd->bsd", h, w2)
        return out

    x = A_x
    h = x + _A_ref(_layernorm(x, axis=-1), A_c_kv, A_w_q, A_w_uk, A_w_uv, A_w_o)
    h2 = h + _B_ref(_layernorm(h, axis=-1), B_w1, B_w2)
    return h2
```

```python
import sys
NAME = "sequential_preLN__compressed_kv_cla__dense_activation_silu__decode"

EPOCH = 0x0
QP, QPC = 0x10000, 0x30000
QA, QAC = 0x40000, 0x60000
OP, OPC, ST = 0x100000, 0x500000, 0x600000
CP, CPC = 0x620000, 0x660000
AP, APC = 0x680000, 0x690000
UU, UC = 0x6A0000, 0x6B0000
STAMP = 0x800000
WS_REC = 0x1000000

L_R2 = 131072
L_WQ = L_R2
L_QA = L_R2
L_XN = L_R2 + 20480
L_P = L_R2 + 25600
L_MX = L_R2 + 29696
L_SM = L_MX + 256
L_CC = L_SM + 256
L_FL = L_CC + 1024
LDS_BYTES = 163840
assert L_FL + 64 <= LDS_BYTES
L_WUV = 0
L_WR = 16384
L_RED = 81920
L_HN = 98304
L_LS = 106496
L_HP = 107520
F_A, F_S2, F_QA, F_T0, F_T1, F_RD, F_SM = 0, 4, 8, 12, 16, 20, 24

HASH_A, HASH_C = 1664525, 1013904223
SPIN_MAX = 20000
import struct
def f32(x): return "0x%08x" % struct.unpack("<I", struct.pack("<f", x))[0]
LOG2E = 1.4426950408889634
SCALE = (128 ** -0.5) * LOG2E
M_J4 = "0x000f000f"

P_X, P_CKV, P_WQ, P_WUK, P_WUV, P_WO, P_BX, P_W1, P_W2, P_OUT, P_DBG, P_WS = 16, 18, 20, 22, 24, 26, 28, 30, 32, 34, 36, 38

class G:
    def __init__(self, stamps=False, stop=None):
        self.L = []
        self.stamps = stamps
        self.stop = stop
        self.nlab = 0
    def __call__(self, s):
        for line in s.strip("\n").split("\n"):
            line = line.strip()
            if line:
                self.L.append("    " + line if not line.endswith(":") else line)
    def lab(self, p="L"):
        self.nlab += 1
        return f"{p}_{self.nlab}"
    def nop(self, n):
        while n > 0:
            k = min(n, 16)
            self(f"s_nop {k-1}")
            n -= k
    def srd(self, d, ptr, size):
        self(f"""s_mov_b32 s{d}, s{ptr}
                 s_and_b32 s{d+1}, s{ptr+1}, 0xffff
                 s_mov_b32 s{d+2}, {size}
                 s_mov_b32 s{d+3}, 0x20000""")
    def stamp(self, idx):
        if self.stamps:
            self(f"s_memrealtime s[{72+2*idx}:{73+2*idx}]")
    def flag_add(self, off):
        self(f"""s_mov_b64 exec, 1
                 ds_add_u32 v4, v5 offset:{off}
                 s_mov_b64 exec, -1""")
    def flag_wait(self, off, val):
        l = self.lab("FW"); x = self.lab("FX")
        self(f"""s_mov_b32 s15, 0
                 {l}:
                 ds_read_b32 v6, v4 offset:{off}
                 s_add_u32 s15, s15, 1
                 s_cmp_gt_u32 s15, {SPIN_MAX*8}
                 s_cbranch_scc1 {x}
                 s_waitcnt lgkmcnt(0)
                 v_readfirstlane_b32 s14, v6
                 s_cmp_lt_u32 s14, {val}
                 s_cbranch_scc1 {l}
                 {x}:""")
    def chk(self, dst, p):
        self(f"""v_add3_u32 v{dst}, v{p}, v{p+1}, s11
                 v_add3_u32 v{dst}, v{p+2}, v{p+3}, v{dst}""")
    def verify(self, p, c, first, t=7):
        self.chk(t, p)
        if first:
            self(f"v_cmp_ne_u32 s[62:63], v{t}, v{c}")
        else:
            self(f"""v_cmp_ne_u32 vcc, v{t}, v{c}
                     s_or_b64 s[62:63], s[62:63], vcc""")
    def poll_begin(self):
        l = self.lab("PL")
        self(f"s_mov_b32 s61, 0\n{l}:")
        return l
    def poll_end(self, l):
        x = self.lab("PX")
        self(f"""s_add_u32 s61, s61, 1
                 s_cmp_gt_u32 s61, {SPIN_MAX}
                 s_cbranch_scc1 {x}
                 s_cmp_lg_u64 s[62:63], 0
                 s_cbranch_scc1 {l}
                 {x}:""")
    def xrow(self, op, v, t):
        self(f"v_mov_b32 v{t}, v{v}")
        self.nop(2)
        self(f"v_permlane16_swap_b32 v{v}, v{t}")
        self.nop(1)
        self(f"{op} v{v}, v{v}, v{t}")
        self(f"v_mov_b32 v{t}, v{v}")
        self.nop(2)
        self(f"v_permlane32_swap_b32 v{v}, v{t}")
        self.nop(1)
        self(f"{op} v{v}, v{v}, v{t}")
    def inrow(self, op, v, rors=(8, 4, 2, 1)):
        for r in rors:
            self.nop(2)
            self(f"{op}_dpp v{v}, v{v}, v{v} row_ror:{r} row_mask:0xf bank_mask:0xf")
    def wave_sum(self, v, t):
        self.inrow("v_add_f32", v)
        self.xrow("v_add_f32", v, t)
    def rbf(self, v):
        self(f"""v_cvt_pk_bf16_f32 v{v}, v{v}, v{v}
                 v_lshlrev_b32 v{v}, 16, v{v}""")
    def unpack(self, dst, src):
        self(f"""v_lshlrev_b32 v{dst}, 16, v{src}
                 v_and_b32 v{dst+1}, 0xffff0000, v{src}""")
    def mfma(self, d, a, b, first):
        c = "0" if first else f"v[{d}:{d+3}]"
        self(f"v_mfma_f32_16x16x32_bf16 v[{d}:{d+3}], v[{a}:{a+3}], v[{b}:{b+3}], {c}")
    def pack8(self, p, d):
        for k in range(4):
            self(f"v_cvt_pk_bf16_f32 v{p+k}, v{d+2*k}, v{d+2*k+1}")
    def mask_j4(self):
        self(f"s_mov_b32 exec_lo, {M_J4}\ns_mov_b32 exec_hi, {M_J4}")
    def finish(self):
        if self.stamps:
            self("s_waitcnt lgkmcnt(0)")
            for k in range(12):
                self(f"v_mov_b32 v{8+k}, s{72+2*k}")
            self(f"""s_lshl_b32 s13, s2, 3
                  s_add_u32 s13, s13, s3
                  s_lshl_b32 s13, s13, 6
                  s_add_u32 s13, s13, {STAMP}
                  v_mov_b32 v7, 0
                  s_mov_b64 exec, 1
                  buffer_store_dwordx4 v[8:11], v7, s[40:43], s13 offen
                  buffer_store_dwordx4 v[12:15], v7, s[40:43], s13 offen offset:16
                  buffer_store_dwordx4 v[16:19], v7, s[40:43], s13 offen offset:32""")
        self("s_endpgm")

def tag_load(g):
    g(f"s_load_dword s11, s[{P_WS}:{P_WS+1}], {EPOCH}")
def tag_fin(g):
    g(f"""s_waitcnt lgkmcnt(0)
          s_mul_i32 s11, s11, {HASH_A}
          s_add_u32 s11, s11, {HASH_C}""")

def prologue(g):
    g(f"""s_cmp_ge_u32 s2, 256
          s_cbranch_scc1 L_end
          s_load_dwordx16 s[16:31], s[0:1], 0
          s_load_dwordx8 s[32:39], s[0:1], 64""")
    if g.stamps:
        for k in range(12):
            g(f"s_mov_b32 s{72+2*k}, 0")
    g.stamp(0)
    g(f"""v_lshrrev_b32 v2, 6, v0
          v_and_b32 v1, 63, v0
          s_and_b32 s4, s2, 7
          v_readfirstlane_b32 s3, v2
          s_lshr_b32 s5, s2, 3
          s_lshr_b32 s6, s5, 3
          s_lshl2_add_u32 s6, s4, s6
          s_and_b32 s7, s5, 7
          s_lshr_b32 s8, s4, 1
          s_and_b32 s9, s5, 1
          s_and_b32 s10, s4, 1
          s_lshl_b32 s10, s10, 4
          s_lshr_b32 s13, s5, 1
          s_add_u32 s10, s10, s13
          s_and_b32 s12, s3, 3
          v_mov_b32 v4, {L_FL}
          v_mov_b32 v5, 1
          v_and_b32 v2, 15, v1
          v_lshrrev_b32 v3, 4, v1
          s_cmp_lt_u32 s3, 4
          s_cbranch_scc1 L_swave""")

def pwave(g):
    g(f"""v_lshlrev_b32 v7, 4, v1
          v_lshlrev_b32 v8, 2, v1
          v_and_b32 v9, 7, v1
          v_xor_b32 v9, v9, v3
          s_and_b32 s13, s12, 1
          s_lshl_b32 s13, s13, 2
          v_xor_b32 v9, s13, v9
          v_lshlrev_b32 v9, 4, v9
          v_lshrrev_b32 v10, 3, v1
          v_lshl_add_u32 v9, v10, 13, v9
          s_mul_i32 s56, s12, 1280
          s_lshr_b32 s57, s7, 1
          s_and_b32 s58, s7, 1
          s_mul_i32 s59, s57, 160
          s_lshl3_add_u32 s59, s12, s59
          s_lshl_b32 s59, s59, 13
          s_lshl_b32 s13, s6, 8
          s_add_u32 s59, s59, s13
          s_lshl_b32 s13, s58, 7
          s_add_u32 s59, s59, s13
          s_lshl_b32 s60, s12, 10
          s_add_u32 s60, s60, {L_WQ}
          s_mov_b32 m0, s60
          s_waitcnt lgkmcnt(0)""")
    g.srd(44, P_X, 5120)
    g.srd(48, P_WQ, 5242880)
    g(f"""buffer_load_dwordx4 v[16:19], v7, s[44:47], s56 offen
          buffer_load_dword v20, v8, s[44:47], s56 offen offset:1024""")
    for k in range(5):
        g("buffer_load_dwordx4 v9, s[48:51], s59 offen nt lds")
        if k < 4:
            g(f"""s_add_u32 s59, s59, 262144
                  s_add_u32 m0, m0, 4096
                  s_nop 0""")
    tag_load(g)
    g.srd(40, P_WS, WS_REC)
    g(f"""s_cmp_lt_u32 s12, 2
          s_cbranch_scc1 L_p_nowuk""")
    g.srd(52, P_WUK, 4194304)
    g(f"""v_lshrrev_b32 v10, 2, v2
          v_and_b32 v11, 3, v2
          v_lshl_add_u32 v10, v10, 3, v11
          v_lshlrev_b32 v10, 13, v10
          v_lshl_add_u32 v10, v3, 4, v10
          s_and_b32 s13, s12, 1
          s_lshl_b32 s13, s13, 5
          s_lshl_b32 s14, s7, 6
          s_add_u32 s13, s13, s14
          s_lshl_b32 s13, s13, 13
          s_lshl_b32 s14, s6, 8
          s_add_u32 s13, s13, s14
          s_add_u32 s14, s13, 32768""")
    for e in range(2):
        for t in range(4):
            r = 64 + 16*e + 4*t
            g(f"buffer_load_dwordx4 v[{r}:{r+3}], v10, s[52:55], s{13+e} offen offset:{t*64} nt")
    g(f"""s_barrier
          s_waitcnt vmcnt(13)
          s_branch L_p_ln
          L_p_nowuk:
          s_barrier
          s_waitcnt vmcnt(5)
          L_p_ln:""")
    g.stamp(1)
    for k in range(5):
        g.unpack(24+2*k, 16+k)
    g(f"""v_add_f32 v34, v24, v25
          v_add_f32 v35, v26, v27
          v_add_f32 v36, v28, v29
          v_add_f32 v37, v30, v31
          v_add_f32 v38, v32, v33
          v_add_f32 v34, v34, v35
          v_add_f32 v36, v36, v37
          v_add_f32 v34, v34, v38
          v_add_f32 v34, v34, v36""")
    g.wave_sum(34, 35)
    g(f"v_mul_f32 v34, {f32(1/640)}, v34")
    g("v_sub_f32 v36, v24, v34\nv_mul_f32 v35, v36, v36")
    for k in range(1, 10):
        g(f"v_sub_f32 v36, v{24+k}, v34\nv_fmac_f32 v35, v36, v36")
    g.wave_sum(35, 36)
    g(f"v_mul_f32 v35, {f32(1/640)}, v35")
    g.rbf(35)
    g(f"v_add_f32 v35, {f32(1e-5)}, v35")
    g.rbf(35)
    g("v_sqrt_f32 v35, v35")
    g.rbf(34)
    g.rbf(35)
    g("v_rcp_f32 v35, v35")
    for k in range(10):
        g(f"v_sub_f32 v{24+k}, v{24+k}, v34")
    for k in range(5):
        g(f"v_cvt_pk_bf16_f32 v{16+k}, v{24+2*k}, v{25+2*k}")
    for k in range(5):
        g.unpack(24+2*k, 16+k)
    for k in range(10):
        g(f"v_mul_f32 v{24+k}, v{24+k}, v35")
    for k in range(5):
        g(f"v_cvt_pk_bf16_f32 v{16+k}, v{24+2*k}, v{25+2*k}")
    g(f"""s_add_u32 s13, s56, {L_XN}
          v_add_u32 v7, s13, v7
          v_add_u32 v8, s13, v8
          ds_write_b128 v7, v[16:19]
          ds_write_b32 v8, v20 offset:1024""")
    tag_fin(g)
    g(f"""s_cmp_lt_u32 s12, 2
          s_cbranch_scc0 L_p_s2""")
    g("s_waitcnt vmcnt(0)")
    g.flag_add(F_A)
    g(f"""v_lshrrev_b32 v10, 2, v1
          v_and_b32 v10, 3, v10
          v_and_b32 v11, 3, v1
          s_lshl_b32 s13, s12, 2
          v_or_b32 v11, s13, v11
          v_lshrrev_b32 v12, 1, v10
          v_xor_b32 v11, v11, v12
          v_and_b32 v12, 1, v3
          v_lshlrev_b32 v12, 2, v12
          v_xor_b32 v11, v11, v12
          v_lshlrev_b32 v11, 4, v11
          v_lshl_add_u32 v11, v10, 7, v11
          v_lshl_add_u32 v11, v3, 10, v11
          v_add_u32 v11, {L_WQ}, v11
          v_xor_b32 v12, 32, v11
          v_add_u32 v12, 512, v12
          v_and_b32 v13, 3, v2
          v_mul_u32_u24 v13, 1280, v13
          v_lshl_add_u32 v13, v3, 4, v13
          s_mul_i32 s13, s57, 320
          s_add_u32 s13, s13, {L_XN}
          v_add_u32 v13, s13, v13
          v_lshlrev_b32 v14, 8, v2
          v_lshl_add_u32 v14, v3, 4, v14
          v_lshlrev_b32 v15, 6, v2
          v_lshl_add_u32 v15, v3, 4, v15
          s_lshl1_add_u32 s64, s58, s12
          s_lshl_b32 s65, s6, 12
          s_lshl_b32 s13, s57, 10
          s_add_u32 s65, s65, s13
          s_lshl_b32 s13, s64, 6
          s_add_u32 s65, s65, s13
          s_add_u32 s65, s65, {QP}
          s_lshl_b32 s66, s6, 10
          s_lshl_b32 s13, s57, 8
          s_add_u32 s66, s66, s13
          s_lshl2_add_u32 s66, s64, s66
          s_add_u32 s66, s66, {QPC}""")
    g.flag_wait(F_A, 4)
    g.stamp(2)
    def s1_reads(t):
        g(f"ds_read_b128 v[{36+4*t}:{39+4*t}], v13 offset:{t*64}")
        for e in range(2):
            r = 96 + 8*t + 4*e
            g(f"ds_read_b64_tr_b16 v[{r}:{r+1}], v11 offset:{t*4096+e*8}")
            g(f"ds_read_b64_tr_b16 v[{r+2}:{r+3}], v12 offset:{t*4096+e*8}")
    s1_reads(0); s1_reads(1); s1_reads(2)
    for t in range(5):
        rem = min(5, t+3) - (t+1)
        g(f"s_waitcnt lgkmcnt({rem*5})")
        for e in range(2):
            g.mfma(56+4*e, 96+8*t+4*e, 36+4*t, t == 0)
        if t + 3 < 5:
            s1_reads(t+3)
    g.nop(8)
    g.pack8(16, 56)
    g.chk(20, 16)
    g.mask_j4()
    g(f"""buffer_store_dwordx4 v[16:19], v14, s[40:43], s65 offen sc1
          buffer_store_dword v20, v15, s[40:43], s66 offen sc1
          s_mov_b64 exec, -1""")
    g.stamp(3)
    g("s_branch L_p_gather")
    g("L_p_s2:")
    g("s_waitcnt vmcnt(8)")
    g.flag_add(F_A)
    g(f"""v_lshlrev_b32 v14, 8, v2
          v_lshl_add_u32 v14, v3, 4, v14
          v_lshlrev_b32 v15, 6, v2
          v_lshl_add_u32 v15, v3, 4, v15
          s_lshl_b32 s65, s6, 12
          s_add_u32 s65, s65, {QP}
          s_lshl_b32 s66, s6, 10
          s_add_u32 s66, s66, {QPC}
          v_lshlrev_b32 v11, 15, v2
          v_lshl_add_u32 v11, v3, 4, v11
          v_lshlrev_b32 v12, 13, v2
          v_lshl_add_u32 v12, v3, 4, v12
          s_and_b32 s13, s12, 1
          s_lshl1_add_u32 s13, s7, s13
          s_lshl_b32 s13, s13, 6
          s_lshl_b32 s67, s6, 10
          s_add_u32 s67, s67, s13
          s_add_u32 s67, s67, {QA}
          s_lshl_b32 s68, s4, 10
          s_add_u32 s68, s68, s13
          s_lshr_b32 s13, s5, 3
          s_lshl2_add_u32 s68, s13, s68
          s_add_u32 s68, s68, {QAC}""")
    g.flag_wait(F_A, 4)
    g.stamp(2)
    l = g.poll_begin()
    for t in range(4):
        g(f"buffer_load_dwordx4 v[{36+4*t}:{39+4*t}], v14, s[40:43], s65 offen offset:{t*64} sc1")
    g(f"""buffer_load_dwordx4 v[52:55], v15, s[40:43], s66 offen sc1
          s_waitcnt vmcnt(0)""")
    for t in range(4):
        g.verify(36+4*t, 52+t, t == 0)
    g.poll_end(l)
    g.stamp(3)
    for t in range(4):
        for e in range(2):
            g.mfma(56+4*e, 64+16*e+4*t, 36+4*t, t == 0)
    g.nop(8)
    for r in (4, 8):
        for k in range(8):
            g(f"v_add_f32_dpp v{56+k}, v{56+k}, v{56+k} row_ror:{r} row_mask:0xf bank_mask:0xf")
    g.pack8(16, 56)
    g.chk(20, 16)
    g.mask_j4()
    g(f"""buffer_store_dwordx4 v[16:19], v11, s[40:43], s67 offen sc1
          buffer_store_dword v20, v12, s[40:43], s68 offen sc1
          s_mov_b64 exec, -1""")
    g.stamp(4)
    g("s_waitcnt vmcnt(0)")
    g.flag_add(F_S2)
    g("L_p_gather:")
    if g.stop == "A":
        g("s_waitcnt vmcnt(0)")
        g.finish()
        return
    g(f"""v_lshrrev_b32 v10, 2, v1
          v_and_b32 v10, 3, v10
          v_and_b32 v11, 3, v1
          v_lshrrev_b32 v12, 1, v10
          v_and_b32 v13, 2, v3
          v_or_b32 v12, v12, v13
          v_and_b32 v13, 1, v3
          v_lshl_or_b32 v12, v13, 2, v12
          v_xor_b32 v12, v12, v11
          v_lshlrev_b32 v12, 4, v12
          v_lshl_or_b32 v13, v13, 2, v10
          v_lshl_add_u32 v12, v13, 7, v12
          v_lshrrev_b32 v13, 1, v3
          v_lshl_add_u32 v12, v13, 10, v12
          v_and_b32 v13, 1, v11
          v_lshl_add_u32 v12, v13, 3, v12
          s_lshl_b32 s13, s12, 12
          v_add_u32 v20, s13, v12
          v_xor_b32 v21, 8, v20
          v_xor_b32 v22, 64, v20
          v_xor_b32 v23, 0x48, v20
          v_add_u32 v24, 0x10000, v20
          v_add_u32 v25, 0x10000, v21
          v_add_u32 v26, 0x10000, v22
          v_add_u32 v27, 0x10000, v23
          v_lshlrev_b32 v28, 4, v1
          s_lshl2_add_u32 s13, s9, s12
          s_lshl_b32 s65, s13, 12
          s_lshl_b32 s14, s8, 15
          s_add_u32 s65, s65, s14
          s_add_u32 s65, s65, {QA}
          s_lshl_b32 s66, s13, 10
          s_lshl_b32 s14, s8, 13
          s_add_u32 s66, s66, s14
          s_add_u32 s66, s66, {QAC}""")
    for n in range(4):
        g(f"""s_lshl2_add_u32 s13, s12, {n}
              s_lshl_b32 s14, s13, 4
              v_xor_b32 v{29+n}, s14, v28
              s_lshl_b32 s13, s13, 10
              s_add_u32 s13, s13, {L_QA}
              v_add_u32 v{29+n}, s13, v{29+n}""")
    def gather_loads():
        for n in range(4):
            g(f"buffer_load_dwordx4 v[{36+4*n}:{39+4*n}], v28, s[40:43], s65 offen offset:{n*1024} sc1")
        g("buffer_load_dwordx4 v[52:55], v28, s[40:43], s66 offen sc1")
    def pv_pre(tile):
        for sw in range(4):
            for tp in range(4):
                for e in range(2):
                    r = 128 + ((tp*2+e)*4 + sw)*4 + 2*tile
                    a = 20 + (tp & 1)*2 + e + (4 if sw >= 2 else 0)
                    off = (sw & 1)*32768 + tile*16384 + (tp >> 1)*2048
                    g(f"ds_read_b64_tr_b16 v[{r}:{r+1}], v{a} offset:{off}")
    g.flag_wait(F_S2, 2)
    g.stamp(5)
    gather_loads()
    g.flag_wait(F_T0, 4)
    pv_pre(0)
    g("s_waitcnt lgkmcnt(0)")
    g.flag_add(F_RD)
    lskip = g.lab("GS")
    g(f"s_mov_b32 s61, 0\ns_branch {lskip}")
    l = g.lab("PL")
    g(f"{l}:")
    gather_loads()
    g(f"{lskip}:")
    g("s_waitcnt vmcnt(0)")
    for n in range(4):
        g.verify(36+4*n, 52+n, n == 0)
    g.poll_end(l)
    for n in range(4):
        g(f"ds_write_b128 v{29+n}, v[{36+4*n}:{39+4*n}]")
    g.flag_add(F_QA)
    g.stamp(6)
    g.srd(48, P_WUV, 4194304)
    g(f"""s_lshl_b32 s59, s7, 6
          s_lshl3_add_u32 s59, s12, s59
          s_lshl_b32 s59, s59, 13
          s_lshl_b32 s13, s6, 8
          s_add_u32 s59, s59, s13
          s_lshl_b32 s60, s12, 10""")
    g.flag_wait(F_RD, 4)
    for k in range(2):
        for ch in range(2):
            g(f"""s_add_u32 s13, s59, {k*262144 + ch*128}
                  s_add_u32 m0, s60, {L_WUV + ch*8192 + k*4096}
                  s_nop 0
                  buffer_load_dwordx4 v9, s[48:51], s13 offen nt lds""")
    g(f"""v_lshlrev_b32 v29, 17, v2
          v_lshl_add_u32 v29, v3, 4, v29
          v_lshlrev_b32 v30, 15, v2
          v_lshl_add_u32 v30, v3, 4, v30
          s_lshl_b32 s65, s9, 21
          s_lshl_b32 s13, s12, 15
          s_add_u32 s65, s65, s13
          s_lshl_b32 s13, s8, 12
          s_add_u32 s65, s65, s13
          s_lshl_b32 s13, s10, 7
          s_add_u32 s65, s65, s13
          s_add_u32 s65, s65, {OP}
          s_add_u32 s66, s65, 16384
          s_lshl_b32 s67, s9, 19
          s_lshl_b32 s13, s12, 13
          s_add_u32 s67, s67, s13
          s_lshl_b32 s13, s8, 11
          s_add_u32 s67, s67, s13
          s_lshl_b32 s13, s10, 6
          s_add_u32 s67, s67, s13
          s_add_u32 s67, s67, {OPC}
          v_add_u32 v31, {L_P}, v28""")
    g.flag_wait(F_T1, 4)
    pv_pre(1)
    g("s_barrier")
    g("s_waitcnt lgkmcnt(0)")
    g("s_barrier")
    g.stamp(7)
    for sw in range(4):
        g(f"ds_read_b128 v[{36+4*sw}:{39+4*sw}], v31 offset:{sw*1024}")
    def pv_out(tp):
        g.pack8(96+4*tp, 64+8*tp)
        g.chk(112+tp, 96+4*tp)
        g(f"buffer_store_dwordx4 v[{96+4*tp}:{99+4*tp}], v29, s[40:43], s{65+(tp>>1)} offen offset:{(tp&1)*64} sc1")
    for tp in range(4):
        for sw in range(4):
            if tp == 0:
                g(f"s_waitcnt lgkmcnt({3-sw})")
            for e in range(2):
                g.mfma(64+8*tp+4*e, 128+((tp*2+e)*4+sw)*4, 36+4*sw, sw == 0)
        if tp >= 1:
            pv_out(tp-1)
    g.nop(2)
    pv_out(3)
    g("buffer_store_dwordx4 v[112:115], v30, s[40:43], s67 offen sc1")
    g.stamp(8)
    g("s_waitcnt vmcnt(0)")
    g("s_branch L_s4")

def swave(g, W):
    g("L_swave:")
    g(f"""v_lshrrev_b32 v10, 3, v1
          v_lshrrev_b32 v11, 1, v10
          v_and_b32 v11, 1, v11
          v_and_b32 v12, 4, v10
          v_or_b32 v11, v11, v12
          v_and_b32 v12, 7, v1
          v_xor_b32 v11, v11, v12
          v_lshlrev_b32 v11, 4, v11
          v_lshl_add_u32 v7, v10, 10, v11
          v_xor_b32 v8, 32, v7
          v_add_u32 v8, 8192, v8
          s_lshl_b32 s56, s8, 22
          s_lshl_b32 s13, s10, 17
          s_add_u32 s56, s56, s13
          s_lshl_b32 s57, s12, 15
          s_add_u32 s56, s56, s57
          v_mov_b32 v6, 0
          v_lshlrev_b32 v9, 2, v1
          v_add_u32 v10, v4, v9
          s_mov_b64 exec, 0xffff
          ds_write_b32 v10, v6
          s_mov_b64 exec, -1
          s_getpc_b64 s[58:59]
          L_pc:
          s_sub_u32 s48, s58, L_pc-{NAME}_kernel
          s_subb_u32 s49, s59, 0
          s_and_b32 s49, s49, 0xffff
          s_mov_b32 s50, L_code_end-{NAME}_kernel
          s_mov_b32 s51, 0x20000
          s_lshl2_add_u32 s13, s5, s12
          s_lshl_b32 s13, s13, 8
          buffer_load_dword v16, v9, s[48:51], s13 offen
          s_waitcnt lgkmcnt(0)""")
    tag_load(g)
    g.srd(44, P_CKV, 16777216)
    g.srd(40, P_WS, WS_REC)
    g(f"""v_lshrrev_b32 v11, 1, v2
          v_and_b32 v11, 1, v11
          v_lshrrev_b32 v12, 3, v2
          v_lshl_or_b32 v11, v12, 1, v11
          v_and_b32 v13, 4, v2
          v_or_b32 v11, v11, v13
          v_xor_b32 v11, v11, v3
          v_lshlrev_b32 v11, 4, v11
          v_and_b32 v13, 7, v2
          v_lshl_add_u32 v11, v13, 7, v11
          v_lshl_add_u32 v11, v12, 10, v11
          v_add_u32 v11, s57, v11
          v_xor_b32 v12, 64, v11
          s_barrier""")
    if g.stop == "A":
        g("s_waitcnt vmcnt(0)")
        g.finish()
        return
    g.stamp(1)
    def areads(m):
        tile, u = m >> 3, m & 7
        for tl in range(2):
            t = 2*u + tl
            r = 64 + 64*tile + 4*t
            g(f"ds_read_b128 v[{r}:{r+3}], v{11+tl} offset:{tile*16384+u*2048}")
    done = 0
    for n in range(32):
        tile, u, kh = n >> 4, (n >> 1) & 7, n & 1
        if n >= W:
            g(f"s_waitcnt vmcnt({W-1})")
        g(f"""s_add_u32 s13, s56, {tile*16384 + u*128}
              s_add_u32 m0, s57, {n*1024}
              s_nop 0
              buffer_load_dwordx4 v{7+kh}, s[44:47], s13 offen nt lds""")
        landed = n - W
        while 2*done + 1 <= landed:
            areads(done); done += 1
            if done == 8:
                g("s_waitcnt lgkmcnt(0)")
                g.flag_add(F_T0)
                g.stamp(2)
    tag_fin(g)
    for tl in range(4):
        g(f"""v_or_b32 v13, {4*tl}, v3
              v_xor_b32 v13, v13, v2
              v_lshlrev_b32 v13, 4, v13
              v_lshl_add_u32 v13, v2, 10, v13
              v_add_u32 v{16+tl}, {L_QA}, v13""")
    g(f"""v_lshlrev_b32 v20, 4, v2
          v_add_u32 v20, {L_MX}, v20
          s_lshl_b32 s13, s12, 2
          v_add_u32 v21, s13, v20
          v_lshlrev_b32 v22, 4, v1
          s_lshl_b32 s13, s12, 10
          s_add_u32 s13, s13, {L_P}
          v_add_u32 v22, s13, v22
          s_mov_b32 s60, {f32(SCALE)}""")
    g.stamp(3)
    g.flag_wait(F_QA, 4)
    g.stamp(4)
    for t in range(16):
        g(f"ds_read_b128 v[{192+4*t}:{195+4*t}], v{16+(t&3)} offset:{(t>>2)*256}")
    for t in range(16):
        g(f"s_waitcnt lgkmcnt({min(15, 15-t)})")
        g.mfma(56, 64+4*t, 192+4*t, t == 0)
    first = True
    for m in range(8, done):
        for tl in range(2):
            t = 2*(m & 7) + tl
            g.mfma(60, 128+4*t, 192+4*t, first); first = False
    for m in range(done, 16):
        g(f"s_waitcnt vmcnt({31-(2*m+1)})")
        areads(m)
        if m == 15:
            g.flag_add(F_T1)
            g.stamp(5)
        if m > done:
            g(f"s_waitcnt lgkmcnt({3 if m == 15 else 2})")
            for tl in range(2):
                t = 2*((m-1) & 7) + tl
                g.mfma(60, 128+4*t, 192+4*t, first); first = False
    g("s_waitcnt lgkmcnt(0)")
    for tl in range(2):
        g.mfma(60, 128+4*(14+tl), 192+4*(14+tl), False)
    g("""v_max3_f32 v24, v56, v57, v58
         v_max_f32 v24, v24, v59""")
    g.nop(6)
    g("""v_max3_f32 v24, v24, v60, v61
         v_max3_f32 v24, v24, v62, v63""")
    g.xrow("v_max_f32", 24, 25)
    g(f"""ds_write_b32 v21, v24
          s_waitcnt lgkmcnt(0)
          s_barrier
          ds_read_b128 v[24:27], v20
          s_waitcnt lgkmcnt(0)
          v_max3_f32 v24, v24, v25, v26
          v_max_f32 v24, v24, v27
          v_mul_f32 v24, s60, v24""")
    for k in range(8):
        g(f"v_fma_f32 v{56+k}, v{56+k}, s60, -v24")
    for k in range(8):
        g(f"v_exp_f32 v{56+k}, v{56+k}")
    g.nop(1)
    g.pack8(28, 56)
    g(f"""ds_write_b128 v22, v[28:31]
          s_waitcnt lgkmcnt(0)
          s_barrier""")
    g.stamp(6)
    g(f"""v_add_f32 v56, v56, v57
          v_add_f32 v58, v58, v59
          v_add_f32 v60, v60, v61
          v_add_f32 v62, v62, v63
          v_add_f32 v56, v56, v58
          v_add_f32 v60, v60, v62
          v_add_f32 v25, v56, v60""")
    g.xrow("v_add_f32", 25, 26)
    g(f"ds_write_b32 v21, v25 offset:{L_SM-L_MX}")
    g.flag_add(F_SM)
    lns = g.lab("NS")
    g(f"""s_cmp_lg_u32 s12, 0
          s_cbranch_scc1 {lns}""")
    g.flag_wait(F_SM, 4)
    g(f"""ds_read_b128 v[28:31], v20 offset:{L_SM-L_MX}
          v_lshlrev_b32 v13, 11, v2
          s_lshl_b32 s13, s9, 15
          s_lshl_b32 s14, s8, 9
          s_add_u32 s13, s13, s14
          s_lshl4_add_u32 s13, s10, s13
          s_add_u32 s13, s13, {ST}
          v_mov_b32 v26, s11
          v_mov_b32 v27, s11
          s_waitcnt lgkmcnt(0)
          v_add_f32 v28, v28, v29
          v_add_f32 v30, v30, v31
          v_add_f32 v25, v28, v30
          s_mov_b64 exec, 0xffff
          buffer_store_dwordx4 v[24:27], v13, s[40:43], s13 offen sc1
          s_mov_b64 exec, -1
          {lns}:""")
    role_decode(g)
    role_dma(g)
    g.stamp(7)

def role_decode(g):
    l6, l7, ld, lhi = g.lab("R6"), g.lab("R7"), g.lab("RD"), g.lab("RH")
    g(f"""s_mov_b32 s69, 0
          s_mov_b32 s70, s5
          s_cmp_lt_u32 s5, 20
          s_cbranch_scc1 {ld}
          s_sub_u32 s13, s5, 20
          s_cmp_ge_u32 s4, 2
          s_cbranch_scc1 {lhi}
          s_lshl3_add_u32 s70, s4, s13
          s_cmp_lt_u32 s13, 8
          s_cbranch_scc1 {l7}
          s_lshl2_add_u32 s70, s4, s13
          s_sub_u32 s70, s70, 8
          s_branch {l6}
          {lhi}:
          s_lshl2_add_u32 s70, s4, s13
          s_add_u32 s70, s70, 8
          s_cmp_lt_u32 s13, 4
          s_cbranch_scc1 {l7}
          s_lshl3_add_u32 s70, s4, s13
          s_sub_u32 s70, s70, 12
          {l6}:
          s_mov_b32 s69, 1
          s_cmp_lt_u32 s70, 54
          s_cbranch_scc1 {ld}
          s_mov_b32 s69, 3
          s_branch {ld}
          {l7}:
          s_mov_b32 s69, 2
          {ld}:""")

def role_dma(g):
    l6, l7, lgo, lend, lp = g.lab("D6"), g.lab("D7"), g.lab("DG"), g.lab("DE"), g.lab("DL")
    g(f"""s_cmp_eq_u32 s69, 3
          s_cbranch_scc1 {lend}
          v_lshrrev_b32 v7, 2, v1
          v_and_b32 v8, 3, v1
          s_cmp_eq_u32 s69, 1
          s_cbranch_scc1 {l6}
          s_cmp_eq_u32 s69, 2
          s_cbranch_scc1 {l7}""")
    g.srd(48, P_WO, 5242880)
    g(f"""v_mul_u32_u24 v7, 1280, v7
          s_lshl_b32 s56, s4, 5
          s_add_u32 s56, s56, s12
          s_mul_i32 s56, s56, {16*1280}
          s_lshl_b32 s13, s70, 6
          s_add_u32 s56, s56, s13
          s_mov_b32 s57, {64*1280}
          s_mov_b32 s58, 32
          s_branch {lgo}
          {l6}:""")
    g.srd(48, P_W1, 2211840)
    g(f"""v_mul_u32_u24 v7, 3456, v7
          s_mul_i32 s56, s12, {16*3456}
          s_lshl_b32 s13, s70, 6
          s_add_u32 s56, s56, s13
          s_mov_b32 s57, {64*3456}
          s_mov_b32 s58, 40
          s_branch {lgo}
          {l7}:""")
    g.srd(48, P_W2, 2211840)
    g(f"""v_lshrrev_b32 v7, 1, v1
          v_and_b32 v8, 1, v1
          v_mul_u32_u24 v7, 1280, v7
          s_mul_i32 s56, s12, {32*1280}
          s_lshl_b32 s13, s70, 5
          s_add_u32 s56, s56, s13
          s_mov_b32 s57, {128*1280}
          s_mov_b32 s58, 54
          {lgo}:
          v_lshl_add_u32 v7, v8, 4, v7
          s_lshl_b32 s13, s12, 10
          s_add_u32 m0, s13, {L_WR}
          s_mov_b32 s59, s12
          {lp}:
          buffer_load_dwordx4 v7, s[48:51], s56 offen nt lds
          s_add_u32 s56, s56, s57
          s_add_u32 m0, m0, 4096
          s_add_u32 s59, s59, 4
          s_cmp_lt_u32 s59, s58
          s_cbranch_scc1 {lp}
          {lend}:""")

def tail(g):
    g("L_s4:")
    if g.stop == "B":
        g("s_waitcnt vmcnt(0)")
        g.finish()
        return
    role_decode(g)
    g(f"""v_lshlrev_b32 v8, 4, v1
          s_lshl_b32 s65, s6, 17
          s_lshl_b32 s13, s7, 14
          s_add_u32 s65, s65, s13
          s_lshl_b32 s13, s3, 11
          s_add_u32 s65, s65, s13
          s_add_u32 s65, s65, {OP}
          v_lshrrev_b32 v9, 3, v1
          v_lshlrev_b32 v9, 6, v9
          v_and_b32 v10, 3, v1
          v_lshl_add_u32 v9, v10, 4, v9
          v_and_b32 v10, 4, v1
          v_add_u32 v9, v9, v10
          s_lshl_b32 s66, s6, 15
          s_lshr_b32 s13, s7, 1
          s_lshl_b32 s13, s13, 13
          s_add_u32 s66, s66, s13
          s_lshl_b32 s13, s3, 10
          s_add_u32 s66, s66, s13
          s_and_b32 s13, s7, 1
          s_lshl3_add_u32 s66, s13, s66
          s_add_u32 s66, s66, {OPC}
          v_and_b32 v10, 31, v1
          v_lshlrev_b32 v10, 4, v10
          s_lshl_b32 s67, s6, 11
          s_lshr_b32 s13, s3, 1
          s_lshl_b32 s13, s13, 9
          s_add_u32 s67, s67, s13
          s_add_u32 s67, s67, {ST}
          v_lshrrev_b32 v11, 3, v1
          s_and_b32 s13, s3, 1
          s_lshl_b32 s13, s13, 4
          v_add_u32 v11, s13, v11
          v_lshlrev_b32 v11, 2, v11
          v_add_u32 v12, 32, v11
          v_and_b32 v13, 7, v1
          v_lshlrev_b32 v13, 4, v13
          v_and_b32 v14, 1, v3
          v_lshl_add_u32 v13, v14, 3, v13
          v_lshrrev_b32 v14, 1, v3
          v_lshl_add_u32 v13, v14, 2, v13
          s_and_b32 s13, s3, 1
          s_lshl_b32 s13, s13, 2
          s_lshr_b32 s14, s3, 1
          s_add_u32 s13, s13, s14
          s_lshl_b32 s13, s13, 7
          s_add_u32 s13, s13, {L_CC}
          v_add_u32 v13, s13, v13
          s_barrier""")
    g.stamp(9)
    lw = g.lab("NW")
    g(f"""s_cmp_ge_u32 s3, 4
          s_cbranch_scc1 {lw}
          v_lshrrev_b32 v14, 2, v1
          v_and_b32 v14, 3, v14
          v_and_b32 v15, 1, v3
          v_lshl_or_b32 v14, v15, 2, v14
          v_and_b32 v16, 3, v1
          s_and_b32 s13, s12, 1
          s_lshl_b32 s13, s13, 2
          v_or_b32 v16, s13, v16
          v_lshrrev_b32 v17, 1, v14
          v_xor_b32 v16, v16, v17
          v_lshlrev_b32 v15, 2, v15
          v_xor_b32 v16, v16, v15
          v_lshlrev_b32 v16, 4, v16
          v_lshl_add_u32 v16, v14, 7, v16
          v_lshl_add_u32 v16, v3, 10, v16
          s_lshr_b32 s13, s12, 1
          s_lshl_b32 s13, s13, 13
          s_add_u32 s13, s13, {L_WUV}
          v_add_u32 v16, s13, v16
          v_xor_b32 v17, 0x220, v16""")
    for t in range(2):
        for e in range(2):
            r = 64 + 8*t + 4*e
            g(f"ds_read_b64_tr_b16 v[{r}:{r+1}], v16 offset:{t*4096+e*8}")
            g(f"ds_read_b64_tr_b16 v[{r+2}:{r+3}], v17 offset:{t*4096+e*8}")
    g(f"{lw}:")
    l = g.poll_begin()
    g(f"""buffer_load_dwordx4 v[24:27], v10, s[40:43], s67 offen sc1
          buffer_load_dwordx4 v[28:31], v8, s[40:43], s65 offen sc1
          buffer_load_dwordx4 v[32:35], v8, s[40:43], s65 offen offset:1024 sc1
          buffer_load_dword v36, v9, s[40:43], s66 offen sc1
          buffer_load_dword v37, v9, s[40:43], s66 offen offset:512 sc1
          s_waitcnt vmcnt(4)
          v_cmp_ne_u32 s[62:63], s11, v26
          v_mov_b32 v38, v24""")
    g.inrow("v_max_f32", 38)
    g("v_mov_b32 v39, v38")
    g.nop(2)
    g("v_permlane16_swap_b32 v38, v39")
    g.nop(1)
    g("""v_max_f32 v38, v38, v39
         v_sub_f32 v38, v24, v38
         v_exp_f32 v38, v38
         s_nop 0
         v_mul_f32 v39, v38, v25""")
    g.inrow("v_add_f32", 39)
    g("v_mov_b32 v40, v39")
    g.nop(2)
    g("v_permlane16_swap_b32 v39, v40")
    g.nop(1)
    g("""v_add_f32 v39, v39, v40
         v_rcp_f32 v39, v39
         s_nop 0
         v_mul_f32 v38, v38, v39
         ds_bpermute_b32 v40, v11, v38
         ds_bpermute_b32 v41, v12, v38
         s_waitcnt vmcnt(0)""")
    g.verify(28, 36, False)
    g.verify(32, 37, False)
    g.poll_end(l)
    g.stamp(10)
    for k in range(4):
        g.unpack(44+2*k, 28+k)
        g.unpack(52+2*k, 32+k)
    g("s_waitcnt lgkmcnt(0)")
    for k in range(8):
        g(f"v_mul_f32 v{44+k}, v{44+k}, v40")
    for k in range(8):
        g(f"v_fmac_f32 v{44+k}, v{52+k}, v41")
    g.nop(1)
    for k in range(4):
        g(f"v_permlane16_swap_b32 v{44+k}, v{48+k}")
    g.nop(1)
    for k in range(4):
        g(f"v_add_f32 v{44+k}, v{44+k}, v{48+k}")
    g.nop(1)
    for k in range(2):
        g(f"v_permlane32_swap_b32 v{44+k}, v{46+k}")
    g.nop(1)
    for k in range(2):
        g(f"v_add_f32 v{44+k}, v{44+k}, v{46+k}")
    g.nop(1)
    for k in range(2):
        g(f"v_add_f32_dpp v{44+k}, v{44+k}, v{44+k} row_ror:8 row_mask:0xf bank_mask:0xf")
    g(f"""v_cvt_pk_bf16_f32 v44, v44, v45
          ds_write_b32 v13, v44
          s_waitcnt lgkmcnt(0)
          s_barrier""")
    ln = g.lab("N4")
    g(f"""s_cmp_ge_u32 s3, 4
          s_cbranch_scc1 {ln}
          v_and_b32 v14, 7, v2
          v_lshlrev_b32 v14, 7, v14
          v_lshl_add_u32 v14, v3, 4, v14
          v_add_u32 v14, {L_CC}, v14
          ds_read_b128 v[24:27], v14
          ds_read_b128 v[28:31], v14 offset:64
          v_lshlrev_b32 v14, 8, v2
          v_lshl_add_u32 v14, v3, 4, v14
          v_lshlrev_b32 v15, 6, v2
          v_lshl_add_u32 v15, v3, 4, v15
          s_lshl_b32 s65, s6, 13
          s_lshl_b32 s13, s7, 10
          s_add_u32 s65, s65, s13
          s_lshl_b32 s13, s12, 6
          s_add_u32 s65, s65, s13
          s_add_u32 s65, s65, {CP}
          s_lshl_b32 s66, s6, 11
          s_lshl_b32 s13, s7, 8
          s_add_u32 s66, s66, s13
          s_lshl2_add_u32 s66, s12, s66
          s_add_u32 s66, s66, {CPC}
          s_waitcnt lgkmcnt(0)""")
    for t in range(2):
        for e in range(2):
            g.mfma(56+4*e, 64+8*t+4*e, 24+4*t, t == 0)
    g.nop(8)
    for k in range(8):
        g(f"v_add_f32_dpp v{56+k}, v{56+k}, v{56+k} row_ror:4 row_mask:0xf bank_mask:0xf")
    g.pack8(16, 56)
    g.chk(20, 16)
    g.mask_j4()
    g(f"""buffer_store_dwordx4 v[16:19], v14, s[40:43], s65 offen sc1
          buffer_store_dword v20, v15, s[40:43], s66 offen sc1
          s_mov_b64 exec, -1
          {ln}:""")
    g.stamp(11)
    if g.stop == "C1":
        g("s_waitcnt vmcnt(0)")
        g.finish()
        return
    g(f"""s_cmp_eq_u32 s69, 1
          s_cbranch_scc1 L_s6
          s_cmp_eq_u32 s69, 2
          s_cbranch_scc1 L_s7
          s_cmp_eq_u32 s69, 3
          s_cbranch_scc1 L_fin""")
    s5(g)
    s6(g)
    s7(g)
    g("L_fin:")
    g.finish()

def tr64_addr(g, dst, rowbase_sgpr):
    g(f"""v_lshrrev_b32 v{dst}, 2, v1
          v_and_b32 v{dst}, 3, v{dst}
          v_lshl_add_u32 v{dst}, v3, 3, v{dst}
          v_add_u32 v{dst}, s{rowbase_sgpr}, v{dst}
          v_lshlrev_b32 v{dst}, 6, v{dst}
          v_and_b32 v7, 3, v1
          v_lshl_add_u32 v{dst}, v7, 4, v{dst}
          v_add_u32 v{dst}, {L_WR}, v{dst}""")
def tr64_reads(g, a):
    for t in range(4):
        for e in range(2):
            r = 64 + 8*t + 4*e
            g(f"ds_read_b64_tr_b16 v[{r}:{r+1}], v{a} offset:{t*2048+e*8}")
            g(f"ds_read_b64_tr_b16 v[{r+2}:{r+3}], v{a} offset:{t*2048+256+e*8}")
def red_write(g):
    g.mask_j4()
    g(f"""ds_write_b128 v10, v[56:59]
          ds_write_b128 v10, v[60:63] offset:16
          s_mov_b64 exec, -1""")
def red_addr(g):
    g(f"""v_lshlrev_b32 v10, 7, v2
          v_lshl_add_u32 v10, v3, 5, v10
          s_lshl_b32 s13, s3, 9
          s_add_u32 s13, s13, {L_RED}
          v_add_u32 v10, s13, v10
          v_lshlrev_b32 v11, 3, v1
          v_add_u32 v11, {L_RED}, v11""")
def red_read(g, n):
    for w in range(n):
        g(f"ds_read_b64 v[{24+2*w}:{25+2*w}], v11 offset:{w*512}")
    for w in range(1, n):
        g(f"s_waitcnt lgkmcnt({n-1-w})")
        g(f"v_add_f32 v24, v24, v{24+2*w}\nv_add_f32 v25, v25, v{25+2*w}")
def quad_chk(g, dst, src):
    g.nop(2)
    g(f"v_add_u32_dpp v{dst}, v{src}, v{src} quad_perm:[1,0,3,2] row_mask:0xf bank_mask:0xf")
    g.nop(2)
    g(f"v_add_u32_dpp v{dst}, v{dst}, v{dst} quad_perm:[2,3,0,1] row_mask:0xf bank_mask:0xf")
    g(f"v_add_u32 v{dst}, s11, v{dst}")

def s5(g):
    g(f"""s_lshr_b32 s13, s3, 1
          s_lshl_b32 s64, s13, 7""")
    tr64_addr(g, 8, 64)
    tr64_reads(g, 8)
    red_addr(g)
    g(f"""v_lshlrev_b32 v14, 8, v2
          v_lshl_add_u32 v14, v3, 4, v14
          v_lshlrev_b32 v15, 6, v2
          v_lshl_add_u32 v15, v3, 4, v15
          s_lshl3_add_u32 s13, s4, s3
          s_lshl_b32 s65, s13, 12
          s_add_u32 s65, s65, {CP}
          s_lshl_b32 s66, s13, 10
          s_add_u32 s66, s66, {CPC}""")
    l = g.poll_begin()
    for t in range(4):
        g(f"buffer_load_dwordx4 v[{96+4*t}:{99+4*t}], v14, s[40:43], s65 offen offset:{t*64} sc1")
    g(f"""buffer_load_dwordx4 v[112:115], v15, s[40:43], s66 offen sc1
          s_waitcnt vmcnt(0)""")
    for t in range(4):
        g.verify(96+4*t, 112+t, t == 0)
    g.poll_end(l)
    g.stamp(1)
    g("s_waitcnt lgkmcnt(0)")
    for t in range(4):
        for e in range(2):
            g.mfma(56+4*e, 64+8*t+4*e, 96+4*t, t == 0)
    g.nop(8)
    for r in (4, 8):
        for k in range(8):
            g(f"v_add_f32_dpp v{56+k}, v{56+k}, v{56+k} row_ror:{r} row_mask:0xf bank_mask:0xf")
    red_write(g)
    g(f"""s_waitcnt lgkmcnt(0)
          s_barrier
          s_cmp_lg_u32 s3, 0
          s_cbranch_scc1 L_fin""")
    red_read(g, 8)
    g(f"""v_cvt_pk_bf16_f32 v24, v24, v25
          v_mul_u32_u24 v12, 1280, v3
          v_lshl_add_u32 v12, v2, 2, v12
          s_mul_i32 s65, s4, 5120
          s_lshl_b32 s13, s70, 6
          s_add_u32 s65, s65, s13
          s_add_u32 s65, s65, {AP}
          buffer_store_dword v24, v12, s[40:43], s65 offen sc1""")
    quad_chk(g, 26, 24)
    g(f"""v_mul_u32_u24 v13, 2560, v3
          v_lshrrev_b32 v14, 2, v2
          v_lshl_add_u32 v13, v14, 5, v13
          s_lshl_b32 s66, s70, 7
          s_lshl2_add_u32 s66, s4, s66
          s_add_u32 s66, s66, {APC}
          s_mov_b32 exec_lo, 0x11111111
          s_mov_b32 exec_hi, 0x11111111
          buffer_store_dword v26, v13, s[40:43], s66 offen sc1
          s_mov_b64 exec, -1""")
    g.stamp(2)
    g("s_branch L_fin")

def s6(g):
    g("L_s6:")
    g(f"""s_min_u32 s13, s3, 4
          s_lshl_b32 s64, s13, 7""")
    tr64_addr(g, 8, 64)
    tr64_reads(g, 8)
    red_addr(g)
    g.srd(44, P_X, 5120)
    g(f"""v_lshlrev_b32 v14, 4, v1
          v_lshlrev_b32 v15, 5, v1
          s_mul_i32 s64, s3, 640
          s_add_u32 s65, s64, {AP}
          s_lshl_b32 s66, s64, 1
          s_add_u32 s66, s66, {APC}
          v_cmp_gt_u32 vcc, 40, v1
          v_mov_b32 v16, 0
          s_nop 0
          v_cndmask_b32 v16, v16, 1.0, vcc""")
    for k in range(96, 140):
        g(f"v_mov_b32 v{k}, 0")
    g(f"""s_mov_b32 exec_lo, -1
          s_mov_b32 exec_hi, 0xff
          buffer_load_dwordx4 v[136:139], v14, s[44:47], s64 offen""")
    l = g.poll_begin()
    g("s_mov_b32 s13, s65")
    for x in range(8):
        g(f"buffer_load_dwordx4 v[{96+4*x}:{99+4*x}], v14, s[40:43], s13 offen sc1")
        if x < 7:
            g("s_add_u32 s13, s13, 5120")
    g(f"""buffer_load_dwordx4 v[128:131], v15, s[40:43], s66 offen sc1
          buffer_load_dwordx4 v[132:135], v15, s[40:43], s66 offen offset:16 sc1
          s_waitcnt vmcnt(0)""")
    for x in range(8):
        g.verify(96+4*x, 128+x, x == 0)
    g.poll_end(l)
    g("s_mov_b64 exec, -1")
    g.stamp(1)
    for k in range(4):
        g.unpack(24+2*k, 96+k)
    for x in range(1, 8):
        for k in range(4):
            g.unpack(32+2*k, 96+4*x+k)
        for k in range(8):
            g(f"v_add_f32 v{24+k}, v{24+k}, v{32+k}")
    g.pack8(40, 24)
    for k in range(4):
        g.unpack(24+2*k, 40+k)
        g.unpack(32+2*k, 136+k)
    for k in range(8):
        g(f"v_add_f32 v{24+k}, v{24+k}, v{32+k}")
    g.pack8(40, 24)
    for k in range(4):
        g.unpack(24+2*k, 40+k)
    g(f"""v_add_f32 v32, v24, v25
          v_add_f32 v33, v26, v27
          v_add_f32 v34, v28, v29
          v_add_f32 v35, v30, v31
          v_add_f32 v32, v32, v33
          v_add_f32 v34, v34, v35
          v_add_f32 v32, v32, v34""")
    g.wave_sum(32, 33)
    g(f"v_mul_f32 v32, {f32(1/320)}, v32")
    g("v_sub_f32 v34, v24, v32\nv_mul_f32 v33, v34, v34")
    for k in range(1, 8):
        g(f"v_sub_f32 v34, v{24+k}, v32\nv_fmac_f32 v33, v34, v34")
    g("v_mul_f32 v33, v33, v16")
    g.wave_sum(33, 34)
    g(f"""s_lshl_b32 s13, s3, 3
          s_add_u32 s13, s13, {L_LS}
          v_mov_b32 v17, s13
          v_and_b32 v18, 0xfffffff0, v17
          ds_write_b64 v17, v[32:33]
          s_waitcnt lgkmcnt(0)
          s_barrier
          ds_read_b128 v[32:35], v18
          s_add_u32 s13, s64, {L_HN}
          v_add_u32 v17, s13, v14
          v_and_b32 v18, 3, v2
          v_mul_u32_u24 v18, 1280, v18
          v_lshl_add_u32 v18, v3, 4, v18
          s_min_u32 s13, s3, 4
          s_lshl_b32 s13, s13, 8
          s_add_u32 s13, s13, {L_HN}
          v_add_u32 v18, s13, v18
          s_waitcnt lgkmcnt(0)
          v_sub_f32 v36, v32, v34
          v_add_f32 v32, v32, v34
          v_mul_f32 v32, 0.5, v32
          v_add_f32 v33, v33, v35
          v_mul_f32 v36, v36, v36
          v_fmac_f32 v33, {f32(160.0)}, v36
          v_mul_f32 v33, {f32(1/640)}, v33""")
    g.rbf(33)
    g(f"v_add_f32 v33, {f32(1e-5)}, v33")
    g.rbf(33)
    g("v_sqrt_f32 v33, v33")
    g.rbf(32)
    g.rbf(33)
    g("v_rcp_f32 v33, v33")
    for k in range(8):
        g(f"v_sub_f32 v{24+k}, v{24+k}, v32")
    g.pack8(40, 24)
    for k in range(4):
        g.unpack(24+2*k, 40+k)
    for k in range(8):
        g(f"v_mul_f32 v{24+k}, v{24+k}, v33")
    g.pack8(40, 24)
    lm = g.lab("M6")
    g(f"""s_mov_b32 exec_hi, 0xff
          ds_write_b128 v17, v[40:43]
          s_mov_b64 exec, -1
          s_waitcnt lgkmcnt(0)
          s_barrier
          s_cmp_ge_u32 s3, 5
          s_cbranch_scc1 {lm}""")
    for t in range(4):
        g(f"ds_read_b128 v[{96+4*t}:{99+4*t}], v18 offset:{t*64}")
    for t in range(4):
        g(f"s_waitcnt lgkmcnt({3-t})")
        for e in range(2):
            g.mfma(56+4*e, 64+8*t+4*e, 96+4*t, t == 0)
    g.nop(8)
    red_write(g)
    g(f"""{lm}:
          s_waitcnt lgkmcnt(0)
          s_barrier
          s_cmp_lg_u32 s3, 0
          s_cbranch_scc1 L_fin""")
    red_read(g, 5)
    g("v_cvt_pk_bf16_f32 v26, v24, v25")
    g.unpack(24, 26)
    g(f"""v_mul_f32 v26, {f32(-LOG2E)}, v24
          v_mul_f32 v27, {f32(-LOG2E)}, v25
          v_exp_f32 v26, v26
          v_exp_f32 v27, v27
          v_mul_u32_u24 v12, 3584, v3
          v_add_f32 v26, 1.0, v26
          v_add_f32 v27, 1.0, v27
          v_rcp_f32 v26, v26
          v_rcp_f32 v27, v27
          v_lshl_add_u32 v12, v2, 2, v12
          v_mul_f32 v24, v24, v26
          v_mul_f32 v25, v25, v27
          v_cvt_pk_bf16_f32 v24, v24, v25
          s_lshl_b32 s65, s70, 6
          s_add_u32 s65, s65, {UU}
          buffer_store_dword v24, v12, s[40:43], s65 offen sc1""")
    quad_chk(g, 26, 24)
    g(f"""v_lshlrev_b32 v13, 10, v3
          v_and_b32 v14, 12, v2
          v_add_u32 v13, v13, v14
          s_lshl_b32 s66, s70, 4
          s_add_u32 s66, s66, {UC}
          s_mov_b32 exec_lo, 0x11111111
          s_mov_b32 exec_hi, 0x11111111
          buffer_store_dword v26, v13, s[40:43], s66 offen sc1
          s_mov_b64 exec, -1""")
    g.stamp(2)
    g("s_branch L_fin")

def s7(g):
    g("L_s7:")
    lh, lj = g.lab("H7"), g.lab("J7")
    g(f"""s_cmp_eq_u32 s3, 7
          s_cbranch_scc1 {lh}""")
    g(f"""v_lshrrev_b32 v8, 2, v1
          v_and_b32 v8, 3, v8
          v_lshl_add_u32 v8, v3, 3, v8
          v_and_b32 v7, 3, v1
          v_lshl_add_u32 v8, v7, 5, v8
          s_lshl_b32 s13, s3, 8
          v_add_u32 v8, s13, v8
          v_add_u32 v9, 128, v8
          v_cmp_le_u32 vcc, 1728, v9
          v_subrev_u32 v12, 64, v9
          s_nop 0
          v_cndmask_b32 v9, v9, v12, vcc
          v_lshlrev_b32 v8, 5, v8
          v_lshlrev_b32 v9, 5, v9
          v_add_u32 v8, {L_WR}, v8
          v_add_u32 v9, {L_WR}, v9""")
    for Ti in range(2):
        for q in range(4):
            r = 64 + 16*Ti + 4*q
            g(f"ds_read_b64_tr_b16 v[{r}:{r+1}], v{8+Ti} offset:{q*8}")
            g(f"ds_read_b64_tr_b16 v[{r+2}:{r+3}], v{8+Ti} offset:{q*8+128}")
    g(f"""v_and_b32 v12, 3, v2
          v_and_b32 v13, 12, v2
          v_add_u32 v13, v13, v3
          v_mul_u32_u24 v14, 3584, v12
          v_lshl_add_u32 v14, v13, 4, v14
          v_lshlrev_b32 v15, 10, v12
          v_lshl_add_u32 v15, v13, 2, v15
          s_lshl_b32 s65, s3, 9
          s_add_u32 s65, s65, {UU}
          s_lshl_b32 s66, s3, 7
          s_add_u32 s66, s66, {UC}
          s_mov_b64 s[56:57], -1
          s_cmp_eq_u32 s3, 6
          s_cselect_b32 s56, 0x00ff00ff, s56
          s_cselect_b32 s57, 0x00ff00ff, s57
          v_mov_b32 v100, 0
          v_mov_b32 v101, 0
          v_mov_b32 v102, 0
          v_mov_b32 v103, 0
          v_lshrrev_b32 v12, 2, v2
          v_cmp_eq_u32 s[58:59], v12, v3
          v_and_b32 v12, 3, v2
          v_lshlrev_b32 v10, 8, v3
          v_lshl_add_u32 v10, v12, 4, v10
          s_lshl_b32 s13, s3, 10
          s_add_u32 s13, s13, {L_RED}
          v_add_u32 v10, s13, v10""")
    l = g.poll_begin()
    g(f"""buffer_load_dwordx4 v[96:99], v14, s[40:43], s65 offen sc1
          buffer_load_dword v104, v15, s[40:43], s66 offen sc1
          s_mov_b64 exec, s[56:57]
          buffer_load_dwordx4 v[100:103], v14, s[40:43], s65 offen offset:256 sc1
          buffer_load_dword v105, v15, s[40:43], s66 offen offset:64 sc1
          s_waitcnt vmcnt(0)""")
    g.verify(100, 105, True)
    g("s_mov_b64 exec, -1")
    g.verify(96, 104, False)
    g.poll_end(l)
    g.stamp(1)
    g("s_waitcnt lgkmcnt(0)")
    for Ti in range(2):
        for q in range(4):
            g.mfma(24+4*q, 96+4*Ti, 64+16*Ti+4*q, Ti == 0)
    g.nop(8)
    g("s_mov_b64 exec, s[58:59]")
    for q in range(4):
        g(f"ds_write_b128 v10, v[{24+4*q}:{27+4*q}] offset:{q*64}")
    g(f"""s_mov_b64 exec, -1
          s_waitcnt lgkmcnt(0)
          s_barrier
          s_branch L_fin
          {lh}:""")
    g.srd(44, P_X, 5120)
    g.srd(48, P_OUT, 5120)
    g(f"""v_lshrrev_b32 v8, 3, v1
          v_lshrrev_b32 v9, 1, v1
          v_and_b32 v9, 3, v9
          v_and_b32 v10, 1, v1
          v_mul_u32_u24 v11, 5120, v8
          v_mul_u32_u24 v12, 1280, v9
          v_add_u32 v11, v11, v12
          v_lshl_add_u32 v11, v10, 4, v11
          v_lshlrev_b32 v12, 1, v12
          v_lshl_add_u32 v12, v10, 5, v12
          v_lshl_add_u32 v12, v8, 2, v12
          s_lshl_b32 s64, s70, 5
          s_add_u32 s65, s64, {AP}
          s_lshl_b32 s66, s70, 6
          s_add_u32 s66, s66, {APC}
          v_mul_u32_u24 v13, 1280, v3
          v_lshl_add_u32 v13, v2, 1, v13
          buffer_load_ushort v40, v13, s[44:47], s64 offen
          v_lshlrev_b32 v14, 4, v1
          v_add_u32 v14, {L_HP}, v14
          v_lshlrev_b32 v15, 1, v1
          v_add_u32 v15, {L_HP}, v15
          v_lshlrev_b32 v16, 4, v1
          v_add_u32 v16, {L_RED}, v16""")
    l = g.poll_begin()
    g(f"""buffer_load_dwordx4 v[24:27], v11, s[40:43], s65 offen sc1
          buffer_load_dword v28, v12, s[40:43], s66 offen sc1
          s_waitcnt vmcnt(0)""")
    g.verify(24, 28, True)
    g.poll_end(l)
    g("ds_write_b128 v14, v[24:27]")
    for x in range(8):
        g(f"ds_read_u16 v{30+x}, v15 offset:{x*128}")
    g("s_waitcnt lgkmcnt(0)")
    for x in range(8):
        g(f"v_lshlrev_b32 v{30+x}, 16, v{30+x}")
    for x in range(1, 8):
        g(f"v_add_f32 v30, v30, v{30+x}")
    g.rbf(30)
    g("v_lshlrev_b32 v40, 16, v40\nv_add_f32 v30, v30, v40")
    g.rbf(30)
    g.stamp(1)
    g("s_barrier")
    for w in range(7):
        g(f"ds_read_b128 v[{64+4*w}:{67+4*w}], v16 offset:{w*1024}")
    for w in range(1, 7):
        g(f"s_waitcnt lgkmcnt({6-w})")
        for k in range(4):
            g(f"v_add_f32 v{64+k}, v{64+k}, v{64+4*w+k}")
    g.nop(2)
    g("""v_permlane16_swap_b32 v64, v65
         v_permlane16_swap_b32 v66, v67
         s_nop 1
         v_add_f32 v64, v64, v65
         v_add_f32 v66, v66, v67
         s_nop 1
         v_permlane32_swap_b32 v64, v66
         s_nop 1
         v_add_f32 v64, v64, v66""")
    g.rbf(64)
    g(f"""v_add_f32 v64, v64, v30
          v_cvt_pk_bf16_f32 v64, v64, v64
          buffer_store_short v64, v13, s[48:51], s64 offen
          s_cmp_lg_u32 s70, 0
          s_cbranch_scc1 {lj}
          v_mov_b32 v65, s11
          v_mov_b32 v66, {EPOCH}
          s_mov_b64 exec, 1
          buffer_store_dword v65, v66, s[40:43], 0 offen
          s_mov_b64 exec, -1
          {lj}:""")
    g.stamp(2)

def gen(stamps=False, stop=None, W=7):
    g = G(stamps, stop)
    prologue(g)
    pwave(g)
    swave(g, W)
    if stop != "A":
        tail(g)
    g("L_end:")
    return g

def emit(g, path):
    hdr = open("cdna_kernels/" + NAME + ".s.ref").read().split("; Override launch")[0]
    txt = hdr + f"""; @launch grid=(256,1,1) block=(512,1,1) lds={LDS_BYTES}
.amdgcn_target "amdgcn-amd-amdhsa--gfx950"
.text
.globl {NAME}_kernel
.p2align 8
.type {NAME}_kernel,@function
{NAME}_kernel:
""" + "\n".join(g.L) + f"""
    s_endpgm
L_code_end:
.section .rodata,"a"
.p2align 6
.amdhsa_kernel {NAME}_kernel
  .amdhsa_next_free_vgpr 256
  .amdhsa_next_free_sgpr 102
  .amdhsa_accum_offset 256
  .amdhsa_group_segment_fixed_size 0
  .amdhsa_kernarg_size 96
  .amdhsa_user_sgpr_count 2
  .amdhsa_user_sgpr_kernarg_segment_ptr 1
  .amdhsa_system_sgpr_workgroup_id_x 1
.end_amdhsa_kernel
"""
    open(path, "w").write(txt)

if __name__ == "__main__":
    import argparse
    ap = argparse.ArgumentParser()
    ap.add_argument("-o", default="k.s")
    ap.add_argument("--stamps", action="store_true")
    ap.add_argument("--stop", default=None)
    ap.add_argument("-W", type=int, default=7)
    a = ap.parse_args()
    emit(gen(a.stamps, a.stop, a.W), a.o)
```

```python
import sys, struct
NAME = "sequential_preLN__compressed_kv_cla__dense_activation_silu__decode"

EPOCH = 0x0
QP, QPC = 0x10000, 0x30000
QA = 0x40000
OP = 0x100000
OBLK = 20736
CP, CPC = 0x620000, 0x660000
AP = 0x680000
HH, HHC, HS = 0x6B0000, 0x6BA000, 0x6BD000
FP = 0x700000
DUAL = 0x800000
STAMP = 0x1000000
STAMP2 = 0x1040000
WS_REC = 0x1100000

L_R2 = 131072
L_WQ = 0
L_WUK = 40960
L_QA = L_R2
L_XN = L_R2 + 20480
L_P = L_R2 + 25600
L_MX = L_R2 + 29696
L_SM = L_MX + 256
L_CC = L_SM + 256
L_FL = L_CC + 1024
LDS_BYTES = 163840
assert L_FL + 64 <= LDS_BYTES
L_WUV = 0
L_WR = 32768
L_W2 = L_WR + 40960
L_RED = L_W2 + 40960
L_UL = L_RED + 8192
F_A, F_S2, F_QA, F_T0, F_T1, F_RD, F_SM, F_S1, F_UK, F_UR, F_MX, F_GO = 0, 4, 8, 12, 16, 20, 24, 28, 32, 36, 40, 44

HASH_A, HASH_C = 1664525, 1013904223
SPIN_MAX = 20000
def f32(x): return "0x%08x" % struct.unpack("<I", struct.pack("<f", x))[0]
LOG2E = 1.4426950408889634
SCALE = (128 ** -0.5) * LOG2E
P_X, P_CKV, P_WQ, P_WUK, P_WUV, P_WO, P_BX, P_W1, P_W2, P_OUT, P_DBG, P_WS = 16, 18, 20, 22, 24, 26, 28, 30, 32, 34, 36, 38
DPP = "row_mask:0xf bank_mask:0xf"

class G:
    def __init__(self, stamps=False, stop=None):
        self.L = []; self.stamps = stamps; self.stop = stop; self.nlab = 0
    def __call__(self, s):
        for line in s.strip("\n").split("\n"):
            line = line.strip()
            if line:
                self.L.append("    " + line if not line.endswith(":") else line)
    def lab(self, p="L"):
        self.nlab += 1
        return f"{p}_{self.nlab}"
    def nop(self, n):
        while n > 0:
            k = min(n, 16); self(f"s_nop {k-1}"); n -= k
    def srd(self, d, ptr, size):
        self(f"""s_mov_b32 s{d}, s{ptr}
                 s_and_b32 s{d+1}, s{ptr+1}, 0xffff
                 s_mov_b32 s{d+2}, {size}
                 s_mov_b32 s{d+3}, 0x20000""")
    def ws_srds(self):
        self.srd(40, P_WS, WS_REC)
        self(f"""s_add_u32 s56, s{P_WS}, {DUAL}
                 s_addc_u32 s57, s{P_WS+1}, 0
                 s_and_b32 s57, s57, 0xffff
                 s_mov_b32 s58, {DUAL}
                 s_mov_b32 s59, 0x20000""")
    def stamp(self, idx):
        if self.stamps:
            self(f"s_memrealtime s[{76+2*idx}:{77+2*idx}]")
    def flag_add(self, off):
        self(f"""s_mov_b64 exec, 1
                 ds_add_u32 v4, v5 offset:{off}
                 s_mov_b64 exec, -1""")
    def flag_wait(self, off, val):
        l = self.lab("FW"); x = self.lab("FX")
        self(f"""s_mov_b32 s15, 0
                 {l}:
                 ds_read_b32 v6, v4 offset:{off}
                 s_add_u32 s15, s15, 1
                 s_cmp_gt_u32 s15, {SPIN_MAX*8}
                 s_cbranch_scc1 {x}
                 s_waitcnt lgkmcnt(0)
                 v_readfirstlane_b32 s14, v6
                 s_cmp_lt_u32 s14, {val}
                 s_cbranch_scc1 {l}
                 {x}:""")
    def chk(self, dst, p):
        self(f"""v_add3_u32 v{dst}, v{p}, v{p+1}, s11
                 v_add3_u32 v{dst}, v{p+2}, v{p+3}, v{dst}""")
    def acc_ne(self, a, b, first):
        if first:
            self(f"v_cmp_ne_u32 s[62:63], {a}, {b}")
        else:
            self(f"""v_cmp_ne_u32 vcc, {a}, {b}
                     s_or_b64 s[62:63], s[62:63], vcc""")
    def verify(self, p, c, first, t=7):
        self.chk(t, p)
        self.acc_ne(f"v{t}", f"v{c}", first)
    def poll_begin(self, dual=False):
        l = self.lab("PL")
        if dual:
            self("""s_mov_b32 s52, s40
                    s_mov_b32 s53, s41
                    s_mov_b32 s54, %d
                    s_mov_b32 s55, 0x20000""" % DUAL)
        self(f"s_mov_b32 s61, 0\n{l}:")
        return l
    def poll_end(self, l, dual=False):
        x = self.lab("PX")
        self(f"""s_cmp_eq_u64 s[62:63], 0
                 s_cbranch_scc1 {x}
                 s_add_u32 s61, s61, 1""")
        if dual:
            self("""s_and_b32 s14, s61, 7
                    s_cmp_eq_u32 s14, 7
                    s_cselect_b32 s52, s56, s40
                    s_cselect_b32 s53, s57, s41""")
        self(f"""s_cmp_lt_u32 s61, {SPIN_MAX}
                 s_cbranch_scc1 {l}
                 {x}:""")
    def xrow(self, op, v, t):
        self(f"""v_mov_b32 v{t}, v{v}
                 s_nop 1
                 v_permlane16_swap_b32 v{v}, v{t}
                 s_nop 0
                 {op} v{v}, v{v}, v{t}
                 v_mov_b32 v{t}, v{v}
                 s_nop 1
                 v_permlane32_swap_b32 v{v}, v{t}
                 s_nop 0
                 {op} v{v}, v{v}, v{t}""")
    def inrow(self, op, v, rors=(8, 4, 2, 1)):
        for r in rors:
            self(f"s_nop 1\n{op}_dpp v{v}, v{v}, v{v} row_ror:{r} {DPP}")
    def wave_sum(self, v, t):
        self.inrow("v_add_f32", v); self.xrow("v_add_f32", v, t)
    def rbf(self, v):
        self(f"v_cvt_pk_bf16_f32 v{v}, v{v}, v{v}\nv_lshlrev_b32 v{v}, 16, v{v}")
    def unpack(self, dst, src):
        self(f"v_lshlrev_b32 v{dst}, 16, v{src}\nv_and_b32 v{dst+1}, 0xffff0000, v{src}")
    def mfma(self, d, a, b, first):
        c = "0" if first else f"v[{d}:{d+3}]"
        self(f"v_mfma_f32_16x16x32_bf16 v[{d}:{d+3}], v[{a}:{a+3}], v[{b}:{b+3}], {c}")
    def pack8(self, p, d):
        for k in range(4):
            self(f"v_cvt_pk_bf16_f32 v{p+k}, v{d+2*k}, v{d+2*k+1}")
    def mask(self, m):
        self(f"s_mov_b32 exec_lo, {m}\ns_mov_b32 exec_hi, {m}")
    def mask_j4(self): self.mask("0x000f000f")
    def unmask(self): self("s_mov_b64 exec, -1")
    def dump(self, base):
        if self.stamps:
            self("s_waitcnt lgkmcnt(0)")
            for k in range(12):
                self(f"v_mov_b32 v{240+k}, s{76+2*k}")
            self(f"""s_lshl_b32 s13, s2, 3
                  s_add_u32 s13, s13, s3
                  s_lshl_b32 s13, s13, 6
                  s_add_u32 s13, s13, {base}
                  v_mov_b32 v7, 0
                  s_mov_b64 exec, 1
                  buffer_store_dwordx4 v[240:243], v7, s[40:43], s13 offen
                  buffer_store_dwordx4 v[244:247], v7, s[40:43], s13 offen offset:16
                  buffer_store_dwordx4 v[248:251], v7, s[40:43], s13 offen offset:32
                  s_mov_b64 exec, -1""")
            for k in range(1, 12): self(f"s_mov_b32 s{76+2*k}, 0")
    def finish(self):
        self.dump(STAMP)
        self("s_endpgm")

def tag_load(g): g(f"s_load_dword s11, s[{P_WS}:{P_WS+1}], {EPOCH}")
def tag_fin(g):
    g(f"""s_waitcnt lgkmcnt(0)
          s_mul_i32 s11, s11, {HASH_A}
          s_add_u32 s11, s11, {HASH_C}""")

def prologue(g):
    g(f"""s_cmp_ge_u32 s2, 256
          s_cbranch_scc1 L_end
          s_load_dwordx16 s[16:31], s[0:1], 0
          s_load_dwordx8 s[32:39], s[0:1], 64""")
    if g.stamps:
        for k in range(12): g(f"s_mov_b32 s{76+2*k}, 0")
    g.stamp(0)
    g(f"""v_lshrrev_b32 v2, 6, v0
          v_and_b32 v1, 63, v0
          s_and_b32 s4, s2, 7
          v_readfirstlane_b32 s3, v2
          s_lshr_b32 s5, s2, 3
          s_lshr_b32 s6, s5, 3
          s_lshl2_add_u32 s6, s4, s6
          s_and_b32 s7, s5, 7
          v_lshrrev_b32 v3, 4, v1
          v_and_b32 v9, 7, v1
          v_xor_b32 v9, v9, v3
          v_and_b32 v2, 1, v2
          v_lshlrev_b32 v2, 2, v2
          v_xor_b32 v9, v2, v9
          v_lshlrev_b32 v9, 4, v9
          v_lshrrev_b32 v10, 3, v1
          v_lshl_add_u32 v9, v10, 13, v9
          s_and_b32 s12, s3, 3
          v_and_b32 v2, 15, v1
          s_cmp_lt_u32 s3, 4
          s_cbranch_scc1 L_swave""")

def ids2(g):
    g(f"""s_lshr_b32 s8, s4, 1
          s_and_b32 s9, s5, 1
          s_and_b32 s10, s4, 1
          s_lshl_b32 s10, s10, 4
          s_lshr_b32 s13, s5, 1
          s_add_u32 s10, s10, s13
          v_mov_b32 v4, {L_FL}
          v_mov_b32 v5, 1""")

def pwave(g):
    g(f"""v_lshlrev_b32 v7, 4, v1
          v_lshlrev_b32 v8, 2, v1
          s_mul_i32 s64, s12, 1280
          v_lshlrev_b32 v15, 6, v2
          v_lshl_add_u32 v15, v3, 4, v15
          s_lshl_b32 s67, s6, 12
          s_add_u32 s67, s67, {QP}
          s_lshl_b32 s68, s6, 10
          s_add_u32 s68, s68, {QPC}
          s_mov_b32 s46, 5120
          s_mov_b32 s47, 0x20000
          {"s_setprio 3" if g.prio else ""}
          s_bitcmp1_b32 s5, 0
          s_cbranch_scc1 L_p_b
          s_waitcnt lgkmcnt(0)
          s_mov_b32 s44, s{P_X}
          s_and_b32 s45, s{P_X+1}, 0xffff
          buffer_load_dwordx4 v[16:19], v7, s[44:47], s64 offen
          buffer_load_dword v20, v8, s[44:47], s64 offen offset:1024
          s_barrier""")
    tag_load(g)
    g.ws_srds()
    ids2(g)
    g(f"""s_lshr_b32 s69, s7, 1
          s_lshl_b32 s13, s12, 10
          s_add_u32 s65, s67, s13
          s_lshl_b32 s13, s69, 8
          s_add_u32 s65, s65, s13
          s_add_u32 s66, s68, s13
          s_lshl2_add_u32 s66, s12, s66
          s_waitcnt vmcnt(0)""")
    g.stamp(1)
    for k in range(5): g.unpack(24+2*k, 16+k)
    g(f"""v_add_f32 v34, v24, v25
          v_add_f32 v35, v26, v27
          v_add_f32 v36, v28, v29
          v_add_f32 v37, v30, v31
          v_add_f32 v38, v32, v33
          v_add_f32 v34, v34, v35
          v_add_f32 v36, v36, v37
          v_add_f32 v34, v34, v38
          v_add_f32 v34, v34, v36""")
    g.wave_sum(34, 35)
    g(f"v_mul_f32 v34, {f32(1/640)}, v34")
    g("v_sub_f32 v36, v24, v34\nv_mul_f32 v35, v36, v36")
    for k in range(1, 10):
        g(f"v_sub_f32 v36, v{24+k}, v34\nv_fmac_f32 v35, v36, v36")
    g.wave_sum(35, 36)
    g(f"v_mul_f32 v35, {f32(1/640)}, v35")
    g.rbf(35)
    g(f"v_add_f32 v35, {f32(1e-5)}, v35")
    g.rbf(35)
    g("v_sqrt_f32 v35, v35")
    g.rbf(34)
    g.rbf(35)
    g("v_rcp_f32 v35, v35")
    for k in range(10): g(f"v_sub_f32 v{24+k}, v{24+k}, v34")
    for k in range(5): g(f"v_cvt_pk_bf16_f32 v{16+k}, v{24+2*k}, v{25+2*k}")
    for k in range(5): g.unpack(24+2*k, 16+k)
    for k in range(10): g(f"v_mul_f32 v{24+k}, v{24+k}, v35")
    for k in range(5): g(f"v_cvt_pk_bf16_f32 v{16+k}, v{24+2*k}, v{25+2*k}")
    g(f"""s_add_u32 s13, s64, {L_XN}
          v_add_u32 v7, s13, v7
          v_add_u32 v8, s13, v8
          ds_write_b128 v7, v[16:19]
          ds_write_b32 v8, v20 offset:1024""")
    g.flag_add(F_A)
    tag_fin(g)
    g(f"""v_lshrrev_b32 v10, 2, v1
          v_and_b32 v10, 3, v10
          v_and_b32 v11, 3, v1
          s_and_b32 s13, s12, 1
          s_lshl_b32 s13, s13, 2
          v_or_b32 v11, s13, v11
          v_lshrrev_b32 v12, 1, v10
          v_xor_b32 v11, v11, v12
          v_and_b32 v12, 1, v3
          v_lshlrev_b32 v12, 2, v12
          v_xor_b32 v11, v11, v12
          v_lshlrev_b32 v11, 4, v11
          v_lshl_add_u32 v11, v10, 7, v11
          v_lshl_add_u32 v11, v3, 10, v11
          s_lshr_b32 s13, s12, 1
          s_mul_i32 s13, s13, 20480
          s_add_u32 s13, s13, {L_WQ}
          v_add_u32 v11, s13, v11
          v_xor_b32 v12, 0x220, v11
          v_and_b32 v13, 3, v2
          v_mul_u32_u24 v13, 1280, v13
          v_lshl_add_u32 v13, v3, 4, v13
          s_mul_i32 s13, s69, 320
          s_add_u32 s13, s13, {L_XN}
          v_add_u32 v13, s13, v13""")
    g(f"""v_and_b32 v24, 3, v2
          v_lshlrev_b32 v24, 16, v24
          v_lshl_add_u32 v24, v3, 5, v24
          v_and_b32 v7, 4, v2
          v_lshl_add_u32 v24, v7, 2, v24
          v_cmp_ne_u32 s[74:75], 0, v7
          s_lshl2_add_u32 s13, s69, s12
          s_lshl_b32 s13, s13, 7
          s_lshl_b32 s70, s6, 11
          s_add_u32 s70, s70, s13
          s_add_u32 s70, s70, {QA}
          v_mov_b32 v34, s11
          v_mov_b32 v35, s11
          v_lshrrev_b32 v26, 2, v2
          v_and_b32 v27, 3, v2
          v_lshrrev_b32 v25, 1, v27
          v_xor_b32 v25, v25, v3
          v_xor_b32 v25, v25, v7
          v_lshlrev_b32 v25, 4, v25
          v_lshl_add_u32 v25, v27, 7, v25
          v_lshl_add_u32 v25, v26, 11, v25
          s_lshl_b32 s13, s12, 13
          s_add_u32 s13, s13, {L_WUK}
          v_add_u32 v25, s13, v25
          v_xor_b32 v26, 64, v25
          v_xor_b32 v27, 0x220, v25
          v_xor_b32 v28, 0x260, v25
          s_mov_b32 s52, s40
          s_mov_b32 s53, s41
          s_mov_b32 s54, {DUAL}
          s_mov_b32 s55, 0x20000
          s_mov_b32 s61, 0""")
    g.flag_wait(F_A, 8)
    g.stamp(2)
    def s1_reads(t):
        g(f"ds_read_b128 v[{36+4*t}:{39+4*t}], v13 offset:{t*64}")
        for e in range(2):
            r = 96 + 8*t + 4*e
            g(f"ds_read_b64_tr_b16 v[{r}:{r+1}], v11 offset:{t*4096+e*8}")
            g(f"ds_read_b64_tr_b16 v[{r+2}:{r+3}], v12 offset:{t*4096+e*8}")
    s1_reads(0); s1_reads(1); s1_reads(2)
    for t in range(5):
        rem = min(5, t+3) - (t+1)
        g(f"s_waitcnt lgkmcnt({rem*5})")
        for e in range(2): g.mfma(56+4*e, 96+8*t+4*e, 36+4*t, t == 0)
        if t + 3 < 5: s1_reads(t+3)
    g.nop(6)
    g.mask_j4()
    g.pack8(16, 56)
    g.chk(20, 16)
    g(f"""buffer_store_dwordx4 v[16:19], v15, s[40:43], s65 offen
          buffer_store_dword v20, v15, s[40:43], s66 offen
          s_mov_b64 exec, -1""")
    g.stamp(3)
    def qdual():
        g.mask_j4()
        g(f"""buffer_store_dwordx4 v[16:19], v15, s[56:59], s65 offen sc1
              buffer_store_dword v20, v15, s[56:59], s66 offen sc1
              s_mov_b64 exec, -1""")
    g.flag_wait(F_UK, 4)
    for e in range(2):
        for t in range(4):
            r = 64 + 16*e + 4*t
            g(f"ds_read_b128 v[{r}:{r+3}], v{25+2*e+(t&1)} offset:{(t>>1)*1024}")
    l, lnd = g.lab("PL"), g.lab("ND")
    g(f"""s_mov_b64 s[62:63], -1
          {l}:
          s_cmp_lg_u32 s61, 3
          s_cbranch_scc1 {lnd}""")
    qdual()
    g(f"{lnd}:\ns_mov_b64 exec, s[62:63]")
    for t in range(4):
        g(f"buffer_load_dwordx4 v[{36+4*t}:{39+4*t}], v15, s[52:55], s67 offen offset:{t*1024} sc1")
    g(f"""buffer_load_dwordx4 v[52:55], v15, s[52:55], s68 offen sc1
          s_mov_b64 exec, -1
          s_waitcnt vmcnt(0) lgkmcnt(0)""")
    for t in range(4):
        for e in range(2): g.mfma(56+4*e, 64+16*e+4*t, 36+4*t, t == 0)
    for t in range(4): g.verify(36+4*t, 52+t, t == 0)
    g.poll_end(l, dual=True)
    for r in (4, 8):
        for k in range(8): g(f"v_add_f32_dpp v{56+k}, v{56+k}, v{56+k} row_ror:{r} {DPP}")
    g.pack8(28, 56)
    g.mask("0x00ff00ff")
    g(f"""v_cndmask_b32 v32, v28, v30, s[74:75]
          v_cndmask_b32 v33, v29, v31, s[74:75]
          buffer_store_dwordx4 v[32:35], v24, s[40:43], s70 offen sc1
          s_mov_b64 exec, -1""")
    g.flag_add(F_GO)
    g.stamp(4)
    lnd = g.lab("ND")
    g(f"s_cmp_ge_u32 s61, 3\ns_cbranch_scc1 {lnd}")
    qdual()
    g(f"{lnd}:\ns_waitcnt vmcnt(0)")
    g.flag_add(F_S2)
    g("s_branch L_p_gather")
    g(f"""L_p_b:
          s_waitcnt lgkmcnt(0)
          s_mov_b32 s44, s{P_X}
          s_and_b32 s45, s{P_X+1}, 0xffff
          s_getpc_b64 s[70:71]
          L_pc:
          s_sub_u32 s48, s70, L_pc-{NAME}_kernel
          s_subb_u32 s49, s71, 0
          s_and_b32 s49, s49, 0xffff
          s_mov_b32 s50, L_code_end-{NAME}_kernel
          s_mov_b32 s51, 0x20000
          s_lshr_b32 s13, s5, 1
          s_lshl2_add_u32 s13, s13, s12
          s_lshl_b32 s13, s13, 9
          v_lshlrev_b32 v10, 3, v1
          buffer_load_dwordx2 v[254:255], v10, s[48:51], s13 offen""")
    tag_load(g)
    g.ws_srds()
    g(f"""s_lshr_b32 s69, s7, 1
          s_lshl_b32 s13, s12, 10
          s_add_u32 s65, s67, s13
          s_lshl_b32 s13, s69, 8
          s_add_u32 s65, s65, s13
          s_add_u32 s66, s68, s13""")
    g.mask_j4()
    g(f"""buffer_load_dword v64, v15, s[40:43], s65 offen sc1
          buffer_load_dword v65, v15, s[40:43], s66 offen sc1
          s_mov_b64 exec, -1
          s_barrier""")
    for k in range(14, 20): g(f"v_mov_b32 v{k}, 0")
    ids2(g)
    tag_fin(g)
    g("L_p_gather:")
    if g.stop == "A":
        g("s_waitcnt vmcnt(0)"); g.finish(); return
    g("s_nop 1")
    g(f"""v_lshrrev_b32 v10, 2, v1
          v_and_b32 v10, 3, v10
          v_and_b32 v11, 3, v1
          v_lshrrev_b32 v12, 1, v10
          v_and_b32 v13, 2, v3
          v_or_b32 v12, v12, v13
          v_and_b32 v13, 1, v3
          v_lshl_or_b32 v12, v13, 2, v12
          v_xor_b32 v12, v12, v11
          v_lshlrev_b32 v12, 4, v12
          v_lshl_or_b32 v13, v13, 2, v10
          v_lshl_add_u32 v12, v13, 7, v12
          v_lshrrev_b32 v13, 1, v3
          v_lshl_add_u32 v12, v13, 10, v12
          v_and_b32 v13, 1, v11
          v_lshl_add_u32 v12, v13, 3, v12
          s_lshl_b32 s13, s12, 12
          v_add_u32 v20, s13, v12
          v_xor_b32 v21, 8, v20
          v_xor_b32 v22, 64, v20
          v_xor_b32 v23, 0x48, v20
          v_add_u32 v24, 0x10000, v20
          v_add_u32 v25, 0x10000, v21
          v_add_u32 v26, 0x10000, v22
          v_add_u32 v27, 0x10000, v23
          v_lshlrev_b32 v28, 4, v1
          v_lshlrev_b32 v33, 3, v1
          s_lshl2_add_u32 s13, s9, s12
          s_lshl_b32 s65, s13, 13
          s_lshl_b32 s14, s8, 16
          s_add_u32 s65, s65, s14
          s_add_u32 s65, s65, {QA}
          s_add_u32 s66, s65, 4096""")
    for n in range(4):
        g(f"""s_lshl2_add_u32 s13, s12, {n}
              s_lshl_b32 s14, s13, 4
              v_xor_b32 v{29+n}, s14, v33
              s_lshl_b32 s13, s13, 10
              s_add_u32 s13, s13, {L_QA}
              v_add_u32 v{29+n}, s13, v{29+n}""")
    role_decode(g)
    def gather_loads():
        for n in range(8):
            g(f"buffer_load_dwordx4 v[{64+4*n}:{67+4*n}], v28, s[40:43], s{65+(n>>2)} offen offset:{(n&3)*1024} sc1")
    def pv_pre(tile):
        for sw in range(4):
            for tp in range(4):
                for e in range(2):
                    r = 128 + ((tp*2+e)*4 + sw)*4 + 2*tile
                    a = 20 + (tp & 1)*2 + e + (4 if sw >= 2 else 0)
                    off = (sw & 1)*32768 + tile*16384 + (tp >> 1)*2048
                    g(f"ds_read_b64_tr_b16 v[{r}:{r+1}], v{a} offset:{off}")
    lga, lgb = g.lab("GA"), g.lab("GB")
    g(f"s_bitcmp1_b32 s5, 0\ns_cbranch_scc1 {lga}")
    g.flag_wait(F_S2, 4)
    g.stamp(5)
    gather_loads()
    g(f"{lga}:")
    g.flag_wait(F_T0, 4)
    pv_pre(0)
    g("s_waitcnt lgkmcnt(0)")
    g.flag_add(F_RD)
    g(f"s_bitcmp0_b32 s5, 0\ns_cbranch_scc1 {lgb}")
    g.flag_wait(F_S2, 4)
    g.stamp(5)
    gather_loads()
    g(f"{lgb}:")
    lsk, lp, lx = g.lab("GS"), g.lab("GL"), g.lab("GX")
    g(f"""s_mov_b32 s64, 0xff
          s_mov_b32 s61, 0
          s_branch {lsk}
          {lp}:""")
    for n in range(8):
        ls = g.lab("G")
        g(f"""s_bitcmp1_b32 s64, {n}
              s_cbranch_scc0 {ls}
              buffer_load_dwordx4 v[{64+4*n}:{67+4*n}], v28, s[40:43], s{65+(n>>2)} offen offset:{(n&3)*1024} sc1
              {ls}:""")
    g(f"{lsk}:\ns_waitcnt vmcnt(0)")
    for n in range(8):
        ls = g.lab("G")
        g(f"""v_cmp_ne_u32 vcc, s11, v{66+4*n}
              s_cbranch_vccnz {ls}
              ds_write_b64 v{29+(n>>1)}, v[{64+4*n}:{65+4*n}] offset:{(n&1)*512}
              s_bitset0_b32 s64, {n}
              {ls}:""")
    g(f"""s_cmp_eq_u32 s64, 0
          s_cbranch_scc1 {lx}
          s_add_u32 s61, s61, 1
          s_cmp_lt_u32 s61, {SPIN_MAX}
          s_cbranch_scc1 {lp}
          {lx}:""")
    g.flag_add(F_QA)
    g.stamp(6)
    lpt = g.lab("PT")
    g(f"""s_cmp_lg_u32 s3, 5
          s_cbranch_scc1 {lpt}
          s_cmp_lg_u32 s72, 0
          s_cbranch_scc1 {lpt}""")
    hh_addr(g, 116, 117, 118)
    g(f"""s_lshl_b32 s13, s73, 6
          buffer_load_dword v120, v116, s[44:47], s13 offen
          buffer_load_dword v121, v116, s[40:43], s67 offen sc1
          buffer_load_dword v122, v117, s[40:43], s69 offen sc1
          buffer_load_dword v123, v118, s[40:43], s68 offen sc1
          {lpt}:""")
    g(f"""v_lshlrev_b32 v29, {7 if g.opl else 6}, v2
          v_lshl_add_u32 v29, v3, 4, v29
          v_lshlrev_b32 v30, 6, v2
          v_lshl_add_u32 v30, v3, 4, v30
          s_lshl2_add_u32 s65, s9, s8
          s_lshl_b32 s65, s65, 5
          s_add_u32 s65, s65, s10
          s_mul_i32 s65, s65, {OBLK}
          s_add_u32 s65, s65, {OP}
          s_lshl_b32 s13, s12, 10
          s_add_u32 s67, s65, s13
          s_add_u32 s67, s67, 16384
          s_lshl_b32 s13, s12, 12
          s_add_u32 s65, s65, s13
          v_add_u32 v31, {L_P}, v28""")
    early_setup(g)
    g.flag_wait(F_T1, 4)
    pv_pre(1)
    if g.ea: early_dma(g)
    g("s_waitcnt lgkmcnt(0)")
    g("s_barrier")
    g.stamp(7)
    for sw in range(4):
        g(f"ds_read_b128 v[{36+4*sw}:{39+4*sw}], v31 offset:{sw*1024}")
    def pv_out(tp):
        g.pack8(96+4*tp, 64+8*tp)
        g.chk(112+tp, 96+4*tp)
        g(f"buffer_store_dwordx4 v[{96+4*tp}:{99+4*tp}], v29, s[40:43], s65 offen offset:{((tp>>1)*2048+(tp&1)*64) if g.opl else tp*1024} sc1")
    for tp in range(4):
        for sw in range(4):
            if tp == 0: g(f"s_waitcnt lgkmcnt({3-sw})")
            for e in range(2): g.mfma(64+8*tp+4*e, 128+((tp*2+e)*4+sw)*4, 36+4*sw, sw == 0)
        if tp >= 1: pv_out(tp-1)
    g.nop(2)
    pv_out(3)
    g("buffer_store_dwordx4 v[112:115], v30, s[40:43], s67 offen sc1")
    g.stamp(8)
    if g.ea >= 2: early_dma(g)
    g("s_branch L_s4")

def hh_addr(g, va, vc, vs):
    g(f"""v_mul_u32_u24 v{va}, 1280, v3
          v_lshl_add_u32 v{va}, v2, 2, v{va}
          s_lshl_b32 s67, s73, 6
          s_mul_i32 s13, s4, 5120
          s_add_u32 s67, s67, s13
          s_add_u32 s67, s67, {HH}
          v_mul_u32_u24 v{vs}, 320, v3
          v_and_b32 v{vc}, 12, v2
          v_lshl_add_u32 v{vc}, v{vc}, 2, v{vs}
          s_mul_i32 s68, s4, 1280
          s_lshr_b32 s13, s73, 2
          s_lshl_b32 s13, s13, 6
          s_add_u32 s69, s68, s13
          s_and_b32 s13, s73, 3
          s_lshl2_add_u32 s69, s13, s69
          s_add_u32 s69, s69, {HHC}
          s_lshl4_add_u32 s68, s73, s68
          s_add_u32 s68, s68, {HS}""")
def v1280(g, dst):
    g(f"""v_lshrrev_b32 v{dst}, 3, v1
          v_mul_u32_u24 v{dst}, 1280, v{dst}
          v_and_b32 v7, 0x70, v9
          v_add_u32 v{dst}, v{dst}, v7""")
def early_setup(g):
    l1, le = g.lab("E1"), g.lab("EE")
    g(f"""s_mov_b32 s70, 0
          s_lshl_b32 s71, s12, 10
          s_add_u32 s71, s71, {L_WR}""")
    g.srd(44, P_WO, 5242880)
    v1280(g, 119)
    g(f"""s_and_b32 s13, s73, 1
          s_lshl1_add_u32 s13, s4, s13
          s_lshl_b32 s13, s13, 5
          s_add_u32 s13, s13, s12
          s_mul_i32 s68, s13, {8*1280}
          s_lshr_b32 s13, s73, 1
          s_lshl_b32 s13, s13, 7
          s_add_u32 s68, s68, s13
          s_mov_b32 s69, {32*1280}
          s_cmp_ge_u32 s72, 2
          s_cbranch_scc1 {le}
          s_mov_b32 s70, 4
          s_cmp_eq_u32 s72, 0
          s_cbranch_scc1 {le}""")
    g.srd(44, P_W1, 2211840)
    g(f"""v_lshrrev_b32 v119, 2, v1
          v_mul_u32_u24 v119, 3456, v119
          v_and_b32 v7, 3, v1
          v_lshl_add_u32 v119, v7, 4, v119
          s_mul_i32 s68, s12, {16*3456}
          s_lshl_b32 s13, s73, 6
          s_add_u32 s68, s68, s13
          s_mov_b32 s69, {64*3456}
          s_mov_b32 s70, 2
          {le}:""")
def early_dma(g):
    l, le = g.lab("ED"), g.lab("EX")
    g(f"""s_mov_b32 s13, s70
          s_cmp_eq_u32 s70, 0
          s_cbranch_scc1 {le}
          {l}:
          s_mov_b32 m0, s71
          s_add_u32 s71, s71, 4096
          buffer_load_dwordx4 v119, s[44:47], s68 offen nt lds
          s_add_u32 s68, s68, s69
          s_sub_u32 s13, s13, 1
          s_cmp_lg_u32 s13, 0
          s_cbranch_scc1 {l}
          {le}:""")

def swave(g, W):
    g("L_swave:")
    g(f"""s_lshr_b32 s14, s7, 1
          s_mul_i32 s64, s14, 160
          s_lshl3_add_u32 s64, s12, s64
          s_lshl_b32 s64, s64, 13
          s_lshl_b32 s13, s6, 8
          s_add_u32 s64, s64, s13
          s_lshl_b32 s68, s14, 7
          s_lshl3_add_u32 s68, s12, s68
          s_lshl_b32 s68, s68, 13
          s_add_u32 s68, s68, s13
          s_lshl_b32 s67, s12, 10
          v_mov_b32 v6, 0
          v_lshlrev_b32 v14, 2, v1
          v_add_u32 v10, {L_FL}, v14
          s_mov_b64 exec, 0xffff
          ds_write_b32 v10, v6
          s_mov_b64 exec, -1
          s_mov_b32 s50, 5242880
          s_mov_b32 s51, 0x20000
          s_and_b32 s70, s5, 1
          s_mov_b32 s71, 0
          s_mov_b64 vcc, s[70:71]
          s_waitcnt lgkmcnt(0)
          s_mov_b32 s48, s{P_WQ}
          s_and_b32 s49, s{P_WQ+1}, 0xffff
          s_barrier
          s_cbranch_vccnz L_s_setup""")
    for k in range(5):
        for ch in range(2):
            g(f"""s_add_u32 m0, s67, {L_WQ + ch*20480 + k*4096}
                  s_add_u32 s13, s64, {k*262144 + ch*128}
                  buffer_load_dwordx4 v9, s[48:51], s13 offen nt lds""")
    g("L_s_setup:")
    tag_load(g)
    ids2(g)
    g.srd(48, P_WUK, 4194304)
    g.srd(44, P_CKV, 16777216)
    g.srd(52, P_WUV, 4194304)
    g.ws_srds()
    g(f"""s_lshl_b32 s66, s7, 6
          s_lshl3_add_u32 s66, s12, s66
          s_lshl_b32 s66, s66, 13
          s_lshl_b32 s13, s6, 8
          s_add_u32 s66, s66, s13
          s_lshl_b32 s65, s12, 15
          v_lshrrev_b32 v10, 3, v1
          v_lshrrev_b32 v11, 1, v10
          v_and_b32 v11, 1, v11
          v_and_b32 v12, 4, v10
          v_or_b32 v11, v11, v12
          v_and_b32 v12, 7, v1
          v_xor_b32 v11, v11, v12
          v_lshlrev_b32 v11, 4, v11
          v_lshl_add_u32 v7, v10, 10, v11
          v_xor_b32 v8, 32, v7
          v_add_u32 v8, 8192, v8
          s_lshl_b32 s64, s8, 22
          s_lshl_b32 s13, s10, 17
          s_add_u32 s64, s64, s13
          s_add_u32 s64, s64, s65
          v_lshrrev_b32 v11, 1, v2
          v_and_b32 v11, 1, v11
          v_lshrrev_b32 v12, 3, v2
          v_lshl_or_b32 v11, v12, 1, v11
          v_and_b32 v13, 4, v2
          v_or_b32 v11, v11, v13
          v_xor_b32 v11, v11, v3
          v_lshlrev_b32 v11, 4, v11
          v_and_b32 v13, 7, v2
          v_lshl_add_u32 v11, v13, 7, v11
          v_lshl_add_u32 v11, v12, 10, v11
          v_add_u32 v11, s65, v11
          v_xor_b32 v12, 64, v11""")
    g.stamp(1)
    def areads(m):
        tile, u = m >> 3, m & 7
        for tl in range(2):
            t = 2*u + tl
            r = 64 + 64*tile + 4*t
            g(f"ds_read_b128 v[{r}:{r+3}], v{11+tl} offset:{tile*16384+u*2048}")
    g("s_cbranch_vccnz L_s_ckv\ns_lshl_b32 s69, s12, 11")
    for k in range(8):
        kk, ch = k >> 1, k & 1
        g(f"""s_waitcnt vmcnt({g.wa-1})
              s_add_u32 m0, s69, {L_WUK + kk*8192 + ch*1024}
              s_add_u32 s13, s68, {kk*262144 + ch*128}
              buffer_load_dwordx4 v9, s[48:51], s13 offen nt lds""")
    g("s_waitcnt vmcnt(8)")
    g.flag_add(F_A)
    g("s_waitcnt vmcnt(0)")
    g.flag_add(F_UK)
    g.flag_wait(F_GO, 4)
    g("L_s_ckv:")
    done = 0
    for k in range(36):
        if k == 32: g.flag_wait(F_RD, 4)
        if k == g.gb:
            lb = g.lab("SB")
            g(f"s_cbranch_vccz {lb}")
            g.flag_add(F_S2)
            g(f"{lb}:")
        if k >= g.we and k < g.wsw:
            lb = g.lab("SB")
            g(f"s_cbranch_vccz {lb}\ns_waitcnt vmcnt({g.we-1})\n{lb}:")
        if k >= W: g(f"s_waitcnt vmcnt({W-1})")
        landed = k - W
        if k < 32:
            tile, u, kh = k >> 4, (k >> 1) & 7, k & 1
            g(f"""s_add_u32 m0, s65, {k*1024}
                  s_add_u32 s13, s64, {tile*16384 + u*128}
                  buffer_load_dwordx4 v{7+kh}, s[44:47], s13 offen nt lds""")
        else:
            kk, ch = (k-32) >> 1, (k-32) & 1
            g(f"""s_add_u32 m0, s67, {L_WUV + ch*8192 + kk*4096}
                  s_add_u32 s13, s66, {kk*262144 + ch*128}
                  buffer_load_dwordx4 v9, s[52:55], s13 offen nt lds""")
        while 2*done + 1 <= landed:
            areads(done); done += 1
            if done == 8:
                tag_fin(g)
                g.flag_add(F_T0)
                g.stamp(2)
    for tl in range(4):
        g(f"""v_or_b32 v13, {4*tl}, v3
              v_xor_b32 v13, v13, v2
              v_lshlrev_b32 v13, 4, v13
              v_lshl_add_u32 v13, v2, 10, v13
              v_add_u32 v{16+tl}, {L_QA}, v13""")
    g(f"""v_lshlrev_b32 v20, 4, v2
          v_add_u32 v20, {L_MX}, v20
          s_lshl_b32 s13, s12, 2
          v_add_u32 v21, s13, v20
          v_lshlrev_b32 v22, 4, v1
          s_lshl_b32 s13, s12, 10
          s_add_u32 s13, s13, {L_P}
          v_add_u32 v22, s13, v22
          s_mov_b32 s60, {f32(SCALE)}""")
    role_decode(g)
    g.stamp(3)
    g.flag_wait(F_QA, 4)
    g.stamp(4)
    for t in range(16):
        g(f"ds_read_b128 v[{192+4*t}:{195+4*t}], v{16+(t&3)} offset:{(t>>2)*256}")
    for t in range(16):
        g(f"s_waitcnt lgkmcnt({15-t})")
        g.mfma(56, 64+4*t, 192+4*t, t == 0)
    first = True
    for m in range(8, done):
        for tl in range(2):
            t = 2*(m & 7) + tl
            g.mfma(60, 128+4*t, 192+4*t, first); first = False
    for m in range(done, 16):
        g(f"s_waitcnt vmcnt({35-(2*m+1)})")
        areads(m)
        if m == 15:
            g.flag_add(F_T1)
            g.stamp(5)
        if m > done:
            g(f"s_waitcnt lgkmcnt({3 if m == 15 else 2})")
            for tl in range(2):
                t = 2*((m-1) & 7) + tl
                g.mfma(60, 128+4*t, 192+4*t, first); first = False
    g("s_waitcnt lgkmcnt(0)")
    for tl in range(2): g.mfma(60, 128+4*(14+tl), 192+4*(14+tl), False)
    g("v_max3_f32 v24, v56, v57, v58\nv_max_f32 v24, v24, v59")
    g.nop(6)
    g("v_max3_f32 v24, v24, v60, v61\nv_max3_f32 v24, v24, v62, v63")
    g.xrow("v_max_f32", 24, 25)
    g("ds_write_b32 v21, v24")
    g.flag_add(F_MX)
    g.flag_wait(F_MX, 4)
    g(f"""ds_read_b128 v[24:27], v20
          s_waitcnt lgkmcnt(0)
          v_max3_f32 v24, v24, v25, v26
          v_max_f32 v24, v24, v27
          v_mul_f32 v24, s60, v24""")
    for k in range(8): g(f"v_fma_f32 v{56+k}, v{56+k}, s60, -v24")
    for k in range(8): g(f"v_exp_f32 v{56+k}, v{56+k}")
    g.nop(1)
    g.pack8(28, 56)
    g(f"""ds_write_b128 v22, v[28:31]
          s_waitcnt lgkmcnt(0)
          s_barrier""")
    g.stamp(6)
    g(f"""v_add_f32 v56, v56, v57
          v_add_f32 v58, v58, v59
          v_add_f32 v60, v60, v61
          v_add_f32 v62, v62, v63
          v_add_f32 v56, v56, v58
          v_add_f32 v60, v60, v62
          v_add_f32 v25, v56, v60""")
    g.xrow("v_add_f32", 25, 26)
    g(f"ds_write_b32 v21, v25 offset:{L_SM-L_MX}")
    g.flag_add(F_SM)
    lns = g.lab("NS")
    g(f"s_cmp_lg_u32 s12, 0\ns_cbranch_scc1 {lns}")
    g.flag_wait(F_SM, 4)
    g(f"""ds_read_b128 v[28:31], v20 offset:{L_SM-L_MX}
          v_lshlrev_b32 v13, 4, v2
          s_lshl2_add_u32 s13, s9, s8
          s_lshl_b32 s13, s13, 5
          s_add_u32 s13, s13, s10
          s_mul_i32 s13, s13, {OBLK}
          s_add_u32 s13, s13, {OP+20480}
          v_mov_b32 v26, s11
          v_mov_b32 v27, s11
          s_waitcnt lgkmcnt(0)
          v_add_f32 v28, v28, v29
          v_add_f32 v30, v30, v31
          v_add_f32 v25, v28, v30
          s_mov_b64 exec, 0xffff
          buffer_store_dwordx4 v[24:27], v13, s[40:43], s13 offen sc1
          s_mov_b64 exec, -1
          {lns}:""")
    g(f"""v_lshlrev_b32 v19, 6, v2
          v_lshl_add_u32 v19, v3, 4, v19
          v_mov_b32 v18, v19
          s_lshl_b32 s68, s6, 13
          s_lshr_b32 s13, s7, 2
          s_lshl_b32 s13, s13, 12
          s_add_u32 s68, s68, s13
          s_lshl_b32 s13, s12, 10
          s_add_u32 s68, s68, s13
          s_and_b32 s13, s7, 3
          s_lshl_b32 s13, s13, 8
          s_add_u32 s68, s68, s13
          s_add_u32 s68, s68, {CP}
          s_lshl_b32 s69, s6, 11
          s_lshl_b32 s13, s7, 8
          s_add_u32 s69, s69, s13
          s_lshl2_add_u32 s69, s12, s69
          s_add_u32 s69, s69, {CPC}""")
    g.mask_j4()
    g(f"""buffer_load_dword v20, v18, s[40:43], s68 offen sc1
          buffer_load_dword v21, v19, s[40:43], s69 offen sc1
          s_mov_b64 exec, -1""")
    g.stamp(7)

def role_decode(g):
    l6, l7, ld, lhi = g.lab("R6"), g.lab("R7"), g.lab("RD"), g.lab("RH")
    g(f"""s_mov_b32 s72, 0
          s_mov_b32 s73, s5
          s_cmp_lt_u32 s5, 20
          s_cbranch_scc1 {ld}
          s_sub_u32 s13, s5, 20
          s_cmp_ge_u32 s4, 2
          s_cbranch_scc1 {lhi}
          s_lshl3_add_u32 s73, s4, s13
          s_cmp_lt_u32 s13, 8
          s_cbranch_scc1 {l7}
          s_lshl2_add_u32 s73, s4, s13
          s_sub_u32 s73, s73, 8
          s_branch {l6}
          {lhi}:
          s_lshl2_add_u32 s73, s4, s13
          s_add_u32 s73, s73, 8
          s_cmp_lt_u32 s13, 4
          s_cbranch_scc1 {l7}
          s_lshl3_add_u32 s73, s4, s13
          s_sub_u32 s73, s73, 12
          {l6}:
          s_mov_b32 s72, 1
          s_cmp_lt_u32 s73, 54
          s_cbranch_scc1 {ld}
          s_mov_b32 s72, 3
          s_branch {ld}
          {l7}:
          s_mov_b32 s72, 2
          {ld}:""")

def tail(g):
    g("L_s4:")
    if g.stop == "B":
        g("s_waitcnt vmcnt(0)"); g.finish(); return
    g.dump(STAMP2)
    g(f"""s_mov_b32 s13, {OBLK}
          v_lshrrev_b32 v9, 3, v1
          v_mul_lo_u32 v9, v9, s13
          v_and_b32 v10, 3, v1
          v_lshl_add_u32 v9, v10, 4, v9
          v_and_b32 v10, 4, v1
          v_lshl_add_u32 v8, v10, {4 if g.opl else 8}, v9
          v_add_u32 v9, v9, v10
          v_and_b32 v10, 31, v1
          v_mul_lo_u32 v10, v10, s13
          s_lshr_b32 s14, s6, 4
          s_lshl3_add_u32 s64, s14, s3
          s_and_b32 s67, s64, 0xfe
          s_mul_i32 s64, s64, {16*OBLK}
          s_mul_i32 s67, s67, {16*OBLK}
          s_and_b32 s14, s6, 15
          s_lshl4_add_u32 s67, s14, s67
          s_add_u32 s67, s67, {OP+20480}
          s_lshl_b32 s14, s14, 6
          s_add_u32 s64, s64, s14
          s_lshl_b32 s13, s7, 11
          s_add_u32 s65, s64, s13
          {"s_add_u32 s65, s65, s14" if g.opl else ""}
          s_add_u32 s65, s65, {OP}
          s_lshr_b32 s13, s7, 1
          s_lshl_b32 s13, s13, 10
          s_add_u32 s66, s64, s13
          s_and_b32 s13, s7, 1
          s_lshl3_add_u32 s66, s13, s66
          s_add_u32 s66, s66, {OP+16384}
          s_add_u32 s74, s65, {8*OBLK}
          s_add_u32 s75, s66, {8*OBLK}
          v_lshrrev_b32 v11, 3, v1
          s_and_b32 s13, s3, 1
          s_lshl_b32 s13, s13, 4
          v_add_u32 v11, s13, v11
          v_lshlrev_b32 v11, 2, v11
          v_add_u32 v12, 32, v11
          v_and_b32 v13, 7, v1
          v_lshlrev_b32 v13, 4, v13
          v_and_b32 v14, 1, v3
          v_lshl_add_u32 v13, v14, 3, v13
          v_lshrrev_b32 v14, 1, v3
          v_lshl_add_u32 v13, v14, 2, v13
          s_and_b32 s13, s3, 1
          s_lshl_b32 s13, s13, 2
          s_lshr_b32 s14, s3, 1
          s_add_u32 s13, s13, s14
          s_lshl_b32 s13, s13, 7
          s_add_u32 s13, s13, {L_CC}
          v_add_u32 v13, s13, v13""")
    l = g.poll_begin()
    g(f"""buffer_load_dwordx4 v[24:27], v10, s[40:43], s67 offen sc1
          s_waitcnt vmcnt(0)
          v_cmp_ne_u32 s[62:63], s11, v26""")
    g.poll_end(l)
    g("s_barrier")
    g.stamp(9)
    g(f"""buffer_load_dwordx4 v[28:31], v8, s[40:43], s65 offen sc1
          buffer_load_dwordx4 v[32:35], v8, s[40:43], s74 offen sc1
          buffer_load_dword v36, v9, s[40:43], s66 offen sc1
          buffer_load_dword v37, v9, s[40:43], s75 offen sc1
          v_mov_b32 v38, v24""")
    g.inrow("v_max_f32", 38)
    g("""v_mov_b32 v39, v38
         s_nop 1
         v_permlane16_swap_b32 v38, v39
         s_nop 0
         v_max_f32 v38, v38, v39
         v_sub_f32 v38, v24, v38
         v_exp_f32 v38, v38
         s_nop 0
         v_mul_f32 v39, v38, v25""")
    g.inrow("v_add_f32", 39)
    g("""v_mov_b32 v40, v39
         s_nop 1
         v_permlane16_swap_b32 v39, v40
         s_nop 0
         v_add_f32 v39, v39, v40
         v_rcp_f32 v39, v39
         s_nop 0
         v_mul_f32 v38, v38, v39
         ds_bpermute_b32 v40, v11, v38
         ds_bpermute_b32 v41, v12, v38""")
    lw = g.lab("NW")
    g(f"""s_cmp_ge_u32 s3, 4
          s_cbranch_scc1 {lw}
          v_lshrrev_b32 v14, 2, v1
          v_and_b32 v14, 3, v14
          v_and_b32 v15, 1, v3
          v_lshl_or_b32 v14, v15, 2, v14
          v_and_b32 v16, 3, v1
          s_and_b32 s13, s12, 1
          s_lshl_b32 s13, s13, 2
          v_or_b32 v16, s13, v16
          v_lshrrev_b32 v17, 1, v14
          v_xor_b32 v16, v16, v17
          v_lshlrev_b32 v15, 2, v15
          v_xor_b32 v16, v16, v15
          v_lshlrev_b32 v16, 4, v16
          v_lshl_add_u32 v16, v14, 7, v16
          v_lshl_add_u32 v16, v3, 10, v16
          s_lshr_b32 s13, s12, 1
          s_lshl_b32 s13, s13, 13
          s_add_u32 s13, s13, {L_WUV}
          v_add_u32 v16, s13, v16
          v_xor_b32 v17, 0x220, v16
          v_and_b32 v14, 7, v2
          v_lshlrev_b32 v14, 7, v14
          v_lshl_add_u32 v14, v3, 4, v14
          v_add_u32 v14, {L_CC}, v14""")
    for t in range(2):
        for e in range(2):
            r = 64 + 8*t + 4*e
            g(f"ds_read_b64_tr_b16 v[{r}:{r+1}], v16 offset:{t*4096+e*8}")
            g(f"ds_read_b64_tr_b16 v[{r+2}:{r+3}], v17 offset:{t*4096+e*8}")
    g(f"{lw}:")
    lsk = g.lab("SK"); l = g.lab("PL")
    g(f"""s_mov_b32 s61, 0
          s_branch {lsk}
          {l}:
          s_mov_b64 exec, s[62:63]
          buffer_load_dwordx4 v[28:31], v8, s[40:43], s65 offen sc1
          buffer_load_dwordx4 v[32:35], v8, s[40:43], s74 offen sc1
          buffer_load_dword v36, v9, s[40:43], s66 offen sc1
          buffer_load_dword v37, v9, s[40:43], s75 offen sc1
          s_mov_b64 exec, -1
          {lsk}:
          s_waitcnt vmcnt(0)""")
    g.verify(28, 36, True)
    g.verify(32, 37, False)
    g.poll_end(l)
    g.stamp(10)
    for k in range(4):
        g.unpack(44+2*k, 28+k); g.unpack(52+2*k, 32+k)
    g("s_waitcnt lgkmcnt(0)")
    for k in range(8): g(f"v_mul_f32 v{44+k}, v{44+k}, v40")
    for k in range(8): g(f"v_fmac_f32 v{44+k}, v{52+k}, v41")
    g.nop(1)
    for k in range(4): g(f"v_permlane16_swap_b32 v{44+k}, v{48+k}")
    g.nop(1)
    for k in range(4): g(f"v_add_f32 v{44+k}, v{44+k}, v{48+k}")
    g.nop(1)
    for k in range(2): g(f"v_permlane32_swap_b32 v{44+k}, v{46+k}")
    g.nop(1)
    for k in range(2): g(f"v_add_f32 v{44+k}, v{44+k}, v{46+k}")
    g.nop(1)
    for k in range(2): g(f"v_add_f32_dpp v{44+k}, v{44+k}, v{44+k} row_ror:8 {DPP}")
    g(f"""v_cvt_pk_bf16_f32 v44, v44, v45
          ds_write_b32 v13, v44
          s_waitcnt lgkmcnt(0)
          s_barrier""")
    ln = g.lab("N4")
    g(f"""s_cmp_ge_u32 s3, 4
          s_cbranch_scc1 {ln}
          ds_read_b128 v[24:27], v14
          ds_read_b128 v[28:31], v14 offset:64
          s_waitcnt lgkmcnt(1)""")
    for t in range(2):
        if t == 1: g("s_waitcnt lgkmcnt(0)")
        for e in range(2): g.mfma(56+4*e, 64+8*t+4*e, 24+4*t, t == 0)
    g.nop(7)
    for k in range(8): g(f"v_add_f32_dpp v{56+k}, v{56+k}, v{56+k} row_ror:4 {DPP}")
    g.mask_j4()
    g.pack8(24, 56)
    g.chk(28, 24)
    g(f"""buffer_store_dwordx4 v[24:27], v18, s[40:43], s68 offen
          buffer_store_dword v28, v19, s[40:43], s69 offen
          s_cmp_eq_u32 s72, 0
          s_cbranch_scc1 {ln}_c
          buffer_store_dwordx4 v[24:27], v18, s[56:59], s68 offen sc1
          buffer_store_dword v28, v19, s[56:59], s69 offen sc1
          {ln}_c:
          s_mov_b64 exec, -1
          s_branch {ln}_b
          {ln}:""")
    if g.ea == 0: g("s_lshl_b32 s70, s70, 1")
    if g.ea < 2: early_dma(g)
    g(f"{ln}_b:")
    g.stamp(11)
    if g.stop == "C1":
        g("s_waitcnt vmcnt(0)"); g.finish(); return
    g(f"""s_cmp_eq_u32 s72, 1
          s_cbranch_scc1 L_s6
          s_cmp_eq_u32 s72, 2
          s_cbranch_scc1 L_s7
          s_cmp_eq_u32 s72, 3
          s_cbranch_scc1 L_fin""")
    s5(g); s6(g); s7(g)
    g("L_fin:")
    g.finish()


def tr64_addr(g, dst, rowbase_sgpr):
    g(f"""v_lshrrev_b32 v{dst}, 2, v1
          v_and_b32 v{dst}, 3, v{dst}
          v_lshl_add_u32 v{dst}, v3, 3, v{dst}
          v_add_u32 v{dst}, s{rowbase_sgpr}, v{dst}
          v_lshlrev_b32 v{dst}, 6, v{dst}
          v_and_b32 v7, 3, v1
          v_lshl_add_u32 v{dst}, v7, 4, v{dst}
          v_add_u32 v{dst}, {L_WR}, v{dst}""")
def tr64_reads(g, a):
    for t in range(4):
        for e in range(2):
            r = 64 + 8*t + 4*e
            g(f"ds_read_b64_tr_b16 v[{r}:{r+1}], v{a} offset:{t*2048+e*8}")
            g(f"ds_read_b64_tr_b16 v[{r+2}:{r+3}], v{a} offset:{t*2048+256+e*8}")
def red_write(g):
    g.mask_j4()
    g("""ds_write_b128 v10, v[56:59]
         ds_write_b128 v10, v[60:63] offset:16
         s_mov_b64 exec, -1""")
def red_read(g, n, stride):
    for w in range(n): g(f"ds_read_b64 v[{24+2*w}:{25+2*w}], v11 offset:{w*stride}")
    for w in range(1, n):
        g(f"s_waitcnt lgkmcnt({n-1-w})")
        g(f"v_add_f32 v24, v24, v{24+2*w}\nv_add_f32 v25, v25, v{25+2*w}")

def s5(g):
    g(f"""v_lshrrev_b32 v12, 2, v1
          v_and_b32 v12, 3, v12
          v_and_b32 v8, 3, v1
          v_lshrrev_b32 v7, 1, v12
          v_xor_b32 v8, v8, v7
          v_and_b32 v7, 1, v3
          v_lshl_or_b32 v8, v7, 2, v8
          v_lshlrev_b32 v8, 4, v8
          v_lshl_add_u32 v8, v12, 7, v8
          v_lshl_add_u32 v8, v3, 10, v8
          s_lshr_b32 s13, s3, 2
          s_and_b32 s14, s3, 1
          s_lshl1_add_u32 s13, s13, s14
          s_lshl_b32 s13, s13, 13
          s_add_u32 s13, s13, {L_WR}
          v_add_u32 v8, s13, v8
          v_xor_b32 v9, 0x220, v8
          v_xor_b32 v12, 64, v8
          v_xor_b32 v13, 0x260, v8""")
    g(f"""v_and_b32 v10, 3, v2
          v_lshlrev_b32 v10, 7, v10
          v_lshl_add_u32 v10, v3, 5, v10
          v_and_b32 v7, 4, v2
          v_lshl_add_u32 v10, v7, 2, v10
          v_and_b32 v7, 8, v2
          v_lshl_add_u32 v10, v7, 6, v10
          s_lshl_b32 s13, s3, 10
          s_add_u32 s13, s13, {L_RED}
          v_add_u32 v10, s13, v10
          v_lshlrev_b32 v17, 3, v1
          s_and_b32 s14, s3, 1
          s_lshl_b32 s13, s14, 9
          s_add_u32 s13, s13, {L_RED}
          v_add_u32 v11, s13, v17
          v_lshlrev_b32 v15, 6, v2
          v_lshl_add_u32 v15, v3, 4, v15
          s_and_b32 s13, s73, 1
          s_lshl1_add_u32 s64, s4, s13
          s_lshl3_add_u32 s13, s64, s3
          s_lshl_b32 s65, s13, 11
          s_add_u32 s65, s65, {CP}
          s_lshr_b32 s13, s13, 1
          s_lshl_b32 s66, s13, 10
          s_lshl3_add_u32 s66, s14, s66
          s_add_u32 s66, s66, {CPC}
          s_and_b32 s13, s73, 0xfe
          s_add_u32 s13, s13, s14
          s_lshl4_add_u32 s71, s13, s64
          s_lshl_b32 s71, s71, 9
          s_add_u32 s71, s71, {AP}""")
    lf = g.lab("F5")
    g(f"s_cmp_lg_u32 s3, 5\ns_cbranch_scc1 {lf}")
    hh_addr(g, 20, 21, 16)
    g(f"""s_nop 0
          s_lshl_b32 s70, s73, 13
          s_add_u32 s70, s70, {AP}
          s_add_u32 s71, s70, 4096
          {lf}:""")
    lq = g.lab("LQ")
    g(f"s_mov_b64 s[62:63], -1\ns_cmp_lt_u32 s3, 4\ns_cbranch_scc1 {lq}\ns_waitcnt vmcnt(0)\n{lq}:\ns_barrier")
    g.stamp(5)
    for tt in range(2):
        for tpi in range(2):
            for e in range(2):
                r = 64 + 16*tt + 8*tpi + 4*e
                g(f"ds_read_b64_tr_b16 v[{r}:{r+1}], v{[8,12][tpi]} offset:{tt*4096+e*8}")
                g(f"ds_read_b64_tr_b16 v[{r+2}:{r+3}], v{[9,13][tpi]} offset:{tt*4096+e*8}")
    def cdual(cond):
        lnd = g.lab("ND")
        g(f"""{cond}
              s_cbranch_scc1 {lnd}
              s_cmp_ge_u32 s3, 4
              s_cbranch_scc1 {lnd}""")
        g.mask_j4()
        g(f"""buffer_store_dwordx4 v[24:27], v18, s[56:59], s68 offen sc1
              buffer_store_dword v28, v19, s[56:59], s69 offen sc1
              s_mov_b64 exec, -1
              {lnd}:""")
    l = g.poll_begin(dual=True)
    cdual("s_cmp_lg_u32 s61, 3")
    g("s_mov_b64 exec, s[62:63]")
    for tt in range(2):
        g(f"buffer_load_dwordx4 v[{96+4*tt}:{99+4*tt}], v15, s[52:55], s65 offen offset:{tt*1024} sc1")
    g(f"""buffer_load_dwordx2 v[112:113], v15, s[52:55], s66 offen sc1
          s_mov_b64 exec, -1
          s_waitcnt vmcnt(0) lgkmcnt(0)""")
    for tt in range(2):
        for q in range(4): g.mfma(40+4*q, 64+16*tt+4*q, 96+4*tt, tt == 0)
    for tt in range(2): g.verify(96+4*tt, 112+tt, tt == 0)
    g.poll_end(l, dual=True)
    g.stamp(1)
    for k in range(8): g(f"v_add_f32_dpp v{40+k}, v{40+k}, v{40+k} row_ror:8 row_mask:0xf bank_mask:0x3")
    for k in range(8): g(f"v_add_f32_dpp v{40+k}, v{48+k}, v{48+k} row_ror:8 row_mask:0xf bank_mask:0xc")
    for k in range(4): g(f"v_add_f32_dpp v{40+k}, v{40+k}, v{40+k} row_shl:4 row_mask:0xf bank_mask:0x5")
    for k in range(4): g(f"v_add_f32_dpp v{40+k}, v{44+k}, v{44+k} row_shr:4 row_mask:0xf bank_mask:0xa")
    lr = g.lab("R5")
    g(f"""ds_write_b128 v10, v[40:43]
          s_waitcnt lgkmcnt(0)
          s_barrier""")
    cdual("s_cmp_ge_u32 s61, 3")
    g(f"""s_cmp_eq_u32 s3, 5
          s_cbranch_scc1 {lr}
          s_cmp_lt_u32 s3, 6
          s_cbranch_scc1 L_fin""")
    red_read(g, 8, 1024)
    g(f"""v_cvt_pk_bf16_f32 v24, v24, v25
          v_mov_b32 v25, s11
          buffer_store_dwordx2 v[24:25], v17, s[40:43], s71 offen sc1""")
    g.stamp(2)
    g(f"s_branch L_fin\n{lr}:")
    g.unpack(44, 120)
    g("v_mov_b32 v50, s11\nv_mov_b32 v51, s11")
    l = g.poll_begin()
    for x in range(16):
        g(f"buffer_load_dwordx2 v[{64+2*x}:{65+2*x}], v17, s[40:43], s{70+(x>>3)} offen offset:{(x&7)*512} sc1")
    for x in range(16):
        g(f"s_waitcnt vmcnt({15-x})")
        if x == 0:
            g.unpack(46, 64)
            g("v_xor_b32 v55, s11, v65")
        else:
            g.unpack(48, 64+2*x)
            g(f"v_bitop3_b32 v55, v55, v{65+2*x}, v50 bitop3:0xf6")
            g("v_add_f32 v46, v46, v48\nv_add_f32 v47, v47, v49")
    g("v_cmp_ne_u32 s[62:63], 0, v55")
    g.poll_end(l)
    g.stamp(3)
    g("v_cvt_pk_bf16_f32 v46, v46, v47")
    g.unpack(48, 46)
    g(f"""v_add_f32 v48, v48, v44
          v_add_f32 v49, v49, v45
          v_cvt_pk_bf16_f32 v46, v48, v49
          buffer_store_dword v46, v20, s[40:43], s67 offen
          v_lshlrev_b32 v52, 16, v46
          v_add_u32_dpp v47, v46, v46 quad_perm:[1,0,3,2] {DPP}
          v_and_b32 v53, 0xffff0000, v46
          v_add_f32 v48, v52, v53
          v_add_u32_dpp v47, v47, v47 quad_perm:[2,3,0,1] {DPP}
          v_add_u32 v47, s11, v47""")
    g.mask("0x11111111")
    g(f"""buffer_store_dword v47, v21, s[40:43], s69 offen
          s_mov_b64 exec, -1""")
    g.inrow("v_add_f32", 48)
    g(f"""v_mul_f32 v54, {f32(1/32)}, v48
          v_sub_f32 v52, v52, v54
          v_sub_f32 v53, v53, v54
          v_mul_f32 v49, v52, v52
          v_fmac_f32 v49, v53, v53""")
    g.inrow("v_add_f32", 49)
    g.mask("0x00010001")
    g(f"""buffer_store_dwordx4 v[48:51], v16, s[40:43], s68 offen
          buffer_store_dwordx4 v[48:51], v16, s[56:59], s68 offen sc1""")
    g.mask("0x11111111")
    g(f"""buffer_store_dword v47, v21, s[56:59], s69 offen sc1
          s_mov_b64 exec, -1
          buffer_store_dword v46, v20, s[56:59], s67 offen sc1""")
    g.stamp(4)
    g("s_branch L_fin")

def s6(g):
    g("L_s6:")
    g.srd(48, P_W1, 2211840)
    g(f"""v_lshrrev_b32 v12, 2, v1
          v_mul_u32_u24 v12, 3456, v12
          v_and_b32 v7, 3, v1
          v_lshl_add_u32 v12, v7, 4, v12
          s_add_u32 s13, s3, 16
          s_mul_i32 s64, s13, {16*3456}
          s_lshl_b32 s14, s73, 6
          s_add_u32 s64, s64, s14
          s_lshl_b32 s65, s3, 10""")
    for k in range(3):
        g(f"""s_add_u32 m0, s65, {L_WR + 16384 + k*8192}
              s_add_u32 s13, s64, {k*128*3456}
              buffer_load_dwordx4 v12, s[48:51], s13 offen nt lds""")
    g.srd(44, P_W2, 2211840)
    g(f"""v_and_b32 v13, 7, v1
          v_xor_b32 v13, v13, v3
          s_and_b32 s13, s3, 1
          s_lshl_b32 s13, s13, 2
          v_xor_b32 v13, s13, v13
          v_lshrrev_b32 v7, 3, v1
          v_mul_u32_u24 v7, 1280, v7
          v_lshl_add_u32 v13, v13, 4, v7
          s_lshl2_add_u32 s64, s73, s12
          s_mul_i32 s64, s64, {8*1280}
          s_lshr_b32 s13, s3, 2
          s_lshl_b32 s13, s13, 7
          s_add_u32 s64, s64, s13""")
    for k in range(5):
        g(f"""s_add_u32 m0, s65, {L_W2 + k*8192}
              s_add_u32 s13, s64, {k*256}
              buffer_load_dwordx4 v13, s[44:47], s13 offen nt lds""")
    g("s_min_u32 s13, s3, 4\ns_lshl_b32 s64, s13, 7")
    tr64_addr(g, 8, 64)
    g(f"""v_lshlrev_b32 v10, 7, v2
          v_lshl_add_u32 v10, v3, 5, v10
          s_lshl_b32 s13, s3, 9
          s_add_u32 s13, s13, {L_RED}
          v_add_u32 v10, s13, v10
          v_lshlrev_b32 v11, 3, v1
          v_add_u32 v11, {L_RED}, v11
          v_mul_u32_u24 v14, 1280, v2
          v_lshl_add_u32 v14, v3, 4, v14
          v_mul_u32_u24 v15, 320, v2
          v_lshl_add_u32 v15, v3, 4, v15
          s_mul_i32 s65, s4, 5120
          s_lshl_b32 s13, s3, 8
          s_add_u32 s65, s65, s13
          s_add_u32 s65, s65, {HH}
          s_mul_i32 s67, s4, 1280
          s_lshl_b32 s13, s3, 6
          s_add_u32 s66, s67, s13
          s_add_u32 s66, s66, {HHC}
          s_add_u32 s67, s67, {HS}""")
    g(f"""v_lshrrev_b32 v12, 2, v1
          v_and_b32 v12, 3, v12
          v_and_b32 v13, 3, v1
          v_lshrrev_b32 v20, 1, v13
          s_lshl_b32 s13, s12, 1
          v_or_b32 v20, s13, v20
          v_lshrrev_b32 v7, 1, v12
          v_xor_b32 v20, v20, v7
          v_and_b32 v7, 1, v3
          v_lshlrev_b32 v7, 2, v7
          v_xor_b32 v20, v20, v7
          v_lshlrev_b32 v20, 4, v20
          v_lshl_add_u32 v20, v12, 7, v20
          v_lshl_add_u32 v20, v3, 10, v20
          v_and_b32 v7, 1, v13
          v_lshl_add_u32 v20, v7, 3, v20
          s_lshr_b32 s13, s3, 2
          s_lshl_b32 s13, s13, 12
          s_add_u32 s13, s13, {L_W2}
          v_add_u32 v20, s13, v20
          v_xor_b32 v21, 0x220, v20
          v_and_b32 v22, 3, v2
          v_lshlrev_b32 v22, 6, v22
          v_lshl_add_u32 v22, v3, 4, v22
          v_add_u32 v22, {L_UL}, v22
          v_lshlrev_b32 v23, 4, v2
          s_mul_i32 s68, s73, 10240
          s_lshl_b32 s13, s3, 8
          s_add_u32 s68, s68, s13
          s_add_u32 s68, s68, {FP}
          s_add_u32 s69, s68, 4096
          s_add_u32 s70, s68, 8192""")
    for k in range(96, 112): g(f"v_mov_b32 v{k}, 0x3f803f80")
    for k in range(5): g(f"v_mov_b32 v{170+4*k}, s11\nv_mov_b32 v{171+4*k}, s11")
    lfin, lidle, lw2 = g.lab("F6"), g.lab("I6"), g.lab("W6")
    g("s_waitcnt vmcnt(0)\ns_barrier")
    g.stamp(4)
    for k in range(5):
        g(f"ds_read_b64_tr_b16 v[{128+4*k}:{129+4*k}], v20 offset:{k*8192}")
        g(f"ds_read_b64_tr_b16 v[{130+4*k}:{131+4*k}], v21 offset:{k*8192}")
    g(f"""s_cmp_eq_u32 s3, 7
          s_cbranch_scc1 {lfin}
          s_cmp_ge_u32 s3, 5
          s_cbranch_scc1 {lidle}""")
    tr64_reads(g, 8)
    g("s_waitcnt lgkmcnt(0)")
    for t in range(4):
        for e in range(2): g.mfma(56+4*e, 64+8*t+4*e, 96+4*t, t == 0)
    g.nop(6)
    red_write(g)
    g("s_waitcnt lgkmcnt(0)\ns_barrier\ns_barrier")
    g.mask_j4()
    l = g.poll_begin(dual=True)
    for t in range(4):
        g(f"buffer_load_dwordx4 v[{96+4*t}:{99+4*t}], v14, s[52:55], s65 offen offset:{t*64} sc1")
    g(f"""buffer_load_dwordx4 v[112:115], v15, s[52:55], s66 offen sc1
          s_waitcnt vmcnt(0)""")
    for t in range(4): g.verify(96+4*t, 112+t, t == 0)
    g.poll_end(l, dual=True)
    g.unmask()
    g.stamp(1)
    for t in range(4):
        for e in range(2): g.mfma(56+4*e, 64+8*t+4*e, 96+4*t, t == 0)
    g.nop(6)
    red_write(g)
    g(f"""s_waitcnt lgkmcnt(0)
          s_barrier
          s_branch {lw2}
          {lidle}:
          s_barrier
          s_barrier
          s_barrier
          s_branch {lw2}
          {lfin}:
          s_barrier""")
    red_read(g, 5, 512)
    g(f"""v_mov_b32 v40, v24
          v_mov_b32 v41, v25
          s_barrier
          v_mul_u32_u24 v16, 320, v3
          v_lshl_add_u32 v16, v2, 4, v16
          v_mov_b32 v48, 0
          v_mov_b32 v49, 0
          v_mov_b32 v50, s11
          v_cmp_gt_u32 vcc, 4, v2
          v_mov_b32 v42, 0
          v_lshlrev_b32 v17, 2, v1
          v_cndmask_b32 v42, v42, 1.0, vcc
          v_add_u32 v17, {L_UL}, v17""")
    l = g.poll_begin(dual=True)
    g(f"buffer_load_dwordx4 v[44:47], v16, s[52:55], s67 offen sc1")
    g.mask_j4()
    g(f"""buffer_load_dwordx4 v[48:51], v16, s[52:55], s67 offen offset:256 sc1
          s_mov_b64 exec, -1
          s_waitcnt vmcnt(0)""")
    g.acc_ne("s11", "v46", True)
    g.acc_ne("s11", "v50", False)
    g.poll_end(l, dual=True)
    g.stamp(1)
    g("v_add_f32 v52, v44, v48")
    g.inrow("v_add_f32", 52)
    g(f"""v_mul_f32 v52, {f32(1/640)}, v52
          v_mul_f32 v44, {f32(1/32)}, v44
          v_mul_f32 v48, {f32(1/32)}, v48
          v_sub_f32 v44, v44, v52
          v_sub_f32 v48, v48, v52
          v_mul_f32 v48, v48, v42
          v_mul_f32 v44, v44, v44
          v_fmac_f32 v44, v48, v48
          v_add_f32 v53, v45, v49
          v_fmac_f32 v53, {f32(32.0)}, v44""")
    g.inrow("v_add_f32", 53)
    g(f"""v_mov_b32 v54, {f32(1e-5)}
          v_fmac_f32 v54, {f32(1/640)}, v53
          v_rsq_f32 v54, v54
          v_mul_f32 v40, v40, v52
          v_mul_f32 v41, v41, v52
          s_barrier""")
    g.stamp(2)
    red_read(g, 5, 512)
    g(f"""v_sub_f32 v24, v24, v40
          v_sub_f32 v25, v25, v41
          v_mul_f32 v24, v24, v54
          v_mul_f32 v25, v25, v54
          v_mul_f32 v26, {f32(-LOG2E)}, v24
          v_mul_f32 v27, {f32(-LOG2E)}, v25
          v_exp_f32 v26, v26
          v_exp_f32 v27, v27
          s_nop 0
          v_add_f32 v26, 1.0, v26
          v_add_f32 v27, 1.0, v27
          v_rcp_f32 v26, v26
          v_rcp_f32 v27, v27
          s_nop 0
          v_mul_f32 v24, v24, v26
          v_mul_f32 v25, v25, v27
          v_cvt_pk_bf16_f32 v24, v24, v25
          ds_write_b32 v17, v24
          {lw2}:
          s_waitcnt lgkmcnt(0)
          s_barrier
          ds_read_b128 v[24:27], v22
          s_waitcnt lgkmcnt(0)""")
    for k in range(5): g.mfma(148+4*k, 24, 128+4*k, True)
    g.nop(3)
    g("s_mov_b64 exec, 0xffff")
    for k in range(5):
        g(f"""v_cvt_pk_bf16_f32 v{168+4*k}, v{148+4*k}, v{149+4*k}
              v_cvt_pk_bf16_f32 v{169+4*k}, v{150+4*k}, v{151+4*k}
              buffer_store_dwordx4 v[{168+4*k}:{171+4*k}], v23, s[40:43], s{68+(k>>1)} offen offset:{(k&1)*2048} sc1""")
    g.unmask()
    g.stamp(3)
    g("s_branch L_fin")

def s7(g):
    g("L_s7:")
    lh, lj = g.lab("H7"), g.lab("J7")
    g(f"""v_lshlrev_b32 v10, 2, v1
          v_add_u32 v16, {L_RED}, v10
          s_cmp_eq_u32 s3, 7
          s_cbranch_scc1 {lh}
          v_mul_u32_u24 v14, 10240, v3
          v_lshl_add_u32 v14, v2, 4, v14
          s_mul_i32 s65, s3, {8*10240}
          s_lshl_b32 s13, s73, 8
          s_add_u32 s65, s65, s13
          s_add_u32 s65, s65, {FP}
          s_add_u32 s66, s65, {4*10240}
          s_mov_b64 s[74:75], -1
          s_cmp_eq_u32 s3, 6
          s_cselect_b32 s75, 0, s75
          v_mov_b32 v100, 0
          v_mov_b32 v101, 0
          v_mov_b32 v102, s11
          s_lshl_b32 s13, s3, 8
          v_add_u32 v10, s13, v16""")
    l = g.poll_begin()
    g(f"""buffer_load_dwordx4 v[96:99], v14, s[40:43], s65 offen sc1
          s_mov_b64 exec, s[74:75]
          buffer_load_dwordx4 v[100:103], v14, s[40:43], s66 offen sc1
          s_mov_b64 exec, -1
          s_waitcnt vmcnt(0)""")
    g.acc_ne("s11", "v98", True)
    g.acc_ne("s11", "v102", False)
    g.poll_end(l)
    g.stamp(1)
    g.unpack(24, 96); g.unpack(26, 97); g.unpack(28, 100); g.unpack(30, 101)
    for k in range(4): g(f"v_add_f32 v{24+k}, v{24+k}, v{28+k}")
    g(f"""s_nop 0
          v_permlane16_swap_b32 v24, v25
          v_permlane16_swap_b32 v26, v27
          s_nop 0
          v_add_f32 v24, v24, v25
          v_add_f32 v26, v26, v27
          s_nop 1
          v_permlane32_swap_b32 v24, v26
          s_nop 0
          v_add_f32 v24, v24, v26
          ds_write_b32 v10, v24
          s_waitcnt lgkmcnt(0)
          s_barrier
          s_branch L_fin
          {lh}:""")
    g.srd(48, P_OUT, 5120)
    g(f"""v_mul_u32_u24 v13, 1280, v3
          v_and_b32 v8, 8, v2
          v_lshl_add_u32 v11, v8, 1, v13
          v_lshl_add_u32 v13, v2, 1, v13
          v_mul_u32_u24 v12, 320, v3
          v_lshl_add_u32 v12, v8, 1, v12
          s_lshl_b32 s64, s73, 5
          s_mul_i32 s65, s4, 5120
          s_add_u32 s65, s65, s64
          s_add_u32 s65, s65, {HH}
          s_mul_i32 s66, s4, 1280
          s_lshr_b32 s13, s73, 3
          s_lshl_b32 s13, s13, 6
          s_add_u32 s66, s66, s13
          s_and_b32 s13, s73, 1
          s_lshl_b32 s13, s13, 5
          s_add_u32 s66, s66, s13
          s_lshr_b32 s13, s73, 1
          s_and_b32 s13, s13, 3
          s_lshl2_add_u32 s66, s13, s66
          s_add_u32 s66, s66, {HHC}""")
    l = g.poll_begin(dual=True)
    g(f"""buffer_load_dwordx4 v[24:27], v11, s[52:55], s65 offen sc1
          buffer_load_dword v28, v12, s[52:55], s66 offen sc1
          s_waitcnt vmcnt(0)""")
    g.verify(24, 28, True)
    g.poll_end(l, dual=True)
    g(f"""v_and_b32 v8, 2, v1
          v_cmp_ne_u32 vcc, 0, v8
          v_and_b32 v9, 4, v1
          v_cmp_ne_u32 s[74:75], 0, v9
          v_cndmask_b32 v24, v24, v25, vcc
          v_cndmask_b32 v26, v26, v27, vcc
          v_and_b32 v8, 1, v1
          v_cmp_ne_u32 vcc, 0, v8
          v_cndmask_b32 v24, v24, v26, s[74:75]
          v_lshlrev_b32 v25, 16, v24
          v_and_b32 v26, 0xffff0000, v24
          v_cndmask_b32 v30, v25, v26, vcc""")
    g.stamp(1)
    g("s_barrier")
    for w in range(7): g(f"ds_read_b32 v{64+w}, v16 offset:{w*256}")
    g("""s_waitcnt lgkmcnt(4)
         v_add_f32 v64, v64, v65
         v_add_f32 v64, v64, v66
         s_waitcnt lgkmcnt(2)
         v_add_f32 v67, v67, v68
         s_waitcnt lgkmcnt(0)
         v_add_f32 v69, v69, v70
         v_add_f32 v64, v64, v67
         v_add_f32 v64, v64, v69""")
    g.rbf(64)
    g(f"""v_add_f32 v64, v64, v30
          v_cvt_pk_bf16_f32 v64, v64, v64
          buffer_store_short v64, v13, s[48:51], s64 offen
          s_cmp_lg_u32 s73, 0
          s_cbranch_scc1 {lj}
          v_mov_b32 v65, s11
          v_mov_b32 v66, {EPOCH}
          s_mov_b64 exec, 1
          buffer_store_dword v65, v66, s[40:43], 0 offen
          s_mov_b64 exec, -1
          {lj}:""")
    g.stamp(2)

def gen(stamps=False, stop=None, W=7, we=5, wsw=16, opl=0, ea=1, npre=4, prio=1, wa=10, gb=28):
    g = G(stamps, stop)
    g.we, g.wsw, g.opl, g.ea = we, wsw, opl, ea
    g.npre, g.prio, g.wa, g.gb = npre, prio, wa, gb
    prologue(g); pwave(g); swave(g, W)
    if stop != "A": tail(g)
    g("L_end:")
    return g

def emit(g, path):
    hdr = open("cdna_kernels/" + NAME + ".s.ref").read().split("; Override launch")[0]
    txt = hdr + f"""; @launch grid=(256,1,1) block=(512,1,1) lds={LDS_BYTES}
.amdgcn_target "amdgcn-amd-amdhsa--gfx950"
.text
.globl {NAME}_kernel
.p2align 8
.type {NAME}_kernel,@function
{NAME}_kernel:
""" + "\n".join(g.L) + f"""
    s_endpgm
L_code_end:
.section .rodata,"a"
.p2align 6
.amdhsa_kernel {NAME}_kernel
  .amdhsa_next_free_vgpr 256
  .amdhsa_next_free_sgpr 102
  .amdhsa_accum_offset 256
  .amdhsa_group_segment_fixed_size 0
  .amdhsa_kernarg_size 96
  .amdhsa_user_sgpr_count 2
  .amdhsa_user_sgpr_kernarg_segment_ptr 1
  .amdhsa_system_sgpr_workgroup_id_x 1
.end_amdhsa_kernel
"""
    open(path, "w").write(txt)

if __name__ == "__main__":
    import argparse
    ap = argparse.ArgumentParser()
    ap.add_argument("-o", default="k.s")
    ap.add_argument("--stamps", action="store_true")
    ap.add_argument("--stop", default=None)
    ap.add_argument("-W", type=int, default=7)
    ap.add_argument("--we", type=int, default=5)
    ap.add_argument("--wsw", type=int, default=16)
    ap.add_argument("--opl", type=int, default=0)
    ap.add_argument("--ea", type=int, default=1)
    ap.add_argument("--npre", type=int, default=4)
    ap.add_argument("--prio", type=int, default=1)
    ap.add_argument("--wa", type=int, default=10)
    ap.add_argument("--gb", type=int, default=28)
    a = ap.parse_args()
    emit(gen(a.stamps, a.stop, a.W, a.we, a.wsw, a.opl, a.ea, a.npre, a.prio, a.wa, a.gb), a.o)
```

```python
import sys, struct
NAME = "sequential_preLN__compressed_kv_cla__dense_activation_silu__decode"

EPOCH = 0x0
QP, QPC = 0x10000, 0x30000
QA = 0x40000
OP = 0x100000
OBLK = 20736
CP, CPC = 0x620000, 0x660000
AP = 0x680000
HH, HHC, HS = 0x6B0000, 0x6BA000, 0x6BD000
FP = 0x700000
DUAL = 0x800000
STAMP = 0x1000000
STAMP2 = 0x1040000
WS_REC = 0x1100000

L_R2 = 131072
L_WQ = 0
L_WUK = 40960
L_QA = L_R2
L_XN = L_R2 + 20480
L_P = L_R2 + 25600
L_MX = L_R2 + 29696
L_SM = L_MX + 256
L_CC = L_SM + 256
L_FL = L_CC + 1024
LDS_BYTES = 163840
assert L_FL + 64 <= LDS_BYTES
L_WUV = 0
L_WR = 32768
L_W2 = L_WR + 40960
L_RED = L_W2 + 40960
L_UL = L_RED + 8192
F_A, F_S2, F_QA, F_T0, F_T1, F_RD, F_SM, F_S1, F_UK, F_UR, F_MX, F_GO = 0, 4, 8, 12, 16, 20, 24, 28, 32, 36, 40, 44

HASH_A, HASH_C = 1664525, 1013904223
SPIN_MAX = 20000
def f32(x): return "0x%08x" % struct.unpack("<I", struct.pack("<f", x))[0]
LOG2E = 1.4426950408889634
SCALE = (128 ** -0.5) * LOG2E
P_X, P_CKV, P_WQ, P_WUK, P_WUV, P_WO, P_BX, P_W1, P_W2, P_OUT, P_DBG, P_WS = 16, 18, 20, 22, 24, 26, 28, 30, 32, 34, 36, 38
DPP = "row_mask:0xf bank_mask:0xf"

class G:
    def __init__(self, stamps=False, stop=None):
        self.L = []; self.stamps = stamps; self.stop = stop; self.nlab = 0
    def __call__(self, s):
        for line in s.strip("\n").split("\n"):
            line = line.strip()
            if line:
                self.L.append("    " + line if not line.endswith(":") else line)
    def lab(self, p="L"):
        self.nlab += 1
        return f"{p}_{self.nlab}"
    def nop(self, n):
        while n > 0:
            k = min(n, 16); self(f"s_nop {k-1}"); n -= k
    def srd(self, d, ptr, size):
        self(f"""s_mov_b32 s{d}, s{ptr}
                 s_and_b32 s{d+1}, s{ptr+1}, 0xffff
                 s_mov_b32 s{d+2}, {size}
                 s_mov_b32 s{d+3}, 0x20000""")
    def ws_srds(self):
        self.srd(40, P_WS, WS_REC)
        self(f"""s_add_u32 s56, s{P_WS}, {DUAL}
                 s_addc_u32 s57, s{P_WS+1}, 0
                 s_and_b32 s57, s57, 0xffff
                 s_mov_b32 s58, {DUAL}
                 s_mov_b32 s59, 0x20000""")
    def stamp(self, idx):
        if self.stamps:
            self(f"s_memrealtime s[{76+2*idx}:{77+2*idx}]")
    def flag_add(self, off):
        self(f"""s_mov_b64 exec, 1
                 ds_add_u32 v4, v5 offset:{off}
                 s_mov_b64 exec, -1""")
    def flag_wait(self, off, val):
        l = self.lab("FW"); x = self.lab("FX")
        self(f"""s_mov_b32 s15, 0
                 {l}:
                 ds_read_b32 v6, v4 offset:{off}
                 s_add_u32 s15, s15, 1
                 s_cmp_gt_u32 s15, {SPIN_MAX*8}
                 s_cbranch_scc1 {x}
                 s_waitcnt lgkmcnt(0)
                 v_readfirstlane_b32 s14, v6
                 s_cmp_lt_u32 s14, {val}
                 s_cbranch_scc1 {l}
                 {x}:""")
    def chk(self, dst, p):
        self(f"""v_add3_u32 v{dst}, v{p}, v{p+1}, s11
                 v_add3_u32 v{dst}, v{p+2}, v{p+3}, v{dst}""")
    def acc_ne(self, a, b, first):
        if first:
            self(f"v_cmp_ne_u32 s[62:63], {a}, {b}")
        else:
            self(f"""v_cmp_ne_u32 vcc, {a}, {b}
                     s_or_b64 s[62:63], s[62:63], vcc""")
    def verify(self, p, c, first, t=7):
        self.chk(t, p)
        self.acc_ne(f"v{t}", f"v{c}", first)
    def poll_begin(self, dual=False):
        l = self.lab("PL")
        if dual:
            self("""s_mov_b32 s52, s40
                    s_mov_b32 s53, s41
                    s_mov_b32 s54, %d
                    s_mov_b32 s55, 0x20000""" % DUAL)
        self(f"s_mov_b32 s61, 0\n{l}:")
        return l
    def poll_end(self, l, dual=False):
        x = self.lab("PX")
        self(f"""s_cmp_eq_u64 s[62:63], 0
                 s_cbranch_scc1 {x}
                 s_add_u32 s61, s61, 1""")
        if dual:
            self("""s_and_b32 s14, s61, 7
                    s_cmp_eq_u32 s14, 7
                    s_cselect_b32 s52, s56, s40
                    s_cselect_b32 s53, s57, s41""")
        self(f"""s_cmp_lt_u32 s61, {SPIN_MAX}
                 s_cbranch_scc1 {l}
                 {x}:""")
    def xrow(self, op, v, t):
        self(f"""v_mov_b32 v{t}, v{v}
                 s_nop 1
                 v_permlane16_swap_b32 v{v}, v{t}
                 s_nop 0
                 {op} v{v}, v{v}, v{t}
                 v_mov_b32 v{t}, v{v}
                 s_nop 1
                 v_permlane32_swap_b32 v{v}, v{t}
                 s_nop 0
                 {op} v{v}, v{v}, v{t}""")
    def inrow(self, op, v, rors=(8, 4, 2, 1)):
        for r in rors:
            self(f"s_nop 1\n{op}_dpp v{v}, v{v}, v{v} row_ror:{r} {DPP}")
    def wave_sum(self, v, t):
        self.inrow("v_add_f32", v); self.xrow("v_add_f32", v, t)
    def rbf(self, v):
        self(f"v_cvt_pk_bf16_f32 v{v}, v{v}, v{v}\nv_lshlrev_b32 v{v}, 16, v{v}")
    def unpack(self, dst, src):
        self(f"v_lshlrev_b32 v{dst}, 16, v{src}\nv_and_b32 v{dst+1}, 0xffff0000, v{src}")
    def mfma(self, d, a, b, first):
        c = "0" if first else f"v[{d}:{d+3}]"
        self(f"v_mfma_f32_16x16x32_bf16 v[{d}:{d+3}], v[{a}:{a+3}], v[{b}:{b+3}], {c}")
    def pack8(self, p, d):
        for k in range(4):
            self(f"v_cvt_pk_bf16_f32 v{p+k}, v{d+2*k}, v{d+2*k+1}")
    def mask(self, m):
        self(f"s_mov_b32 exec_lo, {m}\ns_mov_b32 exec_hi, {m}")
    def mask_j4(self): self.mask("0x000f000f")
    def unmask(self): self("s_mov_b64 exec, -1")
    def dump(self, base):
        if self.dbg:
            g = self
            g("s_waitcnt lgkmcnt(0)")
            if base == STAMP2:
                lb = g.lab("DB")
                g(f"""v_mov_b32 v239, 0
                      s_not_b32 s13, s76
                      v_writelane_b32 v239, s13, 0
                      v_writelane_b32 v239, s76, 1
                      s_cmp_lt_u32 s3, 4
                      s_cbranch_scc1 {lb}""")
                for lane, k in ((2, 2), (3, 4), (4, 6), (5, 7), (6, 8)):
                    g(f"v_writelane_b32 v239, s{76+2*k}, {lane}")
                g(f"{lb}:")
                for k in range(1, 12): g(f"s_mov_b32 s{76+2*k}, 0")
            else:
                l0, l1, le = g.lab("DB"), g.lab("DB"), g.lab("DB")
                for lane, k in ((7, 9), (8, 10), (9, 11)):
                    g(f"v_writelane_b32 v239, s{76+2*k}, {lane}")
                g(f"""s_cmp_eq_u32 s72, 0
                      s_cbranch_scc1 {l0}
                      s_cmp_eq_u32 s72, 1
                      s_cbranch_scc1 {l1}
                      v_writelane_b32 v239, s78, 14
                      v_writelane_b32 v239, s80, 15
                      s_branch {le}
                      {l0}:
                      v_writelane_b32 v239, s78, 10
                      v_writelane_b32 v239, s82, 11
                      s_branch {le}
                      {l1}:
                      v_writelane_b32 v239, s78, 12
                      v_writelane_b32 v239, s82, 13
                      {le}:""")
                g.srd(44, P_DBG, 256)
                g("""v_lshlrev_b32 v238, 2, v1
                     s_mov_b64 exec, 0xffff
                     buffer_atomic_umax v239, v238, s[44:47], 0 offen sc1""")
            return
        if self.stamps:
            self("s_waitcnt lgkmcnt(0)")
            for k in range(12):
                self(f"v_mov_b32 v{240+k}, s{76+2*k}")
            self(f"""s_lshl_b32 s13, s2, 3
                  s_add_u32 s13, s13, s3
                  s_lshl_b32 s13, s13, 6
                  s_add_u32 s13, s13, {base}
                  v_mov_b32 v7, 0
                  s_mov_b64 exec, 1
                  buffer_store_dwordx4 v[240:243], v7, s[40:43], s13 offen
                  buffer_store_dwordx4 v[244:247], v7, s[40:43], s13 offen offset:16
                  buffer_store_dwordx4 v[248:251], v7, s[40:43], s13 offen offset:32
                  s_mov_b64 exec, -1""")
            for k in range(1, 12): self(f"s_mov_b32 s{76+2*k}, 0")
    def finish(self):
        self.dump(STAMP)
        self("s_endpgm")

def tag_load(g): g(f"s_load_dword s11, s[{P_WS}:{P_WS+1}], {EPOCH}")
def tag_fin(g):
    g(f"""s_waitcnt lgkmcnt(0)
          s_mul_i32 s11, s11, {HASH_A}
          s_add_u32 s11, s11, {HASH_C}""")

def prologue(g):
    g(f"""s_cmp_ge_u32 s2, 256
          s_cbranch_scc1 L_end
          s_load_dwordx16 s[16:31], s[0:1], 0
          s_load_dwordx8 s[32:39], s[0:1], 64""")
    if g.stamps:
        for k in range(12): g(f"s_mov_b32 s{76+2*k}, 0")
    g.stamp(0)
    g(f"""v_lshrrev_b32 v2, 6, v0
          v_and_b32 v1, 63, v0
          s_and_b32 s4, s2, 7
          v_readfirstlane_b32 s3, v2
          s_lshr_b32 s5, s2, 3
          s_lshr_b32 s6, s5, 3
          s_lshl2_add_u32 s6, s4, s6
          s_and_b32 s7, s5, 7
          v_lshrrev_b32 v3, 4, v1
          v_and_b32 v9, 7, v1
          v_xor_b32 v9, v9, v3
          v_and_b32 v2, 1, v2
          v_lshlrev_b32 v2, 2, v2
          v_xor_b32 v9, v2, v9
          v_lshlrev_b32 v9, 4, v9
          v_lshrrev_b32 v10, 3, v1
          v_lshl_add_u32 v9, v10, 13, v9
          s_and_b32 s12, s3, 3
          v_and_b32 v2, 15, v1
          s_cmp_lt_u32 s3, 4
          s_cbranch_scc1 L_swave""")

def ids2(g):
    g(f"""s_lshr_b32 s8, s4, 1
          s_and_b32 s9, s5, 1
          s_and_b32 s10, s4, 1
          s_lshl_b32 s10, s10, 4
          s_lshr_b32 s13, s5, 1
          s_add_u32 s10, s10, s13
          v_mov_b32 v4, {L_FL}
          v_mov_b32 v5, 1""")

def pwave(g):
    g(f"""v_lshlrev_b32 v7, 4, v1
          v_lshlrev_b32 v8, 2, v1
          s_mul_i32 s64, s12, 1280
          v_lshlrev_b32 v15, 6, v2
          v_lshl_add_u32 v15, v3, 4, v15
          s_lshl_b32 s67, s6, 12
          s_add_u32 s67, s67, {QP}
          s_lshl_b32 s68, s6, 10
          s_add_u32 s68, s68, {QPC}
          s_mov_b32 s46, 5120
          s_mov_b32 s47, 0x20000
          {"s_setprio 3" if g.prio else ""}
          s_bitcmp1_b32 s5, 0
          s_cbranch_scc1 L_p_b
          s_waitcnt lgkmcnt(0)
          s_mov_b32 s44, s{P_X}
          s_and_b32 s45, s{P_X+1}, 0xffff
          buffer_load_dwordx4 v[16:19], v7, s[44:47], s64 offen
          buffer_load_dword v20, v8, s[44:47], s64 offen offset:1024
          s_barrier""")
    tag_load(g)
    g.ws_srds()
    ids2(g)
    g(f"""s_lshr_b32 s69, s7, 1
          s_lshl_b32 s13, s12, 10
          s_add_u32 s65, s67, s13
          s_lshl_b32 s13, s69, 8
          s_add_u32 s65, s65, s13
          s_add_u32 s66, s68, s13
          s_lshl2_add_u32 s66, s12, s66
          s_waitcnt vmcnt(0)""")
    g.stamp(1)
    for k in range(5): g.unpack(24+2*k, 16+k)
    g(f"""v_add_f32 v34, v24, v25
          v_add_f32 v35, v26, v27
          v_add_f32 v36, v28, v29
          v_add_f32 v37, v30, v31
          v_add_f32 v38, v32, v33
          v_add_f32 v34, v34, v35
          v_add_f32 v36, v36, v37
          v_add_f32 v34, v34, v38
          v_add_f32 v34, v34, v36""")
    g.wave_sum(34, 35)
    g(f"v_mul_f32 v34, {f32(1/640)}, v34")
    g("v_sub_f32 v36, v24, v34\nv_mul_f32 v35, v36, v36")
    for k in range(1, 10):
        g(f"v_sub_f32 v36, v{24+k}, v34\nv_fmac_f32 v35, v36, v36")
    g.wave_sum(35, 36)
    g(f"v_mul_f32 v35, {f32(1/640)}, v35")
    g.rbf(35)
    g(f"v_add_f32 v35, {f32(1e-5)}, v35")
    g.rbf(35)
    g("v_sqrt_f32 v35, v35")
    g.rbf(34)
    g.rbf(35)
    g("v_rcp_f32 v35, v35")
    for k in range(10): g(f"v_sub_f32 v{24+k}, v{24+k}, v34")
    for k in range(5): g(f"v_cvt_pk_bf16_f32 v{16+k}, v{24+2*k}, v{25+2*k}")
    for k in range(5): g.unpack(24+2*k, 16+k)
    for k in range(10): g(f"v_mul_f32 v{24+k}, v{24+k}, v35")
    for k in range(5): g(f"v_cvt_pk_bf16_f32 v{16+k}, v{24+2*k}, v{25+2*k}")
    g(f"""s_add_u32 s13, s64, {L_XN}
          v_add_u32 v7, s13, v7
          v_add_u32 v8, s13, v8
          ds_write_b128 v7, v[16:19]
          ds_write_b32 v8, v20 offset:1024""")
    g.flag_add(F_A)
    tag_fin(g)
    g(f"""v_lshrrev_b32 v10, 2, v1
          v_and_b32 v10, 3, v10
          v_and_b32 v11, 3, v1
          s_and_b32 s13, s12, 1
          s_lshl_b32 s13, s13, 2
          v_or_b32 v11, s13, v11
          v_lshrrev_b32 v12, 1, v10
          v_xor_b32 v11, v11, v12
          v_and_b32 v12, 1, v3
          v_lshlrev_b32 v12, 2, v12
          v_xor_b32 v11, v11, v12
          v_lshlrev_b32 v11, 4, v11
          v_lshl_add_u32 v11, v10, 7, v11
          v_lshl_add_u32 v11, v3, 10, v11
          s_lshr_b32 s13, s12, 1
          s_mul_i32 s13, s13, 20480
          s_add_u32 s13, s13, {L_WQ}
          v_add_u32 v11, s13, v11
          v_xor_b32 v12, 0x220, v11
          v_and_b32 v13, 3, v2
          v_mul_u32_u24 v13, 1280, v13
          v_lshl_add_u32 v13, v3, 4, v13
          s_mul_i32 s13, s69, 320
          s_add_u32 s13, s13, {L_XN}
          v_add_u32 v13, s13, v13""")
    g(f"""v_and_b32 v24, 3, v2
          v_lshlrev_b32 v24, 16, v24
          v_lshl_add_u32 v24, v3, 5, v24
          v_and_b32 v7, 4, v2
          v_lshl_add_u32 v24, v7, 2, v24
          v_cmp_ne_u32 s[74:75], 0, v7
          s_lshl2_add_u32 s13, s69, s12
          s_lshl_b32 s13, s13, 7
          s_lshl_b32 s70, s6, 11
          s_add_u32 s70, s70, s13
          s_add_u32 s70, s70, {QA}
          v_mov_b32 v34, s11
          v_mov_b32 v35, s11
          v_lshrrev_b32 v26, 2, v2
          v_and_b32 v27, 3, v2
          v_lshrrev_b32 v25, 1, v27
          v_xor_b32 v25, v25, v3
          v_xor_b32 v25, v25, v7
          v_lshlrev_b32 v25, 4, v25
          v_lshl_add_u32 v25, v27, 7, v25
          v_lshl_add_u32 v25, v26, 11, v25
          s_lshl_b32 s13, s12, 13
          s_add_u32 s13, s13, {L_WUK}
          v_add_u32 v25, s13, v25
          v_xor_b32 v26, 64, v25
          v_xor_b32 v27, 0x220, v25
          v_xor_b32 v28, 0x260, v25
          s_mov_b32 s52, s40
          s_mov_b32 s53, s41
          s_mov_b32 s54, {DUAL}
          s_mov_b32 s55, 0x20000
          s_mov_b32 s61, 0""")
    g.flag_wait(F_A, 8)
    g.stamp(2)
    def s1_reads(t):
        g(f"ds_read_b128 v[{36+4*t}:{39+4*t}], v13 offset:{t*64}")
        for e in range(2):
            r = 96 + 8*t + 4*e
            g(f"ds_read_b64_tr_b16 v[{r}:{r+1}], v11 offset:{t*4096+e*8}")
            g(f"ds_read_b64_tr_b16 v[{r+2}:{r+3}], v12 offset:{t*4096+e*8}")
    s1_reads(0); s1_reads(1); s1_reads(2)
    for t in range(5):
        rem = min(5, t+3) - (t+1)
        g(f"s_waitcnt lgkmcnt({rem*5})")
        for e in range(2): g.mfma(56+4*e, 96+8*t+4*e, 36+4*t, t == 0)
        if t + 3 < 5: s1_reads(t+3)
    g.nop(6)
    g.mask_j4()
    g.pack8(16, 56)
    g.chk(20, 16)
    g(f"""buffer_store_dwordx4 v[16:19], v15, s[40:43], s65 offen
          buffer_store_dword v20, v15, s[40:43], s66 offen
          s_mov_b64 exec, -1""")
    g.stamp(3)
    def qdual():
        g.mask_j4()
        g(f"""buffer_store_dwordx4 v[16:19], v15, s[56:59], s65 offen sc1
              buffer_store_dword v20, v15, s[56:59], s66 offen sc1
              s_mov_b64 exec, -1""")
    g.flag_wait(F_UK, 4)
    for e in range(2):
        for t in range(4):
            r = 64 + 16*e + 4*t
            g(f"ds_read_b128 v[{r}:{r+3}], v{25+2*e+(t&1)} offset:{(t>>1)*1024}")
    l, lnd = g.lab("PL"), g.lab("ND")
    g(f"""s_mov_b64 s[62:63], -1
          {l}:
          s_cmp_lg_u32 s61, 3
          s_cbranch_scc1 {lnd}""")
    qdual()
    g(f"{lnd}:\ns_mov_b64 exec, s[62:63]")
    for t in range(4):
        g(f"buffer_load_dwordx4 v[{36+4*t}:{39+4*t}], v15, s[52:55], s67 offen offset:{t*1024} sc1")
    g(f"""buffer_load_dwordx4 v[52:55], v15, s[52:55], s68 offen sc1
          s_mov_b64 exec, -1
          s_waitcnt vmcnt(0) lgkmcnt(0)""")
    for t in range(4):
        for e in range(2): g.mfma(56+4*e, 64+16*e+4*t, 36+4*t, t == 0)
    for t in range(4): g.verify(36+4*t, 52+t, t == 0)
    g.poll_end(l, dual=True)
    for r in (4, 8):
        for k in range(8): g(f"v_add_f32_dpp v{56+k}, v{56+k}, v{56+k} row_ror:{r} {DPP}")
    g.pack8(28, 56)
    g.mask("0x00ff00ff")
    g(f"""v_cndmask_b32 v32, v28, v30, s[74:75]
          v_cndmask_b32 v33, v29, v31, s[74:75]
          buffer_store_dwordx4 v[32:35], v24, s[40:43], s70 offen sc1
          s_mov_b64 exec, -1""")
    g.flag_add(F_GO)
    g.stamp(4)
    lnd = g.lab("ND")
    g(f"s_cmp_ge_u32 s61, 3\ns_cbranch_scc1 {lnd}")
    qdual()
    g(f"{lnd}:\ns_waitcnt vmcnt(0)")
    g.flag_add(F_S2)
    g("s_branch L_p_gather")
    g(f"""L_p_b:
          s_waitcnt lgkmcnt(0)
          s_mov_b32 s44, s{P_X}
          s_and_b32 s45, s{P_X+1}, 0xffff
          s_getpc_b64 s[70:71]
          L_pc:
          s_sub_u32 s48, s70, L_pc-{NAME}_kernel
          s_subb_u32 s49, s71, 0
          s_and_b32 s49, s49, 0xffff
          s_mov_b32 s50, L_code_end-{NAME}_kernel
          s_mov_b32 s51, 0x20000
          s_lshr_b32 s13, s5, 1
          s_lshl2_add_u32 s13, s13, s12
          s_lshl_b32 s13, s13, 9
          v_lshlrev_b32 v10, 3, v1
          buffer_load_dwordx2 v[254:255], v10, s[48:51], s13 offen""")
    tag_load(g)
    g.ws_srds()
    g(f"""s_lshr_b32 s69, s7, 1
          s_lshl_b32 s13, s12, 10
          s_add_u32 s65, s67, s13
          s_lshl_b32 s13, s69, 8
          s_add_u32 s65, s65, s13
          s_add_u32 s66, s68, s13""")
    g.mask_j4()
    g(f"""buffer_load_dword v64, v15, s[40:43], s65 offen sc1
          buffer_load_dword v65, v15, s[40:43], s66 offen sc1
          s_mov_b64 exec, -1
          s_barrier""")
    for k in range(14, 20): g(f"v_mov_b32 v{k}, 0")
    ids2(g)
    tag_fin(g)
    g("L_p_gather:")
    if g.stop == "A":
        g("s_waitcnt vmcnt(0)"); g.finish(); return
    g("s_nop 1")
    g(f"""v_lshrrev_b32 v10, 2, v1
          v_and_b32 v10, 3, v10
          v_and_b32 v11, 3, v1
          v_lshrrev_b32 v12, 1, v10
          v_and_b32 v13, 2, v3
          v_or_b32 v12, v12, v13
          v_and_b32 v13, 1, v3
          v_lshl_or_b32 v12, v13, 2, v12
          v_xor_b32 v12, v12, v11
          v_lshlrev_b32 v12, 4, v12
          v_lshl_or_b32 v13, v13, 2, v10
          v_lshl_add_u32 v12, v13, 7, v12
          v_lshrrev_b32 v13, 1, v3
          v_lshl_add_u32 v12, v13, 10, v12
          v_and_b32 v13, 1, v11
          v_lshl_add_u32 v12, v13, 3, v12
          s_lshl_b32 s13, s12, 12
          v_add_u32 v20, s13, v12
          v_xor_b32 v21, 8, v20
          v_xor_b32 v22, 64, v20
          v_xor_b32 v23, 0x48, v20
          v_add_u32 v24, 0x10000, v20
          v_add_u32 v25, 0x10000, v21
          v_add_u32 v26, 0x10000, v22
          v_add_u32 v27, 0x10000, v23
          v_lshlrev_b32 v28, 4, v1
          v_lshlrev_b32 v33, 3, v1
          s_lshl2_add_u32 s13, s9, s12
          s_lshl_b32 s65, s13, 13
          s_lshl_b32 s14, s8, 16
          s_add_u32 s65, s65, s14
          s_add_u32 s65, s65, {QA}
          s_add_u32 s66, s65, 4096""")
    for n in range(4):
        g(f"""s_lshl2_add_u32 s13, s12, {n}
              s_lshl_b32 s14, s13, 4
              v_xor_b32 v{29+n}, s14, v33
              s_lshl_b32 s13, s13, 10
              s_add_u32 s13, s13, {L_QA}
              v_add_u32 v{29+n}, s13, v{29+n}""")
    role_decode(g)
    def gather_loads():
        for n in range(8):
            g(f"buffer_load_dwordx4 v[{64+4*n}:{67+4*n}], v28, s[40:43], s{65+(n>>2)} offen offset:{(n&3)*1024} sc1")
    def pv_pre(tile):
        for sw in range(4):
            for tp in range(4):
                for e in range(2):
                    r = 128 + ((tp*2+e)*4 + sw)*4 + 2*tile
                    a = 20 + (tp & 1)*2 + e + (4 if sw >= 2 else 0)
                    off = (sw & 1)*32768 + tile*16384 + (tp >> 1)*2048
                    g(f"ds_read_b64_tr_b16 v[{r}:{r+1}], v{a} offset:{off}")
    lga, lgb = g.lab("GA"), g.lab("GB")
    g(f"s_bitcmp1_b32 s5, 0\ns_cbranch_scc1 {lga}")
    g.flag_wait(F_S2, 4)
    g.stamp(5)
    gather_loads()
    g(f"{lga}:")
    g.flag_wait(F_T0, 4)
    pv_pre(0)
    g("s_waitcnt lgkmcnt(0)")
    g.flag_add(F_RD)
    g(f"s_bitcmp0_b32 s5, 0\ns_cbranch_scc1 {lgb}")
    g.flag_wait(F_S2, 4)
    g.stamp(5)
    gather_loads()
    g(f"{lgb}:")
    lsk, lp, lx = g.lab("GS"), g.lab("GL"), g.lab("GX")
    g(f"""s_mov_b32 s64, 0xff
          s_mov_b32 s61, 0
          s_branch {lsk}
          {lp}:""")
    for n in range(8):
        ls = g.lab("G")
        g(f"""s_bitcmp1_b32 s64, {n}
              s_cbranch_scc0 {ls}
              buffer_load_dwordx4 v[{64+4*n}:{67+4*n}], v28, s[40:43], s{65+(n>>2)} offen offset:{(n&3)*1024} sc1
              {ls}:""")
    g(f"{lsk}:\ns_waitcnt vmcnt(0)")
    for n in range(8):
        ls = g.lab("G")
        g(f"""v_cmp_ne_u32 vcc, s11, v{66+4*n}
              s_cbranch_vccnz {ls}
              ds_write_b64 v{29+(n>>1)}, v[{64+4*n}:{65+4*n}] offset:{(n&1)*512}
              s_bitset0_b32 s64, {n}
              {ls}:""")
    g(f"""s_cmp_eq_u32 s64, 0
          s_cbranch_scc1 {lx}
          s_add_u32 s61, s61, 1
          s_cmp_lt_u32 s61, {SPIN_MAX}
          s_cbranch_scc1 {lp}
          {lx}:""")
    g.flag_add(F_QA)
    g.stamp(6)
    lpt = g.lab("PT")
    g(f"""s_cmp_lg_u32 s3, 5
          s_cbranch_scc1 {lpt}
          s_cmp_lg_u32 s72, 0
          s_cbranch_scc1 {lpt}""")
    hh_addr(g, 116, 117, 118)
    g(f"""s_lshl_b32 s13, s73, 6
          buffer_load_dword v120, v116, s[44:47], s13 offen
          buffer_load_dword v121, v116, s[40:43], s67 offen sc1
          buffer_load_dword v122, v117, s[40:43], s69 offen sc1
          buffer_load_dword v123, v118, s[40:43], s68 offen sc1
          {lpt}:""")
    g(f"""v_lshlrev_b32 v29, {7 if g.opl else 6}, v2
          v_lshl_add_u32 v29, v3, 4, v29
          v_lshlrev_b32 v30, 6, v2
          v_lshl_add_u32 v30, v3, 4, v30
          s_lshl2_add_u32 s65, s9, s8
          s_lshl_b32 s65, s65, 5
          s_add_u32 s65, s65, s10
          s_mul_i32 s65, s65, {OBLK}
          s_add_u32 s65, s65, {OP}
          s_lshl_b32 s13, s12, 10
          s_add_u32 s67, s65, s13
          s_add_u32 s67, s67, 16384
          s_lshl_b32 s13, s12, 12
          s_add_u32 s65, s65, s13
          v_add_u32 v31, {L_P}, v28""")
    early_setup(g)
    g.flag_wait(F_T1, 4)
    pv_pre(1)
    if g.ea: early_dma(g)
    g("s_waitcnt lgkmcnt(0)")
    g("s_barrier")
    g.stamp(7)
    for sw in range(4):
        g(f"ds_read_b128 v[{36+4*sw}:{39+4*sw}], v31 offset:{sw*1024}")
    def pv_out(tp):
        g.pack8(96+4*tp, 64+8*tp)
        g.chk(112+tp, 96+4*tp)
        g(f"buffer_store_dwordx4 v[{96+4*tp}:{99+4*tp}], v29, s[40:43], s65 offen offset:{((tp>>1)*2048+(tp&1)*64) if g.opl else tp*1024} sc1")
    for tp in range(4):
        for sw in range(4):
            if tp == 0: g(f"s_waitcnt lgkmcnt({3-sw})")
            for e in range(2): g.mfma(64+8*tp+4*e, 128+((tp*2+e)*4+sw)*4, 36+4*sw, sw == 0)
        if tp >= 1: pv_out(tp-1)
    g.nop(2)
    pv_out(3)
    g("buffer_store_dwordx4 v[112:115], v30, s[40:43], s67 offen sc1")
    g.stamp(8)
    if g.ea >= 2: early_dma(g)
    g("s_branch L_s4")

def hh_addr(g, va, vc, vs):
    g(f"""v_mul_u32_u24 v{va}, 1280, v3
          v_lshl_add_u32 v{va}, v2, 2, v{va}
          s_lshl_b32 s67, s73, 6
          s_mul_i32 s13, s4, 5120
          s_add_u32 s67, s67, s13
          s_add_u32 s67, s67, {HH}
          v_mul_u32_u24 v{vs}, 320, v3
          v_and_b32 v{vc}, 12, v2
          v_lshl_add_u32 v{vc}, v{vc}, 2, v{vs}
          s_mul_i32 s68, s4, 1280
          s_lshr_b32 s13, s73, 2
          s_lshl_b32 s13, s13, 6
          s_add_u32 s69, s68, s13
          s_and_b32 s13, s73, 3
          s_lshl2_add_u32 s69, s13, s69
          s_add_u32 s69, s69, {HHC}
          s_lshl4_add_u32 s68, s73, s68
          s_add_u32 s68, s68, {HS}""")
def v1280(g, dst):
    g(f"""v_lshrrev_b32 v{dst}, 3, v1
          v_mul_u32_u24 v{dst}, 1280, v{dst}
          v_and_b32 v7, 0x70, v9
          v_add_u32 v{dst}, v{dst}, v7""")
def early_setup(g):
    l1, le = g.lab("E1"), g.lab("EE")
    g(f"""s_mov_b32 s70, 0
          s_lshl_b32 s71, s12, 10
          s_add_u32 s71, s71, {L_WR}""")
    g.srd(44, P_WO, 5242880)
    v1280(g, 119)
    g(f"""s_and_b32 s13, s73, 1
          s_lshl1_add_u32 s13, s4, s13
          s_lshl_b32 s13, s13, 5
          s_add_u32 s13, s13, s12
          s_mul_i32 s68, s13, {8*1280}
          s_lshr_b32 s13, s73, 1
          s_lshl_b32 s13, s13, 7
          s_add_u32 s68, s68, s13
          s_mov_b32 s69, {32*1280}
          s_cmp_ge_u32 s72, 2
          s_cbranch_scc1 {le}
          s_mov_b32 s70, 4
          s_cmp_eq_u32 s72, 0
          s_cbranch_scc1 {le}""")
    g.srd(44, P_W1, 2211840)
    g(f"""v_lshrrev_b32 v119, 2, v1
          v_mul_u32_u24 v119, 3456, v119
          v_and_b32 v7, 3, v1
          v_lshl_add_u32 v119, v7, 4, v119
          s_mul_i32 s68, s12, {16*3456}
          s_lshl_b32 s13, s73, 6
          s_add_u32 s68, s68, s13
          s_mov_b32 s69, {64*3456}
          s_mov_b32 s70, 2
          {le}:""")
def early_dma(g):
    l, le = g.lab("ED"), g.lab("EX")
    g(f"""s_mov_b32 s13, s70
          s_cmp_eq_u32 s70, 0
          s_cbranch_scc1 {le}
          {l}:
          s_mov_b32 m0, s71
          s_add_u32 s71, s71, 4096
          buffer_load_dwordx4 v119, s[44:47], s68 offen nt lds
          s_add_u32 s68, s68, s69
          s_sub_u32 s13, s13, 1
          s_cmp_lg_u32 s13, 0
          s_cbranch_scc1 {l}
          {le}:""")

def swave(g, W):
    g("L_swave:")
    g(f"""s_lshr_b32 s14, s7, 1
          s_mul_i32 s64, s14, 160
          s_lshl3_add_u32 s64, s12, s64
          s_lshl_b32 s64, s64, 13
          s_lshl_b32 s13, s6, 8
          s_add_u32 s64, s64, s13
          s_lshl_b32 s68, s14, 7
          s_lshl3_add_u32 s68, s12, s68
          s_lshl_b32 s68, s68, 13
          s_add_u32 s68, s68, s13
          s_lshl_b32 s67, s12, 10
          v_mov_b32 v6, 0
          v_lshlrev_b32 v14, 2, v1
          v_add_u32 v10, {L_FL}, v14
          s_mov_b64 exec, 0xffff
          ds_write_b32 v10, v6
          s_mov_b64 exec, -1
          s_mov_b32 s50, 5242880
          s_mov_b32 s51, 0x20000
          s_and_b32 s70, s5, 1
          s_mov_b32 s71, 0
          s_mov_b64 vcc, s[70:71]
          s_waitcnt lgkmcnt(0)
          s_mov_b32 s48, s{P_WQ}
          s_and_b32 s49, s{P_WQ+1}, 0xffff
          s_barrier
          s_cbranch_vccnz L_s_setup""")
    for k in range(5):
        for ch in range(2):
            g(f"""s_add_u32 m0, s67, {L_WQ + ch*20480 + k*4096}
                  s_add_u32 s13, s64, {k*262144 + ch*128}
                  buffer_load_dwordx4 v9, s[48:51], s13 offen nt lds""")
    g("L_s_setup:")
    tag_load(g)
    ids2(g)
    g.srd(48, P_WUK, 4194304)
    g.srd(44, P_CKV, 16777216)
    g.srd(52, P_WUV, 4194304)
    g.ws_srds()
    g(f"""s_lshl_b32 s66, s7, 6
          s_lshl3_add_u32 s66, s12, s66
          s_lshl_b32 s66, s66, 13
          s_lshl_b32 s13, s6, 8
          s_add_u32 s66, s66, s13
          s_lshl_b32 s65, s12, 15
          v_lshrrev_b32 v10, 3, v1
          v_lshrrev_b32 v11, 1, v10
          v_and_b32 v11, 1, v11
          v_and_b32 v12, 4, v10
          v_or_b32 v11, v11, v12
          v_and_b32 v12, 7, v1
          v_xor_b32 v11, v11, v12
          v_lshlrev_b32 v11, 4, v11
          v_lshl_add_u32 v7, v10, 10, v11
          v_xor_b32 v8, 32, v7
          v_add_u32 v8, 8192, v8
          s_lshl_b32 s64, s8, 22
          s_lshl_b32 s13, s10, 17
          s_add_u32 s64, s64, s13
          s_add_u32 s64, s64, s65
          v_lshrrev_b32 v11, 1, v2
          v_and_b32 v11, 1, v11
          v_lshrrev_b32 v12, 3, v2
          v_lshl_or_b32 v11, v12, 1, v11
          v_and_b32 v13, 4, v2
          v_or_b32 v11, v11, v13
          v_xor_b32 v11, v11, v3
          v_lshlrev_b32 v11, 4, v11
          v_and_b32 v13, 7, v2
          v_lshl_add_u32 v11, v13, 7, v11
          v_lshl_add_u32 v11, v12, 10, v11
          v_add_u32 v11, s65, v11
          v_xor_b32 v12, 64, v11""")
    g.stamp(1)
    def areads(m):
        tile, u = m >> 3, m & 7
        for tl in range(2):
            t = 2*u + tl
            r = 64 + 64*tile + 4*t
            g(f"ds_read_b128 v[{r}:{r+3}], v{11+tl} offset:{tile*16384+u*2048}")
    g("s_cbranch_vccnz L_s_ckv\ns_lshl_b32 s69, s12, 11")
    for k in range(8):
        kk, ch = k >> 1, k & 1
        g(f"""s_waitcnt vmcnt({g.wa-1})
              s_add_u32 m0, s69, {L_WUK + kk*8192 + ch*1024}
              s_add_u32 s13, s68, {kk*262144 + ch*128}
              buffer_load_dwordx4 v9, s[48:51], s13 offen nt lds""")
    g("s_waitcnt vmcnt(8)")
    g.flag_add(F_A)
    g("s_waitcnt vmcnt(0)")
    g.flag_add(F_UK)
    g.flag_wait(F_GO, 4)
    g("L_s_ckv:")
    done = 0
    for k in range(36):
        if k == 32: g.flag_wait(F_RD, 4)
        if k == g.gb:
            lb = g.lab("SB")
            g(f"s_cbranch_vccz {lb}")
            g.flag_add(F_S2)
            g(f"{lb}:")
        if k >= g.we and k < g.wsw:
            lb = g.lab("SB")
            g(f"s_cbranch_vccz {lb}\ns_waitcnt vmcnt({g.we-1})\n{lb}:")
        if k >= W: g(f"s_waitcnt vmcnt({W-1})")
        landed = k - W
        if k < 32:
            tile, u, kh = k >> 4, (k >> 1) & 7, k & 1
            g(f"""s_add_u32 m0, s65, {k*1024}
                  s_add_u32 s13, s64, {tile*16384 + u*128}
                  buffer_load_dwordx4 v{7+kh}, s[44:47], s13 offen nt lds""")
        else:
            kk, ch = (k-32) >> 1, (k-32) & 1
            g(f"""s_add_u32 m0, s67, {L_WUV + ch*8192 + kk*4096}
                  s_add_u32 s13, s66, {kk*262144 + ch*128}
                  buffer_load_dwordx4 v9, s[52:55], s13 offen nt lds""")
        while 2*done + 1 <= landed:
            areads(done); done += 1
            if done == 8:
                tag_fin(g)
                g.flag_add(F_T0)
                g.stamp(2)
    for tl in range(4):
        g(f"""v_or_b32 v13, {4*tl}, v3
              v_xor_b32 v13, v13, v2
              v_lshlrev_b32 v13, 4, v13
              v_lshl_add_u32 v13, v2, 10, v13
              v_add_u32 v{16+tl}, {L_QA}, v13""")
    g(f"""v_lshlrev_b32 v20, 4, v2
          v_add_u32 v20, {L_MX}, v20
          s_lshl_b32 s13, s12, 2
          v_add_u32 v21, s13, v20
          v_lshlrev_b32 v22, 4, v1
          s_lshl_b32 s13, s12, 10
          s_add_u32 s13, s13, {L_P}
          v_add_u32 v22, s13, v22
          s_mov_b32 s60, {f32(SCALE)}""")
    role_decode(g)
    g.stamp(3)
    g.flag_wait(F_QA, 4)
    g.stamp(4)
    for t in range(16):
        g(f"ds_read_b128 v[{192+4*t}:{195+4*t}], v{16+(t&3)} offset:{(t>>2)*256}")
    for t in range(16):
        g(f"s_waitcnt lgkmcnt({15-t})")
        g.mfma(56, 64+4*t, 192+4*t, t == 0)
    first = True
    for m in range(8, done):
        for tl in range(2):
            t = 2*(m & 7) + tl
            g.mfma(60, 128+4*t, 192+4*t, first); first = False
    for m in range(done, 16):
        g(f"s_waitcnt vmcnt({35-(2*m+1)})")
        areads(m)
        if m == 15:
            g.flag_add(F_T1)
            g.stamp(5)
        if m > done:
            g(f"s_waitcnt lgkmcnt({3 if m == 15 else 2})")
            for tl in range(2):
                t = 2*((m-1) & 7) + tl
                g.mfma(60, 128+4*t, 192+4*t, first); first = False
    g("s_waitcnt lgkmcnt(0)")
    for tl in range(2): g.mfma(60, 128+4*(14+tl), 192+4*(14+tl), False)
    g("v_max3_f32 v24, v56, v57, v58\nv_max_f32 v24, v24, v59")
    g.nop(6)
    g("v_max3_f32 v24, v24, v60, v61\nv_max3_f32 v24, v24, v62, v63")
    g.xrow("v_max_f32", 24, 25)
    g("ds_write_b32 v21, v24")
    g.flag_add(F_MX)
    g.flag_wait(F_MX, 4)
    g(f"""ds_read_b128 v[24:27], v20
          s_waitcnt lgkmcnt(0)
          v_max3_f32 v24, v24, v25, v26
          v_max_f32 v24, v24, v27
          v_mul_f32 v24, s60, v24""")
    for k in range(8): g(f"v_fma_f32 v{56+k}, v{56+k}, s60, -v24")
    for k in range(8): g(f"v_exp_f32 v{56+k}, v{56+k}")
    g.nop(1)
    g.pack8(28, 56)
    g(f"""ds_write_b128 v22, v[28:31]
          s_waitcnt lgkmcnt(0)
          s_barrier""")
    g.stamp(6)
    g(f"""v_add_f32 v56, v56, v57
          v_add_f32 v58, v58, v59
          v_add_f32 v60, v60, v61
          v_add_f32 v62, v62, v63
          v_add_f32 v56, v56, v58
          v_add_f32 v60, v60, v62
          v_add_f32 v25, v56, v60""")
    g.xrow("v_add_f32", 25, 26)
    g(f"ds_write_b32 v21, v25 offset:{L_SM-L_MX}")
    g.flag_add(F_SM)
    lns = g.lab("NS")
    g(f"s_cmp_lg_u32 s12, 0\ns_cbranch_scc1 {lns}")
    g.flag_wait(F_SM, 4)
    g(f"""ds_read_b128 v[28:31], v20 offset:{L_SM-L_MX}
          v_lshlrev_b32 v13, 4, v2
          s_lshl2_add_u32 s13, s9, s8
          s_lshl_b32 s13, s13, 5
          s_add_u32 s13, s13, s10
          s_mul_i32 s13, s13, {OBLK}
          s_add_u32 s13, s13, {OP+20480}
          v_mov_b32 v26, s11
          v_mov_b32 v27, s11
          s_waitcnt lgkmcnt(0)
          v_add_f32 v28, v28, v29
          v_add_f32 v30, v30, v31
          v_add_f32 v25, v28, v30
          s_mov_b64 exec, 0xffff
          buffer_store_dwordx4 v[24:27], v13, s[40:43], s13 offen sc1
          s_mov_b64 exec, -1
          {lns}:""")
    g(f"""v_lshlrev_b32 v19, 6, v2
          v_lshl_add_u32 v19, v3, 4, v19
          v_mov_b32 v18, v19
          s_lshl_b32 s68, s6, 13
          s_lshr_b32 s13, s7, 2
          s_lshl_b32 s13, s13, 12
          s_add_u32 s68, s68, s13
          s_lshl_b32 s13, s12, 10
          s_add_u32 s68, s68, s13
          s_and_b32 s13, s7, 3
          s_lshl_b32 s13, s13, 8
          s_add_u32 s68, s68, s13
          s_add_u32 s68, s68, {CP}
          s_lshl_b32 s69, s6, 11
          s_lshl_b32 s13, s7, 8
          s_add_u32 s69, s69, s13
          s_lshl2_add_u32 s69, s12, s69
          s_add_u32 s69, s69, {CPC}""")
    g.mask_j4()
    g(f"""buffer_load_dword v20, v18, s[40:43], s68 offen sc1
          buffer_load_dword v21, v19, s[40:43], s69 offen sc1
          s_mov_b64 exec, -1""")
    g.stamp(7)

def role_decode(g):
    l6, l7, ld, lhi = g.lab("R6"), g.lab("R7"), g.lab("RD"), g.lab("RH")
    g(f"""s_mov_b32 s72, 0
          s_mov_b32 s73, s5
          s_cmp_lt_u32 s5, 20
          s_cbranch_scc1 {ld}
          s_sub_u32 s13, s5, 20
          s_cmp_ge_u32 s4, 2
          s_cbranch_scc1 {lhi}
          s_lshl3_add_u32 s73, s4, s13
          s_cmp_lt_u32 s13, 8
          s_cbranch_scc1 {l7}
          s_lshl2_add_u32 s73, s4, s13
          s_sub_u32 s73, s73, 8
          s_branch {l6}
          {lhi}:
          s_lshl2_add_u32 s73, s4, s13
          s_add_u32 s73, s73, 8
          s_cmp_lt_u32 s13, 4
          s_cbranch_scc1 {l7}
          s_lshl3_add_u32 s73, s4, s13
          s_sub_u32 s73, s73, 12
          {l6}:
          s_mov_b32 s72, 1
          s_cmp_lt_u32 s73, 54
          s_cbranch_scc1 {ld}
          s_mov_b32 s72, 3
          s_branch {ld}
          {l7}:
          s_mov_b32 s72, 2
          {ld}:""")

def tail(g):
    g("L_s4:")
    if g.stop == "B":
        g("s_waitcnt vmcnt(0)"); g.finish(); return
    g.dump(STAMP2)
    g(f"""s_mov_b32 s13, {OBLK}
          v_lshrrev_b32 v9, 3, v1
          v_mul_lo_u32 v9, v9, s13
          v_and_b32 v10, 3, v1
          v_lshl_add_u32 v9, v10, 4, v9
          v_and_b32 v10, 4, v1
          v_lshl_add_u32 v8, v10, {4 if g.opl else 8}, v9
          v_add_u32 v9, v9, v10
          v_and_b32 v10, 31, v1
          v_mul_lo_u32 v10, v10, s13
          s_lshr_b32 s14, s6, 4
          s_lshl3_add_u32 s64, s14, s3
          s_and_b32 s67, s64, 0xfe
          s_mul_i32 s64, s64, {16*OBLK}
          s_mul_i32 s67, s67, {16*OBLK}
          s_and_b32 s14, s6, 15
          s_lshl4_add_u32 s67, s14, s67
          s_add_u32 s67, s67, {OP+20480}
          s_lshl_b32 s14, s14, 6
          s_add_u32 s64, s64, s14
          s_lshl_b32 s13, s7, 11
          s_add_u32 s65, s64, s13
          {"s_add_u32 s65, s65, s14" if g.opl else ""}
          s_add_u32 s65, s65, {OP}
          s_lshr_b32 s13, s7, 1
          s_lshl_b32 s13, s13, 10
          s_add_u32 s66, s64, s13
          s_and_b32 s13, s7, 1
          s_lshl3_add_u32 s66, s13, s66
          s_add_u32 s66, s66, {OP+16384}
          s_add_u32 s74, s65, {8*OBLK}
          s_add_u32 s75, s66, {8*OBLK}
          v_lshrrev_b32 v11, 3, v1
          s_and_b32 s13, s3, 1
          s_lshl_b32 s13, s13, 4
          v_add_u32 v11, s13, v11
          v_lshlrev_b32 v11, 2, v11
          v_add_u32 v12, 32, v11
          v_and_b32 v13, 7, v1
          v_lshlrev_b32 v13, 4, v13
          v_and_b32 v14, 1, v3
          v_lshl_add_u32 v13, v14, 3, v13
          v_lshrrev_b32 v14, 1, v3
          v_lshl_add_u32 v13, v14, 2, v13
          s_and_b32 s13, s3, 1
          s_lshl_b32 s13, s13, 2
          s_lshr_b32 s14, s3, 1
          s_add_u32 s13, s13, s14
          s_lshl_b32 s13, s13, 7
          s_add_u32 s13, s13, {L_CC}
          v_add_u32 v13, s13, v13""")
    l = g.poll_begin()
    g(f"""buffer_load_dwordx4 v[24:27], v10, s[40:43], s67 offen sc1
          s_waitcnt vmcnt(0)
          v_cmp_ne_u32 s[62:63], s11, v26""")
    g.poll_end(l)
    g("s_barrier")
    g.stamp(9)
    g(f"""buffer_load_dwordx4 v[28:31], v8, s[40:43], s65 offen sc1
          buffer_load_dwordx4 v[32:35], v8, s[40:43], s74 offen sc1
          buffer_load_dword v36, v9, s[40:43], s66 offen sc1
          buffer_load_dword v37, v9, s[40:43], s75 offen sc1
          v_mov_b32 v38, v24""")
    g.inrow("v_max_f32", 38)
    g("""v_mov_b32 v39, v38
         s_nop 1
         v_permlane16_swap_b32 v38, v39
         s_nop 0
         v_max_f32 v38, v38, v39
         v_sub_f32 v38, v24, v38
         v_exp_f32 v38, v38
         s_nop 0
         v_mul_f32 v39, v38, v25""")
    g.inrow("v_add_f32", 39)
    g("""v_mov_b32 v40, v39
         s_nop 1
         v_permlane16_swap_b32 v39, v40
         s_nop 0
         v_add_f32 v39, v39, v40
         v_rcp_f32 v39, v39
         s_nop 0
         v_mul_f32 v38, v38, v39
         ds_bpermute_b32 v40, v11, v38
         ds_bpermute_b32 v41, v12, v38""")
    lw = g.lab("NW")
    g(f"""s_cmp_ge_u32 s3, 4
          s_cbranch_scc1 {lw}
          v_lshrrev_b32 v14, 2, v1
          v_and_b32 v14, 3, v14
          v_and_b32 v15, 1, v3
          v_lshl_or_b32 v14, v15, 2, v14
          v_and_b32 v16, 3, v1
          s_and_b32 s13, s12, 1
          s_lshl_b32 s13, s13, 2
          v_or_b32 v16, s13, v16
          v_lshrrev_b32 v17, 1, v14
          v_xor_b32 v16, v16, v17
          v_lshlrev_b32 v15, 2, v15
          v_xor_b32 v16, v16, v15
          v_lshlrev_b32 v16, 4, v16
          v_lshl_add_u32 v16, v14, 7, v16
          v_lshl_add_u32 v16, v3, 10, v16
          s_lshr_b32 s13, s12, 1
          s_lshl_b32 s13, s13, 13
          s_add_u32 s13, s13, {L_WUV}
          v_add_u32 v16, s13, v16
          v_xor_b32 v17, 0x220, v16
          v_and_b32 v14, 7, v2
          v_lshlrev_b32 v14, 7, v14
          v_lshl_add_u32 v14, v3, 4, v14
          v_add_u32 v14, {L_CC}, v14""")
    for t in range(2):
        for e in range(2):
            r = 64 + 8*t + 4*e
            g(f"ds_read_b64_tr_b16 v[{r}:{r+1}], v16 offset:{t*4096+e*8}")
            g(f"ds_read_b64_tr_b16 v[{r+2}:{r+3}], v17 offset:{t*4096+e*8}")
    g(f"{lw}:")
    lsk = g.lab("SK"); l = g.lab("PL")
    g(f"""s_mov_b32 s61, 0
          s_branch {lsk}
          {l}:
          s_mov_b64 exec, s[62:63]
          buffer_load_dwordx4 v[28:31], v8, s[40:43], s65 offen sc1
          buffer_load_dwordx4 v[32:35], v8, s[40:43], s74 offen sc1
          buffer_load_dword v36, v9, s[40:43], s66 offen sc1
          buffer_load_dword v37, v9, s[40:43], s75 offen sc1
          s_mov_b64 exec, -1
          {lsk}:
          s_waitcnt vmcnt(0)""")
    g.verify(28, 36, True)
    g.verify(32, 37, False)
    g.poll_end(l)
    g.stamp(10)
    for k in range(4):
        g.unpack(44+2*k, 28+k); g.unpack(52+2*k, 32+k)
    g("s_waitcnt lgkmcnt(0)")
    for k in range(8): g(f"v_mul_f32 v{44+k}, v{44+k}, v40")
    for k in range(8): g(f"v_fmac_f32 v{44+k}, v{52+k}, v41")
    g.nop(1)
    for k in range(4): g(f"v_permlane16_swap_b32 v{44+k}, v{48+k}")
    g.nop(1)
    for k in range(4): g(f"v_add_f32 v{44+k}, v{44+k}, v{48+k}")
    g.nop(1)
    for k in range(2): g(f"v_permlane32_swap_b32 v{44+k}, v{46+k}")
    g.nop(1)
    for k in range(2): g(f"v_add_f32 v{44+k}, v{44+k}, v{46+k}")
    g.nop(1)
    for k in range(2): g(f"v_add_f32_dpp v{44+k}, v{44+k}, v{44+k} row_ror:8 {DPP}")
    g(f"""v_cvt_pk_bf16_f32 v44, v44, v45
          ds_write_b32 v13, v44
          s_waitcnt lgkmcnt(0)
          s_barrier""")
    ln = g.lab("N4")
    g(f"""s_cmp_ge_u32 s3, 4
          s_cbranch_scc1 {ln}
          ds_read_b128 v[24:27], v14
          ds_read_b128 v[28:31], v14 offset:64
          s_waitcnt lgkmcnt(1)""")
    for t in range(2):
        if t == 1: g("s_waitcnt lgkmcnt(0)")
        for e in range(2): g.mfma(56+4*e, 64+8*t+4*e, 24+4*t, t == 0)
    g.nop(7)
    for k in range(8): g(f"v_add_f32_dpp v{56+k}, v{56+k}, v{56+k} row_ror:4 {DPP}")
    g.mask_j4()
    g.pack8(24, 56)
    g.chk(28, 24)
    g(f"""buffer_store_dwordx4 v[24:27], v18, s[40:43], s68 offen
          buffer_store_dword v28, v19, s[40:43], s69 offen
          s_cmp_eq_u32 s72, 0
          s_cbranch_scc1 {ln}_c
          buffer_store_dwordx4 v[24:27], v18, s[56:59], s68 offen sc1
          buffer_store_dword v28, v19, s[56:59], s69 offen sc1
          {ln}_c:
          s_mov_b64 exec, -1
          s_branch {ln}_b
          {ln}:""")
    if g.ea == 0: g("s_lshl_b32 s70, s70, 1")
    if g.ea < 2: early_dma(g)
    g(f"{ln}_b:")
    g.stamp(11)
    if g.stop == "C1":
        g("s_waitcnt vmcnt(0)"); g.finish(); return
    g(f"""s_cmp_eq_u32 s72, 1
          s_cbranch_scc1 L_s6
          s_cmp_eq_u32 s72, 2
          s_cbranch_scc1 L_s7
          s_cmp_eq_u32 s72, 3
          s_cbranch_scc1 L_fin""")
    s5(g); s6(g); s7(g)
    g("L_fin:")
    g.finish()


def tr64_addr(g, dst, rowbase_sgpr):
    g(f"""v_lshrrev_b32 v{dst}, 2, v1
          v_and_b32 v{dst}, 3, v{dst}
          v_lshl_add_u32 v{dst}, v3, 3, v{dst}
          v_add_u32 v{dst}, s{rowbase_sgpr}, v{dst}
          v_lshlrev_b32 v{dst}, 6, v{dst}
          v_and_b32 v7, 3, v1
          v_lshl_add_u32 v{dst}, v7, 4, v{dst}
          v_add_u32 v{dst}, {L_WR}, v{dst}""")
def tr64_reads(g, a):
    for t in range(4):
        for e in range(2):
            r = 64 + 8*t + 4*e
            g(f"ds_read_b64_tr_b16 v[{r}:{r+1}], v{a} offset:{t*2048+e*8}")
            g(f"ds_read_b64_tr_b16 v[{r+2}:{r+3}], v{a} offset:{t*2048+256+e*8}")
def red_write(g):
    g.mask_j4()
    g("""ds_write_b128 v10, v[56:59]
         ds_write_b128 v10, v[60:63] offset:16
         s_mov_b64 exec, -1""")
def red_read(g, n, stride):
    for w in range(n): g(f"ds_read_b64 v[{24+2*w}:{25+2*w}], v11 offset:{w*stride}")
    for w in range(1, n):
        g(f"s_waitcnt lgkmcnt({n-1-w})")
        g(f"v_add_f32 v24, v24, v{24+2*w}\nv_add_f32 v25, v25, v{25+2*w}")

def s5(g):
    g(f"""v_lshrrev_b32 v12, 2, v1
          v_and_b32 v12, 3, v12
          v_and_b32 v8, 3, v1
          v_lshrrev_b32 v7, 1, v12
          v_xor_b32 v8, v8, v7
          v_and_b32 v7, 1, v3
          v_lshl_or_b32 v8, v7, 2, v8
          v_lshlrev_b32 v8, 4, v8
          v_lshl_add_u32 v8, v12, 7, v8
          v_lshl_add_u32 v8, v3, 10, v8
          s_lshr_b32 s13, s3, 2
          s_and_b32 s14, s3, 1
          s_lshl1_add_u32 s13, s13, s14
          s_lshl_b32 s13, s13, 13
          s_add_u32 s13, s13, {L_WR}
          v_add_u32 v8, s13, v8
          v_xor_b32 v9, 0x220, v8
          v_xor_b32 v12, 64, v8
          v_xor_b32 v13, 0x260, v8""")
    g(f"""v_and_b32 v10, 3, v2
          v_lshlrev_b32 v10, 7, v10
          v_lshl_add_u32 v10, v3, 5, v10
          v_and_b32 v7, 4, v2
          v_lshl_add_u32 v10, v7, 2, v10
          v_and_b32 v7, 8, v2
          v_lshl_add_u32 v10, v7, 6, v10
          s_lshl_b32 s13, s3, 10
          s_add_u32 s13, s13, {L_RED}
          v_add_u32 v10, s13, v10
          v_lshlrev_b32 v17, 3, v1
          s_and_b32 s14, s3, 1
          s_lshl_b32 s13, s14, 9
          s_add_u32 s13, s13, {L_RED}
          v_add_u32 v11, s13, v17
          v_lshlrev_b32 v15, 6, v2
          v_lshl_add_u32 v15, v3, 4, v15
          s_and_b32 s13, s73, 1
          s_lshl1_add_u32 s64, s4, s13
          s_lshl3_add_u32 s13, s64, s3
          s_lshl_b32 s65, s13, 11
          s_add_u32 s65, s65, {CP}
          s_lshr_b32 s13, s13, 1
          s_lshl_b32 s66, s13, 10
          s_lshl3_add_u32 s66, s14, s66
          s_add_u32 s66, s66, {CPC}
          s_and_b32 s13, s73, 0xfe
          s_add_u32 s13, s13, s14
          s_lshl4_add_u32 s71, s13, s64
          s_lshl_b32 s71, s71, 9
          s_add_u32 s71, s71, {AP}""")
    lf = g.lab("F5")
    g(f"s_cmp_lg_u32 s3, 5\ns_cbranch_scc1 {lf}")
    hh_addr(g, 20, 21, 16)
    g(f"""s_nop 0
          s_lshl_b32 s70, s73, 13
          s_add_u32 s70, s70, {AP}
          s_add_u32 s71, s70, 4096
          {lf}:""")
    lq = g.lab("LQ")
    g(f"s_mov_b64 s[62:63], -1\ns_cmp_lt_u32 s3, 4\ns_cbranch_scc1 {lq}\ns_waitcnt vmcnt(0)\n{lq}:\ns_barrier")
    g.stamp(5)
    for tt in range(2):
        for tpi in range(2):
            for e in range(2):
                r = 64 + 16*tt + 8*tpi + 4*e
                g(f"ds_read_b64_tr_b16 v[{r}:{r+1}], v{[8,12][tpi]} offset:{tt*4096+e*8}")
                g(f"ds_read_b64_tr_b16 v[{r+2}:{r+3}], v{[9,13][tpi]} offset:{tt*4096+e*8}")
    def cdual(cond):
        lnd = g.lab("ND")
        g(f"""{cond}
              s_cbranch_scc1 {lnd}
              s_cmp_ge_u32 s3, 4
              s_cbranch_scc1 {lnd}""")
        g.mask_j4()
        g(f"""buffer_store_dwordx4 v[24:27], v18, s[56:59], s68 offen sc1
              buffer_store_dword v28, v19, s[56:59], s69 offen sc1
              s_mov_b64 exec, -1
              {lnd}:""")
    l = g.poll_begin(dual=True)
    cdual("s_cmp_lg_u32 s61, 3")
    g("s_mov_b64 exec, s[62:63]")
    for tt in range(2):
        g(f"buffer_load_dwordx4 v[{96+4*tt}:{99+4*tt}], v15, s[52:55], s65 offen offset:{tt*1024} sc1")
    g(f"""buffer_load_dwordx2 v[112:113], v15, s[52:55], s66 offen sc1
          s_mov_b64 exec, -1
          s_waitcnt vmcnt(0) lgkmcnt(0)""")
    for tt in range(2):
        for q in range(4): g.mfma(40+4*q, 64+16*tt+4*q, 96+4*tt, tt == 0)
    for tt in range(2): g.verify(96+4*tt, 112+tt, tt == 0)
    g.poll_end(l, dual=True)
    g.stamp(1)
    for k in range(8): g(f"v_add_f32_dpp v{40+k}, v{40+k}, v{40+k} row_ror:8 row_mask:0xf bank_mask:0x3")
    for k in range(8): g(f"v_add_f32_dpp v{40+k}, v{48+k}, v{48+k} row_ror:8 row_mask:0xf bank_mask:0xc")
    for k in range(4): g(f"v_add_f32_dpp v{40+k}, v{40+k}, v{40+k} row_shl:4 row_mask:0xf bank_mask:0x5")
    for k in range(4): g(f"v_add_f32_dpp v{40+k}, v{44+k}, v{44+k} row_shr:4 row_mask:0xf bank_mask:0xa")
    lr = g.lab("R5")
    g(f"""ds_write_b128 v10, v[40:43]
          s_waitcnt lgkmcnt(0)
          s_barrier""")
    cdual("s_cmp_ge_u32 s61, 3")
    g(f"""s_cmp_eq_u32 s3, 5
          s_cbranch_scc1 {lr}
          s_cmp_lt_u32 s3, 6
          s_cbranch_scc1 L_fin""")
    red_read(g, 8, 1024)
    g(f"""v_cvt_pk_bf16_f32 v24, v24, v25
          v_mov_b32 v25, s11
          buffer_store_dwordx2 v[24:25], v17, s[40:43], s71 offen sc1""")
    g.stamp(2)
    g(f"s_branch L_fin\n{lr}:")
    g.unpack(44, 120)
    g("v_mov_b32 v50, s11\nv_mov_b32 v51, s11")
    l = g.poll_begin()
    for x in range(16):
        g(f"buffer_load_dwordx2 v[{64+2*x}:{65+2*x}], v17, s[40:43], s{70+(x>>3)} offen offset:{(x&7)*512} sc1")
    for x in range(16):
        g(f"s_waitcnt vmcnt({15-x})")
        if x == 0:
            g.unpack(46, 64)
            g("v_xor_b32 v55, s11, v65")
        else:
            g.unpack(48, 64+2*x)
            g(f"v_bitop3_b32 v55, v55, v{65+2*x}, v50 bitop3:0xf6")
            g("v_add_f32 v46, v46, v48\nv_add_f32 v47, v47, v49")
    g("v_cmp_ne_u32 s[62:63], 0, v55")
    g.poll_end(l)
    g.stamp(3)
    g("v_cvt_pk_bf16_f32 v46, v46, v47")
    g.unpack(48, 46)
    g(f"""v_add_f32 v48, v48, v44
          v_add_f32 v49, v49, v45
          v_cvt_pk_bf16_f32 v46, v48, v49
          buffer_store_dword v46, v20, s[40:43], s67 offen
          v_lshlrev_b32 v52, 16, v46
          v_add_u32_dpp v47, v46, v46 quad_perm:[1,0,3,2] {DPP}
          v_and_b32 v53, 0xffff0000, v46
          v_add_f32 v48, v52, v53
          v_add_u32_dpp v47, v47, v47 quad_perm:[2,3,0,1] {DPP}
          v_add_u32 v47, s11, v47""")
    g.mask("0x11111111")
    g(f"""buffer_store_dword v47, v21, s[40:43], s69 offen
          s_mov_b64 exec, -1""")
    g.inrow("v_add_f32", 48)
    g(f"""v_mul_f32 v54, {f32(1/32)}, v48
          v_sub_f32 v52, v52, v54
          v_sub_f32 v53, v53, v54
          v_mul_f32 v49, v52, v52
          v_fmac_f32 v49, v53, v53""")
    g.inrow("v_add_f32", 49)
    g.mask("0x00010001")
    g(f"""buffer_store_dwordx4 v[48:51], v16, s[40:43], s68 offen
          buffer_store_dwordx4 v[48:51], v16, s[56:59], s68 offen sc1""")
    g.mask("0x11111111")
    g(f"""buffer_store_dword v47, v21, s[56:59], s69 offen sc1
          s_mov_b64 exec, -1
          buffer_store_dword v46, v20, s[56:59], s67 offen sc1""")
    g.stamp(4)
    g("s_branch L_fin")

def s6(g):
    g("L_s6:")
    g.srd(48, P_W1, 2211840)
    g(f"""v_lshrrev_b32 v12, 2, v1
          v_mul_u32_u24 v12, 3456, v12
          v_and_b32 v7, 3, v1
          v_lshl_add_u32 v12, v7, 4, v12
          s_add_u32 s13, s3, 16
          s_mul_i32 s64, s13, {16*3456}
          s_lshl_b32 s14, s73, 6
          s_add_u32 s64, s64, s14
          s_lshl_b32 s65, s3, 10""")
    for k in range(3):
        g(f"""s_add_u32 m0, s65, {L_WR + 16384 + k*8192}
              s_add_u32 s13, s64, {k*128*3456}
              buffer_load_dwordx4 v12, s[48:51], s13 offen nt lds""")
    g.srd(44, P_W2, 2211840)
    g(f"""v_and_b32 v13, 7, v1
          v_xor_b32 v13, v13, v3
          s_and_b32 s13, s3, 1
          s_lshl_b32 s13, s13, 2
          v_xor_b32 v13, s13, v13
          v_lshrrev_b32 v7, 3, v1
          v_mul_u32_u24 v7, 1280, v7
          v_lshl_add_u32 v13, v13, 4, v7
          s_lshl2_add_u32 s64, s73, s12
          s_mul_i32 s64, s64, {8*1280}
          s_lshr_b32 s13, s3, 2
          s_lshl_b32 s13, s13, 7
          s_add_u32 s64, s64, s13""")
    for k in range(5):
        g(f"""s_add_u32 m0, s65, {L_W2 + k*8192}
              s_add_u32 s13, s64, {k*256}
              buffer_load_dwordx4 v13, s[44:47], s13 offen nt lds""")
    g("s_min_u32 s13, s3, 4\ns_lshl_b32 s64, s13, 7")
    tr64_addr(g, 8, 64)
    g(f"""v_lshlrev_b32 v10, 7, v2
          v_lshl_add_u32 v10, v3, 5, v10
          s_lshl_b32 s13, s3, 9
          s_add_u32 s13, s13, {L_RED}
          v_add_u32 v10, s13, v10
          v_lshlrev_b32 v11, 3, v1
          v_add_u32 v11, {L_RED}, v11
          v_mul_u32_u24 v14, 1280, v2
          v_lshl_add_u32 v14, v3, 4, v14
          v_mul_u32_u24 v15, 320, v2
          v_lshl_add_u32 v15, v3, 4, v15
          s_mul_i32 s65, s4, 5120
          s_lshl_b32 s13, s3, 8
          s_add_u32 s65, s65, s13
          s_add_u32 s65, s65, {HH}
          s_mul_i32 s67, s4, 1280
          s_lshl_b32 s13, s3, 6
          s_add_u32 s66, s67, s13
          s_add_u32 s66, s66, {HHC}
          s_add_u32 s67, s67, {HS}""")
    g(f"""v_lshrrev_b32 v12, 2, v1
          v_and_b32 v12, 3, v12
          v_and_b32 v13, 3, v1
          v_lshrrev_b32 v20, 1, v13
          s_lshl_b32 s13, s12, 1
          v_or_b32 v20, s13, v20
          v_lshrrev_b32 v7, 1, v12
          v_xor_b32 v20, v20, v7
          v_and_b32 v7, 1, v3
          v_lshlrev_b32 v7, 2, v7
          v_xor_b32 v20, v20, v7
          v_lshlrev_b32 v20, 4, v20
          v_lshl_add_u32 v20, v12, 7, v20
          v_lshl_add_u32 v20, v3, 10, v20
          v_and_b32 v7, 1, v13
          v_lshl_add_u32 v20, v7, 3, v20
          s_lshr_b32 s13, s3, 2
          s_lshl_b32 s13, s13, 12
          s_add_u32 s13, s13, {L_W2}
          v_add_u32 v20, s13, v20
          v_xor_b32 v21, 0x220, v20
          v_and_b32 v22, 3, v2
          v_lshlrev_b32 v22, 6, v22
          v_lshl_add_u32 v22, v3, 4, v22
          v_add_u32 v22, {L_UL}, v22
          v_lshlrev_b32 v23, 4, v2
          s_mul_i32 s68, s73, 10240
          s_lshl_b32 s13, s3, 8
          s_add_u32 s68, s68, s13
          s_add_u32 s68, s68, {FP}
          s_add_u32 s69, s68, 4096
          s_add_u32 s70, s68, 8192""")
    for k in range(96, 112): g(f"v_mov_b32 v{k}, 0x3f803f80")
    for k in range(5): g(f"v_mov_b32 v{170+4*k}, s11\nv_mov_b32 v{171+4*k}, s11")
    lfin, lidle, lw2 = g.lab("F6"), g.lab("I6"), g.lab("W6")
    g("s_waitcnt vmcnt(0)\ns_barrier")
    g.stamp(4)
    for k in range(5):
        g(f"ds_read_b64_tr_b16 v[{128+4*k}:{129+4*k}], v20 offset:{k*8192}")
        g(f"ds_read_b64_tr_b16 v[{130+4*k}:{131+4*k}], v21 offset:{k*8192}")
    g(f"""s_cmp_eq_u32 s3, 7
          s_cbranch_scc1 {lfin}
          s_cmp_ge_u32 s3, 5
          s_cbranch_scc1 {lidle}""")
    tr64_reads(g, 8)
    g("s_waitcnt lgkmcnt(0)")
    for t in range(4):
        for e in range(2): g.mfma(56+4*e, 64+8*t+4*e, 96+4*t, t == 0)
    g.nop(6)
    red_write(g)
    g("s_waitcnt lgkmcnt(0)\ns_barrier\ns_barrier")
    g.mask_j4()
    l = g.poll_begin(dual=True)
    for t in range(4):
        g(f"buffer_load_dwordx4 v[{96+4*t}:{99+4*t}], v14, s[52:55], s65 offen offset:{t*64} sc1")
    g(f"""buffer_load_dwordx4 v[112:115], v15, s[52:55], s66 offen sc1
          s_waitcnt vmcnt(0)""")
    for t in range(4): g.verify(96+4*t, 112+t, t == 0)
    g.poll_end(l, dual=True)
    g.unmask()
    g.stamp(1)
    for t in range(4):
        for e in range(2): g.mfma(56+4*e, 64+8*t+4*e, 96+4*t, t == 0)
    g.nop(6)
    red_write(g)
    g(f"""s_waitcnt lgkmcnt(0)
          s_barrier
          s_branch {lw2}
          {lidle}:
          s_barrier
          s_barrier
          s_barrier
          s_branch {lw2}
          {lfin}:
          s_barrier""")
    red_read(g, 5, 512)
    g(f"""v_mov_b32 v40, v24
          v_mov_b32 v41, v25
          s_barrier
          v_mul_u32_u24 v16, 320, v3
          v_lshl_add_u32 v16, v2, 4, v16
          v_mov_b32 v48, 0
          v_mov_b32 v49, 0
          v_mov_b32 v50, s11
          v_cmp_gt_u32 vcc, 4, v2
          v_mov_b32 v42, 0
          v_lshlrev_b32 v17, 2, v1
          v_cndmask_b32 v42, v42, 1.0, vcc
          v_add_u32 v17, {L_UL}, v17""")
    l = g.poll_begin(dual=True)
    g(f"buffer_load_dwordx4 v[44:47], v16, s[52:55], s67 offen sc1")
    g.mask_j4()
    g(f"""buffer_load_dwordx4 v[48:51], v16, s[52:55], s67 offen offset:256 sc1
          s_mov_b64 exec, -1
          s_waitcnt vmcnt(0)""")
    g.acc_ne("s11", "v46", True)
    g.acc_ne("s11", "v50", False)
    g.poll_end(l, dual=True)
    g.stamp(1)
    g("v_add_f32 v52, v44, v48")
    g.inrow("v_add_f32", 52)
    g(f"""v_mul_f32 v52, {f32(1/640)}, v52
          v_mul_f32 v44, {f32(1/32)}, v44
          v_mul_f32 v48, {f32(1/32)}, v48
          v_sub_f32 v44, v44, v52
          v_sub_f32 v48, v48, v52
          v_mul_f32 v48, v48, v42
          v_mul_f32 v44, v44, v44
          v_fmac_f32 v44, v48, v48
          v_add_f32 v53, v45, v49
          v_fmac_f32 v53, {f32(32.0)}, v44""")
    g.inrow("v_add_f32", 53)
    g(f"""v_mov_b32 v54, {f32(1e-5)}
          v_fmac_f32 v54, {f32(1/640)}, v53
          v_rsq_f32 v54, v54
          v_mul_f32 v40, v40, v52
          v_mul_f32 v41, v41, v52
          s_barrier""")
    g.stamp(2)
    red_read(g, 5, 512)
    g(f"""v_sub_f32 v24, v24, v40
          v_sub_f32 v25, v25, v41
          v_mul_f32 v24, v24, v54
          v_mul_f32 v25, v25, v54
          v_mul_f32 v26, {f32(-LOG2E)}, v24
          v_mul_f32 v27, {f32(-LOG2E)}, v25
          v_exp_f32 v26, v26
          v_exp_f32 v27, v27
          s_nop 0
          v_add_f32 v26, 1.0, v26
          v_add_f32 v27, 1.0, v27
          v_rcp_f32 v26, v26
          v_rcp_f32 v27, v27
          s_nop 0
          v_mul_f32 v24, v24, v26
          v_mul_f32 v25, v25, v27
          v_cvt_pk_bf16_f32 v24, v24, v25
          ds_write_b32 v17, v24
          {lw2}:
          s_waitcnt lgkmcnt(0)
          s_barrier
          ds_read_b128 v[24:27], v22
          s_waitcnt lgkmcnt(0)""")
    for k in range(5): g.mfma(148+4*k, 24, 128+4*k, True)
    g.nop(3)
    g("s_mov_b64 exec, 0xffff")
    for k in range(5):
        g(f"""v_cvt_pk_bf16_f32 v{168+4*k}, v{148+4*k}, v{149+4*k}
              v_cvt_pk_bf16_f32 v{169+4*k}, v{150+4*k}, v{151+4*k}
              buffer_store_dwordx4 v[{168+4*k}:{171+4*k}], v23, s[40:43], s{68+(k>>1)} offen offset:{(k&1)*2048} sc1""")
    g.unmask()
    g.stamp(3)
    g("s_branch L_fin")

def s7(g):
    g("L_s7:")
    lh, lj = g.lab("H7"), g.lab("J7")
    g(f"""v_lshlrev_b32 v10, 2, v1
          v_add_u32 v16, {L_RED}, v10
          s_cmp_eq_u32 s3, 7
          s_cbranch_scc1 {lh}
          v_mul_u32_u24 v14, 10240, v3
          v_lshl_add_u32 v14, v2, 4, v14
          s_mul_i32 s65, s3, {8*10240}
          s_lshl_b32 s13, s73, 8
          s_add_u32 s65, s65, s13
          s_add_u32 s65, s65, {FP}
          s_add_u32 s66, s65, {4*10240}
          s_mov_b64 s[74:75], -1
          s_cmp_eq_u32 s3, 6
          s_cselect_b32 s75, 0, s75
          v_mov_b32 v100, 0
          v_mov_b32 v101, 0
          v_mov_b32 v102, s11
          s_lshl_b32 s13, s3, 8
          v_add_u32 v10, s13, v16""")
    l = g.poll_begin()
    g(f"""buffer_load_dwordx4 v[96:99], v14, s[40:43], s65 offen sc1
          s_mov_b64 exec, s[74:75]
          buffer_load_dwordx4 v[100:103], v14, s[40:43], s66 offen sc1
          s_mov_b64 exec, -1
          s_waitcnt vmcnt(0)""")
    g.acc_ne("s11", "v98", True)
    g.acc_ne("s11", "v102", False)
    g.poll_end(l)
    g.stamp(1)
    g.unpack(24, 96); g.unpack(26, 97); g.unpack(28, 100); g.unpack(30, 101)
    for k in range(4): g(f"v_add_f32 v{24+k}, v{24+k}, v{28+k}")
    g(f"""s_nop 0
          v_permlane16_swap_b32 v24, v25
          v_permlane16_swap_b32 v26, v27
          s_nop 0
          v_add_f32 v24, v24, v25
          v_add_f32 v26, v26, v27
          s_nop 1
          v_permlane32_swap_b32 v24, v26
          s_nop 0
          v_add_f32 v24, v24, v26
          ds_write_b32 v10, v24
          s_waitcnt lgkmcnt(0)
          s_barrier
          s_branch L_fin
          {lh}:""")
    g.srd(48, P_OUT, 5120)
    g(f"""v_mul_u32_u24 v13, 1280, v3
          v_and_b32 v8, 8, v2
          v_lshl_add_u32 v11, v8, 1, v13
          v_lshl_add_u32 v13, v2, 1, v13
          v_mul_u32_u24 v12, 320, v3
          v_lshl_add_u32 v12, v8, 1, v12
          s_lshl_b32 s64, s73, 5
          s_mul_i32 s65, s4, 5120
          s_add_u32 s65, s65, s64
          s_add_u32 s65, s65, {HH}
          s_mul_i32 s66, s4, 1280
          s_lshr_b32 s13, s73, 3
          s_lshl_b32 s13, s13, 6
          s_add_u32 s66, s66, s13
          s_and_b32 s13, s73, 1
          s_lshl_b32 s13, s13, 5
          s_add_u32 s66, s66, s13
          s_lshr_b32 s13, s73, 1
          s_and_b32 s13, s13, 3
          s_lshl2_add_u32 s66, s13, s66
          s_add_u32 s66, s66, {HHC}""")
    l = g.poll_begin(dual=True)
    g(f"""buffer_load_dwordx4 v[24:27], v11, s[52:55], s65 offen sc1
          buffer_load_dword v28, v12, s[52:55], s66 offen sc1
          s_waitcnt vmcnt(0)""")
    g.verify(24, 28, True)
    g.poll_end(l, dual=True)
    g(f"""v_and_b32 v8, 2, v1
          v_cmp_ne_u32 vcc, 0, v8
          v_and_b32 v9, 4, v1
          v_cmp_ne_u32 s[74:75], 0, v9
          v_cndmask_b32 v24, v24, v25, vcc
          v_cndmask_b32 v26, v26, v27, vcc
          v_and_b32 v8, 1, v1
          v_cmp_ne_u32 vcc, 0, v8
          v_cndmask_b32 v24, v24, v26, s[74:75]
          v_lshlrev_b32 v25, 16, v24
          v_and_b32 v26, 0xffff0000, v24
          v_cndmask_b32 v30, v25, v26, vcc""")
    g.stamp(1)
    g("s_barrier")
    for w in range(7): g(f"ds_read_b32 v{64+w}, v16 offset:{w*256}")
    g("""s_waitcnt lgkmcnt(4)
         v_add_f32 v64, v64, v65
         v_add_f32 v64, v64, v66
         s_waitcnt lgkmcnt(2)
         v_add_f32 v67, v67, v68
         s_waitcnt lgkmcnt(0)
         v_add_f32 v69, v69, v70
         v_add_f32 v64, v64, v67
         v_add_f32 v64, v64, v69""")
    g.rbf(64)
    g(f"""v_add_f32 v64, v64, v30
          v_cvt_pk_bf16_f32 v64, v64, v64
          buffer_store_short v64, v13, s[48:51], s64 offen
          s_cmp_lg_u32 s73, 0
          s_cbranch_scc1 {lj}
          v_mov_b32 v65, s11
          v_mov_b32 v66, {EPOCH}
          s_mov_b64 exec, 1
          buffer_store_dword v65, v66, s[40:43], 0 offen
          s_mov_b64 exec, -1
          {lj}:""")
    g.stamp(2)

def gen(stamps=False, stop=None, W=7, we=5, wsw=16, opl=0, ea=1, npre=4, prio=1, wa=10, gb=28, dbg=0):
    g = G(stamps or dbg, stop)
    g.dbg = dbg
    g.we, g.wsw, g.opl, g.ea = we, wsw, opl, ea
    g.npre, g.prio, g.wa, g.gb = npre, prio, wa, gb
    prologue(g); pwave(g); swave(g, W)
    if stop != "A": tail(g)
    g("L_end:")
    return g

def emit(g, path):
    hdr = open("cdna_kernels/" + NAME + ".s.ref").read().split("; Override launch")[0]
    txt = hdr + f"""; @launch grid=(256,1,1) block=(512,1,1) lds={LDS_BYTES}
.amdgcn_target "amdgcn-amd-amdhsa--gfx950"
.text
.globl {NAME}_kernel
.p2align 8
.type {NAME}_kernel,@function
{NAME}_kernel:
""" + "\n".join(g.L) + f"""
    s_endpgm
L_code_end:
.section .rodata,"a"
.p2align 6
.amdhsa_kernel {NAME}_kernel
  .amdhsa_next_free_vgpr 256
  .amdhsa_next_free_sgpr 102
  .amdhsa_accum_offset 256
  .amdhsa_group_segment_fixed_size 0
  .amdhsa_kernarg_size 96
  .amdhsa_user_sgpr_count 2
  .amdhsa_user_sgpr_kernarg_segment_ptr 1
  .amdhsa_system_sgpr_workgroup_id_x 1
.end_amdhsa_kernel
"""
    open(path, "w").write(txt)

if __name__ == "__main__":
    import argparse
    ap = argparse.ArgumentParser()
    ap.add_argument("-o", default="k.s")
    ap.add_argument("--stamps", action="store_true")
    ap.add_argument("--stop", default=None)
    ap.add_argument("-W", type=int, default=7)
    ap.add_argument("--we", type=int, default=5)
    ap.add_argument("--wsw", type=int, default=16)
    ap.add_argument("--opl", type=int, default=0)
    ap.add_argument("--ea", type=int, default=1)
    ap.add_argument("--npre", type=int, default=4)
    ap.add_argument("--prio", type=int, default=1)
    ap.add_argument("--wa", type=int, default=10)
    ap.add_argument("--gb", type=int, default=28)
    ap.add_argument("--dbg", type=int, default=0)
    a = ap.parse_args()
    emit(gen(a.stamps, a.stop, a.W, a.we, a.wsw, a.opl, a.ea, a.npre, a.prio, a.wa, a.gb, a.dbg), a.o)
```

```python
import sys, struct
NAME = "sequential_preLN__compressed_kv_cla__dense_activation_silu__decode"

EPOCH = 0x0
QP, QPC = 0x10000, 0x30000
QA = 0x40000
OP = 0x100000
OBLK = 20736
CP, CPC = 0x620000, 0x660000
AP = 0x680000
HH, HHC, HS = 0x6B0000, 0x6BA000, 0x6BD000
FP = 0x700000
DUAL = 0x800000
STAMP = 0x1000000
STAMP2 = 0x1040000
WS_REC = 0x1100000

L_R2 = 131072
L_WQ = 0
L_WUK = 40960
L_QA = L_R2
L_XN = L_R2 + 20480
L_P = L_R2 + 25600
L_MX = L_R2 + 29696
L_SM = L_MX + 256
L_CC = L_SM + 256
L_FL = L_CC + 1024
LDS_BYTES = 163840
assert L_FL + 64 <= LDS_BYTES
L_WUV = 0
L_WR = 32768
L_W2 = L_WR + 40960
L_RED = L_W2 + 40960
L_UL = L_RED + 8192
F_A, F_S2, F_QA, F_T0, F_T1, F_RD, F_SM, F_S1, F_UK, F_UR, F_MX, F_GO = 0, 4, 8, 12, 16, 20, 24, 28, 32, 36, 40, 44

HASH_A, HASH_C = 1664525, 1013904223
SPIN_MAX = 20000
def f32(x): return "0x%08x" % struct.unpack("<I", struct.pack("<f", x))[0]
LOG2E = 1.4426950408889634
SCALE = (128 ** -0.5) * LOG2E
P_X, P_CKV, P_WQ, P_WUK, P_WUV, P_WO, P_BX, P_W1, P_W2, P_OUT, P_DBG, P_WS = 16, 18, 20, 22, 24, 26, 28, 30, 32, 34, 36, 38
DPP = "row_mask:0xf bank_mask:0xf"

class G:
    def __init__(self, stamps=False, stop=None):
        self.L = []; self.stamps = stamps; self.stop = stop; self.nlab = 0
    def __call__(self, s):
        for line in s.strip("\n").split("\n"):
            line = line.strip()
            if line:
                self.L.append("    " + line if not line.endswith(":") else line)
    def lab(self, p="L"):
        self.nlab += 1
        return f"{p}_{self.nlab}"
    def nop(self, n):
        while n > 0:
            k = min(n, 16); self(f"s_nop {k-1}"); n -= k
    def srd(self, d, ptr, size):
        self(f"""s_mov_b32 s{d}, s{ptr}
                 s_and_b32 s{d+1}, s{ptr+1}, 0xffff
                 s_mov_b32 s{d+2}, {size}
                 s_mov_b32 s{d+3}, 0x20000""")
    def ws_srds(self):
        self.srd(40, P_WS, WS_REC)
        self(f"""s_add_u32 s56, s{P_WS}, {DUAL}
                 s_addc_u32 s57, s{P_WS+1}, 0
                 s_and_b32 s57, s57, 0xffff
                 s_mov_b32 s58, {DUAL}
                 s_mov_b32 s59, 0x20000""")
    def stamp(self, idx):
        if self.stamps:
            self(f"s_memrealtime s[{76+2*idx}:{77+2*idx}]")
    def flag_add(self, off):
        self(f"""s_mov_b64 exec, 1
                 ds_add_u32 v4, v5 offset:{off}
                 s_mov_b64 exec, -1""")
    def flag_wait(self, off, val):
        l = self.lab("FW"); x = self.lab("FX")
        self(f"""s_mov_b32 s15, 0
                 {l}:
                 ds_read_b32 v6, v4 offset:{off}
                 s_add_u32 s15, s15, 1
                 s_cmp_gt_u32 s15, {SPIN_MAX*8}
                 s_cbranch_scc1 {x}
                 s_waitcnt lgkmcnt(0)
                 v_readfirstlane_b32 s14, v6
                 s_cmp_lt_u32 s14, {val}
                 s_cbranch_scc1 {l}
                 {x}:""")
    def chk(self, dst, p):
        self(f"""v_add3_u32 v{dst}, v{p}, v{p+1}, s11
                 v_add3_u32 v{dst}, v{p+2}, v{p+3}, v{dst}""")
    def acc_ne(self, a, b, first):
        if first:
            self(f"v_cmp_ne_u32 s[62:63], {a}, {b}")
        else:
            self(f"""v_cmp_ne_u32 vcc, {a}, {b}
                     s_or_b64 s[62:63], s[62:63], vcc""")
    def verify(self, p, c, first, t=7):
        self.chk(t, p)
        self.acc_ne(f"v{t}", f"v{c}", first)
    def poll_begin(self, dual=False):
        l = self.lab("PL")
        if dual:
            self("""s_mov_b32 s52, s40
                    s_mov_b32 s53, s41
                    s_mov_b32 s54, %d
                    s_mov_b32 s55, 0x20000""" % DUAL)
        self(f"s_mov_b32 s61, 0\n{l}:")
        return l
    def poll_end(self, l, dual=False):
        x = self.lab("PX")
        self(f"""s_cmp_eq_u64 s[62:63], 0
                 s_cbranch_scc1 {x}
                 s_add_u32 s61, s61, 1""")
        if dual:
            self("""s_and_b32 s14, s61, 7
                    s_cmp_eq_u32 s14, 7
                    s_cselect_b32 s52, s56, s40
                    s_cselect_b32 s53, s57, s41""")
        self(f"""s_cmp_lt_u32 s61, {SPIN_MAX}
                 s_cbranch_scc1 {l}
                 {x}:""")
    def xrow(self, op, v, t):
        self(f"""v_mov_b32 v{t}, v{v}
                 s_nop 1
                 v_permlane16_swap_b32 v{v}, v{t}
                 s_nop 0
                 {op} v{v}, v{v}, v{t}
                 v_mov_b32 v{t}, v{v}
                 s_nop 1
                 v_permlane32_swap_b32 v{v}, v{t}
                 s_nop 0
                 {op} v{v}, v{v}, v{t}""")
    def inrow(self, op, v, rors=(8, 4, 2, 1)):
        for r in rors:
            self(f"s_nop 1\n{op}_dpp v{v}, v{v}, v{v} row_ror:{r} {DPP}")
    def wave_sum(self, v, t):
        self.inrow("v_add_f32", v); self.xrow("v_add_f32", v, t)
    def rbf(self, v):
        self(f"v_cvt_pk_bf16_f32 v{v}, v{v}, v{v}\nv_lshlrev_b32 v{v}, 16, v{v}")
    def unpack(self, dst, src):
        self(f"v_lshlrev_b32 v{dst}, 16, v{src}\nv_and_b32 v{dst+1}, 0xffff0000, v{src}")
    def mfma(self, d, a, b, first):
        c = "0" if first else f"v[{d}:{d+3}]"
        self(f"v_mfma_f32_16x16x32_bf16 v[{d}:{d+3}], v[{a}:{a+3}], v[{b}:{b+3}], {c}")
    def pack8(self, p, d):
        for k in range(4):
            self(f"v_cvt_pk_bf16_f32 v{p+k}, v{d+2*k}, v{d+2*k+1}")
    def mask(self, m):
        self(f"s_mov_b32 exec_lo, {m}\ns_mov_b32 exec_hi, {m}")
    def mask_j4(self): self.mask("0x000f000f")
    def unmask(self): self("s_mov_b64 exec, -1")
    def dump(self, base):
        if self.dbg:
            g = self
            g("s_waitcnt lgkmcnt(0)")
            if base == STAMP2:
                lb = g.lab("DB")
                g(f"""v_mov_b32 v239, 0
                      s_not_b32 s13, s76
                      v_writelane_b32 v239, s13, 0
                      v_writelane_b32 v239, s76, 1
                      s_cmp_lt_u32 s3, 4
                      s_cbranch_scc1 {lb}""")
                for lane, k in ((2, 2), (3, 4), (4, 6), (5, 7), (6, 8)):
                    g(f"v_writelane_b32 v239, s{76+2*k}, {lane}")
                g(f"{lb}:")
                for k in range(1, 12): g(f"s_mov_b32 s{76+2*k}, 0")
            else:
                l0, l1, le = g.lab("DB"), g.lab("DB"), g.lab("DB")
                for lane, k in ((7, 9), (8, 10), (9, 11)):
                    g(f"v_writelane_b32 v239, s{76+2*k}, {lane}")
                g(f"""s_cmp_eq_u32 s72, 0
                      s_cbranch_scc1 {l0}
                      s_cmp_eq_u32 s72, 1
                      s_cbranch_scc1 {l1}
                      v_writelane_b32 v239, s78, 14
                      v_writelane_b32 v239, s80, 15
                      s_branch {le}
                      {l0}:
                      v_writelane_b32 v239, s78, 10
                      v_writelane_b32 v239, s82, 11
                      s_branch {le}
                      {l1}:
                      v_writelane_b32 v239, s78, 12
                      v_writelane_b32 v239, s82, 13
                      {le}:""")
                g.srd(44, P_DBG, 256)
                g("""v_lshlrev_b32 v238, 2, v1
                     s_mov_b64 exec, 0xffff
                     buffer_atomic_umax v239, v238, s[44:47], 0 offen sc1""")
            return
        if self.stamps:
            self("s_waitcnt lgkmcnt(0)")
            for k in range(12):
                self(f"v_mov_b32 v{240+k}, s{76+2*k}")
            self(f"""s_lshl_b32 s13, s2, 3
                  s_add_u32 s13, s13, s3
                  s_lshl_b32 s13, s13, 6
                  s_add_u32 s13, s13, {base}
                  v_mov_b32 v7, 0
                  s_mov_b64 exec, 1
                  buffer_store_dwordx4 v[240:243], v7, s[40:43], s13 offen
                  buffer_store_dwordx4 v[244:247], v7, s[40:43], s13 offen offset:16
                  buffer_store_dwordx4 v[248:251], v7, s[40:43], s13 offen offset:32
                  s_mov_b64 exec, -1""")
            for k in range(1, 12): self(f"s_mov_b32 s{76+2*k}, 0")
    def finish(self):
        if self.hold:
            l = self.lab("HD")
            self(f"""{l}:
                  s_memrealtime s[78:79]
                  s_waitcnt lgkmcnt(0)
                  s_sub_u32 s13, s78, s76
                  s_cmp_lt_u32 s13, {self.hold}
                  s_cbranch_scc1 {l}
                  s_endpgm""")
            return
        self.dump(STAMP)
        self("s_endpgm")

def tag_load(g): g(f"s_load_dword s11, s[{P_WS}:{P_WS+1}], {EPOCH}")
def tag_fin(g):
    g(f"""s_waitcnt lgkmcnt(0)
          s_mul_i32 s11, s11, {HASH_A}
          s_add_u32 s11, s11, {HASH_C}""")

def prologue(g):
    g(f"""s_cmp_ge_u32 s2, 256
          s_cbranch_scc1 L_end
          s_load_dwordx16 s[16:31], s[0:1], 0
          s_load_dwordx8 s[32:39], s[0:1], 64""")
    if g.stamps:
        for k in range(12): g(f"s_mov_b32 s{76+2*k}, 0")
    g.stamp(0)
    if g.hold: g("s_memrealtime s[76:77]")
    g(f"""v_lshrrev_b32 v2, 6, v0
          v_and_b32 v1, 63, v0
          s_and_b32 s4, s2, 7
          v_readfirstlane_b32 s3, v2
          s_lshr_b32 s5, s2, 3
          s_lshr_b32 s6, s5, 3
          s_lshl2_add_u32 s6, s4, s6
          s_and_b32 s7, s5, 7
          v_lshrrev_b32 v3, 4, v1
          v_and_b32 v9, 7, v1
          v_xor_b32 v9, v9, v3
          v_and_b32 v2, 1, v2
          v_lshlrev_b32 v2, 2, v2
          v_xor_b32 v9, v2, v9
          v_lshlrev_b32 v9, 4, v9
          v_lshrrev_b32 v10, 3, v1
          v_lshl_add_u32 v9, v10, 13, v9
          s_and_b32 s12, s3, 3
          v_and_b32 v2, 15, v1
          s_cmp_lt_u32 s3, 4
          s_cbranch_scc1 L_swave""")

def ids2(g):
    g(f"""s_lshr_b32 s8, s4, 1
          s_and_b32 s9, s5, 1
          s_and_b32 s10, s4, 1
          s_lshl_b32 s10, s10, 4
          s_lshr_b32 s13, s5, 1
          s_add_u32 s10, s10, s13
          v_mov_b32 v4, {L_FL}
          v_mov_b32 v5, 1""")

def pwave(g):
    g(f"""v_lshlrev_b32 v7, 4, v1
          v_lshlrev_b32 v8, 2, v1
          s_mul_i32 s64, s12, 1280
          v_lshlrev_b32 v15, 6, v2
          v_lshl_add_u32 v15, v3, 4, v15
          s_lshl_b32 s67, s6, 12
          s_add_u32 s67, s67, {QP}
          s_lshl_b32 s68, s6, 10
          s_add_u32 s68, s68, {QPC}
          s_mov_b32 s46, 5120
          s_mov_b32 s47, 0x20000
          {"s_setprio 3" if g.prio else ""}
          s_bitcmp1_b32 s5, 0
          s_cbranch_scc1 L_p_b
          s_waitcnt lgkmcnt(0)
          s_mov_b32 s44, s{P_X}
          s_and_b32 s45, s{P_X+1}, 0xffff
          buffer_load_dwordx4 v[16:19], v7, s[44:47], s64 offen
          buffer_load_dword v20, v8, s[44:47], s64 offen offset:1024
          s_barrier""")
    tag_load(g)
    g.ws_srds()
    ids2(g)
    g(f"""s_lshr_b32 s69, s7, 1
          s_lshl_b32 s13, s12, 10
          s_add_u32 s65, s67, s13
          s_lshl_b32 s13, s69, 8
          s_add_u32 s65, s65, s13
          s_add_u32 s66, s68, s13
          s_lshl2_add_u32 s66, s12, s66
          s_waitcnt vmcnt(0)""")
    g.stamp(1)
    for k in range(5): g.unpack(24+2*k, 16+k)
    g(f"""v_add_f32 v34, v24, v25
          v_add_f32 v35, v26, v27
          v_add_f32 v36, v28, v29
          v_add_f32 v37, v30, v31
          v_add_f32 v38, v32, v33
          v_add_f32 v34, v34, v35
          v_add_f32 v36, v36, v37
          v_add_f32 v34, v34, v38
          v_add_f32 v34, v34, v36""")
    g.wave_sum(34, 35)
    g(f"v_mul_f32 v34, {f32(1/640)}, v34")
    g("v_sub_f32 v36, v24, v34\nv_mul_f32 v35, v36, v36")
    for k in range(1, 10):
        g(f"v_sub_f32 v36, v{24+k}, v34\nv_fmac_f32 v35, v36, v36")
    g.wave_sum(35, 36)
    g(f"v_mul_f32 v35, {f32(1/640)}, v35")
    g.rbf(35)
    g(f"v_add_f32 v35, {f32(1e-5)}, v35")
    g.rbf(35)
    g("v_sqrt_f32 v35, v35")
    g.rbf(34)
    g.rbf(35)
    g("v_rcp_f32 v35, v35")
    for k in range(10): g(f"v_sub_f32 v{24+k}, v{24+k}, v34")
    for k in range(5): g(f"v_cvt_pk_bf16_f32 v{16+k}, v{24+2*k}, v{25+2*k}")
    for k in range(5): g.unpack(24+2*k, 16+k)
    for k in range(10): g(f"v_mul_f32 v{24+k}, v{24+k}, v35")
    for k in range(5): g(f"v_cvt_pk_bf16_f32 v{16+k}, v{24+2*k}, v{25+2*k}")
    g(f"""s_add_u32 s13, s64, {L_XN}
          v_add_u32 v7, s13, v7
          v_add_u32 v8, s13, v8
          ds_write_b128 v7, v[16:19]
          ds_write_b32 v8, v20 offset:1024""")
    g.flag_add(F_A)
    tag_fin(g)
    g(f"""v_lshrrev_b32 v10, 2, v1
          v_and_b32 v10, 3, v10
          v_and_b32 v11, 3, v1
          s_and_b32 s13, s12, 1
          s_lshl_b32 s13, s13, 2
          v_or_b32 v11, s13, v11
          v_lshrrev_b32 v12, 1, v10
          v_xor_b32 v11, v11, v12
          v_and_b32 v12, 1, v3
          v_lshlrev_b32 v12, 2, v12
          v_xor_b32 v11, v11, v12
          v_lshlrev_b32 v11, 4, v11
          v_lshl_add_u32 v11, v10, 7, v11
          v_lshl_add_u32 v11, v3, 10, v11
          s_lshr_b32 s13, s12, 1
          s_mul_i32 s13, s13, 20480
          s_add_u32 s13, s13, {L_WQ}
          v_add_u32 v11, s13, v11
          v_xor_b32 v12, 0x220, v11
          v_and_b32 v13, 3, v2
          v_mul_u32_u24 v13, 1280, v13
          v_lshl_add_u32 v13, v3, 4, v13
          s_mul_i32 s13, s69, 320
          s_add_u32 s13, s13, {L_XN}
          v_add_u32 v13, s13, v13""")
    g(f"""v_and_b32 v24, 3, v2
          v_lshlrev_b32 v24, 16, v24
          v_lshl_add_u32 v24, v3, 5, v24
          v_and_b32 v7, 4, v2
          v_lshl_add_u32 v24, v7, 2, v24
          v_cmp_ne_u32 s[74:75], 0, v7
          s_lshl2_add_u32 s13, s69, s12
          s_lshl_b32 s13, s13, 7
          s_lshl_b32 s70, s6, 11
          s_add_u32 s70, s70, s13
          s_add_u32 s70, s70, {QA}
          v_mov_b32 v34, s11
          v_mov_b32 v35, s11
          v_lshrrev_b32 v26, 2, v2
          v_and_b32 v27, 3, v2
          v_lshrrev_b32 v25, 1, v27
          v_xor_b32 v25, v25, v3
          v_xor_b32 v25, v25, v7
          v_lshlrev_b32 v25, 4, v25
          v_lshl_add_u32 v25, v27, 7, v25
          v_lshl_add_u32 v25, v26, 11, v25
          s_lshl_b32 s13, s12, 13
          s_add_u32 s13, s13, {L_WUK}
          v_add_u32 v25, s13, v25
          v_xor_b32 v26, 64, v25
          v_xor_b32 v27, 0x220, v25
          v_xor_b32 v28, 0x260, v25
          s_mov_b32 s52, s40
          s_mov_b32 s53, s41
          s_mov_b32 s54, {DUAL}
          s_mov_b32 s55, 0x20000
          s_mov_b32 s61, 0""")
    g.flag_wait(F_A, 8)
    g.stamp(2)
    def s1_reads(t):
        g(f"ds_read_b128 v[{36+4*t}:{39+4*t}], v13 offset:{t*64}")
        for e in range(2):
            r = 96 + 8*t + 4*e
            g(f"ds_read_b64_tr_b16 v[{r}:{r+1}], v11 offset:{t*4096+e*8}")
            g(f"ds_read_b64_tr_b16 v[{r+2}:{r+3}], v12 offset:{t*4096+e*8}")
    s1_reads(0); s1_reads(1); s1_reads(2)
    for t in range(5):
        rem = min(5, t+3) - (t+1)
        g(f"s_waitcnt lgkmcnt({rem*5})")
        for e in range(2): g.mfma(56+4*e, 96+8*t+4*e, 36+4*t, t == 0)
        if t + 3 < 5: s1_reads(t+3)
    g.nop(6)
    g.mask_j4()
    g.pack8(16, 56)
    g.chk(20, 16)
    g(f"""buffer_store_dwordx4 v[16:19], v15, s[40:43], s65 offen
          buffer_store_dword v20, v15, s[40:43], s66 offen
          s_mov_b64 exec, -1""")
    g.stamp(3)
    def qdual():
        g.mask_j4()
        g(f"""buffer_store_dwordx4 v[16:19], v15, s[56:59], s65 offen sc1
              buffer_store_dword v20, v15, s[56:59], s66 offen sc1
              s_mov_b64 exec, -1""")
    g.flag_wait(F_UK, 4)
    for e in range(2):
        for t in range(4):
            r = 64 + 16*e + 4*t
            g(f"ds_read_b128 v[{r}:{r+3}], v{25+2*e+(t&1)} offset:{(t>>1)*1024}")
    l, lnd = g.lab("PL"), g.lab("ND")
    g(f"""s_mov_b64 s[62:63], -1
          {l}:
          s_cmp_lg_u32 s61, 3
          s_cbranch_scc1 {lnd}""")
    qdual()
    g(f"{lnd}:\ns_mov_b64 exec, s[62:63]")
    for t in range(4):
        g(f"buffer_load_dwordx4 v[{36+4*t}:{39+4*t}], v15, s[52:55], s67 offen offset:{t*1024} sc1")
    g(f"""buffer_load_dwordx4 v[52:55], v15, s[52:55], s68 offen sc1
          s_mov_b64 exec, -1
          s_waitcnt vmcnt(0) lgkmcnt(0)""")
    for t in range(4):
        for e in range(2): g.mfma(56+4*e, 64+16*e+4*t, 36+4*t, t == 0)
    for t in range(4): g.verify(36+4*t, 52+t, t == 0)
    g.poll_end(l, dual=True)
    for r in (4, 8):
        for k in range(8): g(f"v_add_f32_dpp v{56+k}, v{56+k}, v{56+k} row_ror:{r} {DPP}")
    g.pack8(28, 56)
    g.mask("0x00ff00ff")
    g(f"""v_cndmask_b32 v32, v28, v30, s[74:75]
          v_cndmask_b32 v33, v29, v31, s[74:75]
          buffer_store_dwordx4 v[32:35], v24, s[40:43], s70 offen sc1
          s_mov_b64 exec, -1""")
    g.flag_add(F_GO)
    g.stamp(4)
    lnd = g.lab("ND")
    g(f"s_cmp_ge_u32 s61, 3\ns_cbranch_scc1 {lnd}")
    qdual()
    g(f"{lnd}:\ns_waitcnt vmcnt(0)")
    g.flag_add(F_S2)
    g("s_branch L_p_gather")
    g(f"""L_p_b:
          s_waitcnt lgkmcnt(0)
          s_mov_b32 s44, s{P_X}
          s_and_b32 s45, s{P_X+1}, 0xffff
          s_getpc_b64 s[70:71]
          L_pc:
          s_sub_u32 s48, s70, L_pc-{NAME}_kernel
          s_subb_u32 s49, s71, 0
          s_and_b32 s49, s49, 0xffff
          s_mov_b32 s50, L_code_end-{NAME}_kernel
          s_mov_b32 s51, 0x20000
          s_lshr_b32 s13, s5, 1
          s_lshl2_add_u32 s13, s13, s12
          s_lshl_b32 s13, s13, 9
          v_lshlrev_b32 v10, 3, v1
          buffer_load_dwordx2 v[254:255], v10, s[48:51], s13 offen""")
    tag_load(g)
    g.ws_srds()
    g(f"""s_lshr_b32 s69, s7, 1
          s_lshl_b32 s13, s12, 10
          s_add_u32 s65, s67, s13
          s_lshl_b32 s13, s69, 8
          s_add_u32 s65, s65, s13
          s_add_u32 s66, s68, s13""")
    g.mask_j4()
    g(f"""buffer_load_dword v64, v15, s[40:43], s65 offen sc1
          buffer_load_dword v65, v15, s[40:43], s66 offen sc1
          s_mov_b64 exec, -1
          s_barrier""")
    for k in range(14, 20): g(f"v_mov_b32 v{k}, 0")
    ids2(g)
    tag_fin(g)
    g("L_p_gather:")
    if g.stop == "A":
        g("s_waitcnt vmcnt(0)"); g.finish(); return
    g("s_nop 1")
    g(f"""v_lshrrev_b32 v10, 2, v1
          v_and_b32 v10, 3, v10
          v_and_b32 v11, 3, v1
          v_lshrrev_b32 v12, 1, v10
          v_and_b32 v13, 2, v3
          v_or_b32 v12, v12, v13
          v_and_b32 v13, 1, v3
          v_lshl_or_b32 v12, v13, 2, v12
          v_xor_b32 v12, v12, v11
          v_lshlrev_b32 v12, 4, v12
          v_lshl_or_b32 v13, v13, 2, v10
          v_lshl_add_u32 v12, v13, 7, v12
          v_lshrrev_b32 v13, 1, v3
          v_lshl_add_u32 v12, v13, 10, v12
          v_and_b32 v13, 1, v11
          v_lshl_add_u32 v12, v13, 3, v12
          s_lshl_b32 s13, s12, 12
          v_add_u32 v20, s13, v12
          v_xor_b32 v21, 8, v20
          v_xor_b32 v22, 64, v20
          v_xor_b32 v23, 0x48, v20
          v_add_u32 v24, 0x10000, v20
          v_add_u32 v25, 0x10000, v21
          v_add_u32 v26, 0x10000, v22
          v_add_u32 v27, 0x10000, v23
          v_lshlrev_b32 v28, 4, v1
          v_lshlrev_b32 v33, 3, v1
          s_lshl2_add_u32 s13, s9, s12
          s_lshl_b32 s65, s13, 13
          s_lshl_b32 s14, s8, 16
          s_add_u32 s65, s65, s14
          s_add_u32 s65, s65, {QA}
          s_add_u32 s66, s65, 4096""")
    for n in range(4):
        g(f"""s_lshl2_add_u32 s13, s12, {n}
              s_lshl_b32 s14, s13, 4
              v_xor_b32 v{29+n}, s14, v33
              s_lshl_b32 s13, s13, 10
              s_add_u32 s13, s13, {L_QA}
              v_add_u32 v{29+n}, s13, v{29+n}""")
    role_decode(g)
    def gather_loads():
        for n in range(8):
            g(f"buffer_load_dwordx4 v[{64+4*n}:{67+4*n}], v28, s[40:43], s{65+(n>>2)} offen offset:{(n&3)*1024} sc1")
    def pv_pre(tile):
        for sw in range(4):
            for tp in range(4):
                for e in range(2):
                    r = 128 + ((tp*2+e)*4 + sw)*4 + 2*tile
                    a = 20 + (tp & 1)*2 + e + (4 if sw >= 2 else 0)
                    off = (sw & 1)*32768 + tile*16384 + (tp >> 1)*2048
                    g(f"ds_read_b64_tr_b16 v[{r}:{r+1}], v{a} offset:{off}")
    lga, lgb = g.lab("GA"), g.lab("GB")
    g(f"s_bitcmp1_b32 s5, 0\ns_cbranch_scc1 {lga}")
    g.flag_wait(F_S2, 4)
    g.stamp(5)
    gather_loads()
    g(f"{lga}:")
    g.flag_wait(F_T0, 4)
    pv_pre(0)
    g("s_waitcnt lgkmcnt(0)")
    g.flag_add(F_RD)
    g(f"s_bitcmp0_b32 s5, 0\ns_cbranch_scc1 {lgb}")
    g.flag_wait(F_S2, 4)
    g.stamp(5)
    gather_loads()
    g(f"{lgb}:")
    lsk, lp, lx = g.lab("GS"), g.lab("GL"), g.lab("GX")
    g(f"""s_mov_b32 s64, 0xff
          s_mov_b32 s61, 0
          s_branch {lsk}
          {lp}:""")
    for n in range(8):
        ls = g.lab("G")
        g(f"""s_bitcmp1_b32 s64, {n}
              s_cbranch_scc0 {ls}
              buffer_load_dwordx4 v[{64+4*n}:{67+4*n}], v28, s[40:43], s{65+(n>>2)} offen offset:{(n&3)*1024} sc1
              {ls}:""")
    g(f"{lsk}:\ns_waitcnt vmcnt(0)")
    for n in range(8):
        ls = g.lab("G")
        g(f"""v_cmp_ne_u32 vcc, s11, v{66+4*n}
              s_cbranch_vccnz {ls}
              ds_write_b64 v{29+(n>>1)}, v[{64+4*n}:{65+4*n}] offset:{(n&1)*512}
              s_bitset0_b32 s64, {n}
              {ls}:""")
    g(f"""s_cmp_eq_u32 s64, 0
          s_cbranch_scc1 {lx}
          s_add_u32 s61, s61, 1
          s_cmp_lt_u32 s61, {SPIN_MAX}
          s_cbranch_scc1 {lp}
          {lx}:""")
    g.flag_add(F_QA)
    g.stamp(6)
    lpt = g.lab("PT")
    g(f"""s_cmp_lg_u32 s3, 5
          s_cbranch_scc1 {lpt}
          s_cmp_lg_u32 s72, 0
          s_cbranch_scc1 {lpt}""")
    hh_addr(g, 116, 117, 118)
    g(f"""s_lshl_b32 s13, s73, 6
          buffer_load_dword v120, v116, s[44:47], s13 offen
          buffer_load_dword v121, v116, s[40:43], s67 offen sc1
          buffer_load_dword v122, v117, s[40:43], s69 offen sc1
          buffer_load_dword v123, v118, s[40:43], s68 offen sc1
          {lpt}:""")
    g(f"""v_lshlrev_b32 v29, {7 if g.opl else 6}, v2
          v_lshl_add_u32 v29, v3, 4, v29
          v_lshlrev_b32 v30, 6, v2
          v_lshl_add_u32 v30, v3, 4, v30
          s_lshl2_add_u32 s65, s9, s8
          s_lshl_b32 s65, s65, 5
          s_add_u32 s65, s65, s10
          s_mul_i32 s65, s65, {OBLK}
          s_add_u32 s65, s65, {OP}
          s_lshl_b32 s13, s12, 10
          s_add_u32 s67, s65, s13
          s_add_u32 s67, s67, 16384
          s_lshl_b32 s13, s12, 12
          s_add_u32 s65, s65, s13
          v_add_u32 v31, {L_P}, v28""")
    early_setup(g)
    g.flag_wait(F_T1, 4)
    pv_pre(1)
    if g.ea: early_dma(g)
    g("s_waitcnt lgkmcnt(0)")
    g("s_barrier")
    g.stamp(7)
    for sw in range(4):
        g(f"ds_read_b128 v[{36+4*sw}:{39+4*sw}], v31 offset:{sw*1024}")
    def pv_out(tp):
        g.pack8(96+4*tp, 64+8*tp)
        g.chk(112+tp, 96+4*tp)
        g(f"buffer_store_dwordx4 v[{96+4*tp}:{99+4*tp}], v29, s[40:43], s65 offen offset:{((tp>>1)*2048+(tp&1)*64) if g.opl else tp*1024} sc1")
    for tp in range(4):
        for sw in range(4):
            if tp == 0: g(f"s_waitcnt lgkmcnt({3-sw})")
            for e in range(2): g.mfma(64+8*tp+4*e, 128+((tp*2+e)*4+sw)*4, 36+4*sw, sw == 0)
        if tp >= 1: pv_out(tp-1)
    g.nop(2)
    pv_out(3)
    g("buffer_store_dwordx4 v[112:115], v30, s[40:43], s67 offen sc1")
    g.stamp(8)
    if g.ea >= 2: early_dma(g)
    g("s_branch L_s4")

def hh_addr(g, va, vc, vs):
    g(f"""v_mul_u32_u24 v{va}, 1280, v3
          v_lshl_add_u32 v{va}, v2, 2, v{va}
          s_lshl_b32 s67, s73, 6
          s_mul_i32 s13, s4, 5120
          s_add_u32 s67, s67, s13
          s_add_u32 s67, s67, {HH}
          v_mul_u32_u24 v{vs}, 320, v3
          v_and_b32 v{vc}, 12, v2
          v_lshl_add_u32 v{vc}, v{vc}, 2, v{vs}
          s_mul_i32 s68, s4, 1280
          s_lshr_b32 s13, s73, 2
          s_lshl_b32 s13, s13, 6
          s_add_u32 s69, s68, s13
          s_and_b32 s13, s73, 3
          s_lshl2_add_u32 s69, s13, s69
          s_add_u32 s69, s69, {HHC}
          s_lshl4_add_u32 s68, s73, s68
          s_add_u32 s68, s68, {HS}""")
def v1280(g, dst):
    g(f"""v_lshrrev_b32 v{dst}, 3, v1
          v_mul_u32_u24 v{dst}, 1280, v{dst}
          v_and_b32 v7, 0x70, v9
          v_add_u32 v{dst}, v{dst}, v7""")
def early_setup(g):
    l1, le = g.lab("E1"), g.lab("EE")
    g(f"""s_mov_b32 s70, 0
          s_lshl_b32 s71, s12, 10
          s_add_u32 s71, s71, {L_WR}""")
    g.srd(44, P_WO, 5242880)
    v1280(g, 119)
    g(f"""s_and_b32 s13, s73, 1
          s_lshl1_add_u32 s13, s4, s13
          s_lshl_b32 s13, s13, 5
          s_add_u32 s13, s13, s12
          s_mul_i32 s68, s13, {8*1280}
          s_lshr_b32 s13, s73, 1
          s_lshl_b32 s13, s13, 7
          s_add_u32 s68, s68, s13
          s_mov_b32 s69, {32*1280}
          s_cmp_ge_u32 s72, 2
          s_cbranch_scc1 {le}
          s_mov_b32 s70, 4
          s_cmp_eq_u32 s72, 0
          s_cbranch_scc1 {le}""")
    g.srd(44, P_W1, 2211840)
    g(f"""v_lshrrev_b32 v119, 2, v1
          v_mul_u32_u24 v119, 3456, v119
          v_and_b32 v7, 3, v1
          v_lshl_add_u32 v119, v7, 4, v119
          s_mul_i32 s68, s12, {16*3456}
          s_lshl_b32 s13, s73, 6
          s_add_u32 s68, s68, s13
          s_mov_b32 s69, {64*3456}
          s_mov_b32 s70, 2
          {le}:""")
def early_dma(g):
    l, le = g.lab("ED"), g.lab("EX")
    g(f"""s_mov_b32 s13, s70
          s_cmp_eq_u32 s70, 0
          s_cbranch_scc1 {le}
          {l}:
          s_mov_b32 m0, s71
          s_add_u32 s71, s71, 4096
          buffer_load_dwordx4 v119, s[44:47], s68 offen nt lds
          s_add_u32 s68, s68, s69
          s_sub_u32 s13, s13, 1
          s_cmp_lg_u32 s13, 0
          s_cbranch_scc1 {l}
          {le}:""")

def swave(g, W):
    g("L_swave:")
    g(f"""s_lshr_b32 s14, s7, 1
          s_mul_i32 s64, s14, 160
          s_lshl3_add_u32 s64, s12, s64
          s_lshl_b32 s64, s64, 13
          s_lshl_b32 s13, s6, 8
          s_add_u32 s64, s64, s13
          s_lshl_b32 s68, s14, 7
          s_lshl3_add_u32 s68, s12, s68
          s_lshl_b32 s68, s68, 13
          s_add_u32 s68, s68, s13
          s_lshl_b32 s67, s12, 10
          v_mov_b32 v6, 0
          v_lshlrev_b32 v14, 2, v1
          v_add_u32 v10, {L_FL}, v14
          s_mov_b64 exec, 0xffff
          ds_write_b32 v10, v6
          s_mov_b64 exec, -1
          s_mov_b32 s50, 5242880
          s_mov_b32 s51, 0x20000
          s_and_b32 s70, s5, 1
          s_mov_b32 s71, 0
          s_mov_b64 vcc, s[70:71]
          s_waitcnt lgkmcnt(0)
          s_mov_b32 s48, s{P_WQ}
          s_and_b32 s49, s{P_WQ+1}, 0xffff
          s_barrier
          s_cbranch_vccnz L_s_setup""")
    for k in range(5):
        for ch in range(2):
            g(f"""s_add_u32 m0, s67, {L_WQ + ch*20480 + k*4096}
                  s_add_u32 s13, s64, {k*262144 + ch*128}
                  buffer_load_dwordx4 v9, s[48:51], s13 offen nt lds""")
    g("L_s_setup:")
    tag_load(g)
    ids2(g)
    g.srd(48, P_WUK, 4194304)
    g.srd(44, P_CKV, 16777216)
    g.srd(52, P_WUV, 4194304)
    g.ws_srds()
    g(f"""s_lshl_b32 s66, s7, 6
          s_lshl3_add_u32 s66, s12, s66
          s_lshl_b32 s66, s66, 13
          s_lshl_b32 s13, s6, 8
          s_add_u32 s66, s66, s13
          s_lshl_b32 s65, s12, 15
          v_lshrrev_b32 v10, 3, v1
          v_lshrrev_b32 v11, 1, v10
          v_and_b32 v11, 1, v11
          v_and_b32 v12, 4, v10
          v_or_b32 v11, v11, v12
          v_and_b32 v12, 7, v1
          v_xor_b32 v11, v11, v12
          v_lshlrev_b32 v11, 4, v11
          v_lshl_add_u32 v7, v10, 10, v11
          v_xor_b32 v8, 32, v7
          v_add_u32 v8, 8192, v8
          s_lshl_b32 s64, s8, 22
          s_lshl_b32 s13, s10, 17
          s_add_u32 s64, s64, s13
          s_add_u32 s64, s64, s65
          v_lshrrev_b32 v11, 1, v2
          v_and_b32 v11, 1, v11
          v_lshrrev_b32 v12, 3, v2
          v_lshl_or_b32 v11, v12, 1, v11
          v_and_b32 v13, 4, v2
          v_or_b32 v11, v11, v13
          v_xor_b32 v11, v11, v3
          v_lshlrev_b32 v11, 4, v11
          v_and_b32 v13, 7, v2
          v_lshl_add_u32 v11, v13, 7, v11
          v_lshl_add_u32 v11, v12, 10, v11
          v_add_u32 v11, s65, v11
          v_xor_b32 v12, 64, v11""")
    g.stamp(1)
    def areads(m):
        tile, u = m >> 3, m & 7
        for tl in range(2):
            t = 2*u + tl
            r = 64 + 64*tile + 4*t
            g(f"ds_read_b128 v[{r}:{r+3}], v{11+tl} offset:{tile*16384+u*2048}")
    g("s_cbranch_vccnz L_s_ckv\ns_lshl_b32 s69, s12, 11")
    for k in range(8):
        kk, ch = k >> 1, k & 1
        g(f"""s_waitcnt vmcnt({g.wa-1})
              s_add_u32 m0, s69, {L_WUK + kk*8192 + ch*1024}
              s_add_u32 s13, s68, {kk*262144 + ch*128}
              buffer_load_dwordx4 v9, s[48:51], s13 offen nt lds""")
    g("s_waitcnt vmcnt(8)")
    g.flag_add(F_A)
    g("s_waitcnt vmcnt(0)")
    g.flag_add(F_UK)
    g.flag_wait(F_GO, 4)
    g("L_s_ckv:")
    done = 0
    for k in range(36):
        if k == 32: g.flag_wait(F_RD, 4)
        if k == g.gb:
            lb = g.lab("SB")
            g(f"s_cbranch_vccz {lb}")
            g.flag_add(F_S2)
            g(f"{lb}:")
        if k >= g.we and k < g.wsw:
            lb = g.lab("SB")
            g(f"s_cbranch_vccz {lb}\ns_waitcnt vmcnt({g.we-1})\n{lb}:")
        if k >= W: g(f"s_waitcnt vmcnt({W-1})")
        landed = k - W
        if k < 32:
            tile, u, kh = k >> 4, (k >> 1) & 7, k & 1
            g(f"""s_add_u32 m0, s65, {k*1024}
                  s_add_u32 s13, s64, {tile*16384 + u*128}
                  buffer_load_dwordx4 v{7+kh}, s[44:47], s13 offen nt lds""")
        else:
            kk, ch = (k-32) >> 1, (k-32) & 1
            g(f"""s_add_u32 m0, s67, {L_WUV + ch*8192 + kk*4096}
                  s_add_u32 s13, s66, {kk*262144 + ch*128}
                  buffer_load_dwordx4 v9, s[52:55], s13 offen nt lds""")
        while 2*done + 1 <= landed:
            areads(done); done += 1
            if done == 8:
                tag_fin(g)
                g.flag_add(F_T0)
                g.stamp(2)
    for tl in range(4):
        g(f"""v_or_b32 v13, {4*tl}, v3
              v_xor_b32 v13, v13, v2
              v_lshlrev_b32 v13, 4, v13
              v_lshl_add_u32 v13, v2, 10, v13
              v_add_u32 v{16+tl}, {L_QA}, v13""")
    g(f"""v_lshlrev_b32 v20, 4, v2
          v_add_u32 v20, {L_MX}, v20
          s_lshl_b32 s13, s12, 2
          v_add_u32 v21, s13, v20
          v_lshlrev_b32 v22, 4, v1
          s_lshl_b32 s13, s12, 10
          s_add_u32 s13, s13, {L_P}
          v_add_u32 v22, s13, v22
          s_mov_b32 s60, {f32(SCALE)}""")
    role_decode(g)
    g.stamp(3)
    g.flag_wait(F_QA, 4)
    g.stamp(4)
    for t in range(16):
        g(f"ds_read_b128 v[{192+4*t}:{195+4*t}], v{16+(t&3)} offset:{(t>>2)*256}")
    for t in range(16):
        g(f"s_waitcnt lgkmcnt({15-t})")
        g.mfma(56, 64+4*t, 192+4*t, t == 0)
    first = True
    for m in range(8, done):
        for tl in range(2):
            t = 2*(m & 7) + tl
            g.mfma(60, 128+4*t, 192+4*t, first); first = False
    for m in range(done, 16):
        g(f"s_waitcnt vmcnt({35-(2*m+1)})")
        areads(m)
        if m == 15:
            g.flag_add(F_T1)
            g.stamp(5)
        if m > done:
            g(f"s_waitcnt lgkmcnt({3 if m == 15 else 2})")
            for tl in range(2):
                t = 2*((m-1) & 7) + tl
                g.mfma(60, 128+4*t, 192+4*t, first); first = False
    g("s_waitcnt lgkmcnt(0)")
    for tl in range(2): g.mfma(60, 128+4*(14+tl), 192+4*(14+tl), False)
    g("v_max3_f32 v24, v56, v57, v58\nv_max_f32 v24, v24, v59")
    g.nop(6)
    g("v_max3_f32 v24, v24, v60, v61\nv_max3_f32 v24, v24, v62, v63")
    g.xrow("v_max_f32", 24, 25)
    g("ds_write_b32 v21, v24")
    g.flag_add(F_MX)
    g.flag_wait(F_MX, 4)
    g(f"""ds_read_b128 v[24:27], v20
          s_waitcnt lgkmcnt(0)
          v_max3_f32 v24, v24, v25, v26
          v_max_f32 v24, v24, v27
          v_mul_f32 v24, s60, v24""")
    for k in range(8): g(f"v_fma_f32 v{56+k}, v{56+k}, s60, -v24")
    for k in range(8): g(f"v_exp_f32 v{56+k}, v{56+k}")
    g.nop(1)
    g.pack8(28, 56)
    g(f"""ds_write_b128 v22, v[28:31]
          s_waitcnt lgkmcnt(0)
          s_barrier""")
    g.stamp(6)
    g(f"""v_add_f32 v56, v56, v57
          v_add_f32 v58, v58, v59
          v_add_f32 v60, v60, v61
          v_add_f32 v62, v62, v63
          v_add_f32 v56, v56, v58
          v_add_f32 v60, v60, v62
          v_add_f32 v25, v56, v60""")
    g.xrow("v_add_f32", 25, 26)
    g(f"ds_write_b32 v21, v25 offset:{L_SM-L_MX}")
    g.flag_add(F_SM)
    lns = g.lab("NS")
    g(f"s_cmp_lg_u32 s12, 0\ns_cbranch_scc1 {lns}")
    g.flag_wait(F_SM, 4)
    g(f"""ds_read_b128 v[28:31], v20 offset:{L_SM-L_MX}
          v_lshlrev_b32 v13, 4, v2
          s_lshl2_add_u32 s13, s9, s8
          s_lshl_b32 s13, s13, 5
          s_add_u32 s13, s13, s10
          s_mul_i32 s13, s13, {OBLK}
          s_add_u32 s13, s13, {OP+20480}
          v_mov_b32 v26, s11
          v_mov_b32 v27, s11
          s_waitcnt lgkmcnt(0)
          v_add_f32 v28, v28, v29
          v_add_f32 v30, v30, v31
          v_add_f32 v25, v28, v30
          s_mov_b64 exec, 0xffff
          buffer_store_dwordx4 v[24:27], v13, s[40:43], s13 offen sc1
          s_mov_b64 exec, -1
          {lns}:""")
    g(f"""v_lshlrev_b32 v19, 6, v2
          v_lshl_add_u32 v19, v3, 4, v19
          v_mov_b32 v18, v19
          s_lshl_b32 s68, s6, 13
          s_lshr_b32 s13, s7, 2
          s_lshl_b32 s13, s13, 12
          s_add_u32 s68, s68, s13
          s_lshl_b32 s13, s12, 10
          s_add_u32 s68, s68, s13
          s_and_b32 s13, s7, 3
          s_lshl_b32 s13, s13, 8
          s_add_u32 s68, s68, s13
          s_add_u32 s68, s68, {CP}
          s_lshl_b32 s69, s6, 11
          s_lshl_b32 s13, s7, 8
          s_add_u32 s69, s69, s13
          s_lshl2_add_u32 s69, s12, s69
          s_add_u32 s69, s69, {CPC}""")
    g.mask_j4()
    g(f"""buffer_load_dword v20, v18, s[40:43], s68 offen sc1
          buffer_load_dword v21, v19, s[40:43], s69 offen sc1
          s_mov_b64 exec, -1""")
    g.stamp(7)

def role_decode(g):
    l6, l7, ld, lhi = g.lab("R6"), g.lab("R7"), g.lab("RD"), g.lab("RH")
    g(f"""s_mov_b32 s72, 0
          s_mov_b32 s73, s5
          s_cmp_lt_u32 s5, 20
          s_cbranch_scc1 {ld}
          s_sub_u32 s13, s5, 20
          s_cmp_ge_u32 s4, 2
          s_cbranch_scc1 {lhi}
          s_lshl3_add_u32 s73, s4, s13
          s_cmp_lt_u32 s13, 8
          s_cbranch_scc1 {l7}
          s_lshl2_add_u32 s73, s4, s13
          s_sub_u32 s73, s73, 8
          s_branch {l6}
          {lhi}:
          s_lshl2_add_u32 s73, s4, s13
          s_add_u32 s73, s73, 8
          s_cmp_lt_u32 s13, 4
          s_cbranch_scc1 {l7}
          s_lshl3_add_u32 s73, s4, s13
          s_sub_u32 s73, s73, 12
          {l6}:
          s_mov_b32 s72, 1
          s_cmp_lt_u32 s73, 54
          s_cbranch_scc1 {ld}
          s_mov_b32 s72, 3
          s_branch {ld}
          {l7}:
          s_mov_b32 s72, 2
          {ld}:""")

def tail(g):
    g("L_s4:")
    if g.stop == "B":
        g("s_waitcnt vmcnt(0)"); g.finish(); return
    g.dump(STAMP2)
    g(f"""s_mov_b32 s13, {OBLK}
          v_lshrrev_b32 v9, 3, v1
          v_mul_lo_u32 v9, v9, s13
          v_and_b32 v10, 3, v1
          v_lshl_add_u32 v9, v10, 4, v9
          v_and_b32 v10, 4, v1
          v_lshl_add_u32 v8, v10, {4 if g.opl else 8}, v9
          v_add_u32 v9, v9, v10
          v_and_b32 v10, 31, v1
          v_mul_lo_u32 v10, v10, s13
          s_lshr_b32 s14, s6, 4
          s_lshl3_add_u32 s64, s14, s3
          s_and_b32 s67, s64, 0xfe
          s_mul_i32 s64, s64, {16*OBLK}
          s_mul_i32 s67, s67, {16*OBLK}
          s_and_b32 s14, s6, 15
          s_lshl4_add_u32 s67, s14, s67
          s_add_u32 s67, s67, {OP+20480}
          s_lshl_b32 s14, s14, 6
          s_add_u32 s64, s64, s14
          s_lshl_b32 s13, s7, 11
          s_add_u32 s65, s64, s13
          {"s_add_u32 s65, s65, s14" if g.opl else ""}
          s_add_u32 s65, s65, {OP}
          s_lshr_b32 s13, s7, 1
          s_lshl_b32 s13, s13, 10
          s_add_u32 s66, s64, s13
          s_and_b32 s13, s7, 1
          s_lshl3_add_u32 s66, s13, s66
          s_add_u32 s66, s66, {OP+16384}
          s_add_u32 s74, s65, {8*OBLK}
          s_add_u32 s75, s66, {8*OBLK}
          v_lshrrev_b32 v11, 3, v1
          s_and_b32 s13, s3, 1
          s_lshl_b32 s13, s13, 4
          v_add_u32 v11, s13, v11
          v_lshlrev_b32 v11, 2, v11
          v_add_u32 v12, 32, v11
          v_and_b32 v13, 7, v1
          v_lshlrev_b32 v13, 4, v13
          v_and_b32 v14, 1, v3
          v_lshl_add_u32 v13, v14, 3, v13
          v_lshrrev_b32 v14, 1, v3
          v_lshl_add_u32 v13, v14, 2, v13
          s_and_b32 s13, s3, 1
          s_lshl_b32 s13, s13, 2
          s_lshr_b32 s14, s3, 1
          s_add_u32 s13, s13, s14
          s_lshl_b32 s13, s13, 7
          s_add_u32 s13, s13, {L_CC}
          v_add_u32 v13, s13, v13""")
    l = g.poll_begin()
    g(f"""buffer_load_dwordx4 v[24:27], v10, s[40:43], s67 offen sc1
          s_waitcnt vmcnt(0)
          v_cmp_ne_u32 s[62:63], s11, v26""")
    g.poll_end(l)
    g("s_barrier")
    g.stamp(9)
    g(f"""buffer_load_dwordx4 v[28:31], v8, s[40:43], s65 offen sc1
          buffer_load_dwordx4 v[32:35], v8, s[40:43], s74 offen sc1
          buffer_load_dword v36, v9, s[40:43], s66 offen sc1
          buffer_load_dword v37, v9, s[40:43], s75 offen sc1
          v_mov_b32 v38, v24""")
    g.inrow("v_max_f32", 38)
    g("""v_mov_b32 v39, v38
         s_nop 1
         v_permlane16_swap_b32 v38, v39
         s_nop 0
         v_max_f32 v38, v38, v39
         v_sub_f32 v38, v24, v38
         v_exp_f32 v38, v38
         s_nop 0
         v_mul_f32 v39, v38, v25""")
    g.inrow("v_add_f32", 39)
    g("""v_mov_b32 v40, v39
         s_nop 1
         v_permlane16_swap_b32 v39, v40
         s_nop 0
         v_add_f32 v39, v39, v40
         v_rcp_f32 v39, v39
         s_nop 0
         v_mul_f32 v38, v38, v39
         ds_bpermute_b32 v40, v11, v38
         ds_bpermute_b32 v41, v12, v38""")
    lw = g.lab("NW")
    g(f"""s_cmp_ge_u32 s3, 4
          s_cbranch_scc1 {lw}
          v_lshrrev_b32 v14, 2, v1
          v_and_b32 v14, 3, v14
          v_and_b32 v15, 1, v3
          v_lshl_or_b32 v14, v15, 2, v14
          v_and_b32 v16, 3, v1
          s_and_b32 s13, s12, 1
          s_lshl_b32 s13, s13, 2
          v_or_b32 v16, s13, v16
          v_lshrrev_b32 v17, 1, v14
          v_xor_b32 v16, v16, v17
          v_lshlrev_b32 v15, 2, v15
          v_xor_b32 v16, v16, v15
          v_lshlrev_b32 v16, 4, v16
          v_lshl_add_u32 v16, v14, 7, v16
          v_lshl_add_u32 v16, v3, 10, v16
          s_lshr_b32 s13, s12, 1
          s_lshl_b32 s13, s13, 13
          s_add_u32 s13, s13, {L_WUV}
          v_add_u32 v16, s13, v16
          v_xor_b32 v17, 0x220, v16
          v_and_b32 v14, 7, v2
          v_lshlrev_b32 v14, 7, v14
          v_lshl_add_u32 v14, v3, 4, v14
          v_add_u32 v14, {L_CC}, v14""")
    for t in range(2):
        for e in range(2):
            r = 64 + 8*t + 4*e
            g(f"ds_read_b64_tr_b16 v[{r}:{r+1}], v16 offset:{t*4096+e*8}")
            g(f"ds_read_b64_tr_b16 v[{r+2}:{r+3}], v17 offset:{t*4096+e*8}")
    g(f"{lw}:")
    lsk = g.lab("SK"); l = g.lab("PL")
    g(f"""s_mov_b32 s61, 0
          s_branch {lsk}
          {l}:
          s_mov_b64 exec, s[62:63]
          buffer_load_dwordx4 v[28:31], v8, s[40:43], s65 offen sc1
          buffer_load_dwordx4 v[32:35], v8, s[40:43], s74 offen sc1
          buffer_load_dword v36, v9, s[40:43], s66 offen sc1
          buffer_load_dword v37, v9, s[40:43], s75 offen sc1
          s_mov_b64 exec, -1
          {lsk}:
          s_waitcnt vmcnt(0)""")
    g.verify(28, 36, True)
    g.verify(32, 37, False)
    g.poll_end(l)
    g.stamp(10)
    for k in range(4):
        g.unpack(44+2*k, 28+k); g.unpack(52+2*k, 32+k)
    g("s_waitcnt lgkmcnt(0)")
    for k in range(8): g(f"v_mul_f32 v{44+k}, v{44+k}, v40")
    for k in range(8): g(f"v_fmac_f32 v{44+k}, v{52+k}, v41")
    g.nop(1)
    for k in range(4): g(f"v_permlane16_swap_b32 v{44+k}, v{48+k}")
    g.nop(1)
    for k in range(4): g(f"v_add_f32 v{44+k}, v{44+k}, v{48+k}")
    g.nop(1)
    for k in range(2): g(f"v_permlane32_swap_b32 v{44+k}, v{46+k}")
    g.nop(1)
    for k in range(2): g(f"v_add_f32 v{44+k}, v{44+k}, v{46+k}")
    g.nop(1)
    for k in range(2): g(f"v_add_f32_dpp v{44+k}, v{44+k}, v{44+k} row_ror:8 {DPP}")
    g(f"""v_cvt_pk_bf16_f32 v44, v44, v45
          ds_write_b32 v13, v44
          s_waitcnt lgkmcnt(0)
          s_barrier""")
    ln = g.lab("N4")
    g(f"""s_cmp_ge_u32 s3, 4
          s_cbranch_scc1 {ln}
          ds_read_b128 v[24:27], v14
          ds_read_b128 v[28:31], v14 offset:64
          s_waitcnt lgkmcnt(1)""")
    for t in range(2):
        if t == 1: g("s_waitcnt lgkmcnt(0)")
        for e in range(2): g.mfma(56+4*e, 64+8*t+4*e, 24+4*t, t == 0)
    g.nop(7)
    for k in range(8): g(f"v_add_f32_dpp v{56+k}, v{56+k}, v{56+k} row_ror:4 {DPP}")
    g.mask_j4()
    g.pack8(24, 56)
    g.chk(28, 24)
    g(f"""buffer_store_dwordx4 v[24:27], v18, s[40:43], s68 offen
          buffer_store_dword v28, v19, s[40:43], s69 offen
          s_cmp_eq_u32 s72, 0
          s_cbranch_scc1 {ln}_c
          buffer_store_dwordx4 v[24:27], v18, s[56:59], s68 offen sc1
          buffer_store_dword v28, v19, s[56:59], s69 offen sc1
          {ln}_c:
          s_mov_b64 exec, -1
          s_branch {ln}_b
          {ln}:""")
    if g.ea == 0: g("s_lshl_b32 s70, s70, 1")
    if g.ea < 2: early_dma(g)
    g(f"{ln}_b:")
    g.stamp(11)
    if g.stop == "C1":
        g("s_waitcnt vmcnt(0)"); g.finish(); return
    g(f"""s_cmp_eq_u32 s72, 1
          s_cbranch_scc1 L_s6
          s_cmp_eq_u32 s72, 2
          s_cbranch_scc1 L_s7
          s_cmp_eq_u32 s72, 3
          s_cbranch_scc1 L_fin""")
    s5(g); s6(g); s7(g)
    g("L_fin:")
    g.finish()


def tr64_addr(g, dst, rowbase_sgpr):
    g(f"""v_lshrrev_b32 v{dst}, 2, v1
          v_and_b32 v{dst}, 3, v{dst}
          v_lshl_add_u32 v{dst}, v3, 3, v{dst}
          v_add_u32 v{dst}, s{rowbase_sgpr}, v{dst}
          v_lshlrev_b32 v{dst}, 6, v{dst}
          v_and_b32 v7, 3, v1
          v_lshl_add_u32 v{dst}, v7, 4, v{dst}
          v_add_u32 v{dst}, {L_WR}, v{dst}""")
def tr64_reads(g, a):
    for t in range(4):
        for e in range(2):
            r = 64 + 8*t + 4*e
            g(f"ds_read_b64_tr_b16 v[{r}:{r+1}], v{a} offset:{t*2048+e*8}")
            g(f"ds_read_b64_tr_b16 v[{r+2}:{r+3}], v{a} offset:{t*2048+256+e*8}")
def red_write(g):
    g.mask_j4()
    g("""ds_write_b128 v10, v[56:59]
         ds_write_b128 v10, v[60:63] offset:16
         s_mov_b64 exec, -1""")
def red_read(g, n, stride):
    for w in range(n): g(f"ds_read_b64 v[{24+2*w}:{25+2*w}], v11 offset:{w*stride}")
    for w in range(1, n):
        g(f"s_waitcnt lgkmcnt({n-1-w})")
        g(f"v_add_f32 v24, v24, v{24+2*w}\nv_add_f32 v25, v25, v{25+2*w}")

def s5(g):
    g(f"""v_lshrrev_b32 v12, 2, v1
          v_and_b32 v12, 3, v12
          v_and_b32 v8, 3, v1
          v_lshrrev_b32 v7, 1, v12
          v_xor_b32 v8, v8, v7
          v_and_b32 v7, 1, v3
          v_lshl_or_b32 v8, v7, 2, v8
          v_lshlrev_b32 v8, 4, v8
          v_lshl_add_u32 v8, v12, 7, v8
          v_lshl_add_u32 v8, v3, 10, v8
          s_lshr_b32 s13, s3, 2
          s_and_b32 s14, s3, 1
          s_lshl1_add_u32 s13, s13, s14
          s_lshl_b32 s13, s13, 13
          s_add_u32 s13, s13, {L_WR}
          v_add_u32 v8, s13, v8
          v_xor_b32 v9, 0x220, v8
          v_xor_b32 v12, 64, v8
          v_xor_b32 v13, 0x260, v8""")
    g(f"""v_and_b32 v10, 3, v2
          v_lshlrev_b32 v10, 7, v10
          v_lshl_add_u32 v10, v3, 5, v10
          v_and_b32 v7, 4, v2
          v_lshl_add_u32 v10, v7, 2, v10
          v_and_b32 v7, 8, v2
          v_lshl_add_u32 v10, v7, 6, v10
          s_lshl_b32 s13, s3, 10
          s_add_u32 s13, s13, {L_RED}
          v_add_u32 v10, s13, v10
          v_lshlrev_b32 v17, 3, v1
          s_and_b32 s14, s3, 1
          s_lshl_b32 s13, s14, 9
          s_add_u32 s13, s13, {L_RED}
          v_add_u32 v11, s13, v17
          v_lshlrev_b32 v15, 6, v2
          v_lshl_add_u32 v15, v3, 4, v15
          s_and_b32 s13, s73, 1
          s_lshl1_add_u32 s64, s4, s13
          s_lshl3_add_u32 s13, s64, s3
          s_lshl_b32 s65, s13, 11
          s_add_u32 s65, s65, {CP}
          s_lshr_b32 s13, s13, 1
          s_lshl_b32 s66, s13, 10
          s_lshl3_add_u32 s66, s14, s66
          s_add_u32 s66, s66, {CPC}
          s_and_b32 s13, s73, 0xfe
          s_add_u32 s13, s13, s14
          s_lshl4_add_u32 s71, s13, s64
          s_lshl_b32 s71, s71, 9
          s_add_u32 s71, s71, {AP}""")
    lf = g.lab("F5")
    g(f"s_cmp_lg_u32 s3, 5\ns_cbranch_scc1 {lf}")
    hh_addr(g, 20, 21, 16)
    g(f"""s_nop 0
          s_lshl_b32 s70, s73, 13
          s_add_u32 s70, s70, {AP}
          s_add_u32 s71, s70, 4096
          {lf}:""")
    lq = g.lab("LQ")
    g(f"s_mov_b64 s[62:63], -1\ns_cmp_lt_u32 s3, 4\ns_cbranch_scc1 {lq}\ns_waitcnt vmcnt(0)\n{lq}:\ns_barrier")
    g.stamp(5)
    for tt in range(2):
        for tpi in range(2):
            for e in range(2):
                r = 64 + 16*tt + 8*tpi + 4*e
                g(f"ds_read_b64_tr_b16 v[{r}:{r+1}], v{[8,12][tpi]} offset:{tt*4096+e*8}")
                g(f"ds_read_b64_tr_b16 v[{r+2}:{r+3}], v{[9,13][tpi]} offset:{tt*4096+e*8}")
    def cdual(cond):
        lnd = g.lab("ND")
        g(f"""{cond}
              s_cbranch_scc1 {lnd}
              s_cmp_ge_u32 s3, 4
              s_cbranch_scc1 {lnd}""")
        g.mask_j4()
        g(f"""buffer_store_dwordx4 v[24:27], v18, s[56:59], s68 offen sc1
              buffer_store_dword v28, v19, s[56:59], s69 offen sc1
              s_mov_b64 exec, -1
              {lnd}:""")
    l = g.poll_begin(dual=True)
    cdual("s_cmp_lg_u32 s61, 3")
    g("s_mov_b64 exec, s[62:63]")
    for tt in range(2):
        g(f"buffer_load_dwordx4 v[{96+4*tt}:{99+4*tt}], v15, s[52:55], s65 offen offset:{tt*1024} sc1")
    g(f"""buffer_load_dwordx2 v[112:113], v15, s[52:55], s66 offen sc1
          s_mov_b64 exec, -1
          s_waitcnt vmcnt(0) lgkmcnt(0)""")
    for tt in range(2):
        for q in range(4): g.mfma(40+4*q, 64+16*tt+4*q, 96+4*tt, tt == 0)
    for tt in range(2): g.verify(96+4*tt, 112+tt, tt == 0)
    g.poll_end(l, dual=True)
    g.stamp(1)
    for k in range(8): g(f"v_add_f32_dpp v{40+k}, v{40+k}, v{40+k} row_ror:8 row_mask:0xf bank_mask:0x3")
    for k in range(8): g(f"v_add_f32_dpp v{40+k}, v{48+k}, v{48+k} row_ror:8 row_mask:0xf bank_mask:0xc")
    for k in range(4): g(f"v_add_f32_dpp v{40+k}, v{40+k}, v{40+k} row_shl:4 row_mask:0xf bank_mask:0x5")
    for k in range(4): g(f"v_add_f32_dpp v{40+k}, v{44+k}, v{44+k} row_shr:4 row_mask:0xf bank_mask:0xa")
    lr = g.lab("R5")
    g(f"""ds_write_b128 v10, v[40:43]
          s_waitcnt lgkmcnt(0)
          s_barrier""")
    cdual("s_cmp_ge_u32 s61, 3")
    g(f"""s_cmp_eq_u32 s3, 5
          s_cbranch_scc1 {lr}
          s_cmp_lt_u32 s3, 6
          s_cbranch_scc1 L_fin""")
    red_read(g, 8, 1024)
    g(f"""v_cvt_pk_bf16_f32 v24, v24, v25
          v_mov_b32 v25, s11
          buffer_store_dwordx2 v[24:25], v17, s[40:43], s71 offen sc1""")
    g.stamp(2)
    g(f"s_branch L_fin\n{lr}:")
    g.unpack(44, 120)
    g("v_mov_b32 v50, s11\nv_mov_b32 v51, s11")
    l = g.poll_begin()
    for x in range(16):
        g(f"buffer_load_dwordx2 v[{64+2*x}:{65+2*x}], v17, s[40:43], s{70+(x>>3)} offen offset:{(x&7)*512} sc1")
    for x in range(16):
        g(f"s_waitcnt vmcnt({15-x})")
        if x == 0:
            g.unpack(46, 64)
            g("v_xor_b32 v55, s11, v65")
        else:
            g.unpack(48, 64+2*x)
            g(f"v_bitop3_b32 v55, v55, v{65+2*x}, v50 bitop3:0xf6")
            g("v_add_f32 v46, v46, v48\nv_add_f32 v47, v47, v49")
    g("v_cmp_ne_u32 s[62:63], 0, v55")
    g.poll_end(l)
    g.stamp(3)
    g("v_cvt_pk_bf16_f32 v46, v46, v47")
    g.unpack(48, 46)
    g(f"""v_add_f32 v48, v48, v44
          v_add_f32 v49, v49, v45
          v_cvt_pk_bf16_f32 v46, v48, v49
          buffer_store_dword v46, v20, s[40:43], s67 offen
          v_lshlrev_b32 v52, 16, v46
          v_add_u32_dpp v47, v46, v46 quad_perm:[1,0,3,2] {DPP}
          v_and_b32 v53, 0xffff0000, v46
          v_add_f32 v48, v52, v53
          v_add_u32_dpp v47, v47, v47 quad_perm:[2,3,0,1] {DPP}
          v_add_u32 v47, s11, v47""")
    g.mask("0x11111111")
    g(f"""buffer_store_dword v47, v21, s[40:43], s69 offen
          s_mov_b64 exec, -1""")
    g.inrow("v_add_f32", 48)
    g(f"""v_mul_f32 v54, {f32(1/32)}, v48
          v_sub_f32 v52, v52, v54
          v_sub_f32 v53, v53, v54
          v_mul_f32 v49, v52, v52
          v_fmac_f32 v49, v53, v53""")
    g.inrow("v_add_f32", 49)
    g.mask("0x00010001")
    g(f"""buffer_store_dwordx4 v[48:51], v16, s[40:43], s68 offen
          buffer_store_dwordx4 v[48:51], v16, s[56:59], s68 offen sc1""")
    g.mask("0x11111111")
    g(f"""buffer_store_dword v47, v21, s[56:59], s69 offen sc1
          s_mov_b64 exec, -1
          buffer_store_dword v46, v20, s[56:59], s67 offen sc1""")
    g.stamp(4)
    g("s_branch L_fin")

def s6(g):
    g("L_s6:")
    g.srd(48, P_W1, 2211840)
    g(f"""v_lshrrev_b32 v12, 2, v1
          v_mul_u32_u24 v12, 3456, v12
          v_and_b32 v7, 3, v1
          v_lshl_add_u32 v12, v7, 4, v12
          s_add_u32 s13, s3, 16
          s_mul_i32 s64, s13, {16*3456}
          s_lshl_b32 s14, s73, 6
          s_add_u32 s64, s64, s14
          s_lshl_b32 s65, s3, 10""")
    for k in range(3):
        g(f"""s_add_u32 m0, s65, {L_WR + 16384 + k*8192}
              s_add_u32 s13, s64, {k*128*3456}
              buffer_load_dwordx4 v12, s[48:51], s13 offen nt lds""")
    g.srd(44, P_W2, 2211840)
    g(f"""v_and_b32 v13, 7, v1
          v_xor_b32 v13, v13, v3
          s_and_b32 s13, s3, 1
          s_lshl_b32 s13, s13, 2
          v_xor_b32 v13, s13, v13
          v_lshrrev_b32 v7, 3, v1
          v_mul_u32_u24 v7, 1280, v7
          v_lshl_add_u32 v13, v13, 4, v7
          s_lshl2_add_u32 s64, s73, s12
          s_mul_i32 s64, s64, {8*1280}
          s_lshr_b32 s13, s3, 2
          s_lshl_b32 s13, s13, 7
          s_add_u32 s64, s64, s13""")
    for k in range(5):
        g(f"""s_add_u32 m0, s65, {L_W2 + k*8192}
              s_add_u32 s13, s64, {k*256}
              buffer_load_dwordx4 v13, s[44:47], s13 offen nt lds""")
    g("s_min_u32 s13, s3, 4\ns_lshl_b32 s64, s13, 7")
    tr64_addr(g, 8, 64)
    g(f"""v_lshlrev_b32 v10, 7, v2
          v_lshl_add_u32 v10, v3, 5, v10
          s_lshl_b32 s13, s3, 9
          s_add_u32 s13, s13, {L_RED}
          v_add_u32 v10, s13, v10
          v_lshlrev_b32 v11, 3, v1
          v_add_u32 v11, {L_RED}, v11
          v_mul_u32_u24 v14, 1280, v2
          v_lshl_add_u32 v14, v3, 4, v14
          v_mul_u32_u24 v15, 320, v2
          v_lshl_add_u32 v15, v3, 4, v15
          s_mul_i32 s65, s4, 5120
          s_lshl_b32 s13, s3, 8
          s_add_u32 s65, s65, s13
          s_add_u32 s65, s65, {HH}
          s_mul_i32 s67, s4, 1280
          s_lshl_b32 s13, s3, 6
          s_add_u32 s66, s67, s13
          s_add_u32 s66, s66, {HHC}
          s_add_u32 s67, s67, {HS}""")
    g(f"""v_lshrrev_b32 v12, 2, v1
          v_and_b32 v12, 3, v12
          v_and_b32 v13, 3, v1
          v_lshrrev_b32 v20, 1, v13
          s_lshl_b32 s13, s12, 1
          v_or_b32 v20, s13, v20
          v_lshrrev_b32 v7, 1, v12
          v_xor_b32 v20, v20, v7
          v_and_b32 v7, 1, v3
          v_lshlrev_b32 v7, 2, v7
          v_xor_b32 v20, v20, v7
          v_lshlrev_b32 v20, 4, v20
          v_lshl_add_u32 v20, v12, 7, v20
          v_lshl_add_u32 v20, v3, 10, v20
          v_and_b32 v7, 1, v13
          v_lshl_add_u32 v20, v7, 3, v20
          s_lshr_b32 s13, s3, 2
          s_lshl_b32 s13, s13, 12
          s_add_u32 s13, s13, {L_W2}
          v_add_u32 v20, s13, v20
          v_xor_b32 v21, 0x220, v20
          v_and_b32 v22, 3, v2
          v_lshlrev_b32 v22, 6, v22
          v_lshl_add_u32 v22, v3, 4, v22
          v_add_u32 v22, {L_UL}, v22
          v_lshlrev_b32 v23, 4, v2
          s_mul_i32 s68, s73, 10240
          s_lshl_b32 s13, s3, 8
          s_add_u32 s68, s68, s13
          s_add_u32 s68, s68, {FP}
          s_add_u32 s69, s68, 4096
          s_add_u32 s70, s68, 8192""")
    for k in range(96, 112): g(f"v_mov_b32 v{k}, 0x3f803f80")
    for k in range(5): g(f"v_mov_b32 v{170+4*k}, s11\nv_mov_b32 v{171+4*k}, s11")
    lfin, lidle, lw2 = g.lab("F6"), g.lab("I6"), g.lab("W6")
    g("s_waitcnt vmcnt(0)\ns_barrier")
    g.stamp(4)
    for k in range(5):
        g(f"ds_read_b64_tr_b16 v[{128+4*k}:{129+4*k}], v20 offset:{k*8192}")
        g(f"ds_read_b64_tr_b16 v[{130+4*k}:{131+4*k}], v21 offset:{k*8192}")
    g(f"""s_cmp_eq_u32 s3, 7
          s_cbranch_scc1 {lfin}
          s_cmp_ge_u32 s3, 5
          s_cbranch_scc1 {lidle}""")
    tr64_reads(g, 8)
    g("s_waitcnt lgkmcnt(0)")
    for t in range(4):
        for e in range(2): g.mfma(56+4*e, 64+8*t+4*e, 96+4*t, t == 0)
    g.nop(6)
    red_write(g)
    g("s_waitcnt lgkmcnt(0)\ns_barrier\ns_barrier")
    g.mask_j4()
    l = g.poll_begin(dual=True)
    for t in range(4):
        g(f"buffer_load_dwordx4 v[{96+4*t}:{99+4*t}], v14, s[52:55], s65 offen offset:{t*64} sc1")
    g(f"""buffer_load_dwordx4 v[112:115], v15, s[52:55], s66 offen sc1
          s_waitcnt vmcnt(0)""")
    for t in range(4): g.verify(96+4*t, 112+t, t == 0)
    g.poll_end(l, dual=True)
    g.unmask()
    g.stamp(1)
    for t in range(4):
        for e in range(2): g.mfma(56+4*e, 64+8*t+4*e, 96+4*t, t == 0)
    g.nop(6)
    red_write(g)
    g(f"""s_waitcnt lgkmcnt(0)
          s_barrier
          s_branch {lw2}
          {lidle}:
          s_barrier
          s_barrier
          s_barrier
          s_branch {lw2}
          {lfin}:
          s_barrier""")
    red_read(g, 5, 512)
    g(f"""v_mov_b32 v40, v24
          v_mov_b32 v41, v25
          s_barrier
          v_mul_u32_u24 v16, 320, v3
          v_lshl_add_u32 v16, v2, 4, v16
          v_mov_b32 v48, 0
          v_mov_b32 v49, 0
          v_mov_b32 v50, s11
          v_cmp_gt_u32 vcc, 4, v2
          v_mov_b32 v42, 0
          v_lshlrev_b32 v17, 2, v1
          v_cndmask_b32 v42, v42, 1.0, vcc
          v_add_u32 v17, {L_UL}, v17""")
    l = g.poll_begin(dual=True)
    g(f"buffer_load_dwordx4 v[44:47], v16, s[52:55], s67 offen sc1")
    g.mask_j4()
    g(f"""buffer_load_dwordx4 v[48:51], v16, s[52:55], s67 offen offset:256 sc1
          s_mov_b64 exec, -1
          s_waitcnt vmcnt(0)""")
    g.acc_ne("s11", "v46", True)
    g.acc_ne("s11", "v50", False)
    g.poll_end(l, dual=True)
    g.stamp(1)
    g("v_add_f32 v52, v44, v48")
    g.inrow("v_add_f32", 52)
    g(f"""v_mul_f32 v52, {f32(1/640)}, v52
          v_mul_f32 v44, {f32(1/32)}, v44
          v_mul_f32 v48, {f32(1/32)}, v48
          v_sub_f32 v44, v44, v52
          v_sub_f32 v48, v48, v52
          v_mul_f32 v48, v48, v42
          v_mul_f32 v44, v44, v44
          v_fmac_f32 v44, v48, v48
          v_add_f32 v53, v45, v49
          v_fmac_f32 v53, {f32(32.0)}, v44""")
    g.inrow("v_add_f32", 53)
    g(f"""v_mov_b32 v54, {f32(1e-5)}
          v_fmac_f32 v54, {f32(1/640)}, v53
          v_rsq_f32 v54, v54
          v_mul_f32 v40, v40, v52
          v_mul_f32 v41, v41, v52
          s_barrier""")
    g.stamp(2)
    red_read(g, 5, 512)
    g(f"""v_sub_f32 v24, v24, v40
          v_sub_f32 v25, v25, v41
          v_mul_f32 v24, v24, v54
          v_mul_f32 v25, v25, v54
          v_mul_f32 v26, {f32(-LOG2E)}, v24
          v_mul_f32 v27, {f32(-LOG2E)}, v25
          v_exp_f32 v26, v26
          v_exp_f32 v27, v27
          s_nop 0
          v_add_f32 v26, 1.0, v26
          v_add_f32 v27, 1.0, v27
          v_rcp_f32 v26, v26
          v_rcp_f32 v27, v27
          s_nop 0
          v_mul_f32 v24, v24, v26
          v_mul_f32 v25, v25, v27
          v_cvt_pk_bf16_f32 v24, v24, v25
          ds_write_b32 v17, v24
          {lw2}:
          s_waitcnt lgkmcnt(0)
          s_barrier
          ds_read_b128 v[24:27], v22
          s_waitcnt lgkmcnt(0)""")
    for k in range(5): g.mfma(148+4*k, 24, 128+4*k, True)
    g.nop(3)
    g("s_mov_b64 exec, 0xffff")
    for k in range(5):
        g(f"""v_cvt_pk_bf16_f32 v{168+4*k}, v{148+4*k}, v{149+4*k}
              v_cvt_pk_bf16_f32 v{169+4*k}, v{150+4*k}, v{151+4*k}
              buffer_store_dwordx4 v[{168+4*k}:{171+4*k}], v23, s[40:43], s{68+(k>>1)} offen offset:{(k&1)*2048} sc1""")
    g.unmask()
    g.stamp(3)
    g("s_branch L_fin")

def s7(g):
    g("L_s7:")
    lh, lj = g.lab("H7"), g.lab("J7")
    g(f"""v_lshlrev_b32 v10, 2, v1
          v_add_u32 v16, {L_RED}, v10
          s_cmp_eq_u32 s3, 7
          s_cbranch_scc1 {lh}
          v_mul_u32_u24 v14, 10240, v3
          v_lshl_add_u32 v14, v2, 4, v14
          s_mul_i32 s65, s3, {8*10240}
          s_lshl_b32 s13, s73, 8
          s_add_u32 s65, s65, s13
          s_add_u32 s65, s65, {FP}
          s_add_u32 s66, s65, {4*10240}
          s_mov_b64 s[74:75], -1
          s_cmp_eq_u32 s3, 6
          s_cselect_b32 s75, 0, s75
          v_mov_b32 v100, 0
          v_mov_b32 v101, 0
          v_mov_b32 v102, s11
          s_lshl_b32 s13, s3, 8
          v_add_u32 v10, s13, v16""")
    l = g.poll_begin()
    g(f"""buffer_load_dwordx4 v[96:99], v14, s[40:43], s65 offen sc1
          s_mov_b64 exec, s[74:75]
          buffer_load_dwordx4 v[100:103], v14, s[40:43], s66 offen sc1
          s_mov_b64 exec, -1
          s_waitcnt vmcnt(0)""")
    g.acc_ne("s11", "v98", True)
    g.acc_ne("s11", "v102", False)
    g.poll_end(l)
    g.stamp(1)
    g.unpack(24, 96); g.unpack(26, 97); g.unpack(28, 100); g.unpack(30, 101)
    for k in range(4): g(f"v_add_f32 v{24+k}, v{24+k}, v{28+k}")
    g(f"""s_nop 0
          v_permlane16_swap_b32 v24, v25
          v_permlane16_swap_b32 v26, v27
          s_nop 0
          v_add_f32 v24, v24, v25
          v_add_f32 v26, v26, v27
          s_nop 1
          v_permlane32_swap_b32 v24, v26
          s_nop 0
          v_add_f32 v24, v24, v26
          ds_write_b32 v10, v24
          s_waitcnt lgkmcnt(0)
          s_barrier
          s_branch L_fin
          {lh}:""")
    g.srd(48, P_OUT, 5120)
    g(f"""v_mul_u32_u24 v13, 1280, v3
          v_and_b32 v8, 8, v2
          v_lshl_add_u32 v11, v8, 1, v13
          v_lshl_add_u32 v13, v2, 1, v13
          v_mul_u32_u24 v12, 320, v3
          v_lshl_add_u32 v12, v8, 1, v12
          s_lshl_b32 s64, s73, 5
          s_mul_i32 s65, s4, 5120
          s_add_u32 s65, s65, s64
          s_add_u32 s65, s65, {HH}
          s_mul_i32 s66, s4, 1280
          s_lshr_b32 s13, s73, 3
          s_lshl_b32 s13, s13, 6
          s_add_u32 s66, s66, s13
          s_and_b32 s13, s73, 1
          s_lshl_b32 s13, s13, 5
          s_add_u32 s66, s66, s13
          s_lshr_b32 s13, s73, 1
          s_and_b32 s13, s13, 3
          s_lshl2_add_u32 s66, s13, s66
          s_add_u32 s66, s66, {HHC}""")
    l = g.poll_begin(dual=True)
    g(f"""buffer_load_dwordx4 v[24:27], v11, s[52:55], s65 offen sc1
          buffer_load_dword v28, v12, s[52:55], s66 offen sc1
          s_waitcnt vmcnt(0)""")
    g.verify(24, 28, True)
    g.poll_end(l, dual=True)
    g(f"""v_and_b32 v8, 2, v1
          v_cmp_ne_u32 vcc, 0, v8
          v_and_b32 v9, 4, v1
          v_cmp_ne_u32 s[74:75], 0, v9
          v_cndmask_b32 v24, v24, v25, vcc
          v_cndmask_b32 v26, v26, v27, vcc
          v_and_b32 v8, 1, v1
          v_cmp_ne_u32 vcc, 0, v8
          v_cndmask_b32 v24, v24, v26, s[74:75]
          v_lshlrev_b32 v25, 16, v24
          v_and_b32 v26, 0xffff0000, v24
          v_cndmask_b32 v30, v25, v26, vcc""")
    g.stamp(1)
    g("s_barrier")
    for w in range(7): g(f"ds_read_b32 v{64+w}, v16 offset:{w*256}")
    g("""s_waitcnt lgkmcnt(4)
         v_add_f32 v64, v64, v65
         v_add_f32 v64, v64, v66
         s_waitcnt lgkmcnt(2)
         v_add_f32 v67, v67, v68
         s_waitcnt lgkmcnt(0)
         v_add_f32 v69, v69, v70
         v_add_f32 v64, v64, v67
         v_add_f32 v64, v64, v69""")
    g.rbf(64)
    g(f"""v_add_f32 v64, v64, v30
          v_cvt_pk_bf16_f32 v64, v64, v64
          buffer_store_short v64, v13, s[48:51], s64 offen
          s_cmp_lg_u32 s73, 0
          s_cbranch_scc1 {lj}
          v_mov_b32 v65, s11
          v_mov_b32 v66, {EPOCH}
          s_mov_b64 exec, 1
          buffer_store_dword v65, v66, s[40:43], 0 offen
          s_mov_b64 exec, -1
          {lj}:""")
    g.stamp(2)

def gen(stamps=False, stop=None, W=7, we=5, wsw=16, opl=0, ea=1, npre=4, prio=1, wa=10, gb=28, dbg=0, hold=0):
    g = G(stamps or dbg, stop)
    g.dbg = dbg
    g.hold = hold
    g.we, g.wsw, g.opl, g.ea = we, wsw, opl, ea
    g.npre, g.prio, g.wa, g.gb = npre, prio, wa, gb
    prologue(g); pwave(g); swave(g, W)
    if stop != "A": tail(g)
    g("L_end:")
    return g

def emit(g, path):
    hdr = open("cdna_kernels/" + NAME + ".s.ref").read().split("; Override launch")[0]
    txt = hdr + f"""; @launch grid=(256,1,1) block=(512,1,1) lds={LDS_BYTES}
.amdgcn_target "amdgcn-amd-amdhsa--gfx950"
.text
.globl {NAME}_kernel
.p2align 8
.type {NAME}_kernel,@function
{NAME}_kernel:
""" + "\n".join(g.L) + f"""
    s_endpgm
L_code_end:
.section .rodata,"a"
.p2align 6
.amdhsa_kernel {NAME}_kernel
  .amdhsa_next_free_vgpr 256
  .amdhsa_next_free_sgpr 102
  .amdhsa_accum_offset 256
  .amdhsa_group_segment_fixed_size 0
  .amdhsa_kernarg_size 96
  .amdhsa_user_sgpr_count 2
  .amdhsa_user_sgpr_kernarg_segment_ptr 1
  .amdhsa_system_sgpr_workgroup_id_x 1
.end_amdhsa_kernel
"""
    open(path, "w").write(txt)

if __name__ == "__main__":
    import argparse
    ap = argparse.ArgumentParser()
    ap.add_argument("-o", default="k.s")
    ap.add_argument("--stamps", action="store_true")
    ap.add_argument("--stop", default=None)
    ap.add_argument("-W", type=int, default=7)
    ap.add_argument("--we", type=int, default=5)
    ap.add_argument("--wsw", type=int, default=16)
    ap.add_argument("--opl", type=int, default=0)
    ap.add_argument("--ea", type=int, default=1)
    ap.add_argument("--npre", type=int, default=4)
    ap.add_argument("--prio", type=int, default=1)
    ap.add_argument("--wa", type=int, default=10)
    ap.add_argument("--gb", type=int, default=28)
    ap.add_argument("--dbg", type=int, default=0)
    ap.add_argument("--hold", type=int, default=0)
    a = ap.parse_args()
    emit(gen(a.stamps, a.stop, a.W, a.we, a.wsw, a.opl, a.ea, a.npre, a.prio, a.wa, a.gb, a.dbg, a.hold), a.o)
```

```python
import sys, struct
NAME = "sequential_preLN__compressed_kv_cla__dense_activation_silu__decode"

EPOCH = 0x0
FL2, FL3 = 0x780000, 0x7D0000
FSTR = 4352
QPC, QP = 0x8000, 0x10000
QAC, QA = 0x30000, 0x40000
CPC = 0x60000
HH, HHC, HS = 0x70000, 0x7A000, 0x7D000
CP = 0x80000
AP = 0xC0000
FP = 0xF0000
DUAL = 0x170000
DLEN = 0xC0000
OP = 0x240000
OBLK = 20736
STAMP = 0x1000000
STAMP2 = 0x1040000
WS_REC = 0x1100000

L_R2 = 131072
L_WQ = L_R2
L_WUK = 0
L_QA = L_R2
L_XN = L_R2 + 20480
L_P = L_R2 + 25600
L_MX = L_R2 + 29696
L_SM = L_R2 + 16384
L_CC = L_MX + 256
L_FL = L_CC + 1024
LDS_BYTES = 163840
assert L_FL + 64 <= LDS_BYTES
L_WUV = 0
L_WR = 32768
L_W2 = L_WR + 40960
L_RED = L_W2 + 40960
L_UL = L_RED + 8192
F_A, F_S2, F_QA, F_T0, F_T1, F_RD, F_SM, F_S1, F_UK, F_UR, F_MX, F_GO, F_UV = 0, 4, 8, 12, 16, 20, 24, 28, 32, 36, 40, 44, 48

HASH_A, HASH_C = 1664525, 1013904223
SPIN_MAX = 20000
def f32(x): return "0x%08x" % struct.unpack("<I", struct.pack("<f", x))[0]
LOG2E = 1.4426950408889634
SCALE = (128 ** -0.5) * LOG2E
P_X, P_CKV, P_WQ, P_WUK, P_WUV, P_WO, P_BX, P_W1, P_W2, P_OUT, P_DBG, P_WS = 16, 18, 20, 22, 24, 26, 28, 30, 32, 34, 36, 38
DPP = "row_mask:0xf bank_mask:0xf"

class G:
    def __init__(self, stamps=False, stop=None):
        self.L = []; self.stamps = stamps; self.stop = stop; self.nlab = 0
    def __call__(self, s):
        for line in s.strip("\n").split("\n"):
            line = line.strip()
            if line:
                self.L.append("    " + line if not line.endswith(":") else line)
    def lab(self, p="L"):
        self.nlab += 1
        return f"{p}_{self.nlab}"
    def nop(self, n):
        while n > 0:
            k = min(n, 16); self(f"s_nop {k-1}"); n -= k
    def srd(self, d, ptr, size):
        self(f"""s_mov_b32 s{d}, s{ptr}
                 s_and_b32 s{d+1}, s{ptr+1}, 0xffff
                 s_mov_b32 s{d+2}, {size}
                 s_mov_b32 s{d+3}, 0x20000""")
    def ws_srds(self):
        self.srd(40, P_WS, WS_REC)
        self(f"""s_add_u32 s56, s{P_WS}, {DUAL}
                 s_addc_u32 s57, s{P_WS+1}, 0
                 s_and_b32 s57, s57, 0xffff
                 s_mov_b32 s58, {DLEN}
                 s_mov_b32 s59, 0x20000""")
    def stamp(self, idx):
        if self.stamps:
            self(f"s_memrealtime s[{76+2*idx}:{77+2*idx}]")
    def count(self, idx, reg=61):
        if self.stamps: self(f"s_waitcnt lgkmcnt(0)\ns_add_u32 s{76+2*idx}, s{reg}, 1")
    def flag_add(self, off):
        self(f"""s_mov_b64 exec, 1
                 ds_add_u32 v4, v5 offset:{off}
                 s_mov_b64 exec, -1""")
    def flag_wait(self, off, val):
        l = self.lab("FW"); x = self.lab("FX")
        self(f"""s_mov_b32 s15, 0
                 {l}:
                 ds_read_b32 v6, v4 offset:{off}
                 s_add_u32 s15, s15, 1
                 s_cmp_gt_u32 s15, {SPIN_MAX*8}
                 s_cbranch_scc1 {x}
                 s_waitcnt lgkmcnt(0)
                 v_readfirstlane_b32 s14, v6
                 s_cmp_lt_u32 s14, {val}
                 s_cbranch_scc1 {l}
                 {x}:""")
    def sflag_wait(self, base, off):
        l, x, r = self.lab("SW"), self.lab("SX"), self.lab("SR")
        self(f"""s_mov_b32 s15, 0
                 {l}:
                 s_load_dwordx16 s[16:31], s[{base}:{base+1}], {off} glc
                 s_add_u32 s15, s15, 1
                 s_cmp_gt_u32 s15, {SPIN_MAX}
                 s_cbranch_scc1 {x}
                 s_waitcnt lgkmcnt(0)""")
        for k in range(8):
            self(f"s_cmp_lg_u64 s[{16+2*k}:{17+2*k}], s[100:101]\ns_cbranch_scc1 {l}")
        self(f"{x}:")
    def reload_args(self):
        self("s_waitcnt lgkmcnt(0)\ns_load_dwordx16 s[16:31], s[0:1], 0")
    def chk(self, dst, p):
        self(f"""v_add3_u32 v{dst}, v{p}, v{p+1}, s11
                 v_add3_u32 v{dst}, v{p+2}, v{p+3}, v{dst}""")
    def acc_ne(self, a, b, first):
        if first:
            self(f"v_cmp_ne_u32 s[62:63], {a}, {b}")
        else:
            self(f"""v_cmp_ne_u32 vcc, {a}, {b}
                     s_or_b64 s[62:63], s[62:63], vcc""")
    def verify(self, p, c, first, t=7):
        self.chk(t, p)
        self.acc_ne(f"v{t}", f"v{c}", first)
    def poll_begin(self, dual=False):
        l = self.lab("PL")
        if dual:
            self("""s_mov_b32 s52, s40
                    s_mov_b32 s53, s41
                    s_mov_b32 s54, %d
                    s_mov_b32 s55, 0x20000""" % DLEN)
        self(f"s_mov_b32 s61, 0\n{l}:")
        return l
    def poll_end(self, l, dual=False):
        x = self.lab("PX")
        self(f"""s_cmp_eq_u64 s[62:63], 0
                 s_cbranch_scc1 {x}
                 s_add_u32 s61, s61, 1""")
        if dual:
            self("""s_and_b32 s14, s61, 7
                    s_cmp_eq_u32 s14, 7
                    s_cselect_b32 s52, s56, s40
                    s_cselect_b32 s53, s57, s41""")
        self(f"""s_cmp_lt_u32 s61, {SPIN_MAX}
                 s_cbranch_scc1 {l}
                 {x}:""")
    def xrow(self, op, v, t):
        self(f"""v_mov_b32 v{t}, v{v}
                 s_nop 1
                 v_permlane16_swap_b32 v{v}, v{t}
                 s_nop 0
                 {op} v{v}, v{v}, v{t}
                 v_mov_b32 v{t}, v{v}
                 s_nop 1
                 v_permlane32_swap_b32 v{v}, v{t}
                 s_nop 0
                 {op} v{v}, v{v}, v{t}""")
    def inrow(self, op, v, rors=(8, 4, 2, 1)):
        for r in rors:
            self(f"s_nop 1\n{op}_dpp v{v}, v{v}, v{v} row_ror:{r} {DPP}")
    def wave_sum(self, v, t):
        self.inrow("v_add_f32", v); self.xrow("v_add_f32", v, t)
    def rbf(self, v):
        self(f"v_cvt_pk_bf16_f32 v{v}, v{v}, v{v}\nv_lshlrev_b32 v{v}, 16, v{v}")
    def unpack(self, dst, src):
        self(f"v_lshlrev_b32 v{dst}, 16, v{src}\nv_and_b32 v{dst+1}, 0xffff0000, v{src}")
    def mfma(self, d, a, b, first):
        c = "0" if first else f"v[{d}:{d+3}]"
        self(f"v_mfma_f32_16x16x32_bf16 v[{d}:{d+3}], v[{a}:{a+3}], v[{b}:{b+3}], {c}")
    def pack8(self, p, d):
        for k in range(4):
            self(f"v_cvt_pk_bf16_f32 v{p+k}, v{d+2*k}, v{d+2*k+1}")
    def mask(self, m):
        self(f"s_mov_b32 exec_lo, {m}\ns_mov_b32 exec_hi, {m}")
    def mask_j4(self): self.mask("0x000f000f")
    def unmask(self): self("s_mov_b64 exec, -1")
    def dump(self, base):
        if self.dbg:
            g = self
            g("s_waitcnt lgkmcnt(0)")
            if base == STAMP2:
                lb = g.lab("DB")
                g(f"""v_mov_b32 v239, 0
                      s_not_b32 s13, s76
                      v_writelane_b32 v239, s13, 0
                      v_writelane_b32 v239, s76, 1
                      s_cmp_lt_u32 s3, 4
                      s_cbranch_scc1 {lb}""")
                for lane, k in ((2, 2), (3, 4), (4, 6), (5, 7), (6, 8)):
                    g(f"v_writelane_b32 v239, s{76+2*k}, {lane}")
                g(f"{lb}:")
                for k in range(1, 12): g(f"s_mov_b32 s{76+2*k}, 0")
            else:
                l0, l1, le = g.lab("DB"), g.lab("DB"), g.lab("DB")
                for lane, k in ((7, 9), (8, 10), (9, 11)):
                    g(f"v_writelane_b32 v239, s{76+2*k}, {lane}")
                g(f"""s_cmp_eq_u32 s72, 0
                      s_cbranch_scc1 {l0}
                      s_cmp_eq_u32 s72, 1
                      s_cbranch_scc1 {l1}
                      v_writelane_b32 v239, s78, 14
                      v_writelane_b32 v239, s80, 15
                      s_branch {le}
                      {l0}:
                      v_writelane_b32 v239, s78, 10
                      v_writelane_b32 v239, s82, 11
                      s_branch {le}
                      {l1}:
                      v_writelane_b32 v239, s78, 12
                      v_writelane_b32 v239, s82, 13
                      {le}:""")
                g.srd(44, P_DBG, 256)
                g("""v_lshlrev_b32 v238, 2, v1
                     s_mov_b64 exec, 0xffff
                     buffer_atomic_umax v239, v238, s[44:47], 0 offen sc1""")
            return
        if self.stamps:
            self("s_waitcnt lgkmcnt(0)")
            for k in range(12):
                self(f"v_mov_b32 v{240+k}, s{76+2*k}")
            self(f"""s_lshl_b32 s13, s2, 3
                  s_add_u32 s13, s13, s3
                  s_lshl_b32 s13, s13, 6
                  s_add_u32 s13, s13, {base}
                  v_mov_b32 v7, 0
                  s_mov_b64 exec, 1
                  buffer_store_dwordx4 v[240:243], v7, s[40:43], s13 offen
                  buffer_store_dwordx4 v[244:247], v7, s[40:43], s13 offen offset:16
                  buffer_store_dwordx4 v[248:251], v7, s[40:43], s13 offen offset:32
                  s_mov_b64 exec, -1""")
            for k in range(1, 12): self(f"s_mov_b32 s{76+2*k}, 0")
    def finish(self):
        if self.hold:
            l = self.lab("HD")
            self(f"""{l}:
                  s_memrealtime s[78:79]
                  s_waitcnt lgkmcnt(0)
                  s_sub_u32 s13, s78, s76
                  s_cmp_lt_u32 s13, {self.hold}
                  s_cbranch_scc1 {l}
                  s_endpgm""")
            return
        self.dump(STAMP)
        self("s_endpgm")

def tag_load(g): g(f"s_load_dword s11, s[{P_WS}:{P_WS+1}], {EPOCH}")
def tag_fin(g):
    g(f"""s_waitcnt lgkmcnt(0)
          s_mul_i32 s11, s11, {HASH_A}
          s_add_u32 s11, s11, {HASH_C}
          s_mov_b32 s100, s11
          s_mov_b32 s101, s11""")

def prologue(g):
    g(f"""s_cmp_ge_u32 s2, 256
          s_cbranch_scc1 L_end
          s_load_dwordx16 s[16:31], s[0:1], 0
          s_load_dwordx8 s[32:39], s[0:1], 64""")
    if g.stamps:
        for k in range(12): g(f"s_mov_b32 s{76+2*k}, 0")
    g.stamp(0)
    if g.hold: g("s_memrealtime s[76:77]")
    g(f"""v_lshrrev_b32 v2, 6, v0
          v_and_b32 v1, 63, v0
          s_and_b32 s4, s2, 7
          v_readfirstlane_b32 s3, v2
          s_lshr_b32 s5, s2, 3
          s_lshr_b32 s6, s5, 3
          s_lshl2_add_u32 s6, s4, s6
          s_and_b32 s7, s5, 7
          v_lshrrev_b32 v3, 4, v1
          v_and_b32 v9, 7, v1
          v_xor_b32 v9, v9, v3
          v_and_b32 v2, 1, v2
          v_lshlrev_b32 v2, 2, v2
          v_xor_b32 v9, v2, v9
          v_lshlrev_b32 v9, 4, v9
          v_lshrrev_b32 v10, 3, v1
          v_lshl_add_u32 v9, v10, 13, v9
          s_and_b32 s12, s3, 3
          v_and_b32 v2, 15, v1
          s_cmp_lt_u32 s3, 4
          s_cbranch_scc1 L_swave""")

def ids2(g):
    g(f"""s_lshr_b32 s8, s4, 1
          s_and_b32 s9, s5, 1
          s_and_b32 s10, s4, 1
          s_lshl_b32 s10, s10, 4
          s_lshr_b32 s13, s5, 1
          s_add_u32 s10, s10, s13
          v_mov_b32 v4, {L_FL}
          v_mov_b32 v5, 1""")

def pwave(g):
    g(f"""v_lshlrev_b32 v7, 4, v1
          v_lshlrev_b32 v8, 2, v1
          s_mul_i32 s64, s12, 1280
          v_lshlrev_b32 v15, 6, v2
          v_lshl_add_u32 v15, v3, 4, v15
          s_lshl_b32 s67, s6, 12
          s_add_u32 s67, s67, {QP}
          s_lshl_b32 s68, s6, 10
          s_add_u32 s68, s68, {QPC}
          s_mov_b32 s46, 5120
          s_mov_b32 s47, 0x20000
          {"s_setprio 3" if g.prio else ""}
          s_waitcnt lgkmcnt(0)
          s_mov_b32 s44, s{P_X}
          s_and_b32 s45, s{P_X+1}, 0xffff
          buffer_load_dwordx4 v[16:19], v7, s[44:47], s64 offen
          buffer_load_dword v20, v8, s[44:47], s64 offen offset:1024
          s_barrier""")
    tag_load(g)
    g.ws_srds()
    ids2(g)
    g(f"""s_lshr_b32 s69, s7, 1
          s_and_b32 s14, s12, 1
          s_lshl1_add_u32 s14, s9, s14
          s_lshl_b32 s13, s14, 10
          s_add_u32 s65, s67, s13
          s_lshl_b32 s13, s69, 8
          s_add_u32 s65, s65, s13
          s_add_u32 s66, s68, s13
          s_lshl2_add_u32 s66, s14, s66
          s_cmp_lt_u32 s12, 2
          s_cbranch_scc1 L_p_x0""")
    g.mask_j4()
    g(f"""buffer_load_dword v250, v15, s[40:43], s65 offen sc1
          buffer_load_dword v251, v15, s[40:43], s66 offen sc1
          s_mov_b64 exec, -1
          s_getpc_b64 s[70:71]
          L_pc:
          s_sub_u32 s48, s70, L_pc-{NAME}_kernel
          s_subb_u32 s49, s71, 0
          s_and_b32 s49, s49, 0xffff
          s_mov_b32 s50, L_code_end-{NAME}_kernel
          s_mov_b32 s51, 0x20000
          s_and_b32 s14, s12, 1
          s_lshl1_add_u32 s13, s5, s14
          s_lshl_b32 s13, s13, 9
          v_lshlrev_b32 v10, 3, v1
          buffer_load_dwordx2 v[254:255], v10, s[48:51], s13 offen
          s_waitcnt vmcnt(3)
          s_branch L_p_x1
          L_p_x0:
          s_waitcnt vmcnt(0)
          L_p_x1:""")
    g.stamp(1)
    for k in range(5): g.unpack(24+2*k, 16+k)
    g(f"""v_add_f32 v34, v24, v25
          v_add_f32 v35, v26, v27
          v_add_f32 v36, v28, v29
          v_add_f32 v37, v30, v31
          v_add_f32 v38, v32, v33
          v_add_f32 v34, v34, v35
          v_add_f32 v36, v36, v37
          v_add_f32 v34, v34, v38
          v_add_f32 v34, v34, v36""")
    g.wave_sum(34, 35)
    g(f"v_mul_f32 v34, {f32(1/640)}, v34")
    g("v_sub_f32 v36, v24, v34\nv_mul_f32 v35, v36, v36")
    for k in range(1, 10):
        g(f"v_sub_f32 v36, v{24+k}, v34\nv_fmac_f32 v35, v36, v36")
    g.wave_sum(35, 36)
    g(f"v_mul_f32 v35, {f32(1/640)}, v35")
    g.rbf(35)
    g(f"v_add_f32 v35, {f32(1e-5)}, v35")
    g.rbf(35)
    g("v_sqrt_f32 v35, v35")
    g.rbf(34)
    g.rbf(35)
    g("v_rcp_f32 v35, v35")
    for k in range(10): g(f"v_sub_f32 v{24+k}, v{24+k}, v34")
    for k in range(5): g(f"v_cvt_pk_bf16_f32 v{16+k}, v{24+2*k}, v{25+2*k}")
    for k in range(5): g.unpack(24+2*k, 16+k)
    for k in range(10): g(f"v_mul_f32 v{24+k}, v{24+k}, v35")
    for k in range(5): g(f"v_cvt_pk_bf16_f32 v{16+k}, v{24+2*k}, v{25+2*k}")
    g(f"""s_add_u32 s13, s64, {L_XN}
          v_add_u32 v7, s13, v7
          v_add_u32 v8, s13, v8
          ds_write_b128 v7, v[16:19]
          ds_write_b32 v8, v20 offset:1024""")
    g.flag_add(F_A)
    tag_fin(g)
    g(f"""v_lshrrev_b32 v10, 2, v1
          v_and_b32 v10, 3, v10
          v_and_b32 v11, 3, v1
          s_and_b32 s13, s12, 1
          s_lshl_b32 s13, s13, 2
          v_or_b32 v11, s13, v11
          v_lshrrev_b32 v12, 1, v10
          v_xor_b32 v11, v11, v12
          v_and_b32 v12, 1, v3
          v_lshlrev_b32 v12, 2, v12
          v_xor_b32 v11, v11, v12
          v_lshlrev_b32 v11, 4, v11
          v_lshl_add_u32 v11, v10, 7, v11
          v_lshl_add_u32 v11, v3, 10, v11
          v_add_u32 v11, {L_WQ}, v11
          v_xor_b32 v12, 0x220, v11
          v_and_b32 v13, 3, v2
          v_mul_u32_u24 v13, 1280, v13
          v_lshl_add_u32 v13, v3, 4, v13
          s_mul_i32 s13, s69, 320
          s_add_u32 s13, s13, {L_XN}
          v_add_u32 v13, s13, v13""")
    g(f"""v_lshlrev_b32 v24, 15, v2
          v_lshl_add_u32 v24, v3, 4, v24
          v_lshlrev_b32 v34, 13, v2
          v_lshl_add_u32 v34, v3, 4, v34
          v_and_b32 v7, 4, v2
          s_lshl2_add_u32 s13, s69, s12
          s_lshl_b32 s13, s13, 6
          s_lshl_b32 s70, s6, 10
          s_add_u32 s70, s70, s13
          s_add_u32 s70, s70, {QA}
          s_lshl_b32 s71, s4, 10
          s_add_u32 s71, s71, s13
          s_lshr_b32 s13, s5, 3
          s_lshl2_add_u32 s71, s13, s71
          s_add_u32 s71, s71, {QAC}
          v_lshrrev_b32 v26, 2, v2
          v_and_b32 v27, 3, v2
          v_lshrrev_b32 v25, 1, v27
          v_xor_b32 v25, v25, v3
          v_xor_b32 v25, v25, v7
          v_lshlrev_b32 v25, 4, v25
          v_lshl_add_u32 v25, v27, 7, v25
          v_lshl_add_u32 v25, v26, 11, v25
          s_lshl_b32 s13, s12, 13
          s_add_u32 s13, s13, {L_WUK}
          v_add_u32 v25, s13, v25
          v_xor_b32 v26, 64, v25
          v_xor_b32 v27, 0x220, v25
          v_xor_b32 v28, 0x260, v25
          s_mov_b32 s52, s40
          s_mov_b32 s53, s41
          s_mov_b32 s54, {DLEN}
          s_mov_b32 s55, 0x20000
          s_mov_b32 s61, 0""")
    g("s_cmp_ge_u32 s12, 2\ns_cbranch_scc1 L_p_nos1")
    g.flag_wait(F_A, 8)
    g.stamp(2)
    def s1_reads(t):
        g(f"ds_read_b128 v[{36+4*t}:{39+4*t}], v13 offset:{t*64}")
        for e in range(2):
            r = 96 + 8*t + 4*e
            g(f"ds_read_b64_tr_b16 v[{r}:{r+1}], v11 offset:{t*4096+e*8}")
            g(f"ds_read_b64_tr_b16 v[{r+2}:{r+3}], v12 offset:{t*4096+e*8}")
    s1_reads(0); s1_reads(1); s1_reads(2)
    for t in range(5):
        rem = min(5, t+3) - (t+1)
        g(f"s_waitcnt lgkmcnt({rem*5})")
        for e in range(2): g.mfma(56+4*e, 96+8*t+4*e, 36+4*t, t == 0)
        if t + 3 < 5: s1_reads(t+3)
    g.nop(6)
    g.mask_j4()
    g.pack8(16, 56)
    g.chk(20, 16)
    g(f"""buffer_store_dwordx4 v[16:19], v15, s[40:43], s65 offen
          buffer_store_dword v20, v15, s[40:43], s66 offen""")
    g.flag_add(F_S1)
    g.stamp(3)
    g("L_p_nos1:")
    def qdual():
        lq = g.lab("QD")
        g(f"s_cmp_ge_u32 s12, 2\ns_cbranch_scc1 {lq}")
        g.mask_j4()
        g(f"""buffer_store_dwordx4 v[16:19], v15, s[56:59], s65 offen sc1
              buffer_store_dword v20, v15, s[56:59], s66 offen sc1
              s_mov_b64 exec, -1
              {lq}:""")
    g.flag_wait(F_S1, 2)
    g("s_bitcmp1_b32 s5, 0\ns_cbranch_scc1 L_p_qd")
    g.flag_wait(F_UK, 4)
    g.stamp(9)
    for e in range(2):
        for t in range(4):
            r = 64 + 16*e + 4*t
            g(f"ds_read_b128 v[{r}:{r+3}], v{25+2*e+(t&1)} offset:{(t>>1)*1024}")
    l, lnd = g.lab("PL"), g.lab("ND")
    g(f"""s_mov_b64 s[62:63], -1
          {l}:
          s_cmp_lg_u32 s61, 3
          s_cbranch_scc1 {lnd}""")
    qdual()
    g(f"{lnd}:\ns_mov_b64 exec, s[62:63]")
    for t in range(4):
        g(f"buffer_load_dwordx4 v[{36+4*t}:{39+4*t}], v15, s[52:55], s67 offen offset:{t*1024} sc1")
    g(f"""buffer_load_dwordx4 v[52:55], v15, s[52:55], s68 offen sc1
          s_mov_b64 exec, -1
          s_waitcnt vmcnt(0) lgkmcnt(0)""")
    for t in range(4):
        for e in range(2): g.mfma(56+4*e, 64+16*e+4*t, 36+4*t, t == 0)
    for t in range(4): g.verify(36+4*t, 52+t, t == 0)
    g.poll_end(l, dual=True)
    g.count(10)
    for r in (4, 8):
        for k in range(8): g(f"v_add_f32_dpp v{56+k}, v{56+k}, v{56+k} row_ror:{r} {DPP}")
    g.mask_j4()
    g.pack8(28, 56)
    g.chk(32, 28)
    g(f"""buffer_store_dwordx4 v[28:31], v24, s[40:43], s70 offen sc1
          buffer_store_dword v32, v34, s[40:43], s71 offen sc1""")
    g.flag_add(F_GO)
    g.stamp(4)
    lnd = g.lab("ND")
    g(f"s_cmp_ge_u32 s61, 3\ns_cbranch_scc1 {lnd}\nL_p_qd:")
    qdual()
    g(f"{lnd}:")
    g("L_p_gather:")
    if g.stop == "A":
        g("s_waitcnt vmcnt(0)"); g.finish(); return
    g("s_nop 1")
    g(f"""v_lshrrev_b32 v10, 2, v1
          v_and_b32 v10, 3, v10
          v_and_b32 v11, 3, v1
          v_lshrrev_b32 v12, 1, v10
          v_and_b32 v13, 2, v3
          v_or_b32 v12, v12, v13
          v_and_b32 v13, 1, v3
          v_lshl_or_b32 v12, v13, 2, v12
          v_xor_b32 v12, v12, v11
          v_lshlrev_b32 v12, 4, v12
          v_lshl_or_b32 v13, v13, 2, v10
          v_lshl_add_u32 v12, v13, 7, v12
          v_lshrrev_b32 v13, 1, v3
          v_lshl_add_u32 v12, v13, 10, v12
          v_and_b32 v13, 1, v11
          v_lshl_add_u32 v12, v13, 3, v12
          s_lshl_b32 s13, s12, 12
          v_add_u32 v20, s13, v12
          v_xor_b32 v21, 8, v20
          v_xor_b32 v22, 64, v20
          v_xor_b32 v23, 0x48, v20
          v_add_u32 v24, 0x10000, v20
          v_add_u32 v25, 0x10000, v21
          v_add_u32 v26, 0x10000, v22
          v_add_u32 v27, 0x10000, v23
          v_lshlrev_b32 v28, 4, v1
          s_lshl2_add_u32 s13, s9, s12
          s_lshl_b32 s65, s13, 12
          s_lshl_b32 s14, s8, 15
          s_add_u32 s65, s65, s14
          s_add_u32 s65, s65, {QA}
          s_lshl_b32 s66, s13, 10
          s_lshl_b32 s14, s8, 13
          s_add_u32 s66, s66, s14
          s_add_u32 s66, s66, {QAC}
          s_lshl3_add_u32 s13, s4, s13
          s_mul_i32 s13, s13, {FSTR}
          s_add_u32 s13, s13, {FL2}
          s_add_u32 s70, s{P_WS}, s13
          s_addc_u32 s71, s{P_WS+1}, 0""")
    for n in range(4):
        g(f"""s_lshl2_add_u32 s13, s12, {n}
              s_lshl_b32 s14, s13, 4
              v_xor_b32 v{29+n}, s14, v28
              s_lshl_b32 s13, s13, 10
              s_add_u32 s13, s13, {L_QA}
              v_add_u32 v{29+n}, s13, v{29+n}""")
    role_decode(g)
    def gather_loads():
        for n in range(4):
            g(f"buffer_load_dwordx4 v[{64+4*n}:{67+4*n}], v28, s[40:43], s65 offen offset:{n*1024} sc1")
        g("buffer_load_dwordx4 v[80:83], v28, s[40:43], s66 offen sc1")
    def pv_pre(tile):
        for sw in range(4):
            for tp in range(4):
                for e in range(2):
                    r = 128 + ((tp*2+e)*4 + sw)*4 + 2*tile
                    a = 20 + (tp & 1)*2 + e + (4 if sw >= 2 else 0)
                    off = (sw & 1)*32768 + tile*16384 + (tp >> 1)*2048
                    g(f"ds_read_b64_tr_b16 v[{r}:{r+1}], v{a} offset:{off}")
    lga, lgb = g.lab("GA"), g.lab("GB")
    def pre0():
        g.flag_wait(F_T0, 4)
        pv_pre(0)
        g("s_waitcnt lgkmcnt(0)")
        g.flag_add(F_RD)
    g(f"""s_mov_b32 s64, 0
          s_bitcmp0_b32 s5, 0
          s_cbranch_scc1 {lga}
          {lgb}:""")
    pre0()
    g(f"""s_cmp_lg_u32 s64, 0
          s_cbranch_scc1 {lgb}_x
          {lga}:""")
    g.sflag_wait(70, 0)
    g.stamp(5)
    g("s_mov_b64 s[62:63], -1")
    l = g.poll_begin()
    g("s_mov_b64 exec, s[62:63]")
    gather_loads()
    g("s_mov_b64 exec, -1\ns_waitcnt vmcnt(0)")
    for n in range(4): g.verify(64+4*n, 80+n, n == 0)
    g.poll_end(l)
    g.count(11)
    for n in range(4): g(f"ds_write_b128 v{29+n}, v[{64+4*n}:{67+4*n}]")
    g.flag_add(F_QA)
    g.stamp(6)
    g.reload_args()
    g(f"""s_mov_b32 s64, 1
          s_bitcmp0_b32 s5, 0
          s_cbranch_scc1 {lgb}
          {lgb}_x:
          s_waitcnt lgkmcnt(0)""")
    lpt = g.lab("PT")
    g(f"""s_cmp_lg_u32 s3, 5
          s_cbranch_scc1 {lpt}
          s_cmp_lg_u32 s72, 0
          s_cbranch_scc1 {lpt}""")
    hh_addr(g, 116, 117, 118)
    g(f"""s_lshl_b32 s13, s73, 6
          buffer_load_dword v120, v116, s[44:47], s13 offen
          buffer_load_dword v121, v116, s[40:43], s67 offen sc1
          buffer_load_dword v122, v117, s[40:43], s69 offen sc1
          buffer_load_dword v123, v118, s[40:43], s68 offen sc1
          {lpt}:""")
    g(f"""v_lshlrev_b32 v29, {7 if g.opl else 6}, v2
          v_lshl_add_u32 v29, v3, 4, v29
          v_lshlrev_b32 v30, 6, v2
          v_lshl_add_u32 v30, v3, 4, v30
          s_lshl2_add_u32 s65, s9, s8
          s_lshl_b32 s65, s65, 5
          s_add_u32 s65, s65, s10
          s_mul_i32 s65, s65, {OBLK}
          s_add_u32 s65, s65, {OP}
          s_lshl_b32 s13, s12, 10
          s_add_u32 s67, s65, s13
          s_add_u32 s67, s67, 16384
          s_lshl_b32 s13, s12, 12
          s_add_u32 s65, s65, s13
          v_add_u32 v31, {L_P}, v28
          v_mul_u32_u24 v33, {16*FSTR}, v1
          v_mov_b32 v34, s11
          s_lshl4_add_u32 s66, s9, s12
          s_lshl2_add_u32 s66, s66, s8
          s_mul_i32 s66, s66, {FSTR}
          s_lshl2_add_u32 s66, s10, s66
          s_add_u32 s66, s66, {FL3}""")
    g.srd(48, P_WUV, 4194304)
    g(f"""s_lshl_b32 s69, s7, 6
          s_lshl3_add_u32 s69, s12, s69
          s_lshl_b32 s69, s69, 13
          s_lshl_b32 s13, s6, 8
          s_add_u32 s69, s69, s13
          s_lshl_b32 s70, s12, 10""")
    g.flag_wait(F_RD, 4)
    g.flag_wait(F_S2, 4)
    for k in range(2):
        for ch in range(2):
            g(f"""s_add_u32 m0, s70, {L_WUV + ch*8192 + k*4096}
                  s_add_u32 s13, s69, {k*262144 + ch*128}
                  buffer_load_dwordx4 v9, s[48:51], s13 offen nt lds""")
    early_setup(g)
    g.flag_wait(F_T1, 4)
    pv_pre(1)
    if g.ea: early_dma(g)
    g("s_waitcnt lgkmcnt(0)")
    g("s_barrier")
    g.stamp(7)
    for sw in range(4):
        g(f"ds_read_b128 v[{36+4*sw}:{39+4*sw}], v31 offset:{sw*1024}")
    def pv_out(tp):
        g.pack8(96+4*tp, 64+8*tp)
        g.chk(112+tp, 96+4*tp)
        g(f"buffer_store_dwordx4 v[{96+4*tp}:{99+4*tp}], v29, s[40:43], s65 offen offset:{((tp>>1)*2048+(tp&1)*64) if g.opl else tp*1024} sc1")
    for tp in range(4):
        for sw in range(4):
            if tp == 0: g(f"s_waitcnt lgkmcnt({3-sw})")
            for e in range(2): g.mfma(64+8*tp+4*e, 128+((tp*2+e)*4+sw)*4, 36+4*sw, sw == 0)
        if tp >= 1: pv_out(tp-1)
    g.nop(2)
    pv_out(3)
    g("""buffer_store_dwordx4 v[112:115], v30, s[40:43], s67 offen sc1
         s_mov_b64 exec, 15
         buffer_store_dword v34, v33, s[40:43], s66 offen sc1
         s_mov_b64 exec, -1""")
    g.stamp(8)
    g("s_waitcnt vmcnt(6)")
    g.flag_add(F_UV)
    if g.ea >= 2: early_dma(g)
    g("s_branch L_s4")

def hh_addr(g, va, vc, vs):
    g(f"""v_mul_u32_u24 v{va}, 1280, v3
          v_lshl_add_u32 v{va}, v2, 2, v{va}
          s_lshl_b32 s67, s73, 6
          s_mul_i32 s13, s4, 5120
          s_add_u32 s67, s67, s13
          s_add_u32 s67, s67, {HH}
          v_mul_u32_u24 v{vs}, 320, v3
          v_and_b32 v{vc}, 12, v2
          v_lshl_add_u32 v{vc}, v{vc}, 2, v{vs}
          s_mul_i32 s68, s4, 1280
          s_lshr_b32 s13, s73, 2
          s_lshl_b32 s13, s13, 6
          s_add_u32 s69, s68, s13
          s_and_b32 s13, s73, 3
          s_lshl2_add_u32 s69, s13, s69
          s_add_u32 s69, s69, {HHC}
          s_lshl4_add_u32 s68, s73, s68
          s_add_u32 s68, s68, {HS}""")
def v1280(g, dst):
    g(f"""v_lshrrev_b32 v{dst}, 3, v1
          v_mul_u32_u24 v{dst}, 1280, v{dst}
          v_and_b32 v7, 0x70, v9
          v_add_u32 v{dst}, v{dst}, v7""")
def early_setup(g):
    l1, le = g.lab("E1"), g.lab("EE")
    g(f"""s_mov_b32 s70, 0
          s_lshl_b32 s71, s12, 10
          s_add_u32 s71, s71, {L_WR}""")
    g.srd(44, P_WO, 5242880)
    v1280(g, 119)
    g(f"""s_and_b32 s13, s73, 1
          s_lshl1_add_u32 s13, s4, s13
          s_lshl_b32 s13, s13, 5
          s_add_u32 s13, s13, s12
          s_mul_i32 s68, s13, {8*1280}
          s_lshr_b32 s13, s73, 1
          s_lshl_b32 s13, s13, 7
          s_add_u32 s68, s68, s13
          s_mov_b32 s69, {32*1280}
          s_cmp_ge_u32 s72, 2
          s_cbranch_scc1 {le}
          s_mov_b32 s70, 4
          s_cmp_eq_u32 s72, 0
          s_cbranch_scc1 {le}""")
    g.srd(44, P_W1, 2211840)
    g(f"""v_lshrrev_b32 v119, 2, v1
          v_mul_u32_u24 v119, 3456, v119
          v_and_b32 v7, 3, v1
          v_lshl_add_u32 v119, v7, 4, v119
          s_mul_i32 s68, s12, {16*3456}
          s_lshl_b32 s13, s73, 6
          s_add_u32 s68, s68, s13
          s_mov_b32 s69, {64*3456}
          s_mov_b32 s70, 2
          {le}:""")
def early_dma(g):
    l, le = g.lab("ED"), g.lab("EX")
    g(f"""s_mov_b32 s13, s70
          s_cmp_eq_u32 s70, 0
          s_cbranch_scc1 {le}
          {l}:
          s_mov_b32 m0, s71
          s_add_u32 s71, s71, 4096
          buffer_load_dwordx4 v119, s[44:47], s68 offen nt lds
          s_add_u32 s68, s68, s69
          s_sub_u32 s13, s13, 1
          s_cmp_lg_u32 s13, 0
          s_cbranch_scc1 {l}
          {le}:""")

def swave(g, W):
    g("L_swave:")
    g(f"""s_lshr_b32 s14, s7, 1
          s_mul_i32 s64, s14, 160
          s_lshl3_add_u32 s64, s12, s64
          s_lshl_b32 s64, s64, 13
          s_lshl_b32 s13, s6, 8
          s_add_u32 s64, s64, s13
          s_and_b32 s70, s5, 1
          s_lshl_b32 s71, s70, 7
          s_add_u32 s64, s64, s71
          s_lshl_b32 s68, s14, 7
          s_lshl3_add_u32 s68, s12, s68
          s_lshl_b32 s68, s68, 13
          s_add_u32 s68, s68, s13
          s_lshl_b32 s67, s12, 10
          v_mov_b32 v6, 0
          v_lshlrev_b32 v14, 2, v1
          v_add_u32 v10, {L_FL}, v14
          s_mov_b64 exec, 0xffff
          ds_write_b32 v10, v6
          s_mov_b64 exec, -1
          s_mov_b32 s50, 5242880
          s_mov_b32 s51, 0x20000
          s_mov_b32 s71, 0
          s_mov_b64 vcc, s[70:71]
          s_waitcnt lgkmcnt(0)
          s_mov_b32 s48, s{P_WQ}
          s_and_b32 s49, s{P_WQ+1}, 0xffff
          s_barrier""")
    for k in range(5):
        g(f"""s_add_u32 m0, s67, {L_WQ + k*4096}
              s_add_u32 s13, s64, {k*262144}
              buffer_load_dwordx4 v9, s[48:51], s13 offen nt lds""")
    tag_load(g)
    ids2(g)
    g.srd(48, P_WUK, 4194304)
    g.srd(44, P_CKV, 16777216)
    g.ws_srds()
    g(f"""s_lshl_b32 s65, s12, 15
          v_lshrrev_b32 v10, 3, v1
          v_lshrrev_b32 v11, 1, v10
          v_and_b32 v11, 1, v11
          v_and_b32 v12, 4, v10
          v_or_b32 v11, v11, v12
          v_and_b32 v12, 7, v1
          v_xor_b32 v11, v11, v12
          v_lshlrev_b32 v11, 4, v11
          v_lshl_add_u32 v7, v10, 10, v11
          v_xor_b32 v8, 32, v7
          v_add_u32 v8, 8192, v8
          s_lshl_b32 s64, s8, 22
          s_lshl_b32 s13, s10, 17
          s_add_u32 s64, s64, s13
          s_add_u32 s64, s64, s65
          v_lshrrev_b32 v11, 1, v2
          v_and_b32 v11, 1, v11
          v_lshrrev_b32 v12, 3, v2
          v_lshl_or_b32 v11, v12, 1, v11
          v_and_b32 v13, 4, v2
          v_or_b32 v11, v11, v13
          v_xor_b32 v11, v11, v3
          v_lshlrev_b32 v11, 4, v11
          v_and_b32 v13, 7, v2
          v_lshl_add_u32 v11, v13, 7, v11
          v_lshl_add_u32 v11, v12, 10, v11
          v_add_u32 v11, s65, v11
          v_xor_b32 v12, 64, v11""")
    g.stamp(1)
    def areads(m):
        tile, u = m >> 3, m & 7
        for tl in range(2):
            t = 2*u + tl
            r = 64 + 64*tile + 4*t
            g(f"ds_read_b128 v[{r}:{r+3}], v{11+tl} offset:{tile*16384+u*2048}")
    g("s_cbranch_vccnz L_s_ckv\ns_lshl_b32 s69, s12, 11")
    fa = False
    for k in range(8):
        kk, ch = k >> 1, k & 1
        if 5 + k >= g.wa: g(f"s_waitcnt vmcnt({g.wa-1})")
        if not fa and 5 + k - g.wa >= 4:
            g.flag_add(F_A); fa = True
        g(f"""s_add_u32 m0, s69, {L_WUK + kk*8192 + ch*1024}
              s_add_u32 s13, s68, {kk*262144 + ch*128}
              buffer_load_dwordx4 v9, s[48:51], s13 offen nt lds""")
    if not fa:
        g("s_waitcnt vmcnt(8)")
        g.flag_add(F_A)
    g("s_waitcnt vmcnt(0)")
    g.flag_add(F_UK)
    tag_fin(g)
    g(f"""v_mul_u32_u24 v13, {8*FSTR}, v1
          v_mov_b32 v14, s11
          s_mul_i32 s69, s4, {FSTR}
          s_lshr_b32 s13, s5, 1
          s_lshl2_add_u32 s69, s13, s69
          s_add_u32 s69, s69, {FL2}""")
    g.flag_wait(F_GO, 4)
    g(f"""s_cmp_lg_u32 s12, 0
          s_cbranch_scc1 L_s_ckv
          s_mov_b64 exec, 0xff
          buffer_store_dword v14, v13, s[40:43], s69 offen sc1
          s_mov_b64 exec, -1
          L_s_ckv:""")
    done = 0
    for k in range(32):
        if k < g.wsw:
            lb = g.lab("SB")
            g(f"s_cbranch_vccz {lb}\ns_waitcnt vmcnt({g.we-1})")
            if k == g.we - 1: g.flag_add(F_A)
            g(f"{lb}:")
        if k >= W: g(f"s_waitcnt vmcnt({W-1})")
        landed = k - W
        tile, u, kh = k >> 4, (k >> 1) & 7, k & 1
        g(f"""s_add_u32 m0, s65, {k*1024}
              s_add_u32 s13, s64, {tile*16384 + u*128}
              buffer_load_dwordx4 v{7+kh}, s[44:47], s13 offen nt lds""")
        if k == 31: g.flag_add(F_S2)
        while 2*done + 1 <= landed:
            areads(done); done += 1
            if done == 8:
                g("s_waitcnt lgkmcnt(0)")
                g.flag_add(F_T0)
                g("s_cbranch_vccz L_s_tag")
                tag_fin(g)
                g("L_s_tag:")
                g.stamp(2)
    for tl in range(4):
        g(f"""v_or_b32 v13, {4*tl}, v3
              v_xor_b32 v13, v13, v2
              v_lshlrev_b32 v13, 4, v13
              v_lshl_add_u32 v13, v2, 10, v13
              v_add_u32 v{16+tl}, {L_QA}, v13""")
    g(f"""v_lshlrev_b32 v20, 4, v2
          v_add_u32 v20, {L_MX}, v20
          s_lshl_b32 s13, s12, 2
          v_add_u32 v21, s13, v20
          v_lshlrev_b32 v22, 4, v1
          s_lshl_b32 s13, s12, 10
          s_add_u32 s13, s13, {L_P}
          v_add_u32 v22, s13, v22
          s_mov_b32 s60, {f32(SCALE)}
          v_lshlrev_b32 v15, 6, v2
          v_lshl_add_u32 v23, v3, 2, v15
          v_lshl_add_u32 v15, v3, 4, v15
          v_add_u32 v15, {L_SM}, v15
          s_lshl_b32 s13, s12, 4
          s_add_u32 s13, s13, {L_SM}
          v_add_u32 v23, s13, v23
          s_lshl2_add_u32 s68, s9, s8
          s_lshl_b32 s68, s68, 5
          s_add_u32 s68, s68, s10
          s_mul_i32 s68, s68, {OBLK}
          s_add_u32 s68, s68, {OP+20480}""")
    role_decode(g)
    g.stamp(3)
    g.flag_wait(F_QA, 4)
    g.stamp(4)
    for t in range(16):
        g(f"ds_read_b128 v[{192+4*t}:{195+4*t}], v{16+(t&3)} offset:{(t>>2)*256}")
    for t in range(16):
        g(f"s_waitcnt lgkmcnt({15-t})")
        g.mfma(56, 64+4*t, 192+4*t, t == 0)
    first = True
    for m in range(8, done):
        for tl in range(2):
            t = 2*(m & 7) + tl
            g.mfma(60, 128+4*t, 192+4*t, first); first = False
    for m in range(done, 16):
        g(f"s_waitcnt vmcnt({31-(2*m+1)})")
        areads(m)
        if m == 15:
            g.flag_add(F_T1)
            g.stamp(5)
        if m > done:
            g(f"s_waitcnt lgkmcnt({3 if m == 15 else 2})")
            for tl in range(2):
                t = 2*((m-1) & 7) + tl
                g.mfma(60, 128+4*t, 192+4*t, first); first = False
    g("s_waitcnt lgkmcnt(0)")
    for tl in range(2): g.mfma(60, 128+4*(14+tl), 192+4*(14+tl), False)
    g("v_max3_f32 v24, v56, v57, v58\nv_max_f32 v24, v24, v59")
    g.nop(6)
    g("v_max3_f32 v24, v24, v60, v61\nv_max3_f32 v24, v24, v62, v63")
    g.xrow("v_max_f32", 24, 25)
    g("ds_write_b32 v21, v24")
    g.flag_add(F_MX)
    g.flag_wait(F_MX, 4)
    g(f"""ds_read_b128 v[24:27], v20
          s_waitcnt lgkmcnt(0)
          v_max3_f32 v24, v24, v25, v26
          v_max_f32 v24, v24, v27
          v_mul_f32 v24, s60, v24""")
    for k in range(8): g(f"v_fma_f32 v{56+k}, v{56+k}, s60, -v24")
    for k in range(8): g(f"v_exp_f32 v{56+k}, v{56+k}")
    g.nop(1)
    g.pack8(28, 56)
    g(f"""ds_write_b128 v22, v[28:31]
          v_add_f32 v56, v56, v57
          v_add_f32 v58, v58, v59
          v_add_f32 v60, v60, v61
          v_add_f32 v62, v62, v63
          v_add_f32 v56, v56, v58
          v_add_f32 v60, v60, v62
          v_add_f32 v25, v56, v60
          ds_write_b32 v23, v25
          s_waitcnt lgkmcnt(0)
          s_barrier""")
    g.stamp(6)
    lns = g.lab("NS")
    g(f"""s_cmp_lg_u32 s12, 0
          s_cbranch_scc1 {lns}
          ds_read_b128 v[28:31], v15
          v_lshlrev_b32 v13, 4, v2
          v_mov_b32 v26, s11
          v_mov_b32 v27, s11
          s_waitcnt lgkmcnt(0)
          v_add_f32 v28, v28, v29
          v_add_f32 v30, v30, v31
          v_add_f32 v25, v28, v30""")
    g.xrow("v_add_f32", 25, 28)
    g(f"""s_mov_b64 exec, 0xffff
          buffer_store_dwordx4 v[24:27], v13, s[40:43], s68 offen sc1
          s_mov_b64 exec, -1
          {lns}:""")
    g(f"""v_lshlrev_b32 v19, 6, v2
          v_lshl_add_u32 v19, v3, 4, v19
          v_mov_b32 v18, v19
          s_lshl_b32 s68, s6, 13
          s_lshr_b32 s13, s7, 2
          s_lshl_b32 s13, s13, 12
          s_add_u32 s68, s68, s13
          s_lshl_b32 s13, s12, 10
          s_add_u32 s68, s68, s13
          s_and_b32 s13, s7, 3
          s_lshl_b32 s13, s13, 8
          s_add_u32 s68, s68, s13
          s_add_u32 s68, s68, {CP}
          s_lshl_b32 s69, s6, 11
          s_lshl_b32 s13, s7, 8
          s_add_u32 s69, s69, s13
          s_lshl2_add_u32 s69, s12, s69
          s_add_u32 s69, s69, {CPC}""")
    g.mask_j4()
    g(f"""buffer_load_dword v20, v18, s[40:43], s68 offen sc1
          buffer_load_dword v21, v19, s[40:43], s69 offen sc1
          s_mov_b64 exec, -1""")
    g.stamp(7)

def role_decode(g):
    l6, l7, ld, lhi = g.lab("R6"), g.lab("R7"), g.lab("RD"), g.lab("RH")
    g(f"""s_mov_b32 s72, 0
          s_mov_b32 s73, s5
          s_cmp_lt_u32 s5, 20
          s_cbranch_scc1 {ld}
          s_sub_u32 s13, s5, 20
          s_cmp_ge_u32 s4, 2
          s_cbranch_scc1 {lhi}
          s_lshl3_add_u32 s73, s4, s13
          s_cmp_lt_u32 s13, 8
          s_cbranch_scc1 {l7}
          s_lshl2_add_u32 s73, s4, s13
          s_sub_u32 s73, s73, 8
          s_branch {l6}
          {lhi}:
          s_lshl2_add_u32 s73, s4, s13
          s_add_u32 s73, s73, 8
          s_cmp_lt_u32 s13, 4
          s_cbranch_scc1 {l7}
          s_lshl3_add_u32 s73, s4, s13
          s_sub_u32 s73, s73, 12
          {l6}:
          s_mov_b32 s72, 1
          s_cmp_lt_u32 s73, 54
          s_cbranch_scc1 {ld}
          s_mov_b32 s72, 3
          s_branch {ld}
          {l7}:
          s_mov_b32 s72, 2
          {ld}:""")

def tail(g):
    g("L_s4:")
    if g.stop == "B":
        g("s_waitcnt vmcnt(0)"); g.finish(); return
    g.dump(STAMP2)
    if g.prio: g("s_setprio 0")
    g(f"""s_mov_b32 s13, {OBLK}
          v_lshrrev_b32 v9, 3, v1
          v_mul_lo_u32 v9, v9, s13
          v_and_b32 v10, 3, v1
          v_lshl_add_u32 v9, v10, 4, v9
          v_and_b32 v10, 4, v1
          v_lshl_add_u32 v8, v10, {4 if g.opl else 8}, v9
          v_add_u32 v9, v9, v10
          v_and_b32 v10, 31, v1
          v_mul_lo_u32 v10, v10, s13
          s_lshr_b32 s14, s6, 4
          s_lshl3_add_u32 s64, s14, s3
          s_and_b32 s67, s64, 0xfe
          s_mul_i32 s64, s64, {16*OBLK}
          s_mul_i32 s67, s67, {16*OBLK}
          s_and_b32 s14, s6, 15
          s_lshl4_add_u32 s67, s14, s67
          s_add_u32 s67, s67, {OP+20480}
          s_lshl_b32 s14, s14, 6
          s_add_u32 s64, s64, s14
          s_lshl_b32 s13, s7, 11
          s_add_u32 s65, s64, s13
          {"s_add_u32 s65, s65, s14" if g.opl else ""}
          s_add_u32 s65, s65, {OP}
          s_lshr_b32 s13, s7, 1
          s_lshl_b32 s13, s13, 10
          s_add_u32 s66, s64, s13
          s_and_b32 s13, s7, 1
          s_lshl3_add_u32 s66, s13, s66
          s_add_u32 s66, s66, {OP+16384}
          s_add_u32 s74, s65, {8*OBLK}
          s_add_u32 s75, s66, {8*OBLK}
          v_lshrrev_b32 v11, 3, v1
          s_and_b32 s13, s3, 1
          s_lshl_b32 s13, s13, 4
          v_add_u32 v11, s13, v11
          v_lshlrev_b32 v11, 2, v11
          v_add_u32 v12, 32, v11
          v_and_b32 v13, 7, v1
          v_lshlrev_b32 v13, 4, v13
          v_and_b32 v14, 1, v3
          v_lshl_add_u32 v13, v14, 3, v13
          v_lshrrev_b32 v14, 1, v3
          v_lshl_add_u32 v13, v14, 2, v13
          s_and_b32 s13, s3, 1
          s_lshl_b32 s13, s13, 2
          s_lshr_b32 s14, s3, 1
          s_add_u32 s13, s13, s14
          s_lshl_b32 s13, s13, 7
          s_add_u32 s13, s13, {L_CC}
          v_add_u32 v13, s13, v13""")
    g(f"""s_lshl2_add_u32 s13, s4, 0
          s_lshr_b32 s14, s7, 1
          s_add_u32 s13, s13, s14
          s_lshl_b32 s13, s13, 2
          s_lshr_b32 s14, s3, 1
          s_add_u32 s13, s13, s14
          s_mul_i32 s13, s13, {FSTR}
          s_add_u32 s13, s13, {FL3}
          s_add_u32 s62, s{P_WS}, s13
          s_addc_u32 s63, s{P_WS+1}, 0""")
    lw = g.lab("NW")
    g(f"""s_cmp_ge_u32 s3, 4
          s_cbranch_scc1 {lw}
          v_lshrrev_b32 v14, 2, v1
          v_and_b32 v14, 3, v14
          v_and_b32 v15, 1, v3
          v_lshl_or_b32 v14, v15, 2, v14
          v_and_b32 v16, 3, v1
          s_and_b32 s13, s12, 1
          s_lshl_b32 s13, s13, 2
          v_or_b32 v16, s13, v16
          v_lshrrev_b32 v17, 1, v14
          v_xor_b32 v16, v16, v17
          v_lshlrev_b32 v15, 2, v15
          v_xor_b32 v16, v16, v15
          v_lshlrev_b32 v16, 4, v16
          v_lshl_add_u32 v16, v14, 7, v16
          v_lshl_add_u32 v16, v3, 10, v16
          s_lshr_b32 s13, s12, 1
          s_lshl_b32 s13, s13, 13
          s_add_u32 s13, s13, {L_WUV}
          v_add_u32 v16, s13, v16
          v_xor_b32 v17, 0x220, v16
          v_and_b32 v14, 7, v2
          v_lshlrev_b32 v14, 7, v14
          v_lshl_add_u32 v14, v3, 4, v14
          v_add_u32 v14, {L_CC}, v14""")
    g.flag_wait(F_UV, 4)
    for t in range(2):
        for e in range(2):
            r = 64 + 8*t + 4*e
            g(f"ds_read_b64_tr_b16 v[{r}:{r+1}], v16 offset:{t*4096+e*8}")
            g(f"ds_read_b64_tr_b16 v[{r+2}:{r+3}], v17 offset:{t*4096+e*8}")
    g(f"{lw}:")
    if g.h3 == 0:
        g.sflag_wait(62, 0)
        g.sflag_wait(62, 64)
    elif g.h3 == 1:
        g("s_waitcnt vmcnt(0)\ns_barrier")
    g.stamp(9)
    g.reload_args()
    g("s_mov_b64 s[62:63], -1")
    l = g.poll_begin()
    g(f"""buffer_load_dwordx4 v[24:27], v10, s[40:43], s67 offen sc1
          s_mov_b64 exec, s[62:63]
          buffer_load_dwordx4 v[28:31], v8, s[40:43], s65 offen sc1
          buffer_load_dwordx4 v[32:35], v8, s[40:43], s74 offen sc1
          buffer_load_dword v36, v9, s[40:43], s66 offen sc1
          buffer_load_dword v37, v9, s[40:43], s75 offen sc1
          s_mov_b64 exec, -1
          s_waitcnt vmcnt(4)
          v_cmp_ne_u32 s[62:63], s11, v26
          v_mov_b32 v38, v24""")
    g.inrow("v_max_f32", 38)
    g("""v_mov_b32 v39, v38
         s_nop 1
         v_permlane16_swap_b32 v38, v39
         s_nop 0
         v_max_f32 v38, v38, v39
         v_sub_f32 v38, v24, v38
         v_exp_f32 v38, v38
         s_nop 0
         v_mul_f32 v39, v38, v25""")
    g.inrow("v_add_f32", 39)
    g("""v_mov_b32 v42, v39
         s_nop 1
         v_permlane16_swap_b32 v39, v42
         s_nop 0
         v_add_f32 v39, v39, v42
         v_rcp_f32 v39, v39
         s_nop 0
         v_mul_f32 v38, v38, v39
         ds_bpermute_b32 v40, v11, v38
         ds_bpermute_b32 v41, v12, v38
         s_waitcnt vmcnt(0)""")
    g.verify(28, 36, False)
    g.verify(32, 37, False)
    g.poll_end(l)
    g.stamp(10)
    g.count(6)
    for k in range(4):
        g.unpack(44+2*k, 28+k); g.unpack(52+2*k, 32+k)
    g("s_waitcnt lgkmcnt(0)")
    for k in range(8): g(f"v_mul_f32 v{44+k}, v{44+k}, v40")
    for k in range(8): g(f"v_fmac_f32 v{44+k}, v{52+k}, v41")
    g.nop(1)
    for k in range(4): g(f"v_permlane16_swap_b32 v{44+k}, v{48+k}")
    g.nop(1)
    for k in range(4): g(f"v_add_f32 v{44+k}, v{44+k}, v{48+k}")
    g.nop(1)
    for k in range(2): g(f"v_permlane32_swap_b32 v{44+k}, v{46+k}")
    g.nop(1)
    for k in range(2): g(f"v_add_f32 v{44+k}, v{44+k}, v{46+k}")
    g.nop(1)
    for k in range(2): g(f"v_add_f32_dpp v{44+k}, v{44+k}, v{44+k} row_ror:8 {DPP}")
    g(f"""v_cvt_pk_bf16_f32 v44, v44, v45
          ds_write_b32 v13, v44
          s_waitcnt lgkmcnt(0)
          s_barrier""")
    ln = g.lab("N4")
    g(f"""s_cmp_ge_u32 s3, 4
          s_cbranch_scc1 {ln}
          ds_read_b128 v[24:27], v14
          ds_read_b128 v[28:31], v14 offset:64
          s_waitcnt lgkmcnt(1)""")
    for t in range(2):
        if t == 1: g("s_waitcnt lgkmcnt(0)")
        for e in range(2): g.mfma(56+4*e, 64+8*t+4*e, 24+4*t, t == 0)
    g.nop(7)
    for k in range(8): g(f"v_add_f32_dpp v{56+k}, v{56+k}, v{56+k} row_ror:4 {DPP}")
    g.mask_j4()
    g.pack8(24, 56)
    g.chk(28, 24)
    g(f"""buffer_store_dwordx4 v[24:27], v18, s[40:43], s68 offen
          buffer_store_dword v28, v19, s[40:43], s69 offen
          s_cmp_eq_u32 s72, 0
          s_cbranch_scc1 {ln}_c
          buffer_store_dwordx4 v[24:27], v18, s[56:59], s68 offen sc1
          buffer_store_dword v28, v19, s[56:59], s69 offen sc1
          {ln}_c:
          s_mov_b64 exec, -1
          s_branch {ln}_b
          {ln}:""")
    if g.ea == 0: g("s_lshl_b32 s70, s70, 1")
    if g.ea < 2: early_dma(g)
    g(f"{ln}_b:")
    g.stamp(11)
    if g.stop == "C1":
        g("s_waitcnt vmcnt(0)"); g.finish(); return
    g(f"""s_cmp_eq_u32 s72, 1
          s_cbranch_scc1 L_s6
          s_cmp_eq_u32 s72, 2
          s_cbranch_scc1 L_s7
          s_cmp_eq_u32 s72, 3
          s_cbranch_scc1 L_fin""")
    s5(g); s6(g); s7(g)
    g("L_fin:")
    g.finish()


def tr64_addr(g, dst, rowbase_sgpr):
    g(f"""v_lshrrev_b32 v{dst}, 2, v1
          v_and_b32 v{dst}, 3, v{dst}
          v_lshl_add_u32 v{dst}, v3, 3, v{dst}
          v_add_u32 v{dst}, s{rowbase_sgpr}, v{dst}
          v_lshlrev_b32 v{dst}, 6, v{dst}
          v_and_b32 v7, 3, v1
          v_lshl_add_u32 v{dst}, v7, 4, v{dst}
          v_add_u32 v{dst}, {L_WR}, v{dst}""")
def tr64_reads(g, a):
    for t in range(4):
        for e in range(2):
            r = 64 + 8*t + 4*e
            g(f"ds_read_b64_tr_b16 v[{r}:{r+1}], v{a} offset:{t*2048+e*8}")
            g(f"ds_read_b64_tr_b16 v[{r+2}:{r+3}], v{a} offset:{t*2048+256+e*8}")
def red_write(g):
    g.mask_j4()
    g("""ds_write_b128 v10, v[56:59]
         ds_write_b128 v10, v[60:63] offset:16
         s_mov_b64 exec, -1""")
def red_read(g, n, stride):
    for w in range(n): g(f"ds_read_b64 v[{24+2*w}:{25+2*w}], v11 offset:{w*stride}")
    for w in range(1, n):
        g(f"s_waitcnt lgkmcnt({n-1-w})")
        g(f"v_add_f32 v24, v24, v{24+2*w}\nv_add_f32 v25, v25, v{25+2*w}")

def s5(g):
    g(f"""v_lshrrev_b32 v12, 2, v1
          v_and_b32 v12, 3, v12
          v_and_b32 v8, 3, v1
          v_lshrrev_b32 v7, 1, v12
          v_xor_b32 v8, v8, v7
          v_and_b32 v7, 1, v3
          v_lshl_or_b32 v8, v7, 2, v8
          v_lshlrev_b32 v8, 4, v8
          v_lshl_add_u32 v8, v12, 7, v8
          v_lshl_add_u32 v8, v3, 10, v8
          s_lshr_b32 s13, s3, 2
          s_and_b32 s14, s3, 1
          s_lshl1_add_u32 s13, s13, s14
          s_lshl_b32 s13, s13, 13
          s_add_u32 s13, s13, {L_WR}
          v_add_u32 v8, s13, v8
          v_xor_b32 v9, 0x220, v8
          v_xor_b32 v12, 64, v8
          v_xor_b32 v13, 0x260, v8""")
    g(f"""v_and_b32 v10, 3, v2
          v_lshlrev_b32 v10, 7, v10
          v_lshl_add_u32 v10, v3, 5, v10
          v_and_b32 v7, 4, v2
          v_lshl_add_u32 v10, v7, 2, v10
          v_and_b32 v7, 8, v2
          v_lshl_add_u32 v10, v7, 6, v10
          s_lshl_b32 s13, s3, 10
          s_add_u32 s13, s13, {L_RED}
          v_add_u32 v10, s13, v10
          v_lshlrev_b32 v17, 3, v1
          s_and_b32 s14, s3, 1
          s_lshl_b32 s13, s14, 9
          s_add_u32 s13, s13, {L_RED}
          v_add_u32 v11, s13, v17
          v_lshlrev_b32 v15, 6, v2
          v_lshl_add_u32 v15, v3, 4, v15
          s_and_b32 s13, s73, 1
          s_lshl1_add_u32 s64, s4, s13
          s_lshl3_add_u32 s13, s64, s3
          s_lshl_b32 s65, s13, 11
          s_add_u32 s65, s65, {CP}
          s_lshr_b32 s13, s13, 1
          s_lshl_b32 s66, s13, 10
          s_lshl3_add_u32 s66, s14, s66
          s_add_u32 s66, s66, {CPC}
          s_and_b32 s13, s73, 0xfe
          s_add_u32 s13, s13, s14
          s_lshl4_add_u32 s71, s13, s64
          s_lshl_b32 s71, s71, 9
          s_add_u32 s71, s71, {AP}""")
    lf = g.lab("F5")
    g(f"s_cmp_lg_u32 s3, 5\ns_cbranch_scc1 {lf}")
    hh_addr(g, 20, 21, 16)
    g(f"""s_nop 0
          s_lshl_b32 s70, s73, 13
          s_add_u32 s70, s70, {AP}
          s_add_u32 s71, s70, 4096
          {lf}:""")
    lq = g.lab("LQ")
    g(f"s_mov_b64 s[62:63], -1\ns_cmp_lt_u32 s3, 4\ns_cbranch_scc1 {lq}\ns_waitcnt vmcnt(0)\n{lq}:\ns_barrier")
    g.stamp(5)
    for tt in range(2):
        for tpi in range(2):
            for e in range(2):
                r = 64 + 16*tt + 8*tpi + 4*e
                g(f"ds_read_b64_tr_b16 v[{r}:{r+1}], v{[8,12][tpi]} offset:{tt*4096+e*8}")
                g(f"ds_read_b64_tr_b16 v[{r+2}:{r+3}], v{[9,13][tpi]} offset:{tt*4096+e*8}")
    def cdual(cond):
        lnd = g.lab("ND")
        g(f"""{cond}
              s_cbranch_scc1 {lnd}
              s_cmp_ge_u32 s3, 4
              s_cbranch_scc1 {lnd}""")
        g.mask_j4()
        g(f"""buffer_store_dwordx4 v[24:27], v18, s[56:59], s68 offen sc1
              buffer_store_dword v28, v19, s[56:59], s69 offen sc1
              s_mov_b64 exec, -1
              {lnd}:""")
    l = g.poll_begin(dual=True)
    cdual("s_cmp_lg_u32 s61, 3")
    g("s_mov_b64 exec, s[62:63]")
    for tt in range(2):
        g(f"buffer_load_dwordx4 v[{96+4*tt}:{99+4*tt}], v15, s[52:55], s65 offen offset:{tt*1024} sc1")
    g(f"""buffer_load_dwordx2 v[112:113], v15, s[52:55], s66 offen sc1
          s_mov_b64 exec, -1
          s_waitcnt vmcnt(0) lgkmcnt(0)""")
    for tt in range(2):
        for q in range(4): g.mfma(40+4*q, 64+16*tt+4*q, 96+4*tt, tt == 0)
    for tt in range(2): g.verify(96+4*tt, 112+tt, tt == 0)
    g.poll_end(l, dual=True)
    g.stamp(1)
    g.count(7)
    for k in range(8): g(f"v_add_f32_dpp v{40+k}, v{40+k}, v{40+k} row_ror:8 row_mask:0xf bank_mask:0x3")
    for k in range(8): g(f"v_add_f32_dpp v{40+k}, v{48+k}, v{48+k} row_ror:8 row_mask:0xf bank_mask:0xc")
    for k in range(4): g(f"v_add_f32_dpp v{40+k}, v{40+k}, v{40+k} row_shl:4 row_mask:0xf bank_mask:0x5")
    for k in range(4): g(f"v_add_f32_dpp v{40+k}, v{44+k}, v{44+k} row_shr:4 row_mask:0xf bank_mask:0xa")
    lr = g.lab("R5")
    g(f"""ds_write_b128 v10, v[40:43]
          s_waitcnt lgkmcnt(0)
          s_barrier""")
    cdual("s_cmp_ge_u32 s61, 3")
    g(f"""s_cmp_eq_u32 s3, 5
          s_cbranch_scc1 {lr}
          s_cmp_lt_u32 s3, 6
          s_cbranch_scc1 L_fin""")
    red_read(g, 8, 1024)
    g(f"""v_cvt_pk_bf16_f32 v24, v24, v25
          v_mov_b32 v25, s11
          buffer_store_dwordx2 v[24:25], v17, s[40:43], s71 offen sc1""")
    g.stamp(2)
    g(f"s_branch L_fin\n{lr}:")
    g.unpack(44, 120)
    g("v_mov_b32 v50, s11\nv_mov_b32 v51, s11")
    l = g.poll_begin()
    for x in range(16):
        g(f"buffer_load_dwordx2 v[{64+2*x}:{65+2*x}], v17, s[40:43], s{70+(x>>3)} offen offset:{(x&7)*512} sc1")
    for x in range(16):
        g(f"s_waitcnt vmcnt({15-x})")
        if x == 0:
            g.unpack(46, 64)
            g("v_xor_b32 v55, s11, v65")
        else:
            g.unpack(48, 64+2*x)
            g(f"v_bitop3_b32 v55, v55, v{65+2*x}, v50 bitop3:0xf6")
            g("v_add_f32 v46, v46, v48\nv_add_f32 v47, v47, v49")
    g("v_cmp_ne_u32 s[62:63], 0, v55")
    g.poll_end(l)
    g.stamp(3)
    g.count(8)
    g("v_cvt_pk_bf16_f32 v46, v46, v47")
    g.unpack(48, 46)
    g(f"""v_add_f32 v48, v48, v44
          v_add_f32 v49, v49, v45
          v_cvt_pk_bf16_f32 v46, v48, v49
          buffer_store_dword v46, v20, s[40:43], s67 offen
          v_lshlrev_b32 v52, 16, v46
          v_add_u32_dpp v47, v46, v46 quad_perm:[1,0,3,2] {DPP}
          v_and_b32 v53, 0xffff0000, v46
          v_add_f32 v48, v52, v53
          v_add_u32_dpp v47, v47, v47 quad_perm:[2,3,0,1] {DPP}
          v_add_u32 v47, s11, v47""")
    g.mask("0x11111111")
    g(f"""buffer_store_dword v47, v21, s[40:43], s69 offen
          s_mov_b64 exec, -1""")
    g.inrow("v_add_f32", 48)
    g(f"""v_mul_f32 v54, {f32(1/32)}, v48
          v_sub_f32 v52, v52, v54
          v_sub_f32 v53, v53, v54
          v_mul_f32 v49, v52, v52
          v_fmac_f32 v49, v53, v53""")
    g.inrow("v_add_f32", 49)
    g.mask("0x00010001")
    g(f"""buffer_store_dwordx4 v[48:51], v16, s[40:43], s68 offen
          buffer_store_dwordx4 v[48:51], v16, s[56:59], s68 offen sc1""")
    g.mask("0x11111111")
    g(f"""buffer_store_dword v47, v21, s[56:59], s69 offen sc1
          s_mov_b64 exec, -1
          buffer_store_dword v46, v20, s[56:59], s67 offen sc1""")
    g.stamp(4)
    g("s_branch L_fin")

def s6(g):
    g("L_s6:\ns_barrier")
    g.srd(48, P_W1, 2211840)
    g(f"""v_lshrrev_b32 v12, 2, v1
          v_mul_u32_u24 v12, 3456, v12
          v_and_b32 v7, 3, v1
          v_lshl_add_u32 v12, v7, 4, v12
          s_add_u32 s13, s3, 16
          s_mul_i32 s64, s13, {16*3456}
          s_lshl_b32 s14, s73, 6
          s_add_u32 s64, s64, s14
          s_lshl_b32 s65, s3, 10""")
    for k in range(3):
        g(f"""s_add_u32 m0, s65, {L_WR + 16384 + k*8192}
              s_add_u32 s13, s64, {k*128*3456}
              buffer_load_dwordx4 v12, s[48:51], s13 offen nt lds""")
    g.srd(44, P_W2, 2211840)
    g(f"""v_and_b32 v13, 7, v1
          v_xor_b32 v13, v13, v3
          s_and_b32 s13, s3, 1
          s_lshl_b32 s13, s13, 2
          v_xor_b32 v13, s13, v13
          v_lshrrev_b32 v7, 3, v1
          v_mul_u32_u24 v7, 1280, v7
          v_lshl_add_u32 v13, v13, 4, v7
          s_lshl2_add_u32 s64, s73, s12
          s_mul_i32 s64, s64, {8*1280}
          s_lshr_b32 s13, s3, 2
          s_lshl_b32 s13, s13, 7
          s_add_u32 s64, s64, s13""")
    for k in range(5):
        g(f"""s_add_u32 m0, s65, {L_W2 + k*8192}
              s_add_u32 s13, s64, {k*256}
              buffer_load_dwordx4 v13, s[44:47], s13 offen nt lds""")
    g("s_min_u32 s13, s3, 4\ns_lshl_b32 s64, s13, 7")
    tr64_addr(g, 8, 64)
    g(f"""v_lshlrev_b32 v10, 7, v2
          v_lshl_add_u32 v10, v3, 5, v10
          s_lshl_b32 s13, s3, 9
          s_add_u32 s13, s13, {L_RED}
          v_add_u32 v10, s13, v10
          v_lshlrev_b32 v11, 3, v1
          v_add_u32 v11, {L_RED}, v11
          v_mul_u32_u24 v14, 1280, v2
          v_lshl_add_u32 v14, v3, 4, v14
          v_mul_u32_u24 v15, 320, v2
          v_lshl_add_u32 v15, v3, 4, v15
          s_mul_i32 s65, s4, 5120
          s_lshl_b32 s13, s3, 8
          s_add_u32 s65, s65, s13
          s_add_u32 s65, s65, {HH}
          s_mul_i32 s67, s4, 1280
          s_lshl_b32 s13, s3, 6
          s_add_u32 s66, s67, s13
          s_add_u32 s66, s66, {HHC}
          s_add_u32 s67, s67, {HS}""")
    g(f"""v_lshrrev_b32 v12, 2, v1
          v_and_b32 v12, 3, v12
          v_and_b32 v13, 3, v1
          v_lshrrev_b32 v20, 1, v13
          s_lshl_b32 s13, s12, 1
          v_or_b32 v20, s13, v20
          v_lshrrev_b32 v7, 1, v12
          v_xor_b32 v20, v20, v7
          v_and_b32 v7, 1, v3
          v_lshlrev_b32 v7, 2, v7
          v_xor_b32 v20, v20, v7
          v_lshlrev_b32 v20, 4, v20
          v_lshl_add_u32 v20, v12, 7, v20
          v_lshl_add_u32 v20, v3, 10, v20
          v_and_b32 v7, 1, v13
          v_lshl_add_u32 v20, v7, 3, v20
          s_lshr_b32 s13, s3, 2
          s_lshl_b32 s13, s13, 12
          s_add_u32 s13, s13, {L_W2}
          v_add_u32 v20, s13, v20
          v_xor_b32 v21, 0x220, v20
          v_and_b32 v22, 3, v2
          v_lshlrev_b32 v22, 6, v22
          v_lshl_add_u32 v22, v3, 4, v22
          v_add_u32 v22, {L_UL}, v22
          v_lshlrev_b32 v23, 4, v2
          s_mul_i32 s68, s73, 10240
          s_lshl_b32 s13, s3, 8
          s_add_u32 s68, s68, s13
          s_add_u32 s68, s68, {FP}
          s_add_u32 s69, s68, 4096
          s_add_u32 s70, s68, 8192""")
    for k in range(96, 112): g(f"v_mov_b32 v{k}, 0x3f803f80")
    for k in range(5): g(f"v_mov_b32 v{170+4*k}, s11\nv_mov_b32 v{171+4*k}, s11")
    lfin, lidle, lw2 = g.lab("F6"), g.lab("I6"), g.lab("W6")
    g("s_waitcnt vmcnt(0)\ns_barrier")
    g.stamp(4)
    for k in range(5):
        g(f"ds_read_b64_tr_b16 v[{128+4*k}:{129+4*k}], v20 offset:{k*8192}")
        g(f"ds_read_b64_tr_b16 v[{130+4*k}:{131+4*k}], v21 offset:{k*8192}")
    g(f"""s_cmp_eq_u32 s3, 7
          s_cbranch_scc1 {lfin}
          s_cmp_ge_u32 s3, 5
          s_cbranch_scc1 {lidle}""")
    tr64_reads(g, 8)
    g("s_waitcnt lgkmcnt(0)")
    for t in range(4):
        for e in range(2): g.mfma(56+4*e, 64+8*t+4*e, 96+4*t, t == 0)
    g.nop(6)
    red_write(g)
    g("s_waitcnt lgkmcnt(0)\ns_barrier\ns_barrier")
    g.mask_j4()
    l = g.poll_begin(dual=True)
    for t in range(4):
        g(f"buffer_load_dwordx4 v[{96+4*t}:{99+4*t}], v14, s[52:55], s65 offen offset:{t*64} sc1")
    g(f"""buffer_load_dwordx4 v[112:115], v15, s[52:55], s66 offen sc1
          s_waitcnt vmcnt(0)""")
    for t in range(4): g.verify(96+4*t, 112+t, t == 0)
    g.poll_end(l, dual=True)
    g.unmask()
    g.stamp(1)
    for t in range(4):
        for e in range(2): g.mfma(56+4*e, 64+8*t+4*e, 96+4*t, t == 0)
    g.nop(6)
    red_write(g)
    g(f"""s_waitcnt lgkmcnt(0)
          s_barrier
          s_branch {lw2}
          {lidle}:
          s_barrier
          s_barrier
          s_barrier
          s_branch {lw2}
          {lfin}:
          s_barrier""")
    red_read(g, 5, 512)
    g(f"""v_mov_b32 v40, v24
          v_mov_b32 v41, v25
          s_barrier
          v_mul_u32_u24 v16, 320, v3
          v_lshl_add_u32 v16, v2, 4, v16
          v_mov_b32 v48, 0
          v_mov_b32 v49, 0
          v_mov_b32 v50, s11
          v_cmp_gt_u32 vcc, 4, v2
          v_mov_b32 v42, 0
          v_lshlrev_b32 v17, 2, v1
          v_cndmask_b32 v42, v42, 1.0, vcc
          v_add_u32 v17, {L_UL}, v17""")
    l = g.poll_begin(dual=True)
    g(f"buffer_load_dwordx4 v[44:47], v16, s[52:55], s67 offen sc1")
    g.mask_j4()
    g(f"""buffer_load_dwordx4 v[48:51], v16, s[52:55], s67 offen offset:256 sc1
          s_mov_b64 exec, -1
          s_waitcnt vmcnt(0)""")
    g.acc_ne("s11", "v46", True)
    g.acc_ne("s11", "v50", False)
    g.poll_end(l, dual=True)
    g.stamp(1)
    g("v_add_f32 v52, v44, v48")
    g.inrow("v_add_f32", 52)
    g(f"""v_mul_f32 v52, {f32(1/640)}, v52
          v_mul_f32 v44, {f32(1/32)}, v44
          v_mul_f32 v48, {f32(1/32)}, v48
          v_sub_f32 v44, v44, v52
          v_sub_f32 v48, v48, v52
          v_mul_f32 v48, v48, v42
          v_mul_f32 v44, v44, v44
          v_fmac_f32 v44, v48, v48
          v_add_f32 v53, v45, v49
          v_fmac_f32 v53, {f32(32.0)}, v44""")
    g.inrow("v_add_f32", 53)
    g(f"""v_mov_b32 v54, {f32(1e-5)}
          v_fmac_f32 v54, {f32(1/640)}, v53
          v_rsq_f32 v54, v54
          v_mul_f32 v40, v40, v52
          v_mul_f32 v41, v41, v52
          s_barrier""")
    g.stamp(2)
    red_read(g, 5, 512)
    g(f"""v_sub_f32 v24, v24, v40
          v_sub_f32 v25, v25, v41
          v_mul_f32 v24, v24, v54
          v_mul_f32 v25, v25, v54
          v_mul_f32 v26, {f32(-LOG2E)}, v24
          v_mul_f32 v27, {f32(-LOG2E)}, v25
          v_exp_f32 v26, v26
          v_exp_f32 v27, v27
          s_nop 0
          v_add_f32 v26, 1.0, v26
          v_add_f32 v27, 1.0, v27
          v_rcp_f32 v26, v26
          v_rcp_f32 v27, v27
          s_nop 0
          v_mul_f32 v24, v24, v26
          v_mul_f32 v25, v25, v27
          v_cvt_pk_bf16_f32 v24, v24, v25
          ds_write_b32 v17, v24
          {lw2}:
          s_waitcnt lgkmcnt(0)
          s_barrier
          ds_read_b128 v[24:27], v22
          s_waitcnt lgkmcnt(0)""")
    for k in range(5): g.mfma(148+4*k, 24, 128+4*k, True)
    g.nop(3)
    g("s_mov_b64 exec, 0xffff")
    for k in range(5):
        g(f"""v_cvt_pk_bf16_f32 v{168+4*k}, v{148+4*k}, v{149+4*k}
              v_cvt_pk_bf16_f32 v{169+4*k}, v{150+4*k}, v{151+4*k}
              buffer_store_dwordx4 v[{168+4*k}:{171+4*k}], v23, s[40:43], s{68+(k>>1)} offen offset:{(k&1)*2048} sc1""")
    g.unmask()
    g.stamp(3)
    g("s_branch L_fin")

def s7(g):
    g("L_s7:")
    lh, lj = g.lab("H7"), g.lab("J7")
    g(f"""v_lshlrev_b32 v10, 2, v1
          v_add_u32 v16, {L_RED}, v10
          s_cmp_eq_u32 s3, 7
          s_cbranch_scc1 {lh}
          v_mul_u32_u24 v14, 10240, v3
          v_lshl_add_u32 v14, v2, 4, v14
          s_mul_i32 s65, s3, {8*10240}
          s_lshl_b32 s13, s73, 8
          s_add_u32 s65, s65, s13
          s_add_u32 s65, s65, {FP}
          s_add_u32 s66, s65, {4*10240}
          s_mov_b64 s[74:75], -1
          s_cmp_eq_u32 s3, 6
          s_cselect_b32 s75, 0, s75
          v_mov_b32 v100, 0
          v_mov_b32 v101, 0
          v_mov_b32 v102, s11
          s_lshl_b32 s13, s3, 8
          v_add_u32 v10, s13, v16""")
    l = g.poll_begin()
    g(f"""buffer_load_dwordx4 v[96:99], v14, s[40:43], s65 offen sc1
          s_mov_b64 exec, s[74:75]
          buffer_load_dwordx4 v[100:103], v14, s[40:43], s66 offen sc1
          s_mov_b64 exec, -1
          s_waitcnt vmcnt(0)""")
    g.acc_ne("s11", "v98", True)
    g.acc_ne("s11", "v102", False)
    g.poll_end(l)
    g.stamp(1)
    g.unpack(24, 96); g.unpack(26, 97); g.unpack(28, 100); g.unpack(30, 101)
    for k in range(4): g(f"v_add_f32 v{24+k}, v{24+k}, v{28+k}")
    g(f"""s_nop 0
          v_permlane16_swap_b32 v24, v25
          v_permlane16_swap_b32 v26, v27
          s_nop 0
          v_add_f32 v24, v24, v25
          v_add_f32 v26, v26, v27
          s_nop 1
          v_permlane32_swap_b32 v24, v26
          s_nop 0
          v_add_f32 v24, v24, v26
          ds_write_b32 v10, v24
          s_waitcnt lgkmcnt(0)
          s_barrier
          s_branch L_fin
          {lh}:""")
    g.srd(48, P_OUT, 5120)
    g(f"""v_mul_u32_u24 v13, 1280, v3
          v_and_b32 v8, 8, v2
          v_lshl_add_u32 v11, v8, 1, v13
          v_lshl_add_u32 v13, v2, 1, v13
          v_mul_u32_u24 v12, 320, v3
          v_lshl_add_u32 v12, v8, 1, v12
          s_lshl_b32 s64, s73, 5
          s_mul_i32 s65, s4, 5120
          s_add_u32 s65, s65, s64
          s_add_u32 s65, s65, {HH}
          s_mul_i32 s66, s4, 1280
          s_lshr_b32 s13, s73, 3
          s_lshl_b32 s13, s13, 6
          s_add_u32 s66, s66, s13
          s_and_b32 s13, s73, 1
          s_lshl_b32 s13, s13, 5
          s_add_u32 s66, s66, s13
          s_lshr_b32 s13, s73, 1
          s_and_b32 s13, s13, 3
          s_lshl2_add_u32 s66, s13, s66
          s_add_u32 s66, s66, {HHC}""")
    l = g.poll_begin(dual=True)
    g(f"""buffer_load_dwordx4 v[24:27], v11, s[52:55], s65 offen sc1
          buffer_load_dword v28, v12, s[52:55], s66 offen sc1
          s_waitcnt vmcnt(0)""")
    g.verify(24, 28, True)
    g.poll_end(l, dual=True)
    g(f"""v_and_b32 v8, 2, v1
          v_cmp_ne_u32 vcc, 0, v8
          v_and_b32 v9, 4, v1
          v_cmp_ne_u32 s[74:75], 0, v9
          v_cndmask_b32 v24, v24, v25, vcc
          v_cndmask_b32 v26, v26, v27, vcc
          v_and_b32 v8, 1, v1
          v_cmp_ne_u32 vcc, 0, v8
          v_cndmask_b32 v24, v24, v26, s[74:75]
          v_lshlrev_b32 v25, 16, v24
          v_and_b32 v26, 0xffff0000, v24
          v_cndmask_b32 v30, v25, v26, vcc""")
    g.stamp(1)
    g("s_barrier")
    for w in range(7): g(f"ds_read_b32 v{64+w}, v16 offset:{w*256}")
    g("""s_waitcnt lgkmcnt(4)
         v_add_f32 v64, v64, v65
         v_add_f32 v64, v64, v66
         s_waitcnt lgkmcnt(2)
         v_add_f32 v67, v67, v68
         s_waitcnt lgkmcnt(0)
         v_add_f32 v69, v69, v70
         v_add_f32 v64, v64, v67
         v_add_f32 v64, v64, v69""")
    g.rbf(64)
    g(f"""v_add_f32 v64, v64, v30
          v_cvt_pk_bf16_f32 v64, v64, v64
          buffer_store_short v64, v13, s[48:51], s64 offen
          s_cmp_lg_u32 s73, 0
          s_cbranch_scc1 {lj}
          v_mov_b32 v65, s11
          v_mov_b32 v66, {EPOCH}
          s_mov_b64 exec, 1
          buffer_store_dword v65, v66, s[40:43], 0 offen
          s_mov_b64 exec, -1
          {lj}:""")
    g.stamp(2)

def gen(stamps=False, stop=None, W=7, we=5, wsw=16, opl=0, ea=1, npre=4, prio=1, wa=10, gb=28, dbg=0, hold=0, h3=0):
    g = G(stamps or dbg, stop)
    g.dbg = dbg
    g.hold = hold
    g.h3 = h3
    g.we, g.wsw, g.opl, g.ea = we, wsw, opl, ea
    g.npre, g.prio, g.wa, g.gb = npre, prio, wa, gb
    prologue(g); pwave(g); swave(g, W)
    if stop != "A": tail(g)
    g("L_end:")
    return g

def emit(g, path):
    hdr = open("cdna_kernels/" + NAME + ".s.ref").read().split("; Override launch")[0]
    txt = hdr + f"""; @launch grid=(256,1,1) block=(512,1,1) lds={LDS_BYTES}
.amdgcn_target "amdgcn-amd-amdhsa--gfx950"
.text
.globl {NAME}_kernel
.p2align 8
.type {NAME}_kernel,@function
{NAME}_kernel:
""" + "\n".join(g.L) + f"""
    s_endpgm
L_code_end:
.section .rodata,"a"
.p2align 6
.amdhsa_kernel {NAME}_kernel
  .amdhsa_next_free_vgpr 256
  .amdhsa_next_free_sgpr 102
  .amdhsa_accum_offset 256
  .amdhsa_group_segment_fixed_size 0
  .amdhsa_kernarg_size 96
  .amdhsa_user_sgpr_count 2
  .amdhsa_user_sgpr_kernarg_segment_ptr 1
  .amdhsa_system_sgpr_workgroup_id_x 1
.end_amdhsa_kernel
"""
    open(path, "w").write(txt)

if __name__ == "__main__":
    import argparse
    ap = argparse.ArgumentParser()
    ap.add_argument("-o", default="k.s")
    ap.add_argument("--stamps", action="store_true")
    ap.add_argument("--stop", default=None)
    ap.add_argument("-W", type=int, default=7)
    ap.add_argument("--we", type=int, default=5)
    ap.add_argument("--wsw", type=int, default=16)
    ap.add_argument("--opl", type=int, default=0)
    ap.add_argument("--ea", type=int, default=1)
    ap.add_argument("--npre", type=int, default=4)
    ap.add_argument("--prio", type=int, default=1)
    ap.add_argument("--wa", type=int, default=10)
    ap.add_argument("--gb", type=int, default=28)
    ap.add_argument("--dbg", type=int, default=0)
    ap.add_argument("--hold", type=int, default=0)
    ap.add_argument("--h3", type=int, default=0)
    a = ap.parse_args()
    emit(gen(a.stamps, a.stop, a.W, a.we, a.wsw, a.opl, a.ea, a.npre, a.prio, a.wa, a.gb, a.dbg, a.hold, a.h3), a.o)
```

```python
import sys, struct
NAME = "sequential_preLN__compressed_kv_cla__dense_activation_silu__decode"

EPOCH = 0x0
FL2, FL3 = 0x780000, 0x7D0000
FSTR = 4352
QPC, QP = 0x8000, 0x10000
QAC, QA = 0x30000, 0x40000
CPC = 0x60000
HH, HHC, HS = 0x70000, 0x7A000, 0x7D000
CP = 0x80000
AP = 0xC0000
FP = 0xF0000
DUAL = 0x170000
DLEN = 0xC0000
OP = 0x240000
OBLK = 20736
STAMP = 0x1000000
STAMP2 = 0x1040000
WS_REC = 0x1100000

L_R2 = 131072
L_WQ = L_R2
L_WUK = 0
L_QA = L_R2
L_XN = L_R2 + 20480
L_P = L_R2 + 25600
L_MX = L_R2 + 29696
L_SM = L_R2 + 16384
L_CC = L_MX + 256
L_FL = L_CC + 1024
LDS_BYTES = 163840
assert L_FL + 64 <= LDS_BYTES
L_WUV = 0
L_WR = 32768
L_W2 = L_WR + 40960
L_RED = L_W2 + 40960
L_UL = L_RED + 8192
F_A, F_S2, F_QA, F_T0, F_T1, F_RD, F_SM, F_S1, F_UK, F_UR, F_MX, F_GO, F_UV = 0, 4, 8, 12, 16, 20, 24, 28, 32, 36, 40, 44, 48

HASH_A, HASH_C = 1664525, 1013904223
SPIN_MAX = 20000
def f32(x): return "0x%08x" % struct.unpack("<I", struct.pack("<f", x))[0]
LOG2E = 1.4426950408889634
SCALE = (128 ** -0.5) * LOG2E
P_X, P_CKV, P_WQ, P_WUK, P_WUV, P_WO, P_BX, P_W1, P_W2, P_OUT, P_DBG, P_WS = 16, 18, 20, 22, 24, 26, 28, 30, 32, 34, 36, 38
DPP = "row_mask:0xf bank_mask:0xf"

class G:
    def __init__(self, stamps=False, stop=None):
        self.L = []; self.stamps = stamps; self.stop = stop; self.nlab = 0
    def __call__(self, s):
        for line in s.strip("\n").split("\n"):
            line = line.strip()
            if line:
                self.L.append("    " + line if not line.endswith(":") else line)
    def lab(self, p="L"):
        self.nlab += 1
        return f"{p}_{self.nlab}"
    def nop(self, n):
        while n > 0:
            k = min(n, 16); self(f"s_nop {k-1}"); n -= k
    def srd(self, d, ptr, size):
        self(f"""s_mov_b32 s{d}, s{ptr}
                 s_and_b32 s{d+1}, s{ptr+1}, 0xffff
                 s_mov_b32 s{d+2}, {size}
                 s_mov_b32 s{d+3}, 0x20000""")
    def ws_srds(self):
        self.srd(40, P_WS, WS_REC)
        self(f"""s_add_u32 s56, s{P_WS}, {DUAL}
                 s_addc_u32 s57, s{P_WS+1}, 0
                 s_and_b32 s57, s57, 0xffff
                 s_mov_b32 s58, {DLEN}
                 s_mov_b32 s59, 0x20000""")
    def stamp(self, idx):
        if self.stamps:
            self(f"s_memrealtime s[{76+2*idx}:{77+2*idx}]")
    def count(self, idx, reg=61):
        if self.stamps: self(f"s_waitcnt lgkmcnt(0)\ns_add_u32 s{76+2*idx}, s{reg}, 1")
    def flag_add(self, off):
        self(f"""s_mov_b64 exec, 1
                 ds_add_u32 v4, v5 offset:{off}
                 s_mov_b64 exec, -1""")
    def flag_wait(self, off, val):
        l = self.lab("FW"); x = self.lab("FX")
        self(f"""s_mov_b32 s15, 0
                 {l}:
                 ds_read_b32 v6, v4 offset:{off}
                 s_add_u32 s15, s15, 1
                 s_cmp_gt_u32 s15, {SPIN_MAX*8}
                 s_cbranch_scc1 {x}
                 s_waitcnt lgkmcnt(0)
                 v_readfirstlane_b32 s14, v6
                 s_cmp_lt_u32 s14, {val}
                 s_cbranch_scc1 {l}
                 {x}:""")
    def sflag_wait(self, base, off):
        l, x, r = self.lab("SW"), self.lab("SX"), self.lab("SR")
        self(f"""s_mov_b32 s15, 0
                 {l}:
                 s_load_dwordx16 s[16:31], s[{base}:{base+1}], {off} glc
                 s_add_u32 s15, s15, 1
                 s_cmp_gt_u32 s15, {SPIN_MAX}
                 s_cbranch_scc1 {x}
                 s_waitcnt lgkmcnt(0)""")
        for k in range(8):
            self(f"s_cmp_lg_u64 s[{16+2*k}:{17+2*k}], s[100:101]\ns_cbranch_scc1 {l}")
        self(f"{x}:")
    def reload_args(self):
        self("s_waitcnt lgkmcnt(0)\ns_load_dwordx16 s[16:31], s[0:1], 0")
    def chk(self, dst, p):
        self(f"""v_add3_u32 v{dst}, v{p}, v{p+1}, s11
                 v_add3_u32 v{dst}, v{p+2}, v{p+3}, v{dst}""")
    def acc_ne(self, a, b, first):
        if first:
            self(f"v_cmp_ne_u32 s[62:63], {a}, {b}")
        else:
            self(f"""v_cmp_ne_u32 vcc, {a}, {b}
                     s_or_b64 s[62:63], s[62:63], vcc""")
    def verify(self, p, c, first, t=7):
        self.chk(t, p)
        self.acc_ne(f"v{t}", f"v{c}", first)
    def poll_begin(self, dual=False):
        l = self.lab("PL")
        if dual:
            self("""s_mov_b32 s52, s40
                    s_mov_b32 s53, s41
                    s_mov_b32 s54, %d
                    s_mov_b32 s55, 0x20000""" % DLEN)
        self(f"s_mov_b32 s61, 0\n{l}:")
        return l
    def poll_end(self, l, dual=False):
        x = self.lab("PX")
        self(f"""s_cmp_eq_u64 s[62:63], 0
                 s_cbranch_scc1 {x}
                 s_add_u32 s61, s61, 1""")
        if dual:
            self("""s_and_b32 s14, s61, 7
                    s_cmp_eq_u32 s14, 7
                    s_cselect_b32 s52, s56, s40
                    s_cselect_b32 s53, s57, s41""")
        self(f"""s_cmp_lt_u32 s61, {SPIN_MAX}
                 s_cbranch_scc1 {l}
                 {x}:""")
    def xrow(self, op, v, t):
        self(f"""v_mov_b32 v{t}, v{v}
                 s_nop 1
                 v_permlane16_swap_b32 v{v}, v{t}
                 s_nop 0
                 {op} v{v}, v{v}, v{t}
                 v_mov_b32 v{t}, v{v}
                 s_nop 1
                 v_permlane32_swap_b32 v{v}, v{t}
                 s_nop 0
                 {op} v{v}, v{v}, v{t}""")
    def inrow(self, op, v, rors=(8, 4, 2, 1)):
        for r in rors:
            self(f"s_nop 1\n{op}_dpp v{v}, v{v}, v{v} row_ror:{r} {DPP}")
    def wave_sum(self, v, t):
        self.inrow("v_add_f32", v); self.xrow("v_add_f32", v, t)
    def rbf(self, v):
        self(f"v_cvt_pk_bf16_f32 v{v}, v{v}, v{v}\nv_lshlrev_b32 v{v}, 16, v{v}")
    def unpack(self, dst, src):
        self(f"v_lshlrev_b32 v{dst}, 16, v{src}\nv_and_b32 v{dst+1}, 0xffff0000, v{src}")
    def mfma(self, d, a, b, first):
        c = "0" if first else f"v[{d}:{d+3}]"
        self(f"v_mfma_f32_16x16x32_bf16 v[{d}:{d+3}], v[{a}:{a+3}], v[{b}:{b+3}], {c}")
    def pack8(self, p, d):
        for k in range(4):
            self(f"v_cvt_pk_bf16_f32 v{p+k}, v{d+2*k}, v{d+2*k+1}")
    def mask(self, m):
        self(f"s_mov_b32 exec_lo, {m}\ns_mov_b32 exec_hi, {m}")
    def mask_j4(self): self.mask("0x000f000f")
    def unmask(self): self("s_mov_b64 exec, -1")
    def dump(self, base):
        if self.dbg:
            g = self
            g("s_waitcnt lgkmcnt(0)")
            if base == STAMP2:
                lb = g.lab("DB")
                g(f"""v_mov_b32 v239, 0
                      s_not_b32 s13, s76
                      v_writelane_b32 v239, s13, 0
                      v_writelane_b32 v239, s76, 1
                      s_cmp_lt_u32 s3, 4
                      s_cbranch_scc1 {lb}""")
                for lane, k in ((2, 2), (3, 4), (4, 6), (5, 7), (6, 8)):
                    g(f"v_writelane_b32 v239, s{76+2*k}, {lane}")
                g(f"{lb}:")
                for k in range(1, 12): g(f"s_mov_b32 s{76+2*k}, 0")
            else:
                l0, l1, le = g.lab("DB"), g.lab("DB"), g.lab("DB")
                for lane, k in ((7, 9), (8, 10), (9, 11)):
                    g(f"v_writelane_b32 v239, s{76+2*k}, {lane}")
                g(f"""s_cmp_eq_u32 s72, 0
                      s_cbranch_scc1 {l0}
                      s_cmp_eq_u32 s72, 1
                      s_cbranch_scc1 {l1}
                      v_writelane_b32 v239, s78, 14
                      v_writelane_b32 v239, s80, 15
                      s_branch {le}
                      {l0}:
                      v_writelane_b32 v239, s78, 10
                      v_writelane_b32 v239, s82, 11
                      s_branch {le}
                      {l1}:
                      v_writelane_b32 v239, s78, 12
                      v_writelane_b32 v239, s82, 13
                      {le}:""")
                g.srd(44, P_DBG, 256)
                g("""v_lshlrev_b32 v238, 2, v1
                     s_mov_b64 exec, 0xffff
                     buffer_atomic_umax v239, v238, s[44:47], 0 offen sc1""")
            return
        if self.stamps:
            self("s_waitcnt lgkmcnt(0)")
            for k in range(12):
                self(f"v_mov_b32 v{240+k}, s{76+2*k}")
            self(f"""s_lshl_b32 s13, s2, 3
                  s_add_u32 s13, s13, s3
                  s_lshl_b32 s13, s13, 6
                  s_add_u32 s13, s13, {base}
                  v_mov_b32 v7, 0
                  s_mov_b64 exec, 1
                  buffer_store_dwordx4 v[240:243], v7, s[40:43], s13 offen
                  buffer_store_dwordx4 v[244:247], v7, s[40:43], s13 offen offset:16
                  buffer_store_dwordx4 v[248:251], v7, s[40:43], s13 offen offset:32
                  s_mov_b64 exec, -1""")
            for k in range(1, 12): self(f"s_mov_b32 s{76+2*k}, 0")
    def finish(self):
        if self.hold < 0:
            self("s_endpgm"); return
        if self.hold:
            l = self.lab("HD")
            self(f"""{l}:
                  s_memrealtime s[78:79]
                  s_waitcnt lgkmcnt(0)
                  s_sub_u32 s13, s78, s76
                  s_cmp_lt_u32 s13, {self.hold}
                  s_cbranch_scc1 {l}
                  s_endpgm""")
            return
        self.dump(STAMP)
        self("s_endpgm")

def tag_load(g): g(f"s_load_dword s11, s[{P_WS}:{P_WS+1}], {EPOCH}")
def tag_fin(g):
    g(f"""s_waitcnt lgkmcnt(0)
          s_mul_i32 s11, s11, {HASH_A}
          s_add_u32 s11, s11, {HASH_C}
          s_mov_b32 s100, s11
          s_mov_b32 s101, s11""")

def prologue(g):
    g(f"""s_cmp_ge_u32 s2, 256
          s_cbranch_scc1 L_end
          s_load_dwordx16 s[16:31], s[0:1], 0
          s_load_dwordx8 s[32:39], s[0:1], 64""")
    if g.stamps:
        for k in range(12): g(f"s_mov_b32 s{76+2*k}, 0")
    g.stamp(0)
    if g.hold: g("s_memrealtime s[76:77]")
    g(f"""v_lshrrev_b32 v2, 6, v0
          v_and_b32 v1, 63, v0
          s_and_b32 s4, s2, 7
          v_readfirstlane_b32 s3, v2
          s_lshr_b32 s5, s2, 3
          s_lshr_b32 s6, s5, 3
          s_lshl2_add_u32 s6, s4, s6
          s_and_b32 s7, s5, 7
          v_lshrrev_b32 v3, 4, v1
          v_and_b32 v9, 7, v1
          v_xor_b32 v9, v9, v3
          v_and_b32 v2, 1, v2
          v_lshlrev_b32 v2, 2, v2
          v_xor_b32 v9, v2, v9
          v_lshlrev_b32 v9, 4, v9
          v_lshrrev_b32 v10, 3, v1
          v_lshl_add_u32 v9, v10, 13, v9
          s_and_b32 s12, s3, 3
          v_and_b32 v2, 15, v1
          s_cmp_lt_u32 s3, 4
          s_cbranch_scc1 L_swave""")

def ids2(g):
    g(f"""s_lshr_b32 s8, s4, 1
          s_and_b32 s9, s5, 1
          s_and_b32 s10, s4, 1
          s_lshl_b32 s10, s10, 4
          s_lshr_b32 s13, s5, 1
          s_add_u32 s10, s10, s13
          v_mov_b32 v4, {L_FL}
          v_mov_b32 v5, 1""")

def pwave(g):
    g(f"""v_lshlrev_b32 v7, 4, v1
          v_lshlrev_b32 v8, 2, v1
          s_mul_i32 s64, s12, 1280
          v_lshlrev_b32 v15, 6, v2
          v_lshl_add_u32 v15, v3, 4, v15
          s_lshl_b32 s67, s6, 12
          s_add_u32 s67, s67, {QP}
          s_lshl_b32 s68, s6, 10
          s_add_u32 s68, s68, {QPC}
          s_mov_b32 s46, 5120
          s_mov_b32 s47, 0x20000
          {"s_setprio 3" if g.prio else ""}
          s_waitcnt lgkmcnt(0)
          s_mov_b32 s44, s{P_X}
          s_and_b32 s45, s{P_X+1}, 0xffff
          buffer_load_dwordx4 v[16:19], v7, s[44:47], s64 offen
          buffer_load_dword v20, v8, s[44:47], s64 offen offset:1024
          s_barrier""")
    tag_load(g)
    g.ws_srds()
    ids2(g)
    g(f"""s_lshr_b32 s69, s7, 1
          s_and_b32 s14, s12, 1
          s_lshl1_add_u32 s14, s9, s14
          s_lshl_b32 s13, s14, 10
          s_add_u32 s65, s67, s13
          s_lshl_b32 s13, s69, 8
          s_add_u32 s65, s65, s13
          s_add_u32 s66, s68, s13
          s_lshl2_add_u32 s66, s14, s66
          s_cmp_lt_u32 s12, 2
          s_cbranch_scc1 L_p_x0""")
    g.mask_j4()
    g(f"""buffer_load_dword v250, v15, s[40:43], s65 offen sc1
          buffer_load_dword v251, v15, s[40:43], s66 offen sc1
          s_mov_b64 exec, -1
          s_getpc_b64 s[70:71]
          L_pc:
          s_sub_u32 s48, s70, L_pc-{NAME}_kernel
          s_subb_u32 s49, s71, 0
          s_and_b32 s49, s49, 0xffff
          s_mov_b32 s50, L_code_end-{NAME}_kernel
          s_mov_b32 s51, 0x20000
          s_and_b32 s14, s12, 1
          s_lshl1_add_u32 s13, s5, s14
          s_lshl_b32 s13, s13, 9
          v_lshlrev_b32 v10, 3, v1
          buffer_load_dwordx2 v[254:255], v10, s[48:51], s13 offen
          s_waitcnt vmcnt(3)
          s_branch L_p_x1
          L_p_x0:
          s_waitcnt vmcnt(0)
          L_p_x1:""")
    g.stamp(1)
    for k in range(5): g.unpack(24+2*k, 16+k)
    g(f"""v_add_f32 v34, v24, v25
          v_add_f32 v35, v26, v27
          v_add_f32 v36, v28, v29
          v_add_f32 v37, v30, v31
          v_add_f32 v38, v32, v33
          v_add_f32 v34, v34, v35
          v_add_f32 v36, v36, v37
          v_add_f32 v34, v34, v38
          v_add_f32 v34, v34, v36""")
    g.wave_sum(34, 35)
    g(f"v_mul_f32 v34, {f32(1/640)}, v34")
    g("v_sub_f32 v36, v24, v34\nv_mul_f32 v35, v36, v36")
    for k in range(1, 10):
        g(f"v_sub_f32 v36, v{24+k}, v34\nv_fmac_f32 v35, v36, v36")
    g.wave_sum(35, 36)
    g(f"v_mul_f32 v35, {f32(1/640)}, v35")
    g.rbf(35)
    g(f"v_add_f32 v35, {f32(1e-5)}, v35")
    g.rbf(35)
    g("v_sqrt_f32 v35, v35")
    g.rbf(34)
    g.rbf(35)
    g("v_rcp_f32 v35, v35")
    for k in range(10): g(f"v_sub_f32 v{24+k}, v{24+k}, v34")
    for k in range(5): g(f"v_cvt_pk_bf16_f32 v{16+k}, v{24+2*k}, v{25+2*k}")
    for k in range(5): g.unpack(24+2*k, 16+k)
    for k in range(10): g(f"v_mul_f32 v{24+k}, v{24+k}, v35")
    for k in range(5): g(f"v_cvt_pk_bf16_f32 v{16+k}, v{24+2*k}, v{25+2*k}")
    g(f"""s_add_u32 s13, s64, {L_XN}
          v_add_u32 v7, s13, v7
          v_add_u32 v8, s13, v8
          ds_write_b128 v7, v[16:19]
          ds_write_b32 v8, v20 offset:1024""")
    g.flag_add(F_A)
    tag_fin(g)
    g(f"""v_lshrrev_b32 v10, 2, v1
          v_and_b32 v10, 3, v10
          v_and_b32 v11, 3, v1
          s_and_b32 s13, s12, 1
          s_lshl_b32 s13, s13, 2
          v_or_b32 v11, s13, v11
          v_lshrrev_b32 v12, 1, v10
          v_xor_b32 v11, v11, v12
          v_and_b32 v12, 1, v3
          v_lshlrev_b32 v12, 2, v12
          v_xor_b32 v11, v11, v12
          v_lshlrev_b32 v11, 4, v11
          v_lshl_add_u32 v11, v10, 7, v11
          v_lshl_add_u32 v11, v3, 10, v11
          v_add_u32 v11, {L_WQ}, v11
          v_xor_b32 v12, 0x220, v11
          v_and_b32 v13, 3, v2
          v_mul_u32_u24 v13, 1280, v13
          v_lshl_add_u32 v13, v3, 4, v13
          s_mul_i32 s13, s69, 320
          s_add_u32 s13, s13, {L_XN}
          v_add_u32 v13, s13, v13""")
    g(f"""v_lshlrev_b32 v24, 15, v2
          v_lshl_add_u32 v24, v3, 4, v24
          v_lshlrev_b32 v34, 13, v2
          v_lshl_add_u32 v34, v3, 4, v34
          v_and_b32 v7, 4, v2
          s_lshl2_add_u32 s13, s69, s12
          s_lshl_b32 s13, s13, 6
          s_lshl_b32 s70, s6, 10
          s_add_u32 s70, s70, s13
          s_add_u32 s70, s70, {QA}
          s_lshl_b32 s71, s4, 10
          s_add_u32 s71, s71, s13
          s_lshr_b32 s13, s5, 3
          s_lshl2_add_u32 s71, s13, s71
          s_add_u32 s71, s71, {QAC}
          v_lshrrev_b32 v26, 2, v2
          v_and_b32 v27, 3, v2
          v_lshrrev_b32 v25, 1, v27
          v_xor_b32 v25, v25, v3
          v_xor_b32 v25, v25, v7
          v_lshlrev_b32 v25, 4, v25
          v_lshl_add_u32 v25, v27, 7, v25
          v_lshl_add_u32 v25, v26, 11, v25
          s_lshl_b32 s13, s12, 13
          s_add_u32 s13, s13, {L_WUK}
          v_add_u32 v25, s13, v25
          v_xor_b32 v26, 64, v25
          v_xor_b32 v27, 0x220, v25
          v_xor_b32 v28, 0x260, v25
          s_mov_b32 s52, s40
          s_mov_b32 s53, s41
          s_mov_b32 s54, {DLEN}
          s_mov_b32 s55, 0x20000
          s_mov_b32 s61, 0""")
    g("s_cmp_ge_u32 s12, 2\ns_cbranch_scc1 L_p_nos1")
    g.flag_wait(F_A, 8)
    g.stamp(2)
    def s1_reads(t):
        g(f"ds_read_b128 v[{36+4*t}:{39+4*t}], v13 offset:{t*64}")
        for e in range(2):
            r = 96 + 8*t + 4*e
            g(f"ds_read_b64_tr_b16 v[{r}:{r+1}], v11 offset:{t*4096+e*8}")
            g(f"ds_read_b64_tr_b16 v[{r+2}:{r+3}], v12 offset:{t*4096+e*8}")
    s1_reads(0); s1_reads(1); s1_reads(2)
    for t in range(5):
        rem = min(5, t+3) - (t+1)
        g(f"s_waitcnt lgkmcnt({rem*5})")
        for e in range(2): g.mfma(56+4*e, 96+8*t+4*e, 36+4*t, t == 0)
        if t + 3 < 5: s1_reads(t+3)
    g.nop(6)
    g.mask_j4()
    g.pack8(16, 56)
    g.chk(20, 16)
    g(f"""buffer_store_dwordx4 v[16:19], v15, s[40:43], s65 offen
          buffer_store_dword v20, v15, s[40:43], s66 offen""")
    g.flag_add(F_S1)
    g.stamp(3)
    g("L_p_nos1:")
    def qdual():
        lq = g.lab("QD")
        g(f"s_cmp_ge_u32 s12, 2\ns_cbranch_scc1 {lq}")
        g.mask_j4()
        g(f"""buffer_store_dwordx4 v[16:19], v15, s[56:59], s65 offen sc1
              buffer_store_dword v20, v15, s[56:59], s66 offen sc1
              s_mov_b64 exec, -1
              {lq}:""")
    g.flag_wait(F_S1, 2)
    g("s_bitcmp1_b32 s5, 0\ns_cbranch_scc1 L_p_qd")
    g.flag_wait(F_UK, 4)
    g.stamp(9)
    for e in range(2):
        for t in range(4):
            r = 64 + 16*e + 4*t
            g(f"ds_read_b128 v[{r}:{r+3}], v{25+2*e+(t&1)} offset:{(t>>1)*1024}")
    l, lnd = g.lab("PL"), g.lab("ND")
    g(f"""s_mov_b64 s[62:63], -1
          {l}:
          s_cmp_lg_u32 s61, 3
          s_cbranch_scc1 {lnd}""")
    qdual()
    g(f"{lnd}:\ns_mov_b64 exec, s[62:63]")
    for t in range(4):
        g(f"buffer_load_dwordx4 v[{36+4*t}:{39+4*t}], v15, s[52:55], s67 offen offset:{t*1024} sc1")
    g(f"""buffer_load_dwordx4 v[52:55], v15, s[52:55], s68 offen sc1
          s_mov_b64 exec, -1
          s_waitcnt vmcnt(0) lgkmcnt(0)""")
    for t in range(4):
        for e in range(2): g.mfma(56+4*e, 64+16*e+4*t, 36+4*t, t == 0)
    for t in range(4): g.verify(36+4*t, 52+t, t == 0)
    g.poll_end(l, dual=True)
    g.count(10)
    for r in (4, 8):
        for k in range(8): g(f"v_add_f32_dpp v{56+k}, v{56+k}, v{56+k} row_ror:{r} {DPP}")
    g.mask_j4()
    g.pack8(28, 56)
    g.chk(32, 28)
    g(f"""buffer_store_dwordx4 v[28:31], v24, s[40:43], s70 offen sc1
          buffer_store_dword v32, v34, s[40:43], s71 offen sc1""")
    g.flag_add(F_GO)
    g.stamp(4)
    lnd = g.lab("ND")
    g(f"s_cmp_ge_u32 s61, 3\ns_cbranch_scc1 {lnd}\nL_p_qd:")
    qdual()
    g(f"{lnd}:")
    g("L_p_gather:")
    if g.stop == "A":
        g("s_waitcnt vmcnt(0)"); g.finish(); return
    g("s_nop 1")
    g(f"""v_lshrrev_b32 v10, 2, v1
          v_and_b32 v10, 3, v10
          v_and_b32 v11, 3, v1
          v_lshrrev_b32 v12, 1, v10
          v_and_b32 v13, 2, v3
          v_or_b32 v12, v12, v13
          v_and_b32 v13, 1, v3
          v_lshl_or_b32 v12, v13, 2, v12
          v_xor_b32 v12, v12, v11
          v_lshlrev_b32 v12, 4, v12
          v_lshl_or_b32 v13, v13, 2, v10
          v_lshl_add_u32 v12, v13, 7, v12
          v_lshrrev_b32 v13, 1, v3
          v_lshl_add_u32 v12, v13, 10, v12
          v_and_b32 v13, 1, v11
          v_lshl_add_u32 v12, v13, 3, v12
          s_lshl_b32 s13, s12, 12
          v_add_u32 v20, s13, v12
          v_xor_b32 v21, 8, v20
          v_xor_b32 v22, 64, v20
          v_xor_b32 v23, 0x48, v20
          v_add_u32 v24, 0x10000, v20
          v_add_u32 v25, 0x10000, v21
          v_add_u32 v26, 0x10000, v22
          v_add_u32 v27, 0x10000, v23
          v_lshlrev_b32 v28, 4, v1
          s_lshl2_add_u32 s13, s9, s12
          s_lshl_b32 s65, s13, 12
          s_lshl_b32 s14, s8, 15
          s_add_u32 s65, s65, s14
          s_add_u32 s65, s65, {QA}
          s_lshl_b32 s66, s13, 10
          s_lshl_b32 s14, s8, 13
          s_add_u32 s66, s66, s14
          s_add_u32 s66, s66, {QAC}
          s_lshl3_add_u32 s13, s4, s13
          s_mul_i32 s13, s13, {FSTR}
          s_add_u32 s13, s13, {FL2}
          s_add_u32 s70, s{P_WS}, s13
          s_addc_u32 s71, s{P_WS+1}, 0""")
    for n in range(4):
        g(f"""s_lshl2_add_u32 s13, s12, {n}
              s_lshl_b32 s14, s13, 4
              v_xor_b32 v{29+n}, s14, v28
              s_lshl_b32 s13, s13, 10
              s_add_u32 s13, s13, {L_QA}
              v_add_u32 v{29+n}, s13, v{29+n}""")
    role_decode(g)
    def gather_loads():
        for n in range(4):
            g(f"buffer_load_dwordx4 v[{64+4*n}:{67+4*n}], v28, s[40:43], s65 offen offset:{n*1024} sc1")
        g("buffer_load_dwordx4 v[80:83], v28, s[40:43], s66 offen sc1")
    def pv_pre(tile):
        for sw in range(4):
            for tp in range(4):
                for e in range(2):
                    r = 128 + ((tp*2+e)*4 + sw)*4 + 2*tile
                    a = 20 + (tp & 1)*2 + e + (4 if sw >= 2 else 0)
                    off = (sw & 1)*32768 + tile*16384 + (tp >> 1)*2048
                    g(f"ds_read_b64_tr_b16 v[{r}:{r+1}], v{a} offset:{off}")
    lga, lgb = g.lab("GA"), g.lab("GB")
    def pre0():
        g.flag_wait(F_T0, 4)
        pv_pre(0)
        g("s_waitcnt lgkmcnt(0)")
        g.flag_add(F_RD)
    g(f"""s_mov_b32 s64, 0
          s_bitcmp0_b32 s5, 0
          s_cbranch_scc1 {lga}
          {lgb}:""")
    pre0()
    g(f"""s_cmp_lg_u32 s64, 0
          s_cbranch_scc1 {lgb}_x
          {lga}:""")
    g.sflag_wait(70, 0)
    g.stamp(5)
    g("s_mov_b64 s[62:63], -1")
    l = g.poll_begin()
    g("s_mov_b64 exec, s[62:63]")
    gather_loads()
    g("s_mov_b64 exec, -1\ns_waitcnt vmcnt(0)")
    for n in range(4): g.verify(64+4*n, 80+n, n == 0)
    g.poll_end(l)
    g.count(11)
    for n in range(4): g(f"ds_write_b128 v{29+n}, v[{64+4*n}:{67+4*n}]")
    g.flag_add(F_QA)
    g.stamp(6)
    g.reload_args()
    g(f"""s_mov_b32 s64, 1
          s_bitcmp0_b32 s5, 0
          s_cbranch_scc1 {lgb}
          {lgb}_x:
          s_waitcnt lgkmcnt(0)""")
    lpt = g.lab("PT")
    g(f"""s_cmp_lg_u32 s3, 5
          s_cbranch_scc1 {lpt}
          s_cmp_lg_u32 s72, 0
          s_cbranch_scc1 {lpt}""")
    hh_addr(g, 116, 117, 118)
    g(f"""s_lshl_b32 s13, s73, 6
          buffer_load_dword v120, v116, s[44:47], s13 offen
          buffer_load_dword v121, v116, s[40:43], s67 offen sc1
          buffer_load_dword v122, v117, s[40:43], s69 offen sc1
          buffer_load_dword v123, v118, s[40:43], s68 offen sc1
          {lpt}:""")
    g(f"""v_lshlrev_b32 v29, {7 if g.opl else 6}, v2
          v_lshl_add_u32 v29, v3, 4, v29
          v_lshlrev_b32 v30, 6, v2
          v_lshl_add_u32 v30, v3, 4, v30
          s_lshl2_add_u32 s65, s9, s8
          s_lshl_b32 s65, s65, 5
          s_add_u32 s65, s65, s10
          s_mul_i32 s65, s65, {OBLK}
          s_add_u32 s65, s65, {OP}
          s_lshl_b32 s13, s12, 10
          s_add_u32 s67, s65, s13
          s_add_u32 s67, s67, 16384
          s_lshl_b32 s13, s12, 12
          s_add_u32 s65, s65, s13
          v_add_u32 v31, {L_P}, v28
          v_mul_u32_u24 v33, {16*FSTR}, v1
          v_mov_b32 v34, s11
          s_lshl4_add_u32 s66, s9, s12
          s_lshl2_add_u32 s66, s66, s8
          s_mul_i32 s66, s66, {FSTR}
          s_lshl2_add_u32 s66, s10, s66
          s_add_u32 s66, s66, {FL3}""")
    g.srd(48, P_WUV, 4194304)
    g(f"""s_lshl_b32 s69, s7, 6
          s_lshl3_add_u32 s69, s12, s69
          s_lshl_b32 s69, s69, 13
          s_lshl_b32 s13, s6, 8
          s_add_u32 s69, s69, s13
          s_lshl_b32 s70, s12, 10""")
    g.flag_wait(F_RD, 4)
    g.flag_wait(F_S2, 4)
    for k in range(2):
        for ch in range(2):
            g(f"""s_add_u32 m0, s70, {L_WUV + ch*8192 + k*4096}
                  s_add_u32 s13, s69, {k*262144 + ch*128}
                  buffer_load_dwordx4 v9, s[48:51], s13 offen nt lds""")
    early_setup(g)
    g.flag_wait(F_T1, 4)
    pv_pre(1)
    if g.ea: early_dma(g)
    g("s_waitcnt lgkmcnt(0)")
    g("s_barrier")
    g.stamp(7)
    for sw in range(4):
        g(f"ds_read_b128 v[{36+4*sw}:{39+4*sw}], v31 offset:{sw*1024}")
    def pv_out(tp):
        g.pack8(96+4*tp, 64+8*tp)
        g.chk(112+tp, 96+4*tp)
        g(f"buffer_store_dwordx4 v[{96+4*tp}:{99+4*tp}], v29, s[40:43], s65 offen offset:{((tp>>1)*2048+(tp&1)*64) if g.opl else tp*1024} sc1")
    for tp in range(4):
        for sw in range(4):
            if tp == 0: g(f"s_waitcnt lgkmcnt({3-sw})")
            for e in range(2): g.mfma(64+8*tp+4*e, 128+((tp*2+e)*4+sw)*4, 36+4*sw, sw == 0)
        if tp >= 1: pv_out(tp-1)
    g.nop(2)
    pv_out(3)
    g("""buffer_store_dwordx4 v[112:115], v30, s[40:43], s67 offen sc1
         s_mov_b64 exec, 15
         buffer_store_dword v34, v33, s[40:43], s66 offen sc1
         s_mov_b64 exec, -1""")
    g.stamp(8)
    g("s_waitcnt vmcnt(6)")
    g.flag_add(F_UV)
    if g.ea >= 2: early_dma(g)
    g("s_branch L_s4")

def hh_addr(g, va, vc, vs):
    g(f"""v_mul_u32_u24 v{va}, 1280, v3
          v_lshl_add_u32 v{va}, v2, 2, v{va}
          s_lshl_b32 s67, s73, 6
          s_mul_i32 s13, s4, 5120
          s_add_u32 s67, s67, s13
          s_add_u32 s67, s67, {HH}
          v_mul_u32_u24 v{vs}, 320, v3
          v_and_b32 v{vc}, 12, v2
          v_lshl_add_u32 v{vc}, v{vc}, 2, v{vs}
          s_mul_i32 s68, s4, 1280
          s_lshr_b32 s13, s73, 2
          s_lshl_b32 s13, s13, 6
          s_add_u32 s69, s68, s13
          s_and_b32 s13, s73, 3
          s_lshl2_add_u32 s69, s13, s69
          s_add_u32 s69, s69, {HHC}
          s_lshl4_add_u32 s68, s73, s68
          s_add_u32 s68, s68, {HS}""")
def v1280(g, dst):
    g(f"""v_lshrrev_b32 v{dst}, 3, v1
          v_mul_u32_u24 v{dst}, 1280, v{dst}
          v_and_b32 v7, 0x70, v9
          v_add_u32 v{dst}, v{dst}, v7""")
def early_setup(g):
    l1, le = g.lab("E1"), g.lab("EE")
    g(f"""s_mov_b32 s70, 0
          s_lshl_b32 s71, s12, 10
          s_add_u32 s71, s71, {L_WR}""")
    g.srd(44, P_WO, 5242880)
    v1280(g, 119)
    g(f"""s_and_b32 s13, s73, 1
          s_lshl1_add_u32 s13, s4, s13
          s_lshl_b32 s13, s13, 5
          s_add_u32 s13, s13, s12
          s_mul_i32 s68, s13, {8*1280}
          s_lshr_b32 s13, s73, 1
          s_lshl_b32 s13, s13, 7
          s_add_u32 s68, s68, s13
          s_mov_b32 s69, {32*1280}
          s_cmp_ge_u32 s72, 2
          s_cbranch_scc1 {le}
          s_mov_b32 s70, 4
          s_cmp_eq_u32 s72, 0
          s_cbranch_scc1 {le}""")
    g.srd(44, P_W1, 2211840)
    g(f"""v_lshrrev_b32 v119, 2, v1
          v_mul_u32_u24 v119, 3456, v119
          v_and_b32 v7, 3, v1
          v_lshl_add_u32 v119, v7, 4, v119
          s_mul_i32 s68, s12, {16*3456}
          s_lshl_b32 s13, s73, 6
          s_add_u32 s68, s68, s13
          s_mov_b32 s69, {64*3456}
          s_mov_b32 s70, 2
          {le}:""")
def early_dma(g):
    l, le = g.lab("ED"), g.lab("EX")
    g(f"""s_mov_b32 s13, s70
          s_cmp_eq_u32 s70, 0
          s_cbranch_scc1 {le}
          {l}:
          s_mov_b32 m0, s71
          s_add_u32 s71, s71, 4096
          buffer_load_dwordx4 v119, s[44:47], s68 offen nt lds
          s_add_u32 s68, s68, s69
          s_sub_u32 s13, s13, 1
          s_cmp_lg_u32 s13, 0
          s_cbranch_scc1 {l}
          {le}:""")

def swave(g, W):
    g("L_swave:")
    g(f"""s_lshr_b32 s14, s7, 1
          s_mul_i32 s64, s14, 160
          s_lshl3_add_u32 s64, s12, s64
          s_lshl_b32 s64, s64, 13
          s_lshl_b32 s13, s6, 8
          s_add_u32 s64, s64, s13
          s_and_b32 s70, s5, 1
          s_lshl_b32 s71, s70, 7
          s_add_u32 s64, s64, s71
          s_lshl_b32 s68, s14, 7
          s_lshl3_add_u32 s68, s12, s68
          s_lshl_b32 s68, s68, 13
          s_add_u32 s68, s68, s13
          s_lshl_b32 s67, s12, 10
          v_mov_b32 v6, 0
          v_lshlrev_b32 v14, 2, v1
          v_add_u32 v10, {L_FL}, v14
          s_mov_b64 exec, 0xffff
          ds_write_b32 v10, v6
          s_mov_b64 exec, -1
          s_mov_b32 s50, 5242880
          s_mov_b32 s51, 0x20000
          s_mov_b32 s71, 0
          s_mov_b64 vcc, s[70:71]
          s_waitcnt lgkmcnt(0)
          s_mov_b32 s48, s{P_WQ}
          s_and_b32 s49, s{P_WQ+1}, 0xffff
          s_barrier""")
    for k in range(5):
        g(f"""s_add_u32 m0, s67, {L_WQ + k*4096}
              s_add_u32 s13, s64, {k*262144}
              buffer_load_dwordx4 v9, s[48:51], s13 offen nt lds""")
    tag_load(g)
    ids2(g)
    g.srd(48, P_WUK, 4194304)
    g.srd(44, P_CKV, 16777216)
    g.ws_srds()
    g(f"""s_lshl_b32 s65, s12, 15
          v_lshrrev_b32 v10, 3, v1
          v_lshrrev_b32 v11, 1, v10
          v_and_b32 v11, 1, v11
          v_and_b32 v12, 4, v10
          v_or_b32 v11, v11, v12
          v_and_b32 v12, 7, v1
          v_xor_b32 v11, v11, v12
          v_lshlrev_b32 v11, 4, v11
          v_lshl_add_u32 v7, v10, 10, v11
          v_xor_b32 v8, 32, v7
          v_add_u32 v8, 8192, v8
          s_lshl_b32 s64, s8, 22
          s_lshl_b32 s13, s10, 17
          s_add_u32 s64, s64, s13
          s_add_u32 s64, s64, s65
          v_lshrrev_b32 v11, 1, v2
          v_and_b32 v11, 1, v11
          v_lshrrev_b32 v12, 3, v2
          v_lshl_or_b32 v11, v12, 1, v11
          v_and_b32 v13, 4, v2
          v_or_b32 v11, v11, v13
          v_xor_b32 v11, v11, v3
          v_lshlrev_b32 v11, 4, v11
          v_and_b32 v13, 7, v2
          v_lshl_add_u32 v11, v13, 7, v11
          v_lshl_add_u32 v11, v12, 10, v11
          v_add_u32 v11, s65, v11
          v_xor_b32 v12, 64, v11""")
    g.stamp(1)
    def areads(m):
        tile, u = m >> 3, m & 7
        for tl in range(2):
            t = 2*u + tl
            r = 64 + 64*tile + 4*t
            g(f"ds_read_b128 v[{r}:{r+3}], v{11+tl} offset:{tile*16384+u*2048}")
    g("s_cbranch_vccnz L_s_ckv\ns_lshl_b32 s69, s12, 11")
    fa = False
    for k in range(8):
        kk, ch = k >> 1, k & 1
        if 5 + k >= g.wa: g(f"s_waitcnt vmcnt({g.wa-1})")
        if not fa and 5 + k - g.wa >= 4:
            g.flag_add(F_A); fa = True
        g(f"""s_add_u32 m0, s69, {L_WUK + kk*8192 + ch*1024}
              s_add_u32 s13, s68, {kk*262144 + ch*128}
              buffer_load_dwordx4 v9, s[48:51], s13 offen nt lds""")
    if not fa:
        g("s_waitcnt vmcnt(8)")
        g.flag_add(F_A)
    g("s_waitcnt vmcnt(0)")
    g.flag_add(F_UK)
    tag_fin(g)
    g(f"""v_mul_u32_u24 v13, {8*FSTR}, v1
          v_mov_b32 v14, s11
          s_mul_i32 s69, s4, {FSTR}
          s_lshr_b32 s13, s5, 1
          s_lshl2_add_u32 s69, s13, s69
          s_add_u32 s69, s69, {FL2}""")
    g.flag_wait(F_GO, 4)
    g(f"""s_cmp_lg_u32 s12, 0
          s_cbranch_scc1 L_s_ckv
          s_mov_b64 exec, 0xff
          buffer_store_dword v14, v13, s[40:43], s69 offen sc1
          s_mov_b64 exec, -1
          L_s_ckv:""")
    done = 0
    for k in range(32):
        if k < g.wsw:
            lb = g.lab("SB")
            g(f"s_cbranch_vccz {lb}\ns_waitcnt vmcnt({g.we-1})")
            if k == g.we - 1: g.flag_add(F_A)
            g(f"{lb}:")
        if k >= W: g(f"s_waitcnt vmcnt({W-1})")
        landed = k - W
        tile, u, kh = k >> 4, (k >> 1) & 7, k & 1
        g(f"""s_add_u32 m0, s65, {k*1024}
              s_add_u32 s13, s64, {tile*16384 + u*128}
              buffer_load_dwordx4 v{7+kh}, s[44:47], s13 offen nt lds""")
        if k == 31: g.flag_add(F_S2)
        while 2*done + 1 <= landed:
            areads(done); done += 1
            if done == 8:
                g("s_waitcnt lgkmcnt(0)")
                g.flag_add(F_T0)
                g("s_cbranch_vccz L_s_tag")
                tag_fin(g)
                g("L_s_tag:")
                g.stamp(2)
    for tl in range(4):
        g(f"""v_or_b32 v13, {4*tl}, v3
              v_xor_b32 v13, v13, v2
              v_lshlrev_b32 v13, 4, v13
              v_lshl_add_u32 v13, v2, 10, v13
              v_add_u32 v{16+tl}, {L_QA}, v13""")
    g(f"""v_lshlrev_b32 v20, 4, v2
          v_add_u32 v20, {L_MX}, v20
          s_lshl_b32 s13, s12, 2
          v_add_u32 v21, s13, v20
          v_lshlrev_b32 v22, 4, v1
          s_lshl_b32 s13, s12, 10
          s_add_u32 s13, s13, {L_P}
          v_add_u32 v22, s13, v22
          s_mov_b32 s60, {f32(SCALE)}
          v_lshlrev_b32 v15, 6, v2
          v_lshl_add_u32 v23, v3, 2, v15
          v_lshl_add_u32 v15, v3, 4, v15
          v_add_u32 v15, {L_SM}, v15
          s_lshl_b32 s13, s12, 4
          s_add_u32 s13, s13, {L_SM}
          v_add_u32 v23, s13, v23
          s_lshl2_add_u32 s68, s9, s8
          s_lshl_b32 s68, s68, 5
          s_add_u32 s68, s68, s10
          s_mul_i32 s68, s68, {OBLK}
          s_add_u32 s68, s68, {OP+20480}""")
    role_decode(g)
    g.stamp(3)
    g.flag_wait(F_QA, 4)
    g.stamp(4)
    for t in range(16):
        g(f"ds_read_b128 v[{192+4*t}:{195+4*t}], v{16+(t&3)} offset:{(t>>2)*256}")
    for t in range(16):
        g(f"s_waitcnt lgkmcnt({15-t})")
        g.mfma(56, 64+4*t, 192+4*t, t == 0)
    first = True
    for m in range(8, done):
        for tl in range(2):
            t = 2*(m & 7) + tl
            g.mfma(60, 128+4*t, 192+4*t, first); first = False
    for m in range(done, 16):
        g(f"s_waitcnt vmcnt({31-(2*m+1)})")
        areads(m)
        if m == 15:
            g.flag_add(F_T1)
            g.stamp(5)
        if m > done:
            g(f"s_waitcnt lgkmcnt({3 if m == 15 else 2})")
            for tl in range(2):
                t = 2*((m-1) & 7) + tl
                g.mfma(60, 128+4*t, 192+4*t, first); first = False
    g("s_waitcnt lgkmcnt(0)")
    for tl in range(2): g.mfma(60, 128+4*(14+tl), 192+4*(14+tl), False)
    g("v_max3_f32 v24, v56, v57, v58\nv_max_f32 v24, v24, v59")
    g.nop(6)
    g("v_max3_f32 v24, v24, v60, v61\nv_max3_f32 v24, v24, v62, v63")
    g.xrow("v_max_f32", 24, 25)
    g("ds_write_b32 v21, v24")
    g.flag_add(F_MX)
    g.flag_wait(F_MX, 4)
    g(f"""ds_read_b128 v[24:27], v20
          s_waitcnt lgkmcnt(0)
          v_max3_f32 v24, v24, v25, v26
          v_max_f32 v24, v24, v27
          v_mul_f32 v24, s60, v24""")
    for k in range(8): g(f"v_fma_f32 v{56+k}, v{56+k}, s60, -v24")
    for k in range(8): g(f"v_exp_f32 v{56+k}, v{56+k}")
    g.nop(1)
    g.pack8(28, 56)
    g(f"""ds_write_b128 v22, v[28:31]
          v_add_f32 v56, v56, v57
          v_add_f32 v58, v58, v59
          v_add_f32 v60, v60, v61
          v_add_f32 v62, v62, v63
          v_add_f32 v56, v56, v58
          v_add_f32 v60, v60, v62
          v_add_f32 v25, v56, v60
          ds_write_b32 v23, v25
          s_waitcnt lgkmcnt(0)
          s_barrier""")
    g.stamp(6)
    lns = g.lab("NS")
    g(f"""s_cmp_lg_u32 s12, 0
          s_cbranch_scc1 {lns}
          ds_read_b128 v[28:31], v15
          v_lshlrev_b32 v13, 4, v2
          v_mov_b32 v26, s11
          v_mov_b32 v27, s11
          s_waitcnt lgkmcnt(0)
          v_add_f32 v28, v28, v29
          v_add_f32 v30, v30, v31
          v_add_f32 v25, v28, v30""")
    g.xrow("v_add_f32", 25, 28)
    g(f"""s_mov_b64 exec, 0xffff
          buffer_store_dwordx4 v[24:27], v13, s[40:43], s68 offen sc1
          s_mov_b64 exec, -1
          {lns}:""")
    g(f"""v_lshlrev_b32 v19, 6, v2
          v_lshl_add_u32 v19, v3, 4, v19
          v_mov_b32 v18, v19
          s_lshl_b32 s68, s6, 13
          s_lshr_b32 s13, s7, 2
          s_lshl_b32 s13, s13, 12
          s_add_u32 s68, s68, s13
          s_lshl_b32 s13, s12, 10
          s_add_u32 s68, s68, s13
          s_and_b32 s13, s7, 3
          s_lshl_b32 s13, s13, 8
          s_add_u32 s68, s68, s13
          s_add_u32 s68, s68, {CP}
          s_lshl_b32 s69, s6, 11
          s_lshl_b32 s13, s7, 8
          s_add_u32 s69, s69, s13
          s_lshl2_add_u32 s69, s12, s69
          s_add_u32 s69, s69, {CPC}""")
    g.mask_j4()
    g(f"""buffer_load_dword v20, v18, s[40:43], s68 offen sc1
          buffer_load_dword v21, v19, s[40:43], s69 offen sc1
          s_mov_b64 exec, -1""")
    g.stamp(7)

def role_decode(g):
    l6, l7, ld, lhi = g.lab("R6"), g.lab("R7"), g.lab("RD"), g.lab("RH")
    g(f"""s_mov_b32 s72, 0
          s_mov_b32 s73, s5
          s_cmp_lt_u32 s5, 20
          s_cbranch_scc1 {ld}
          s_sub_u32 s13, s5, 20
          s_cmp_ge_u32 s4, 2
          s_cbranch_scc1 {lhi}
          s_lshl3_add_u32 s73, s4, s13
          s_cmp_lt_u32 s13, 8
          s_cbranch_scc1 {l7}
          s_lshl2_add_u32 s73, s4, s13
          s_sub_u32 s73, s73, 8
          s_branch {l6}
          {lhi}:
          s_lshl2_add_u32 s73, s4, s13
          s_add_u32 s73, s73, 8
          s_cmp_lt_u32 s13, 4
          s_cbranch_scc1 {l7}
          s_lshl3_add_u32 s73, s4, s13
          s_sub_u32 s73, s73, 12
          {l6}:
          s_mov_b32 s72, 1
          s_cmp_lt_u32 s73, 54
          s_cbranch_scc1 {ld}
          s_mov_b32 s72, 3
          s_branch {ld}
          {l7}:
          s_mov_b32 s72, 2
          {ld}:""")

def tail(g):
    g("L_s4:")
    if g.stop == "B":
        g("s_waitcnt vmcnt(0)"); g.finish(); return
    g.dump(STAMP2)
    if g.hold < 0:
        lb = g.lab("HG")
        g(f"s_cmp_lg_u32 s3, 0\ns_cbranch_scc1 {lb}")
        g.srd(44, P_DBG, 256)
        g(f"""s_not_b32 s13, s76
              v_mov_b32 v8, s13
              v_mov_b32 v10, 0
              s_mov_b64 exec, 1
              buffer_atomic_umax v8, v10, s[44:47], 0 offen sc1
              s_mov_b64 exec, -1
              s_waitcnt vmcnt(0)
              {lb}:""")
    if g.prio: g("s_setprio 0")
    g(f"""s_mov_b32 s13, {OBLK}
          v_lshrrev_b32 v9, 3, v1
          v_mul_lo_u32 v9, v9, s13
          v_and_b32 v10, 3, v1
          v_lshl_add_u32 v9, v10, 4, v9
          v_and_b32 v10, 4, v1
          v_lshl_add_u32 v8, v10, {4 if g.opl else 8}, v9
          v_add_u32 v9, v9, v10
          v_and_b32 v10, 31, v1
          v_mul_lo_u32 v10, v10, s13
          s_lshr_b32 s14, s6, 4
          s_lshl3_add_u32 s64, s14, s3
          s_and_b32 s67, s64, 0xfe
          s_mul_i32 s64, s64, {16*OBLK}
          s_mul_i32 s67, s67, {16*OBLK}
          s_and_b32 s14, s6, 15
          s_lshl4_add_u32 s67, s14, s67
          s_add_u32 s67, s67, {OP+20480}
          s_lshl_b32 s14, s14, 6
          s_add_u32 s64, s64, s14
          s_lshl_b32 s13, s7, 11
          s_add_u32 s65, s64, s13
          {"s_add_u32 s65, s65, s14" if g.opl else ""}
          s_add_u32 s65, s65, {OP}
          s_lshr_b32 s13, s7, 1
          s_lshl_b32 s13, s13, 10
          s_add_u32 s66, s64, s13
          s_and_b32 s13, s7, 1
          s_lshl3_add_u32 s66, s13, s66
          s_add_u32 s66, s66, {OP+16384}
          s_add_u32 s74, s65, {8*OBLK}
          s_add_u32 s75, s66, {8*OBLK}
          v_lshrrev_b32 v11, 3, v1
          s_and_b32 s13, s3, 1
          s_lshl_b32 s13, s13, 4
          v_add_u32 v11, s13, v11
          v_lshlrev_b32 v11, 2, v11
          v_add_u32 v12, 32, v11
          v_and_b32 v13, 7, v1
          v_lshlrev_b32 v13, 4, v13
          v_and_b32 v14, 1, v3
          v_lshl_add_u32 v13, v14, 3, v13
          v_lshrrev_b32 v14, 1, v3
          v_lshl_add_u32 v13, v14, 2, v13
          s_and_b32 s13, s3, 1
          s_lshl_b32 s13, s13, 2
          s_lshr_b32 s14, s3, 1
          s_add_u32 s13, s13, s14
          s_lshl_b32 s13, s13, 7
          s_add_u32 s13, s13, {L_CC}
          v_add_u32 v13, s13, v13""")
    g(f"""s_lshl2_add_u32 s13, s4, 0
          s_lshr_b32 s14, s7, 1
          s_add_u32 s13, s13, s14
          s_lshl_b32 s13, s13, 2
          s_lshr_b32 s14, s3, 1
          s_add_u32 s13, s13, s14
          s_mul_i32 s13, s13, {FSTR}
          s_add_u32 s13, s13, {FL3}
          s_add_u32 s62, s{P_WS}, s13
          s_addc_u32 s63, s{P_WS+1}, 0""")
    lw = g.lab("NW")
    g(f"""s_cmp_ge_u32 s3, 4
          s_cbranch_scc1 {lw}
          v_lshrrev_b32 v14, 2, v1
          v_and_b32 v14, 3, v14
          v_and_b32 v15, 1, v3
          v_lshl_or_b32 v14, v15, 2, v14
          v_and_b32 v16, 3, v1
          s_and_b32 s13, s12, 1
          s_lshl_b32 s13, s13, 2
          v_or_b32 v16, s13, v16
          v_lshrrev_b32 v17, 1, v14
          v_xor_b32 v16, v16, v17
          v_lshlrev_b32 v15, 2, v15
          v_xor_b32 v16, v16, v15
          v_lshlrev_b32 v16, 4, v16
          v_lshl_add_u32 v16, v14, 7, v16
          v_lshl_add_u32 v16, v3, 10, v16
          s_lshr_b32 s13, s12, 1
          s_lshl_b32 s13, s13, 13
          s_add_u32 s13, s13, {L_WUV}
          v_add_u32 v16, s13, v16
          v_xor_b32 v17, 0x220, v16
          v_and_b32 v14, 7, v2
          v_lshlrev_b32 v14, 7, v14
          v_lshl_add_u32 v14, v3, 4, v14
          v_add_u32 v14, {L_CC}, v14""")
    g.flag_wait(F_UV, 4)
    for t in range(2):
        for e in range(2):
            r = 64 + 8*t + 4*e
            g(f"ds_read_b64_tr_b16 v[{r}:{r+1}], v16 offset:{t*4096+e*8}")
            g(f"ds_read_b64_tr_b16 v[{r+2}:{r+3}], v17 offset:{t*4096+e*8}")
    g(f"{lw}:")
    if g.h3 == 0:
        g.sflag_wait(62, 0)
        g.sflag_wait(62, 64)
    elif g.h3 == 1:
        g("s_waitcnt vmcnt(0)\ns_barrier")
    g.stamp(9)
    g.reload_args()
    g("s_mov_b64 s[62:63], -1")
    l = g.poll_begin()
    g(f"""buffer_load_dwordx4 v[24:27], v10, s[40:43], s67 offen sc1
          s_mov_b64 exec, s[62:63]
          buffer_load_dwordx4 v[28:31], v8, s[40:43], s65 offen sc1
          buffer_load_dwordx4 v[32:35], v8, s[40:43], s74 offen sc1
          buffer_load_dword v36, v9, s[40:43], s66 offen sc1
          buffer_load_dword v37, v9, s[40:43], s75 offen sc1
          s_mov_b64 exec, -1
          s_waitcnt vmcnt(4)
          v_cmp_ne_u32 s[62:63], s11, v26
          v_mov_b32 v38, v24""")
    g.inrow("v_max_f32", 38)
    g("""v_mov_b32 v39, v38
         s_nop 1
         v_permlane16_swap_b32 v38, v39
         s_nop 0
         v_max_f32 v38, v38, v39
         v_sub_f32 v38, v24, v38
         v_exp_f32 v38, v38
         s_nop 0
         v_mul_f32 v39, v38, v25""")
    g.inrow("v_add_f32", 39)
    g("""v_mov_b32 v42, v39
         s_nop 1
         v_permlane16_swap_b32 v39, v42
         s_nop 0
         v_add_f32 v39, v39, v42
         v_rcp_f32 v39, v39
         s_nop 0
         v_mul_f32 v38, v38, v39
         ds_bpermute_b32 v40, v11, v38
         ds_bpermute_b32 v41, v12, v38
         s_waitcnt vmcnt(0)""")
    g.verify(28, 36, False)
    g.verify(32, 37, False)
    g.poll_end(l)
    g.stamp(10)
    g.count(6)
    for k in range(4):
        g.unpack(44+2*k, 28+k); g.unpack(52+2*k, 32+k)
    g("s_waitcnt lgkmcnt(0)")
    for k in range(8): g(f"v_mul_f32 v{44+k}, v{44+k}, v40")
    for k in range(8): g(f"v_fmac_f32 v{44+k}, v{52+k}, v41")
    g.nop(1)
    for k in range(4): g(f"v_permlane16_swap_b32 v{44+k}, v{48+k}")
    g.nop(1)
    for k in range(4): g(f"v_add_f32 v{44+k}, v{44+k}, v{48+k}")
    g.nop(1)
    for k in range(2): g(f"v_permlane32_swap_b32 v{44+k}, v{46+k}")
    g.nop(1)
    for k in range(2): g(f"v_add_f32 v{44+k}, v{44+k}, v{46+k}")
    g.nop(1)
    for k in range(2): g(f"v_add_f32_dpp v{44+k}, v{44+k}, v{44+k} row_ror:8 {DPP}")
    g(f"""v_cvt_pk_bf16_f32 v44, v44, v45
          ds_write_b32 v13, v44
          s_waitcnt lgkmcnt(0)
          s_barrier""")
    ln = g.lab("N4")
    g(f"""s_cmp_ge_u32 s3, 4
          s_cbranch_scc1 {ln}
          ds_read_b128 v[24:27], v14
          ds_read_b128 v[28:31], v14 offset:64
          s_waitcnt lgkmcnt(1)""")
    for t in range(2):
        if t == 1: g("s_waitcnt lgkmcnt(0)")
        for e in range(2): g.mfma(56+4*e, 64+8*t+4*e, 24+4*t, t == 0)
    g.nop(7)
    for k in range(8): g(f"v_add_f32_dpp v{56+k}, v{56+k}, v{56+k} row_ror:4 {DPP}")
    g.mask_j4()
    g.pack8(24, 56)
    g.chk(28, 24)
    g(f"""buffer_store_dwordx4 v[24:27], v18, s[40:43], s68 offen
          buffer_store_dword v28, v19, s[40:43], s69 offen
          s_cmp_eq_u32 s72, 0
          s_cbranch_scc1 {ln}_c
          buffer_store_dwordx4 v[24:27], v18, s[56:59], s68 offen sc1
          buffer_store_dword v28, v19, s[56:59], s69 offen sc1
          {ln}_c:
          s_mov_b64 exec, -1
          s_branch {ln}_b
          {ln}:""")
    if g.ea == 0: g("s_lshl_b32 s70, s70, 1")
    if g.ea < 2: early_dma(g)
    g(f"{ln}_b:")
    g.stamp(11)
    if g.stop == "C1":
        g("s_waitcnt vmcnt(0)"); g.finish(); return
    g(f"""s_cmp_eq_u32 s72, 1
          s_cbranch_scc1 L_s6
          s_cmp_eq_u32 s72, 2
          s_cbranch_scc1 L_s7
          s_cmp_eq_u32 s72, 3
          s_cbranch_scc1 L_fin""")
    s5(g); s6(g); s7(g)
    g("L_fin:")
    g.finish()


def tr64_addr(g, dst, rowbase_sgpr):
    g(f"""v_lshrrev_b32 v{dst}, 2, v1
          v_and_b32 v{dst}, 3, v{dst}
          v_lshl_add_u32 v{dst}, v3, 3, v{dst}
          v_add_u32 v{dst}, s{rowbase_sgpr}, v{dst}
          v_lshlrev_b32 v{dst}, 6, v{dst}
          v_and_b32 v7, 3, v1
          v_lshl_add_u32 v{dst}, v7, 4, v{dst}
          v_add_u32 v{dst}, {L_WR}, v{dst}""")
def tr64_reads(g, a):
    for t in range(4):
        for e in range(2):
            r = 64 + 8*t + 4*e
            g(f"ds_read_b64_tr_b16 v[{r}:{r+1}], v{a} offset:{t*2048+e*8}")
            g(f"ds_read_b64_tr_b16 v[{r+2}:{r+3}], v{a} offset:{t*2048+256+e*8}")
def red_write(g):
    g.mask_j4()
    g("""ds_write_b128 v10, v[56:59]
         ds_write_b128 v10, v[60:63] offset:16
         s_mov_b64 exec, -1""")
def red_read(g, n, stride):
    for w in range(n): g(f"ds_read_b64 v[{24+2*w}:{25+2*w}], v11 offset:{w*stride}")
    for w in range(1, n):
        g(f"s_waitcnt lgkmcnt({n-1-w})")
        g(f"v_add_f32 v24, v24, v{24+2*w}\nv_add_f32 v25, v25, v{25+2*w}")

def s5(g):
    g(f"""v_lshrrev_b32 v12, 2, v1
          v_and_b32 v12, 3, v12
          v_and_b32 v8, 3, v1
          v_lshrrev_b32 v7, 1, v12
          v_xor_b32 v8, v8, v7
          v_and_b32 v7, 1, v3
          v_lshl_or_b32 v8, v7, 2, v8
          v_lshlrev_b32 v8, 4, v8
          v_lshl_add_u32 v8, v12, 7, v8
          v_lshl_add_u32 v8, v3, 10, v8
          s_lshr_b32 s13, s3, 2
          s_and_b32 s14, s3, 1
          s_lshl1_add_u32 s13, s13, s14
          s_lshl_b32 s13, s13, 13
          s_add_u32 s13, s13, {L_WR}
          v_add_u32 v8, s13, v8
          v_xor_b32 v9, 0x220, v8
          v_xor_b32 v12, 64, v8
          v_xor_b32 v13, 0x260, v8""")
    g(f"""v_and_b32 v10, 3, v2
          v_lshlrev_b32 v10, 7, v10
          v_lshl_add_u32 v10, v3, 5, v10
          v_and_b32 v7, 4, v2
          v_lshl_add_u32 v10, v7, 2, v10
          v_and_b32 v7, 8, v2
          v_lshl_add_u32 v10, v7, 6, v10
          s_lshl_b32 s13, s3, 10
          s_add_u32 s13, s13, {L_RED}
          v_add_u32 v10, s13, v10
          v_lshlrev_b32 v17, 3, v1
          s_and_b32 s14, s3, 1
          s_lshl_b32 s13, s14, 9
          s_add_u32 s13, s13, {L_RED}
          v_add_u32 v11, s13, v17
          v_lshlrev_b32 v15, 6, v2
          v_lshl_add_u32 v15, v3, 4, v15
          s_and_b32 s13, s73, 1
          s_lshl1_add_u32 s64, s4, s13
          s_lshl3_add_u32 s13, s64, s3
          s_lshl_b32 s65, s13, 11
          s_add_u32 s65, s65, {CP}
          s_lshr_b32 s13, s13, 1
          s_lshl_b32 s66, s13, 10
          s_lshl3_add_u32 s66, s14, s66
          s_add_u32 s66, s66, {CPC}
          s_and_b32 s13, s73, 0xfe
          s_add_u32 s13, s13, s14
          s_lshl4_add_u32 s71, s13, s64
          s_lshl_b32 s71, s71, 9
          s_add_u32 s71, s71, {AP}""")
    lf = g.lab("F5")
    g(f"s_cmp_lg_u32 s3, 5\ns_cbranch_scc1 {lf}")
    hh_addr(g, 20, 21, 16)
    g(f"""s_nop 0
          s_lshl_b32 s70, s73, 13
          s_add_u32 s70, s70, {AP}
          s_add_u32 s71, s70, 4096
          {lf}:""")
    lq = g.lab("LQ")
    g(f"s_mov_b64 s[62:63], -1\ns_cmp_lt_u32 s3, 4\ns_cbranch_scc1 {lq}\ns_waitcnt vmcnt(0)\n{lq}:\ns_barrier")
    g.stamp(5)
    for tt in range(2):
        for tpi in range(2):
            for e in range(2):
                r = 64 + 16*tt + 8*tpi + 4*e
                g(f"ds_read_b64_tr_b16 v[{r}:{r+1}], v{[8,12][tpi]} offset:{tt*4096+e*8}")
                g(f"ds_read_b64_tr_b16 v[{r+2}:{r+3}], v{[9,13][tpi]} offset:{tt*4096+e*8}")
    def cdual(cond):
        lnd = g.lab("ND")
        g(f"""{cond}
              s_cbranch_scc1 {lnd}
              s_cmp_ge_u32 s3, 4
              s_cbranch_scc1 {lnd}""")
        g.mask_j4()
        g(f"""buffer_store_dwordx4 v[24:27], v18, s[56:59], s68 offen sc1
              buffer_store_dword v28, v19, s[56:59], s69 offen sc1
              s_mov_b64 exec, -1
              {lnd}:""")
    l = g.poll_begin(dual=True)
    cdual("s_cmp_lg_u32 s61, 3")
    g("s_mov_b64 exec, s[62:63]")
    for tt in range(2):
        g(f"buffer_load_dwordx4 v[{96+4*tt}:{99+4*tt}], v15, s[52:55], s65 offen offset:{tt*1024} sc1")
    g(f"""buffer_load_dwordx2 v[112:113], v15, s[52:55], s66 offen sc1
          s_mov_b64 exec, -1
          s_waitcnt vmcnt(0) lgkmcnt(0)""")
    for tt in range(2):
        for q in range(4): g.mfma(40+4*q, 64+16*tt+4*q, 96+4*tt, tt == 0)
    for tt in range(2): g.verify(96+4*tt, 112+tt, tt == 0)
    g.poll_end(l, dual=True)
    g.stamp(1)
    g.count(7)
    for k in range(8): g(f"v_add_f32_dpp v{40+k}, v{40+k}, v{40+k} row_ror:8 row_mask:0xf bank_mask:0x3")
    for k in range(8): g(f"v_add_f32_dpp v{40+k}, v{48+k}, v{48+k} row_ror:8 row_mask:0xf bank_mask:0xc")
    for k in range(4): g(f"v_add_f32_dpp v{40+k}, v{40+k}, v{40+k} row_shl:4 row_mask:0xf bank_mask:0x5")
    for k in range(4): g(f"v_add_f32_dpp v{40+k}, v{44+k}, v{44+k} row_shr:4 row_mask:0xf bank_mask:0xa")
    lr = g.lab("R5")
    g(f"""ds_write_b128 v10, v[40:43]
          s_waitcnt lgkmcnt(0)
          s_barrier""")
    cdual("s_cmp_ge_u32 s61, 3")
    g(f"""s_cmp_eq_u32 s3, 5
          s_cbranch_scc1 {lr}
          s_cmp_lt_u32 s3, 6
          s_cbranch_scc1 L_fin""")
    red_read(g, 8, 1024)
    g(f"""v_cvt_pk_bf16_f32 v24, v24, v25
          v_mov_b32 v25, s11
          buffer_store_dwordx2 v[24:25], v17, s[40:43], s71 offen sc1""")
    g.stamp(2)
    g(f"s_branch L_fin\n{lr}:")
    g.unpack(44, 120)
    g("v_mov_b32 v50, s11\nv_mov_b32 v51, s11")
    l = g.poll_begin()
    for x in range(16):
        g(f"buffer_load_dwordx2 v[{64+2*x}:{65+2*x}], v17, s[40:43], s{70+(x>>3)} offen offset:{(x&7)*512} sc1")
    for x in range(16):
        g(f"s_waitcnt vmcnt({15-x})")
        if x == 0:
            g.unpack(46, 64)
            g("v_xor_b32 v55, s11, v65")
        else:
            g.unpack(48, 64+2*x)
            g(f"v_bitop3_b32 v55, v55, v{65+2*x}, v50 bitop3:0xf6")
            g("v_add_f32 v46, v46, v48\nv_add_f32 v47, v47, v49")
    g("v_cmp_ne_u32 s[62:63], 0, v55")
    g.poll_end(l)
    g.stamp(3)
    g.count(8)
    g("v_cvt_pk_bf16_f32 v46, v46, v47")
    g.unpack(48, 46)
    g(f"""v_add_f32 v48, v48, v44
          v_add_f32 v49, v49, v45
          v_cvt_pk_bf16_f32 v46, v48, v49
          buffer_store_dword v46, v20, s[40:43], s67 offen
          v_lshlrev_b32 v52, 16, v46
          v_add_u32_dpp v47, v46, v46 quad_perm:[1,0,3,2] {DPP}
          v_and_b32 v53, 0xffff0000, v46
          v_add_f32 v48, v52, v53
          v_add_u32_dpp v47, v47, v47 quad_perm:[2,3,0,1] {DPP}
          v_add_u32 v47, s11, v47""")
    g.mask("0x11111111")
    g(f"""buffer_store_dword v47, v21, s[40:43], s69 offen
          s_mov_b64 exec, -1""")
    g.inrow("v_add_f32", 48)
    g(f"""v_mul_f32 v54, {f32(1/32)}, v48
          v_sub_f32 v52, v52, v54
          v_sub_f32 v53, v53, v54
          v_mul_f32 v49, v52, v52
          v_fmac_f32 v49, v53, v53""")
    g.inrow("v_add_f32", 49)
    g.mask("0x00010001")
    g(f"""buffer_store_dwordx4 v[48:51], v16, s[40:43], s68 offen
          buffer_store_dwordx4 v[48:51], v16, s[56:59], s68 offen sc1""")
    g.mask("0x11111111")
    g(f"""buffer_store_dword v47, v21, s[56:59], s69 offen sc1
          s_mov_b64 exec, -1
          buffer_store_dword v46, v20, s[56:59], s67 offen sc1""")
    g.stamp(4)
    g("s_branch L_fin")

def s6(g):
    g("L_s6:\ns_barrier")
    g.srd(48, P_W1, 2211840)
    g(f"""v_lshrrev_b32 v12, 2, v1
          v_mul_u32_u24 v12, 3456, v12
          v_and_b32 v7, 3, v1
          v_lshl_add_u32 v12, v7, 4, v12
          s_add_u32 s13, s3, 16
          s_mul_i32 s64, s13, {16*3456}
          s_lshl_b32 s14, s73, 6
          s_add_u32 s64, s64, s14
          s_lshl_b32 s65, s3, 10""")
    for k in range(3):
        g(f"""s_add_u32 m0, s65, {L_WR + 16384 + k*8192}
              s_add_u32 s13, s64, {k*128*3456}
              buffer_load_dwordx4 v12, s[48:51], s13 offen nt lds""")
    g.srd(44, P_W2, 2211840)
    g(f"""v_and_b32 v13, 7, v1
          v_xor_b32 v13, v13, v3
          s_and_b32 s13, s3, 1
          s_lshl_b32 s13, s13, 2
          v_xor_b32 v13, s13, v13
          v_lshrrev_b32 v7, 3, v1
          v_mul_u32_u24 v7, 1280, v7
          v_lshl_add_u32 v13, v13, 4, v7
          s_lshl2_add_u32 s64, s73, s12
          s_mul_i32 s64, s64, {8*1280}
          s_lshr_b32 s13, s3, 2
          s_lshl_b32 s13, s13, 7
          s_add_u32 s64, s64, s13""")
    for k in range(5):
        g(f"""s_add_u32 m0, s65, {L_W2 + k*8192}
              s_add_u32 s13, s64, {k*256}
              buffer_load_dwordx4 v13, s[44:47], s13 offen nt lds""")
    g("s_min_u32 s13, s3, 4\ns_lshl_b32 s64, s13, 7")
    tr64_addr(g, 8, 64)
    g(f"""v_lshlrev_b32 v10, 7, v2
          v_lshl_add_u32 v10, v3, 5, v10
          s_lshl_b32 s13, s3, 9
          s_add_u32 s13, s13, {L_RED}
          v_add_u32 v10, s13, v10
          v_lshlrev_b32 v11, 3, v1
          v_add_u32 v11, {L_RED}, v11
          v_mul_u32_u24 v14, 1280, v2
          v_lshl_add_u32 v14, v3, 4, v14
          v_mul_u32_u24 v15, 320, v2
          v_lshl_add_u32 v15, v3, 4, v15
          s_mul_i32 s65, s4, 5120
          s_lshl_b32 s13, s3, 8
          s_add_u32 s65, s65, s13
          s_add_u32 s65, s65, {HH}
          s_mul_i32 s67, s4, 1280
          s_lshl_b32 s13, s3, 6
          s_add_u32 s66, s67, s13
          s_add_u32 s66, s66, {HHC}
          s_add_u32 s67, s67, {HS}""")
    g(f"""v_lshrrev_b32 v12, 2, v1
          v_and_b32 v12, 3, v12
          v_and_b32 v13, 3, v1
          v_lshrrev_b32 v20, 1, v13
          s_lshl_b32 s13, s12, 1
          v_or_b32 v20, s13, v20
          v_lshrrev_b32 v7, 1, v12
          v_xor_b32 v20, v20, v7
          v_and_b32 v7, 1, v3
          v_lshlrev_b32 v7, 2, v7
          v_xor_b32 v20, v20, v7
          v_lshlrev_b32 v20, 4, v20
          v_lshl_add_u32 v20, v12, 7, v20
          v_lshl_add_u32 v20, v3, 10, v20
          v_and_b32 v7, 1, v13
          v_lshl_add_u32 v20, v7, 3, v20
          s_lshr_b32 s13, s3, 2
          s_lshl_b32 s13, s13, 12
          s_add_u32 s13, s13, {L_W2}
          v_add_u32 v20, s13, v20
          v_xor_b32 v21, 0x220, v20
          v_and_b32 v22, 3, v2
          v_lshlrev_b32 v22, 6, v22
          v_lshl_add_u32 v22, v3, 4, v22
          v_add_u32 v22, {L_UL}, v22
          v_lshlrev_b32 v23, 4, v2
          s_mul_i32 s68, s73, 10240
          s_lshl_b32 s13, s3, 8
          s_add_u32 s68, s68, s13
          s_add_u32 s68, s68, {FP}
          s_add_u32 s69, s68, 4096
          s_add_u32 s70, s68, 8192""")
    for k in range(96, 112): g(f"v_mov_b32 v{k}, 0x3f803f80")
    for k in range(5): g(f"v_mov_b32 v{170+4*k}, s11\nv_mov_b32 v{171+4*k}, s11")
    lfin, lidle, lw2 = g.lab("F6"), g.lab("I6"), g.lab("W6")
    g("s_waitcnt vmcnt(0)\ns_barrier")
    g.stamp(4)
    for k in range(5):
        g(f"ds_read_b64_tr_b16 v[{128+4*k}:{129+4*k}], v20 offset:{k*8192}")
        g(f"ds_read_b64_tr_b16 v[{130+4*k}:{131+4*k}], v21 offset:{k*8192}")
    g(f"""s_cmp_eq_u32 s3, 7
          s_cbranch_scc1 {lfin}
          s_cmp_ge_u32 s3, 5
          s_cbranch_scc1 {lidle}""")
    tr64_reads(g, 8)
    g("s_waitcnt lgkmcnt(0)")
    for t in range(4):
        for e in range(2): g.mfma(56+4*e, 64+8*t+4*e, 96+4*t, t == 0)
    g.nop(6)
    red_write(g)
    g("s_waitcnt lgkmcnt(0)\ns_barrier\ns_barrier")
    g.mask_j4()
    l = g.poll_begin(dual=True)
    for t in range(4):
        g(f"buffer_load_dwordx4 v[{96+4*t}:{99+4*t}], v14, s[52:55], s65 offen offset:{t*64} sc1")
    g(f"""buffer_load_dwordx4 v[112:115], v15, s[52:55], s66 offen sc1
          s_waitcnt vmcnt(0)""")
    for t in range(4): g.verify(96+4*t, 112+t, t == 0)
    g.poll_end(l, dual=True)
    g.unmask()
    g.stamp(1)
    for t in range(4):
        for e in range(2): g.mfma(56+4*e, 64+8*t+4*e, 96+4*t, t == 0)
    g.nop(6)
    red_write(g)
    g(f"""s_waitcnt lgkmcnt(0)
          s_barrier
          s_branch {lw2}
          {lidle}:
          s_barrier
          s_barrier
          s_barrier
          s_branch {lw2}
          {lfin}:
          s_barrier""")
    red_read(g, 5, 512)
    g(f"""v_mov_b32 v40, v24
          v_mov_b32 v41, v25
          s_barrier
          v_mul_u32_u24 v16, 320, v3
          v_lshl_add_u32 v16, v2, 4, v16
          v_mov_b32 v48, 0
          v_mov_b32 v49, 0
          v_mov_b32 v50, s11
          v_cmp_gt_u32 vcc, 4, v2
          v_mov_b32 v42, 0
          v_lshlrev_b32 v17, 2, v1
          v_cndmask_b32 v42, v42, 1.0, vcc
          v_add_u32 v17, {L_UL}, v17""")
    l = g.poll_begin(dual=True)
    g(f"buffer_load_dwordx4 v[44:47], v16, s[52:55], s67 offen sc1")
    g.mask_j4()
    g(f"""buffer_load_dwordx4 v[48:51], v16, s[52:55], s67 offen offset:256 sc1
          s_mov_b64 exec, -1
          s_waitcnt vmcnt(0)""")
    g.acc_ne("s11", "v46", True)
    g.acc_ne("s11", "v50", False)
    g.poll_end(l, dual=True)
    g.stamp(1)
    g("v_add_f32 v52, v44, v48")
    g.inrow("v_add_f32", 52)
    g(f"""v_mul_f32 v52, {f32(1/640)}, v52
          v_mul_f32 v44, {f32(1/32)}, v44
          v_mul_f32 v48, {f32(1/32)}, v48
          v_sub_f32 v44, v44, v52
          v_sub_f32 v48, v48, v52
          v_mul_f32 v48, v48, v42
          v_mul_f32 v44, v44, v44
          v_fmac_f32 v44, v48, v48
          v_add_f32 v53, v45, v49
          v_fmac_f32 v53, {f32(32.0)}, v44""")
    g.inrow("v_add_f32", 53)
    g(f"""v_mov_b32 v54, {f32(1e-5)}
          v_fmac_f32 v54, {f32(1/640)}, v53
          v_rsq_f32 v54, v54
          v_mul_f32 v40, v40, v52
          v_mul_f32 v41, v41, v52
          s_barrier""")
    g.stamp(2)
    red_read(g, 5, 512)
    g(f"""v_sub_f32 v24, v24, v40
          v_sub_f32 v25, v25, v41
          v_mul_f32 v24, v24, v54
          v_mul_f32 v25, v25, v54
          v_mul_f32 v26, {f32(-LOG2E)}, v24
          v_mul_f32 v27, {f32(-LOG2E)}, v25
          v_exp_f32 v26, v26
          v_exp_f32 v27, v27
          s_nop 0
          v_add_f32 v26, 1.0, v26
          v_add_f32 v27, 1.0, v27
          v_rcp_f32 v26, v26
          v_rcp_f32 v27, v27
          s_nop 0
          v_mul_f32 v24, v24, v26
          v_mul_f32 v25, v25, v27
          v_cvt_pk_bf16_f32 v24, v24, v25
          ds_write_b32 v17, v24
          {lw2}:
          s_waitcnt lgkmcnt(0)
          s_barrier
          ds_read_b128 v[24:27], v22
          s_waitcnt lgkmcnt(0)""")
    for k in range(5): g.mfma(148+4*k, 24, 128+4*k, True)
    g.nop(3)
    g("s_mov_b64 exec, 0xffff")
    for k in range(5):
        g(f"""v_cvt_pk_bf16_f32 v{168+4*k}, v{148+4*k}, v{149+4*k}
              v_cvt_pk_bf16_f32 v{169+4*k}, v{150+4*k}, v{151+4*k}
              buffer_store_dwordx4 v[{168+4*k}:{171+4*k}], v23, s[40:43], s{68+(k>>1)} offen offset:{(k&1)*2048} sc1""")
    g.unmask()
    g.stamp(3)
    g("s_branch L_fin")

def s7(g):
    g("L_s7:")
    lh, lj = g.lab("H7"), g.lab("J7")
    g(f"""v_lshlrev_b32 v10, 2, v1
          v_add_u32 v16, {L_RED}, v10
          s_cmp_eq_u32 s3, 7
          s_cbranch_scc1 {lh}
          v_mul_u32_u24 v14, 10240, v3
          v_lshl_add_u32 v14, v2, 4, v14
          s_mul_i32 s65, s3, {8*10240}
          s_lshl_b32 s13, s73, 8
          s_add_u32 s65, s65, s13
          s_add_u32 s65, s65, {FP}
          s_add_u32 s66, s65, {4*10240}
          s_mov_b64 s[74:75], -1
          s_cmp_eq_u32 s3, 6
          s_cselect_b32 s75, 0, s75
          v_mov_b32 v100, 0
          v_mov_b32 v101, 0
          v_mov_b32 v102, s11
          s_lshl_b32 s13, s3, 8
          v_add_u32 v10, s13, v16""")
    l = g.poll_begin()
    g(f"""buffer_load_dwordx4 v[96:99], v14, s[40:43], s65 offen sc1
          s_mov_b64 exec, s[74:75]
          buffer_load_dwordx4 v[100:103], v14, s[40:43], s66 offen sc1
          s_mov_b64 exec, -1
          s_waitcnt vmcnt(0)""")
    g.acc_ne("s11", "v98", True)
    g.acc_ne("s11", "v102", False)
    g.poll_end(l)
    g.stamp(1)
    g.unpack(24, 96); g.unpack(26, 97); g.unpack(28, 100); g.unpack(30, 101)
    for k in range(4): g(f"v_add_f32 v{24+k}, v{24+k}, v{28+k}")
    g(f"""s_nop 0
          v_permlane16_swap_b32 v24, v25
          v_permlane16_swap_b32 v26, v27
          s_nop 0
          v_add_f32 v24, v24, v25
          v_add_f32 v26, v26, v27
          s_nop 1
          v_permlane32_swap_b32 v24, v26
          s_nop 0
          v_add_f32 v24, v24, v26
          ds_write_b32 v10, v24
          s_waitcnt lgkmcnt(0)
          s_barrier
          s_branch L_fin
          {lh}:""")
    g.srd(48, P_OUT, 5120)
    g(f"""v_mul_u32_u24 v13, 1280, v3
          v_and_b32 v8, 8, v2
          v_lshl_add_u32 v11, v8, 1, v13
          v_lshl_add_u32 v13, v2, 1, v13
          v_mul_u32_u24 v12, 320, v3
          v_lshl_add_u32 v12, v8, 1, v12
          s_lshl_b32 s64, s73, 5
          s_mul_i32 s65, s4, 5120
          s_add_u32 s65, s65, s64
          s_add_u32 s65, s65, {HH}
          s_mul_i32 s66, s4, 1280
          s_lshr_b32 s13, s73, 3
          s_lshl_b32 s13, s13, 6
          s_add_u32 s66, s66, s13
          s_and_b32 s13, s73, 1
          s_lshl_b32 s13, s13, 5
          s_add_u32 s66, s66, s13
          s_lshr_b32 s13, s73, 1
          s_and_b32 s13, s13, 3
          s_lshl2_add_u32 s66, s13, s66
          s_add_u32 s66, s66, {HHC}""")
    l = g.poll_begin(dual=True)
    g(f"""buffer_load_dwordx4 v[24:27], v11, s[52:55], s65 offen sc1
          buffer_load_dword v28, v12, s[52:55], s66 offen sc1
          s_waitcnt vmcnt(0)""")
    g.verify(24, 28, True)
    g.poll_end(l, dual=True)
    g(f"""v_and_b32 v8, 2, v1
          v_cmp_ne_u32 vcc, 0, v8
          v_and_b32 v9, 4, v1
          v_cmp_ne_u32 s[74:75], 0, v9
          v_cndmask_b32 v24, v24, v25, vcc
          v_cndmask_b32 v26, v26, v27, vcc
          v_and_b32 v8, 1, v1
          v_cmp_ne_u32 vcc, 0, v8
          v_cndmask_b32 v24, v24, v26, s[74:75]
          v_lshlrev_b32 v25, 16, v24
          v_and_b32 v26, 0xffff0000, v24
          v_cndmask_b32 v30, v25, v26, vcc""")
    g.stamp(1)
    g("s_barrier")
    for w in range(7): g(f"ds_read_b32 v{64+w}, v16 offset:{w*256}")
    g("""s_waitcnt lgkmcnt(4)
         v_add_f32 v64, v64, v65
         v_add_f32 v64, v64, v66
         s_waitcnt lgkmcnt(2)
         v_add_f32 v67, v67, v68
         s_waitcnt lgkmcnt(0)
         v_add_f32 v69, v69, v70
         v_add_f32 v64, v64, v67
         v_add_f32 v64, v64, v69""")
    g.rbf(64)
    g(f"""v_add_f32 v64, v64, v30
          v_cvt_pk_bf16_f32 v64, v64, v64
          buffer_store_short v64, v13, s[48:51], s64 offen
          s_cmp_lg_u32 s73, 0
          s_cbranch_scc1 {lj}
          v_mov_b32 v65, s11
          v_mov_b32 v66, {EPOCH}
          s_mov_b64 exec, 1
          buffer_store_dword v65, v66, s[40:43], 0 offen
          s_mov_b64 exec, -1
          {lj}:""")
    if g.hold < 0:
        l = g.lab("HD")
        g(f"""s_load_dword s80, s[{P_DBG}:{P_DBG+1}], 0 glc
              s_waitcnt lgkmcnt(0)
              s_not_b32 s80, s80
              {l}:
              s_memrealtime s[78:79]
              s_waitcnt lgkmcnt(0)
              s_sub_u32 s13, s78, s80
              s_cmp_lt_u32 s13, {-g.hold}
              s_cbranch_scc1 {l}""")
    g.stamp(2)

def gen(stamps=False, stop=None, W=7, we=5, wsw=16, opl=0, ea=1, npre=4, prio=1, wa=10, gb=28, dbg=0, hold=0, h3=0):
    g = G(stamps or dbg, stop)
    g.dbg = dbg
    g.hold = hold
    g.h3 = h3
    g.we, g.wsw, g.opl, g.ea = we, wsw, opl, ea
    g.npre, g.prio, g.wa, g.gb = npre, prio, wa, gb
    prologue(g); pwave(g); swave(g, W)
    if stop != "A": tail(g)
    g("L_end:")
    return g

def emit(g, path):
    hdr = open("cdna_kernels/" + NAME + ".s.ref").read().split("; Override launch")[0]
    txt = hdr + f"""; @launch grid=(256,1,1) block=(512,1,1) lds={LDS_BYTES}
.amdgcn_target "amdgcn-amd-amdhsa--gfx950"
.text
.globl {NAME}_kernel
.p2align 8
.type {NAME}_kernel,@function
{NAME}_kernel:
""" + "\n".join(g.L) + f"""
    s_endpgm
L_code_end:
.section .rodata,"a"
.p2align 6
.amdhsa_kernel {NAME}_kernel
  .amdhsa_next_free_vgpr 256
  .amdhsa_next_free_sgpr 102
  .amdhsa_accum_offset 256
  .amdhsa_group_segment_fixed_size 0
  .amdhsa_kernarg_size 96
  .amdhsa_user_sgpr_count 2
  .amdhsa_user_sgpr_kernarg_segment_ptr 1
  .amdhsa_system_sgpr_workgroup_id_x 1
.end_amdhsa_kernel
"""
    open(path, "w").write(txt)

if __name__ == "__main__":
    import argparse
    ap = argparse.ArgumentParser()
    ap.add_argument("-o", default="k.s")
    ap.add_argument("--stamps", action="store_true")
    ap.add_argument("--stop", default=None)
    ap.add_argument("-W", type=int, default=7)
    ap.add_argument("--we", type=int, default=5)
    ap.add_argument("--wsw", type=int, default=16)
    ap.add_argument("--opl", type=int, default=0)
    ap.add_argument("--ea", type=int, default=1)
    ap.add_argument("--npre", type=int, default=4)
    ap.add_argument("--prio", type=int, default=1)
    ap.add_argument("--wa", type=int, default=10)
    ap.add_argument("--gb", type=int, default=28)
    ap.add_argument("--dbg", type=int, default=0)
    ap.add_argument("--hold", type=int, default=0)
    ap.add_argument("--h3", type=int, default=0)
    a = ap.parse_args()
    emit(gen(a.stamps, a.stop, a.W, a.we, a.wsw, a.opl, a.ea, a.npre, a.prio, a.wa, a.gb, a.dbg, a.hold, a.h3), a.o)
```

```python
import sys, struct
NAME = "sequential_preLN__compressed_kv_cla__dense_activation_silu__decode"

EPOCH = 0x0
FL2, FL3 = 0x780000, 0x7D0000
FSTR = 4352
QPC, QP = 0x8000, 0x10000
QAC, QA = 0x30000, 0x40000
CPC = 0x60000
HH, HHC, HS = 0x70000, 0x7A000, 0x7D000
CP = 0x80000
AP = 0xC0000
FP = 0xF0000
DUAL = 0x170000
DLEN = 0xC0000
OP = 0x240000
OBLK = 20736
STAMP = 0x1000000
STAMP2 = 0x1040000
WS_REC = 0x1100000

L_R2 = 131072
L_WQ = L_R2
L_WUK = 0
L_QA = L_R2
L_XN = L_R2 + 20480
L_P = L_R2 + 25600
L_MX = L_R2 + 29696
L_SM = L_R2 + 16384
L_CC = L_MX + 256
L_FL = L_CC + 1024
LDS_BYTES = 163840
assert L_FL + 64 <= LDS_BYTES
L_WUV = 0
L_WR = 32768
L_W2 = L_WR + 40960
L_RED = L_W2 + 40960
L_UL = L_RED + 8192
F_A, F_S2, F_QA, F_T0, F_T1, F_RD, F_SM, F_S1, F_UK, F_UR, F_MX, F_GO, F_UV = 0, 4, 8, 12, 16, 20, 24, 28, 32, 36, 40, 44, 48

HASH_A, HASH_C = 1664525, 1013904223
SPIN_MAX = 20000
def f32(x): return "0x%08x" % struct.unpack("<I", struct.pack("<f", x))[0]
LOG2E = 1.4426950408889634
SCALE = (128 ** -0.5) * LOG2E
P_X, P_CKV, P_WQ, P_WUK, P_WUV, P_WO, P_BX, P_W1, P_W2, P_OUT, P_DBG, P_WS = 16, 18, 20, 22, 24, 26, 28, 30, 32, 34, 36, 38
DPP = "row_mask:0xf bank_mask:0xf"

class G:
    def __init__(self, stamps=False, stop=None):
        self.L = []; self.stamps = stamps; self.stop = stop; self.nlab = 0
    def __call__(self, s):
        for line in s.strip("\n").split("\n"):
            line = line.strip()
            if line:
                self.L.append("    " + line if not line.endswith(":") else line)
    def lab(self, p="L"):
        self.nlab += 1
        return f"{p}_{self.nlab}"
    def nop(self, n):
        while n > 0:
            k = min(n, 16); self(f"s_nop {k-1}"); n -= k
    def srd(self, d, ptr, size):
        self(f"""s_mov_b32 s{d}, s{ptr}
                 s_and_b32 s{d+1}, s{ptr+1}, 0xffff
                 s_mov_b32 s{d+2}, {size}
                 s_mov_b32 s{d+3}, 0x20000""")
    def ws_srds(self):
        self.srd(40, P_WS, WS_REC)
        self(f"""s_add_u32 s56, s{P_WS}, {DUAL}
                 s_addc_u32 s57, s{P_WS+1}, 0
                 s_and_b32 s57, s57, 0xffff
                 s_mov_b32 s58, {DLEN}
                 s_mov_b32 s59, 0x20000""")
    def stamp(self, idx):
        if self.stamps:
            self(f"s_memrealtime s[{76+2*idx}:{77+2*idx}]")
    def count(self, idx, reg=61):
        if self.stamps and not self.dbg: self(f"s_waitcnt lgkmcnt(0)\ns_add_u32 s{76+2*idx}, s{reg}, 1")
    def flag_add(self, off):
        self(f"""s_mov_b64 exec, 1
                 ds_add_u32 v4, v5 offset:{off}
                 s_mov_b64 exec, -1""")
    def flag_wait(self, off, val):
        l = self.lab("FW"); x = self.lab("FX")
        self(f"""s_mov_b32 s15, 0
                 {l}:
                 ds_read_b32 v6, v4 offset:{off}
                 s_add_u32 s15, s15, 1
                 s_cmp_gt_u32 s15, {SPIN_MAX*8}
                 s_cbranch_scc1 {x}
                 s_waitcnt lgkmcnt(0)
                 v_readfirstlane_b32 s14, v6
                 s_cmp_lt_u32 s14, {val}
                 s_cbranch_scc1 {l}
                 {x}:""")
    def sflag_wait(self, base, off):
        l, x, r = self.lab("SW"), self.lab("SX"), self.lab("SR")
        self(f"""s_mov_b32 s15, 0
                 {l}:
                 s_load_dwordx16 s[16:31], s[{base}:{base+1}], {off} glc
                 s_add_u32 s15, s15, 1
                 s_cmp_gt_u32 s15, {SPIN_MAX}
                 s_cbranch_scc1 {x}
                 s_waitcnt lgkmcnt(0)""")
        for k in range(8):
            self(f"s_cmp_lg_u64 s[{16+2*k}:{17+2*k}], s[100:101]\ns_cbranch_scc1 {l}")
        self(f"{x}:")
    def reload_args(self):
        self("s_waitcnt lgkmcnt(0)\ns_load_dwordx16 s[16:31], s[0:1], 0")
    def chk(self, dst, p):
        self(f"""v_add3_u32 v{dst}, v{p}, v{p+1}, s11
                 v_add3_u32 v{dst}, v{p+2}, v{p+3}, v{dst}""")
    def acc_ne(self, a, b, first):
        if first:
            self(f"v_cmp_ne_u32 s[62:63], {a}, {b}")
        else:
            self(f"""v_cmp_ne_u32 vcc, {a}, {b}
                     s_or_b64 s[62:63], s[62:63], vcc""")
    def verify(self, p, c, first, t=7):
        self.chk(t, p)
        self.acc_ne(f"v{t}", f"v{c}", first)
    def poll_begin(self, dual=False):
        l = self.lab("PL")
        if dual:
            self("""s_mov_b32 s52, s40
                    s_mov_b32 s53, s41
                    s_mov_b32 s54, %d
                    s_mov_b32 s55, 0x20000""" % DLEN)
        self(f"s_mov_b32 s61, 0\n{l}:")
        return l
    def poll_end(self, l, dual=False):
        x = self.lab("PX")
        self(f"""s_cmp_eq_u64 s[62:63], 0
                 s_cbranch_scc1 {x}
                 s_add_u32 s61, s61, 1""")
        if dual:
            self("""s_and_b32 s14, s61, 7
                    s_cmp_eq_u32 s14, 7
                    s_cselect_b32 s52, s56, s40
                    s_cselect_b32 s53, s57, s41""")
        self(f"""s_cmp_lt_u32 s61, {SPIN_MAX}
                 s_cbranch_scc1 {l}
                 {x}:""")
    def xrow(self, op, v, t):
        self(f"""v_mov_b32 v{t}, v{v}
                 s_nop 1
                 v_permlane16_swap_b32 v{v}, v{t}
                 s_nop 0
                 {op} v{v}, v{v}, v{t}
                 v_mov_b32 v{t}, v{v}
                 s_nop 1
                 v_permlane32_swap_b32 v{v}, v{t}
                 s_nop 0
                 {op} v{v}, v{v}, v{t}""")
    def inrow(self, op, v, rors=(8, 4, 2, 1)):
        for r in rors:
            self(f"s_nop 1\n{op}_dpp v{v}, v{v}, v{v} row_ror:{r} {DPP}")
    def wave_sum(self, v, t):
        self.inrow("v_add_f32", v); self.xrow("v_add_f32", v, t)
    def rbf(self, v):
        self(f"v_cvt_pk_bf16_f32 v{v}, v{v}, v{v}\nv_lshlrev_b32 v{v}, 16, v{v}")
    def unpack(self, dst, src):
        self(f"v_lshlrev_b32 v{dst}, 16, v{src}\nv_and_b32 v{dst+1}, 0xffff0000, v{src}")
    def mfma(self, d, a, b, first):
        c = "0" if first else f"v[{d}:{d+3}]"
        self(f"v_mfma_f32_16x16x32_bf16 v[{d}:{d+3}], v[{a}:{a+3}], v[{b}:{b+3}], {c}")
    def pack8(self, p, d):
        for k in range(4):
            self(f"v_cvt_pk_bf16_f32 v{p+k}, v{d+2*k}, v{d+2*k+1}")
    def mask(self, m):
        self(f"s_mov_b32 exec_lo, {m}\ns_mov_b32 exec_hi, {m}")
    def mask_j4(self): self.mask("0x000f000f")
    def unmask(self): self("s_mov_b64 exec, -1")
    def dump(self, base):
        if self.dbg:
            g = self
            g("s_waitcnt lgkmcnt(0)")
            if base == STAMP2:
                lb = g.lab("DB")
                g(f"""v_mov_b32 v239, 0
                      s_not_b32 s13, s76
                      v_writelane_b32 v239, s13, 0
                      v_writelane_b32 v239, s76, 1
                      s_cmp_lt_u32 s3, 4
                      s_cbranch_scc1 {lb}""")
                for lane, k in ((2, 2), (3, 4), (4, 6), (5, 7), (6, 8)):
                    g(f"v_writelane_b32 v239, s{76+2*k}, {lane}")
                g(f"{lb}:")
                for k in range(1, 12): g(f"s_mov_b32 s{76+2*k}, 0")
            else:
                l0, l1, le = g.lab("DB"), g.lab("DB"), g.lab("DB")
                for lane, k in ((7, 9), (8, 10), (9, 11)):
                    g(f"v_writelane_b32 v239, s{76+2*k}, {lane}")
                g(f"""s_cmp_eq_u32 s72, 0
                      s_cbranch_scc1 {l0}
                      s_cmp_eq_u32 s72, 1
                      s_cbranch_scc1 {l1}
                      v_writelane_b32 v239, s78, 14
                      v_writelane_b32 v239, s80, 15
                      s_branch {le}
                      {l0}:
                      v_writelane_b32 v239, s78, 10
                      v_writelane_b32 v239, s82, 11
                      s_branch {le}
                      {l1}:
                      v_writelane_b32 v239, s78, 12
                      v_writelane_b32 v239, s82, 13
                      {le}:""")
                g.srd(44, P_DBG, 256)
                lw, lw2, lz = g.lab("DW"), g.lab("DW"), g.lab("DZ")
                g(f"""{lw}:
                     s_sleep 100
                     s_memrealtime s[78:79]
                     s_waitcnt lgkmcnt(0)
                     s_sub_u32 s13, s78, s76
                     s_cmp_lt_u32 s13, 2600
                     s_cbranch_scc1 {lw}
                     v_lshlrev_b32 v238, 2, v1
                     s_mov_b64 exec, 0xffff
                     buffer_atomic_umax v239, v238, s[44:47], 0 offen sc1
                     s_add_u32 s13, s2, s3
                     s_cmp_lg_u32 s13, 0
                     s_cbranch_scc1 {lz}
                     {lw2}:
                     s_sleep 10
                     s_memrealtime s[78:79]
                     s_waitcnt lgkmcnt(0)
                     s_sub_u32 s13, s78, s76
                     s_cmp_lt_u32 s13, 7000
                     s_cbranch_scc1 {lw2}
                     s_load_dword s80, s[{P_DBG}:{P_DBG+1}], {4*g.dbg} glc
                     s_waitcnt lgkmcnt(0)
                     {lw2}_b:
                     s_memrealtime s[78:79]
                     s_waitcnt lgkmcnt(0)
                     s_sub_u32 s13, s78, s80
                     s_cmp_lt_u32 s13, 8000
                     s_cbranch_scc1 {lw2}_b
                     {lz}:""")
            return
        if self.stamps:
            self("s_waitcnt lgkmcnt(0)")
            for k in range(12):
                self(f"v_mov_b32 v{240+k}, s{76+2*k}")
            self(f"""s_lshl_b32 s13, s2, 3
                  s_add_u32 s13, s13, s3
                  s_lshl_b32 s13, s13, 6
                  s_add_u32 s13, s13, {base}
                  v_mov_b32 v7, 0
                  s_mov_b64 exec, 1
                  buffer_store_dwordx4 v[240:243], v7, s[40:43], s13 offen
                  buffer_store_dwordx4 v[244:247], v7, s[40:43], s13 offen offset:16
                  buffer_store_dwordx4 v[248:251], v7, s[40:43], s13 offen offset:32
                  s_mov_b64 exec, -1""")
            for k in range(1, 12): self(f"s_mov_b32 s{76+2*k}, 0")
    def finish(self):
        if self.hold < 0:
            self("s_endpgm"); return
        if self.hold:
            l = self.lab("HD")
            self(f"""{l}:
                  s_memrealtime s[78:79]
                  s_waitcnt lgkmcnt(0)
                  s_sub_u32 s13, s78, s76
                  s_cmp_lt_u32 s13, {self.hold}
                  s_cbranch_scc1 {l}
                  s_endpgm""")
            return
        self.dump(STAMP)
        self("s_endpgm")

def tag_load(g): g(f"s_load_dword s11, s[{P_WS}:{P_WS+1}], {EPOCH}")
def tag_fin(g):
    g(f"""s_waitcnt lgkmcnt(0)
          s_mul_i32 s11, s11, {HASH_A}
          s_add_u32 s11, s11, {HASH_C}
          s_mov_b32 s100, s11
          s_mov_b32 s101, s11""")

def prologue(g):
    g(f"""s_cmp_ge_u32 s2, 256
          s_cbranch_scc1 L_end
          s_load_dwordx16 s[16:31], s[0:1], 0
          s_load_dwordx8 s[32:39], s[0:1], 64""")
    if g.stamps:
        for k in range(12): g(f"s_mov_b32 s{76+2*k}, 0")
    g.stamp(0)
    if g.hold: g("s_memrealtime s[76:77]")
    g(f"""v_lshrrev_b32 v2, 6, v0
          v_and_b32 v1, 63, v0
          s_and_b32 s4, s2, 7
          v_readfirstlane_b32 s3, v2
          s_lshr_b32 s5, s2, 3
          s_lshr_b32 s6, s5, 3
          s_lshl2_add_u32 s6, s4, s6
          s_and_b32 s7, s5, 7
          v_lshrrev_b32 v3, 4, v1
          v_and_b32 v9, 7, v1
          v_xor_b32 v9, v9, v3
          v_and_b32 v2, 1, v2
          v_lshlrev_b32 v2, 2, v2
          v_xor_b32 v9, v2, v9
          v_lshlrev_b32 v9, 4, v9
          v_lshrrev_b32 v10, 3, v1
          v_lshl_add_u32 v9, v10, 13, v9
          s_and_b32 s12, s3, 3
          v_and_b32 v2, 15, v1
          s_cmp_lt_u32 s3, 4
          s_cbranch_scc1 L_swave""")

def ids2(g):
    g(f"""s_lshr_b32 s8, s4, 1
          s_and_b32 s9, s5, 1
          s_and_b32 s10, s4, 1
          s_lshl_b32 s10, s10, 4
          s_lshr_b32 s13, s5, 1
          s_add_u32 s10, s10, s13
          v_mov_b32 v4, {L_FL}
          v_mov_b32 v5, 1""")

def pwave(g):
    g(f"""v_lshlrev_b32 v7, 4, v1
          v_lshlrev_b32 v8, 2, v1
          s_mul_i32 s64, s12, 1280
          v_lshlrev_b32 v15, 6, v2
          v_lshl_add_u32 v15, v3, 4, v15
          s_lshl_b32 s67, s6, 12
          s_add_u32 s67, s67, {QP}
          s_lshl_b32 s68, s6, 10
          s_add_u32 s68, s68, {QPC}
          s_mov_b32 s46, 5120
          s_mov_b32 s47, 0x20000
          {"s_setprio 3" if g.prio else ""}
          s_waitcnt lgkmcnt(0)
          s_mov_b32 s44, s{P_X}
          s_and_b32 s45, s{P_X+1}, 0xffff
          buffer_load_dwordx4 v[16:19], v7, s[44:47], s64 offen
          buffer_load_dword v20, v8, s[44:47], s64 offen offset:1024
          s_barrier""")
    tag_load(g)
    g.ws_srds()
    ids2(g)
    g(f"""s_lshr_b32 s69, s7, 1
          s_and_b32 s14, s12, 1
          s_lshl1_add_u32 s14, s9, s14
          s_lshl_b32 s13, s14, 10
          s_add_u32 s65, s67, s13
          s_lshl_b32 s13, s69, 8
          s_add_u32 s65, s65, s13
          s_add_u32 s66, s68, s13
          s_lshl2_add_u32 s66, s14, s66
          s_cmp_lt_u32 s12, 2
          s_cbranch_scc1 L_p_x0""")
    g.mask_j4()
    g(f"""buffer_load_dword v250, v15, s[40:43], s65 offen sc1
          buffer_load_dword v251, v15, s[40:43], s66 offen sc1
          s_mov_b64 exec, -1
          s_getpc_b64 s[70:71]
          L_pc:
          s_sub_u32 s48, s70, L_pc-{NAME}_kernel
          s_subb_u32 s49, s71, 0
          s_and_b32 s49, s49, 0xffff
          s_mov_b32 s50, L_code_end-{NAME}_kernel
          s_mov_b32 s51, 0x20000
          s_and_b32 s14, s12, 1
          s_lshl1_add_u32 s13, s5, s14
          s_lshl_b32 s13, s13, 9
          v_lshlrev_b32 v10, 3, v1
          buffer_load_dwordx2 v[254:255], v10, s[48:51], s13 offen
          s_waitcnt vmcnt(3)
          s_branch L_p_x1
          L_p_x0:
          s_waitcnt vmcnt(0)
          L_p_x1:""")
    g.stamp(1)
    for k in range(5): g.unpack(24+2*k, 16+k)
    g(f"""v_add_f32 v34, v24, v25
          v_add_f32 v35, v26, v27
          v_add_f32 v36, v28, v29
          v_add_f32 v37, v30, v31
          v_add_f32 v38, v32, v33
          v_add_f32 v34, v34, v35
          v_add_f32 v36, v36, v37
          v_add_f32 v34, v34, v38
          v_add_f32 v34, v34, v36""")
    g.wave_sum(34, 35)
    g(f"v_mul_f32 v34, {f32(1/640)}, v34")
    g("v_sub_f32 v36, v24, v34\nv_mul_f32 v35, v36, v36")
    for k in range(1, 10):
        g(f"v_sub_f32 v36, v{24+k}, v34\nv_fmac_f32 v35, v36, v36")
    g.wave_sum(35, 36)
    g(f"v_mul_f32 v35, {f32(1/640)}, v35")
    g.rbf(35)
    g(f"v_add_f32 v35, {f32(1e-5)}, v35")
    g.rbf(35)
    g("v_sqrt_f32 v35, v35")
    g.rbf(34)
    g.rbf(35)
    g("v_rcp_f32 v35, v35")
    for k in range(10): g(f"v_sub_f32 v{24+k}, v{24+k}, v34")
    for k in range(5): g(f"v_cvt_pk_bf16_f32 v{16+k}, v{24+2*k}, v{25+2*k}")
    for k in range(5): g.unpack(24+2*k, 16+k)
    for k in range(10): g(f"v_mul_f32 v{24+k}, v{24+k}, v35")
    for k in range(5): g(f"v_cvt_pk_bf16_f32 v{16+k}, v{24+2*k}, v{25+2*k}")
    g(f"""s_add_u32 s13, s64, {L_XN}
          v_add_u32 v7, s13, v7
          v_add_u32 v8, s13, v8
          ds_write_b128 v7, v[16:19]
          ds_write_b32 v8, v20 offset:1024""")
    g.flag_add(F_A)
    tag_fin(g)
    g(f"""v_lshrrev_b32 v10, 2, v1
          v_and_b32 v10, 3, v10
          v_and_b32 v11, 3, v1
          s_and_b32 s13, s12, 1
          s_lshl_b32 s13, s13, 2
          v_or_b32 v11, s13, v11
          v_lshrrev_b32 v12, 1, v10
          v_xor_b32 v11, v11, v12
          v_and_b32 v12, 1, v3
          v_lshlrev_b32 v12, 2, v12
          v_xor_b32 v11, v11, v12
          v_lshlrev_b32 v11, 4, v11
          v_lshl_add_u32 v11, v10, 7, v11
          v_lshl_add_u32 v11, v3, 10, v11
          v_add_u32 v11, {L_WQ}, v11
          v_xor_b32 v12, 0x220, v11
          v_and_b32 v13, 3, v2
          v_mul_u32_u24 v13, 1280, v13
          v_lshl_add_u32 v13, v3, 4, v13
          s_mul_i32 s13, s69, 320
          s_add_u32 s13, s13, {L_XN}
          v_add_u32 v13, s13, v13""")
    g(f"""v_lshlrev_b32 v24, 15, v2
          v_lshl_add_u32 v24, v3, 4, v24
          v_lshlrev_b32 v34, 13, v2
          v_lshl_add_u32 v34, v3, 4, v34
          v_and_b32 v7, 4, v2
          s_lshl2_add_u32 s13, s69, s12
          s_lshl_b32 s13, s13, 6
          s_lshl_b32 s70, s6, 10
          s_add_u32 s70, s70, s13
          s_add_u32 s70, s70, {QA}
          s_lshl_b32 s71, s4, 10
          s_add_u32 s71, s71, s13
          s_lshr_b32 s13, s5, 3
          s_lshl2_add_u32 s71, s13, s71
          s_add_u32 s71, s71, {QAC}
          v_lshrrev_b32 v26, 2, v2
          v_and_b32 v27, 3, v2
          v_lshrrev_b32 v25, 1, v27
          v_xor_b32 v25, v25, v3
          v_xor_b32 v25, v25, v7
          v_lshlrev_b32 v25, 4, v25
          v_lshl_add_u32 v25, v27, 7, v25
          v_lshl_add_u32 v25, v26, 11, v25
          s_lshl_b32 s13, s12, 13
          s_add_u32 s13, s13, {L_WUK}
          v_add_u32 v25, s13, v25
          v_xor_b32 v26, 64, v25
          v_xor_b32 v27, 0x220, v25
          v_xor_b32 v28, 0x260, v25
          s_mov_b32 s52, s40
          s_mov_b32 s53, s41
          s_mov_b32 s54, {DLEN}
          s_mov_b32 s55, 0x20000
          s_mov_b32 s61, 0""")
    g("s_cmp_ge_u32 s12, 2\ns_cbranch_scc1 L_p_nos1")
    g.flag_wait(F_A, 8)
    g.stamp(2)
    def s1_reads(t):
        g(f"ds_read_b128 v[{36+4*t}:{39+4*t}], v13 offset:{t*64}")
        for e in range(2):
            r = 96 + 8*t + 4*e
            g(f"ds_read_b64_tr_b16 v[{r}:{r+1}], v11 offset:{t*4096+e*8}")
            g(f"ds_read_b64_tr_b16 v[{r+2}:{r+3}], v12 offset:{t*4096+e*8}")
    s1_reads(0); s1_reads(1); s1_reads(2)
    for t in range(5):
        rem = min(5, t+3) - (t+1)
        g(f"s_waitcnt lgkmcnt({rem*5})")
        for e in range(2): g.mfma(56+4*e, 96+8*t+4*e, 36+4*t, t == 0)
        if t + 3 < 5: s1_reads(t+3)
    g.nop(6)
    g.mask_j4()
    g.pack8(16, 56)
    g.chk(20, 16)
    g(f"""buffer_store_dwordx4 v[16:19], v15, s[40:43], s65 offen
          buffer_store_dword v20, v15, s[40:43], s66 offen""")
    g.flag_add(F_S1)
    g.stamp(3)
    g("L_p_nos1:")
    def qdual():
        lq = g.lab("QD")
        g(f"s_cmp_ge_u32 s12, 2\ns_cbranch_scc1 {lq}")
        g.mask_j4()
        g(f"""buffer_store_dwordx4 v[16:19], v15, s[56:59], s65 offen sc1
              buffer_store_dword v20, v15, s[56:59], s66 offen sc1
              s_mov_b64 exec, -1
              {lq}:""")
    g.flag_wait(F_S1, 2)
    g("s_bitcmp1_b32 s5, 0\ns_cbranch_scc1 L_p_qd")
    g.flag_wait(F_UK, 4)
    g.stamp(9)
    for e in range(2):
        for t in range(4):
            r = 64 + 16*e + 4*t
            g(f"ds_read_b128 v[{r}:{r+3}], v{25+2*e+(t&1)} offset:{(t>>1)*1024}")
    l, lnd = g.lab("PL"), g.lab("ND")
    g(f"""s_mov_b64 s[62:63], -1
          {l}:
          s_cmp_lg_u32 s61, 3
          s_cbranch_scc1 {lnd}""")
    qdual()
    g(f"{lnd}:\ns_mov_b64 exec, s[62:63]")
    for t in range(4):
        g(f"buffer_load_dwordx4 v[{36+4*t}:{39+4*t}], v15, s[52:55], s67 offen offset:{t*1024} sc1")
    g(f"""buffer_load_dwordx4 v[52:55], v15, s[52:55], s68 offen sc1
          s_mov_b64 exec, -1
          s_waitcnt vmcnt(0) lgkmcnt(0)""")
    for t in range(4):
        for e in range(2): g.mfma(56+4*e, 64+16*e+4*t, 36+4*t, t == 0)
    for t in range(4): g.verify(36+4*t, 52+t, t == 0)
    g.poll_end(l, dual=True)
    g.count(10)
    for r in (4, 8):
        for k in range(8): g(f"v_add_f32_dpp v{56+k}, v{56+k}, v{56+k} row_ror:{r} {DPP}")
    g.mask_j4()
    g.pack8(28, 56)
    g.chk(32, 28)
    g(f"""buffer_store_dwordx4 v[28:31], v24, s[40:43], s70 offen sc1
          buffer_store_dword v32, v34, s[40:43], s71 offen sc1""")
    g.flag_add(F_GO)
    g.stamp(4)
    lnd = g.lab("ND")
    g(f"s_cmp_ge_u32 s61, 3\ns_cbranch_scc1 {lnd}\nL_p_qd:")
    qdual()
    g(f"{lnd}:")
    g("L_p_gather:")
    if g.stop == "A":
        g("s_waitcnt vmcnt(0)"); g.finish(); return
    g("s_nop 1")
    g(f"""v_lshrrev_b32 v10, 2, v1
          v_and_b32 v10, 3, v10
          v_and_b32 v11, 3, v1
          v_lshrrev_b32 v12, 1, v10
          v_and_b32 v13, 2, v3
          v_or_b32 v12, v12, v13
          v_and_b32 v13, 1, v3
          v_lshl_or_b32 v12, v13, 2, v12
          v_xor_b32 v12, v12, v11
          v_lshlrev_b32 v12, 4, v12
          v_lshl_or_b32 v13, v13, 2, v10
          v_lshl_add_u32 v12, v13, 7, v12
          v_lshrrev_b32 v13, 1, v3
          v_lshl_add_u32 v12, v13, 10, v12
          v_and_b32 v13, 1, v11
          v_lshl_add_u32 v12, v13, 3, v12
          s_lshl_b32 s13, s12, 12
          v_add_u32 v20, s13, v12
          v_xor_b32 v21, 8, v20
          v_xor_b32 v22, 64, v20
          v_xor_b32 v23, 0x48, v20
          v_add_u32 v24, 0x10000, v20
          v_add_u32 v25, 0x10000, v21
          v_add_u32 v26, 0x10000, v22
          v_add_u32 v27, 0x10000, v23
          v_lshlrev_b32 v28, 4, v1
          s_lshl2_add_u32 s13, s9, s12
          s_lshl_b32 s65, s13, 12
          s_lshl_b32 s14, s8, 15
          s_add_u32 s65, s65, s14
          s_add_u32 s65, s65, {QA}
          s_lshl_b32 s66, s13, 10
          s_lshl_b32 s14, s8, 13
          s_add_u32 s66, s66, s14
          s_add_u32 s66, s66, {QAC}
          s_lshl3_add_u32 s13, s4, s13
          s_mul_i32 s13, s13, {FSTR}
          s_add_u32 s13, s13, {FL2}
          s_add_u32 s70, s{P_WS}, s13
          s_addc_u32 s71, s{P_WS+1}, 0""")
    for n in range(4):
        g(f"""s_lshl2_add_u32 s13, s12, {n}
              s_lshl_b32 s14, s13, 4
              v_xor_b32 v{29+n}, s14, v28
              s_lshl_b32 s13, s13, 10
              s_add_u32 s13, s13, {L_QA}
              v_add_u32 v{29+n}, s13, v{29+n}""")
    role_decode(g)
    def gather_loads():
        for n in range(4):
            g(f"buffer_load_dwordx4 v[{64+4*n}:{67+4*n}], v28, s[40:43], s65 offen offset:{n*1024} sc1")
        g("buffer_load_dwordx4 v[80:83], v28, s[40:43], s66 offen sc1")
    def pv_pre(tile):
        for sw in range(4):
            for tp in range(4):
                for e in range(2):
                    r = 128 + ((tp*2+e)*4 + sw)*4 + 2*tile
                    a = 20 + (tp & 1)*2 + e + (4 if sw >= 2 else 0)
                    off = (sw & 1)*32768 + tile*16384 + (tp >> 1)*2048
                    g(f"ds_read_b64_tr_b16 v[{r}:{r+1}], v{a} offset:{off}")
    lga, lgb = g.lab("GA"), g.lab("GB")
    def pre0():
        g.flag_wait(F_T0, 4)
        pv_pre(0)
        g("s_waitcnt lgkmcnt(0)")
        g.flag_add(F_RD)
    g(f"""s_mov_b32 s64, 0
          s_bitcmp0_b32 s5, 0
          s_cbranch_scc1 {lga}
          {lgb}:""")
    pre0()
    g(f"""s_cmp_lg_u32 s64, 0
          s_cbranch_scc1 {lgb}_x
          {lga}:""")
    g.sflag_wait(70, 0)
    g.stamp(5)
    g("s_mov_b64 s[62:63], -1")
    l = g.poll_begin()
    g("s_mov_b64 exec, s[62:63]")
    gather_loads()
    g("s_mov_b64 exec, -1\ns_waitcnt vmcnt(0)")
    for n in range(4): g.verify(64+4*n, 80+n, n == 0)
    g.poll_end(l)
    g.count(11)
    for n in range(4): g(f"ds_write_b128 v{29+n}, v[{64+4*n}:{67+4*n}]")
    g.flag_add(F_QA)
    g.stamp(6)
    g.reload_args()
    g(f"""s_mov_b32 s64, 1
          s_bitcmp0_b32 s5, 0
          s_cbranch_scc1 {lgb}
          {lgb}_x:
          s_waitcnt lgkmcnt(0)""")
    lpt = g.lab("PT")
    g(f"""s_cmp_lg_u32 s3, 5
          s_cbranch_scc1 {lpt}
          s_cmp_lg_u32 s72, 0
          s_cbranch_scc1 {lpt}""")
    hh_addr(g, 116, 117, 118)
    g(f"""s_lshl_b32 s13, s73, 6
          buffer_load_dword v120, v116, s[44:47], s13 offen
          buffer_load_dword v121, v116, s[40:43], s67 offen sc1
          buffer_load_dword v122, v117, s[40:43], s69 offen sc1
          buffer_load_dword v123, v118, s[40:43], s68 offen sc1
          {lpt}:""")
    g(f"""v_lshlrev_b32 v29, {7 if g.opl else 6}, v2
          v_lshl_add_u32 v29, v3, 4, v29
          v_lshlrev_b32 v30, 6, v2
          v_lshl_add_u32 v30, v3, 4, v30
          s_lshl2_add_u32 s65, s9, s8
          s_lshl_b32 s65, s65, 5
          s_add_u32 s65, s65, s10
          s_mul_i32 s65, s65, {OBLK}
          s_add_u32 s65, s65, {OP}
          s_lshl_b32 s13, s12, 10
          s_add_u32 s67, s65, s13
          s_add_u32 s67, s67, 16384
          s_lshl_b32 s13, s12, 12
          s_add_u32 s65, s65, s13
          v_add_u32 v31, {L_P}, v28
          v_mul_u32_u24 v33, {16*FSTR}, v1
          v_mov_b32 v34, s11
          s_lshl4_add_u32 s66, s9, s12
          s_lshl2_add_u32 s66, s66, s8
          s_mul_i32 s66, s66, {FSTR}
          s_lshl2_add_u32 s66, s10, s66
          s_add_u32 s66, s66, {FL3}""")
    g.srd(48, P_WUV, 4194304)
    g(f"""s_lshl_b32 s69, s7, 6
          s_lshl3_add_u32 s69, s12, s69
          s_lshl_b32 s69, s69, 13
          s_lshl_b32 s13, s6, 8
          s_add_u32 s69, s69, s13
          s_lshl_b32 s70, s12, 10""")
    g.flag_wait(F_RD, 4)
    g.flag_wait(F_S2, 4)
    for k in range(2):
        for ch in range(2):
            g(f"""s_add_u32 m0, s70, {L_WUV + ch*8192 + k*4096}
                  s_add_u32 s13, s69, {k*262144 + ch*128}
                  buffer_load_dwordx4 v9, s[48:51], s13 offen nt lds""")
    early_setup(g)
    g.flag_wait(F_T1, 4)
    pv_pre(1)
    if g.ea: early_dma(g)
    g("s_waitcnt lgkmcnt(0)")
    g("s_barrier")
    g.stamp(7)
    for sw in range(4):
        g(f"ds_read_b128 v[{36+4*sw}:{39+4*sw}], v31 offset:{sw*1024}")
    def pv_out(tp):
        g.pack8(96+4*tp, 64+8*tp)
        g.chk(112+tp, 96+4*tp)
        g(f"buffer_store_dwordx4 v[{96+4*tp}:{99+4*tp}], v29, s[40:43], s65 offen offset:{((tp>>1)*2048+(tp&1)*64) if g.opl else tp*1024} sc1")
    for tp in range(4):
        for sw in range(4):
            if tp == 0: g(f"s_waitcnt lgkmcnt({3-sw})")
            for e in range(2): g.mfma(64+8*tp+4*e, 128+((tp*2+e)*4+sw)*4, 36+4*sw, sw == 0)
        if tp >= 1: pv_out(tp-1)
    g.nop(2)
    pv_out(3)
    g("""buffer_store_dwordx4 v[112:115], v30, s[40:43], s67 offen sc1
         s_mov_b64 exec, 15
         buffer_store_dword v34, v33, s[40:43], s66 offen sc1
         s_mov_b64 exec, -1""")
    g.stamp(8)
    g("s_waitcnt vmcnt(6)")
    g.flag_add(F_UV)
    if g.ea >= 2: early_dma(g)
    g("s_branch L_s4")

def hh_addr(g, va, vc, vs):
    g(f"""v_mul_u32_u24 v{va}, 1280, v3
          v_lshl_add_u32 v{va}, v2, 2, v{va}
          s_lshl_b32 s67, s73, 6
          s_mul_i32 s13, s4, 5120
          s_add_u32 s67, s67, s13
          s_add_u32 s67, s67, {HH}
          v_mul_u32_u24 v{vs}, 320, v3
          v_and_b32 v{vc}, 12, v2
          v_lshl_add_u32 v{vc}, v{vc}, 2, v{vs}
          s_mul_i32 s68, s4, 1280
          s_lshr_b32 s13, s73, 2
          s_lshl_b32 s13, s13, 6
          s_add_u32 s69, s68, s13
          s_and_b32 s13, s73, 3
          s_lshl2_add_u32 s69, s13, s69
          s_add_u32 s69, s69, {HHC}
          s_lshl4_add_u32 s68, s73, s68
          s_add_u32 s68, s68, {HS}""")
def v1280(g, dst):
    g(f"""v_lshrrev_b32 v{dst}, 3, v1
          v_mul_u32_u24 v{dst}, 1280, v{dst}
          v_and_b32 v7, 0x70, v9
          v_add_u32 v{dst}, v{dst}, v7""")
def early_setup(g):
    l1, le = g.lab("E1"), g.lab("EE")
    g(f"""s_mov_b32 s70, 0
          s_lshl_b32 s71, s12, 10
          s_add_u32 s71, s71, {L_WR}""")
    g.srd(44, P_WO, 5242880)
    v1280(g, 119)
    g(f"""s_and_b32 s13, s73, 1
          s_lshl1_add_u32 s13, s4, s13
          s_lshl_b32 s13, s13, 5
          s_add_u32 s13, s13, s12
          s_mul_i32 s68, s13, {8*1280}
          s_lshr_b32 s13, s73, 1
          s_lshl_b32 s13, s13, 7
          s_add_u32 s68, s68, s13
          s_mov_b32 s69, {32*1280}
          s_cmp_ge_u32 s72, 2
          s_cbranch_scc1 {le}
          s_mov_b32 s70, 4
          s_cmp_eq_u32 s72, 0
          s_cbranch_scc1 {le}""")
    g.srd(44, P_W1, 2211840)
    g(f"""v_lshrrev_b32 v119, 2, v1
          v_mul_u32_u24 v119, 3456, v119
          v_and_b32 v7, 3, v1
          v_lshl_add_u32 v119, v7, 4, v119
          s_mul_i32 s68, s12, {16*3456}
          s_lshl_b32 s13, s73, 6
          s_add_u32 s68, s68, s13
          s_mov_b32 s69, {64*3456}
          s_mov_b32 s70, 2
          {le}:""")
def early_dma(g):
    l, le = g.lab("ED"), g.lab("EX")
    g(f"""s_mov_b32 s13, s70
          s_cmp_eq_u32 s70, 0
          s_cbranch_scc1 {le}
          {l}:
          s_mov_b32 m0, s71
          s_add_u32 s71, s71, 4096
          buffer_load_dwordx4 v119, s[44:47], s68 offen nt lds
          s_add_u32 s68, s68, s69
          s_sub_u32 s13, s13, 1
          s_cmp_lg_u32 s13, 0
          s_cbranch_scc1 {l}
          {le}:""")

def swave(g, W):
    g("L_swave:")
    g(f"""s_lshr_b32 s14, s7, 1
          s_mul_i32 s64, s14, 160
          s_lshl3_add_u32 s64, s12, s64
          s_lshl_b32 s64, s64, 13
          s_lshl_b32 s13, s6, 8
          s_add_u32 s64, s64, s13
          s_and_b32 s70, s5, 1
          s_lshl_b32 s71, s70, 7
          s_add_u32 s64, s64, s71
          s_lshl_b32 s68, s14, 7
          s_lshl3_add_u32 s68, s12, s68
          s_lshl_b32 s68, s68, 13
          s_add_u32 s68, s68, s13
          s_lshl_b32 s67, s12, 10
          v_mov_b32 v6, 0
          v_lshlrev_b32 v14, 2, v1
          v_add_u32 v10, {L_FL}, v14
          s_mov_b64 exec, 0xffff
          ds_write_b32 v10, v6
          s_mov_b64 exec, -1
          s_mov_b32 s50, 5242880
          s_mov_b32 s51, 0x20000
          s_mov_b32 s71, 0
          s_mov_b64 vcc, s[70:71]
          s_waitcnt lgkmcnt(0)
          s_mov_b32 s48, s{P_WQ}
          s_and_b32 s49, s{P_WQ+1}, 0xffff
          s_barrier""")
    for k in range(5):
        g(f"""s_add_u32 m0, s67, {L_WQ + k*4096}
              s_add_u32 s13, s64, {k*262144}
              buffer_load_dwordx4 v9, s[48:51], s13 offen nt lds""")
    tag_load(g)
    ids2(g)
    g.srd(48, P_WUK, 4194304)
    g.srd(44, P_CKV, 16777216)
    g.ws_srds()
    g(f"""s_lshl_b32 s65, s12, 15
          v_lshrrev_b32 v10, 3, v1
          v_lshrrev_b32 v11, 1, v10
          v_and_b32 v11, 1, v11
          v_and_b32 v12, 4, v10
          v_or_b32 v11, v11, v12
          v_and_b32 v12, 7, v1
          v_xor_b32 v11, v11, v12
          v_lshlrev_b32 v11, 4, v11
          v_lshl_add_u32 v7, v10, 10, v11
          v_xor_b32 v8, 32, v7
          v_add_u32 v8, 8192, v8
          s_lshl_b32 s64, s8, 22
          s_lshl_b32 s13, s10, 17
          s_add_u32 s64, s64, s13
          s_add_u32 s64, s64, s65
          v_lshrrev_b32 v11, 1, v2
          v_and_b32 v11, 1, v11
          v_lshrrev_b32 v12, 3, v2
          v_lshl_or_b32 v11, v12, 1, v11
          v_and_b32 v13, 4, v2
          v_or_b32 v11, v11, v13
          v_xor_b32 v11, v11, v3
          v_lshlrev_b32 v11, 4, v11
          v_and_b32 v13, 7, v2
          v_lshl_add_u32 v11, v13, 7, v11
          v_lshl_add_u32 v11, v12, 10, v11
          v_add_u32 v11, s65, v11
          v_xor_b32 v12, 64, v11""")
    g.stamp(1)
    def areads(m):
        tile, u = m >> 3, m & 7
        for tl in range(2):
            t = 2*u + tl
            r = 64 + 64*tile + 4*t
            g(f"ds_read_b128 v[{r}:{r+3}], v{11+tl} offset:{tile*16384+u*2048}")
    g("s_cbranch_vccnz L_s_ckv\ns_lshl_b32 s69, s12, 11")
    fa = False
    for k in range(8):
        kk, ch = k >> 1, k & 1
        if 5 + k >= g.wa: g(f"s_waitcnt vmcnt({g.wa-1})")
        if not fa and 5 + k - g.wa >= 4:
            g.flag_add(F_A); fa = True
        g(f"""s_add_u32 m0, s69, {L_WUK + kk*8192 + ch*1024}
              s_add_u32 s13, s68, {kk*262144 + ch*128}
              buffer_load_dwordx4 v9, s[48:51], s13 offen nt lds""")
    if not fa:
        g("s_waitcnt vmcnt(8)")
        g.flag_add(F_A)
    g("s_waitcnt vmcnt(0)")
    g.flag_add(F_UK)
    tag_fin(g)
    g(f"""v_mul_u32_u24 v13, {8*FSTR}, v1
          v_mov_b32 v14, s11
          s_mul_i32 s69, s4, {FSTR}
          s_lshr_b32 s13, s5, 1
          s_lshl2_add_u32 s69, s13, s69
          s_add_u32 s69, s69, {FL2}""")
    g.flag_wait(F_GO, 4)
    g(f"""s_cmp_lg_u32 s12, 0
          s_cbranch_scc1 L_s_ckv
          s_mov_b64 exec, 0xff
          buffer_store_dword v14, v13, s[40:43], s69 offen sc1
          s_mov_b64 exec, -1
          L_s_ckv:""")
    done = 0
    for k in range(32):
        if k < g.wsw:
            lb = g.lab("SB")
            g(f"s_cbranch_vccz {lb}\ns_waitcnt vmcnt({g.we-1})")
            if k == g.we - 1: g.flag_add(F_A)
            g(f"{lb}:")
        if k >= W: g(f"s_waitcnt vmcnt({W-1})")
        landed = k - W
        tile, u, kh = k >> 4, (k >> 1) & 7, k & 1
        g(f"""s_add_u32 m0, s65, {k*1024}
              s_add_u32 s13, s64, {tile*16384 + u*128}
              buffer_load_dwordx4 v{7+kh}, s[44:47], s13 offen nt lds""")
        if k == 31: g.flag_add(F_S2)
        while 2*done + 1 <= landed:
            areads(done); done += 1
            if done == 8:
                g("s_waitcnt lgkmcnt(0)")
                g.flag_add(F_T0)
                g("s_cbranch_vccz L_s_tag")
                tag_fin(g)
                g("L_s_tag:")
                g.stamp(2)
    for tl in range(4):
        g(f"""v_or_b32 v13, {4*tl}, v3
              v_xor_b32 v13, v13, v2
              v_lshlrev_b32 v13, 4, v13
              v_lshl_add_u32 v13, v2, 10, v13
              v_add_u32 v{16+tl}, {L_QA}, v13""")
    g(f"""v_lshlrev_b32 v20, 4, v2
          v_add_u32 v20, {L_MX}, v20
          s_lshl_b32 s13, s12, 2
          v_add_u32 v21, s13, v20
          v_lshlrev_b32 v22, 4, v1
          s_lshl_b32 s13, s12, 10
          s_add_u32 s13, s13, {L_P}
          v_add_u32 v22, s13, v22
          s_mov_b32 s60, {f32(SCALE)}
          v_lshlrev_b32 v15, 6, v2
          v_lshl_add_u32 v23, v3, 2, v15
          v_lshl_add_u32 v15, v3, 4, v15
          v_add_u32 v15, {L_SM}, v15
          s_lshl_b32 s13, s12, 4
          s_add_u32 s13, s13, {L_SM}
          v_add_u32 v23, s13, v23
          s_lshl2_add_u32 s68, s9, s8
          s_lshl_b32 s68, s68, 5
          s_add_u32 s68, s68, s10
          s_mul_i32 s68, s68, {OBLK}
          s_add_u32 s68, s68, {OP+20480}""")
    role_decode(g)
    g.stamp(3)
    g.flag_wait(F_QA, 4)
    g.stamp(4)
    for t in range(16):
        g(f"ds_read_b128 v[{192+4*t}:{195+4*t}], v{16+(t&3)} offset:{(t>>2)*256}")
    for t in range(16):
        g(f"s_waitcnt lgkmcnt({15-t})")
        g.mfma(56, 64+4*t, 192+4*t, t == 0)
    first = True
    for m in range(8, done):
        for tl in range(2):
            t = 2*(m & 7) + tl
            g.mfma(60, 128+4*t, 192+4*t, first); first = False
    for m in range(done, 16):
        g(f"s_waitcnt vmcnt({31-(2*m+1)})")
        areads(m)
        if m == 15:
            g.flag_add(F_T1)
            g.stamp(5)
        if m > done:
            g(f"s_waitcnt lgkmcnt({3 if m == 15 else 2})")
            for tl in range(2):
                t = 2*((m-1) & 7) + tl
                g.mfma(60, 128+4*t, 192+4*t, first); first = False
    g("s_waitcnt lgkmcnt(0)")
    for tl in range(2): g.mfma(60, 128+4*(14+tl), 192+4*(14+tl), False)
    g("v_max3_f32 v24, v56, v57, v58\nv_max_f32 v24, v24, v59")
    g.nop(6)
    g("v_max3_f32 v24, v24, v60, v61\nv_max3_f32 v24, v24, v62, v63")
    g.xrow("v_max_f32", 24, 25)
    g("ds_write_b32 v21, v24")
    g.flag_add(F_MX)
    g.flag_wait(F_MX, 4)
    g(f"""ds_read_b128 v[24:27], v20
          s_waitcnt lgkmcnt(0)
          v_max3_f32 v24, v24, v25, v26
          v_max_f32 v24, v24, v27
          v_mul_f32 v24, s60, v24""")
    for k in range(8): g(f"v_fma_f32 v{56+k}, v{56+k}, s60, -v24")
    for k in range(8): g(f"v_exp_f32 v{56+k}, v{56+k}")
    g.nop(1)
    g.pack8(28, 56)
    g(f"""ds_write_b128 v22, v[28:31]
          v_add_f32 v56, v56, v57
          v_add_f32 v58, v58, v59
          v_add_f32 v60, v60, v61
          v_add_f32 v62, v62, v63
          v_add_f32 v56, v56, v58
          v_add_f32 v60, v60, v62
          v_add_f32 v25, v56, v60
          ds_write_b32 v23, v25
          s_waitcnt lgkmcnt(0)
          s_barrier""")
    g.stamp(6)
    lns = g.lab("NS")
    g(f"""s_cmp_lg_u32 s12, 0
          s_cbranch_scc1 {lns}
          ds_read_b128 v[28:31], v15
          v_lshlrev_b32 v13, 4, v2
          v_mov_b32 v26, s11
          v_mov_b32 v27, s11
          s_waitcnt lgkmcnt(0)
          v_add_f32 v28, v28, v29
          v_add_f32 v30, v30, v31
          v_add_f32 v25, v28, v30""")
    g.xrow("v_add_f32", 25, 28)
    g(f"""s_mov_b64 exec, 0xffff
          buffer_store_dwordx4 v[24:27], v13, s[40:43], s68 offen sc1
          s_mov_b64 exec, -1
          {lns}:""")
    g(f"""v_lshlrev_b32 v19, 6, v2
          v_lshl_add_u32 v19, v3, 4, v19
          v_mov_b32 v18, v19
          s_lshl_b32 s68, s6, 13
          s_lshr_b32 s13, s7, 2
          s_lshl_b32 s13, s13, 12
          s_add_u32 s68, s68, s13
          s_lshl_b32 s13, s12, 10
          s_add_u32 s68, s68, s13
          s_and_b32 s13, s7, 3
          s_lshl_b32 s13, s13, 8
          s_add_u32 s68, s68, s13
          s_add_u32 s68, s68, {CP}
          s_lshl_b32 s69, s6, 11
          s_lshl_b32 s13, s7, 8
          s_add_u32 s69, s69, s13
          s_lshl2_add_u32 s69, s12, s69
          s_add_u32 s69, s69, {CPC}""")
    g.mask_j4()
    g(f"""buffer_load_dword v20, v18, s[40:43], s68 offen sc1
          buffer_load_dword v21, v19, s[40:43], s69 offen sc1
          s_mov_b64 exec, -1""")
    g.stamp(7)

def role_decode(g):
    l6, l7, ld, lhi = g.lab("R6"), g.lab("R7"), g.lab("RD"), g.lab("RH")
    g(f"""s_mov_b32 s72, 0
          s_mov_b32 s73, s5
          s_cmp_lt_u32 s5, 20
          s_cbranch_scc1 {ld}
          s_sub_u32 s13, s5, 20
          s_cmp_ge_u32 s4, 2
          s_cbranch_scc1 {lhi}
          s_lshl3_add_u32 s73, s4, s13
          s_cmp_lt_u32 s13, 8
          s_cbranch_scc1 {l7}
          s_lshl2_add_u32 s73, s4, s13
          s_sub_u32 s73, s73, 8
          s_branch {l6}
          {lhi}:
          s_lshl2_add_u32 s73, s4, s13
          s_add_u32 s73, s73, 8
          s_cmp_lt_u32 s13, 4
          s_cbranch_scc1 {l7}
          s_lshl3_add_u32 s73, s4, s13
          s_sub_u32 s73, s73, 12
          {l6}:
          s_mov_b32 s72, 1
          s_cmp_lt_u32 s73, 54
          s_cbranch_scc1 {ld}
          s_mov_b32 s72, 3
          s_branch {ld}
          {l7}:
          s_mov_b32 s72, 2
          {ld}:""")

def tail(g):
    g("L_s4:")
    if g.stop == "B":
        g("s_waitcnt vmcnt(0)"); g.finish(); return
    g.dump(STAMP2)
    if g.hold < 0:
        lb = g.lab("HG")
        g(f"s_cmp_lg_u32 s3, 0\ns_cbranch_scc1 {lb}")
        g.srd(44, P_DBG, 256)
        g(f"""s_not_b32 s13, s76
              v_mov_b32 v8, s13
              v_mov_b32 v10, 0
              s_mov_b64 exec, 1
              buffer_atomic_umax v8, v10, s[44:47], 0 offen sc1
              s_mov_b64 exec, -1
              s_waitcnt vmcnt(0)
              {lb}:""")
    if g.prio: g("s_setprio 0")
    g(f"""s_mov_b32 s13, {OBLK}
          v_lshrrev_b32 v9, 3, v1
          v_mul_lo_u32 v9, v9, s13
          v_and_b32 v10, 3, v1
          v_lshl_add_u32 v9, v10, 4, v9
          v_and_b32 v10, 4, v1
          v_lshl_add_u32 v8, v10, {4 if g.opl else 8}, v9
          v_add_u32 v9, v9, v10
          v_and_b32 v10, 31, v1
          v_mul_lo_u32 v10, v10, s13
          s_lshr_b32 s14, s6, 4
          s_lshl3_add_u32 s64, s14, s3
          s_and_b32 s67, s64, 0xfe
          s_mul_i32 s64, s64, {16*OBLK}
          s_mul_i32 s67, s67, {16*OBLK}
          s_and_b32 s14, s6, 15
          s_lshl4_add_u32 s67, s14, s67
          s_add_u32 s67, s67, {OP+20480}
          s_lshl_b32 s14, s14, 6
          s_add_u32 s64, s64, s14
          s_lshl_b32 s13, s7, 11
          s_add_u32 s65, s64, s13
          {"s_add_u32 s65, s65, s14" if g.opl else ""}
          s_add_u32 s65, s65, {OP}
          s_lshr_b32 s13, s7, 1
          s_lshl_b32 s13, s13, 10
          s_add_u32 s66, s64, s13
          s_and_b32 s13, s7, 1
          s_lshl3_add_u32 s66, s13, s66
          s_add_u32 s66, s66, {OP+16384}
          s_add_u32 s74, s65, {8*OBLK}
          s_add_u32 s75, s66, {8*OBLK}
          v_lshrrev_b32 v11, 3, v1
          s_and_b32 s13, s3, 1
          s_lshl_b32 s13, s13, 4
          v_add_u32 v11, s13, v11
          v_lshlrev_b32 v11, 2, v11
          v_add_u32 v12, 32, v11
          v_and_b32 v13, 7, v1
          v_lshlrev_b32 v13, 4, v13
          v_and_b32 v14, 1, v3
          v_lshl_add_u32 v13, v14, 3, v13
          v_lshrrev_b32 v14, 1, v3
          v_lshl_add_u32 v13, v14, 2, v13
          s_and_b32 s13, s3, 1
          s_lshl_b32 s13, s13, 2
          s_lshr_b32 s14, s3, 1
          s_add_u32 s13, s13, s14
          s_lshl_b32 s13, s13, 7
          s_add_u32 s13, s13, {L_CC}
          v_add_u32 v13, s13, v13""")
    g(f"""s_lshl2_add_u32 s13, s4, 0
          s_lshr_b32 s14, s7, 1
          s_add_u32 s13, s13, s14
          s_lshl_b32 s13, s13, 2
          s_lshr_b32 s14, s3, 1
          s_add_u32 s13, s13, s14
          s_mul_i32 s13, s13, {FSTR}
          s_add_u32 s13, s13, {FL3}
          s_add_u32 s62, s{P_WS}, s13
          s_addc_u32 s63, s{P_WS+1}, 0""")
    lw = g.lab("NW")
    g(f"""s_cmp_ge_u32 s3, 4
          s_cbranch_scc1 {lw}
          v_lshrrev_b32 v14, 2, v1
          v_and_b32 v14, 3, v14
          v_and_b32 v15, 1, v3
          v_lshl_or_b32 v14, v15, 2, v14
          v_and_b32 v16, 3, v1
          s_and_b32 s13, s12, 1
          s_lshl_b32 s13, s13, 2
          v_or_b32 v16, s13, v16
          v_lshrrev_b32 v17, 1, v14
          v_xor_b32 v16, v16, v17
          v_lshlrev_b32 v15, 2, v15
          v_xor_b32 v16, v16, v15
          v_lshlrev_b32 v16, 4, v16
          v_lshl_add_u32 v16, v14, 7, v16
          v_lshl_add_u32 v16, v3, 10, v16
          s_lshr_b32 s13, s12, 1
          s_lshl_b32 s13, s13, 13
          s_add_u32 s13, s13, {L_WUV}
          v_add_u32 v16, s13, v16
          v_xor_b32 v17, 0x220, v16
          v_and_b32 v14, 7, v2
          v_lshlrev_b32 v14, 7, v14
          v_lshl_add_u32 v14, v3, 4, v14
          v_add_u32 v14, {L_CC}, v14""")
    g.flag_wait(F_UV, 4)
    for t in range(2):
        for e in range(2):
            r = 64 + 8*t + 4*e
            g(f"ds_read_b64_tr_b16 v[{r}:{r+1}], v16 offset:{t*4096+e*8}")
            g(f"ds_read_b64_tr_b16 v[{r+2}:{r+3}], v17 offset:{t*4096+e*8}")
    g(f"{lw}:")
    if g.h3 == 0:
        g.sflag_wait(62, 0)
        g.sflag_wait(62, 64)
    elif g.h3 == 1:
        g("s_waitcnt vmcnt(0)\ns_barrier")
    g.stamp(9)
    g.reload_args()
    g("s_mov_b64 s[62:63], -1")
    l = g.poll_begin()
    g(f"""buffer_load_dwordx4 v[24:27], v10, s[40:43], s67 offen sc1
          s_mov_b64 exec, s[62:63]
          buffer_load_dwordx4 v[28:31], v8, s[40:43], s65 offen sc1
          buffer_load_dwordx4 v[32:35], v8, s[40:43], s74 offen sc1
          buffer_load_dword v36, v9, s[40:43], s66 offen sc1
          buffer_load_dword v37, v9, s[40:43], s75 offen sc1
          s_mov_b64 exec, -1
          s_waitcnt vmcnt(4)
          v_cmp_ne_u32 s[62:63], s11, v26
          v_mov_b32 v38, v24""")
    g.inrow("v_max_f32", 38)
    g("""v_mov_b32 v39, v38
         s_nop 1
         v_permlane16_swap_b32 v38, v39
         s_nop 0
         v_max_f32 v38, v38, v39
         v_sub_f32 v38, v24, v38
         v_exp_f32 v38, v38
         s_nop 0
         v_mul_f32 v39, v38, v25""")
    g.inrow("v_add_f32", 39)
    g("""v_mov_b32 v42, v39
         s_nop 1
         v_permlane16_swap_b32 v39, v42
         s_nop 0
         v_add_f32 v39, v39, v42
         v_rcp_f32 v39, v39
         s_nop 0
         v_mul_f32 v38, v38, v39
         ds_bpermute_b32 v40, v11, v38
         ds_bpermute_b32 v41, v12, v38
         s_waitcnt vmcnt(0)""")
    g.verify(28, 36, False)
    g.verify(32, 37, False)
    g.poll_end(l)
    g.stamp(10)
    g.count(6)
    for k in range(4):
        g.unpack(44+2*k, 28+k); g.unpack(52+2*k, 32+k)
    g("s_waitcnt lgkmcnt(0)")
    for k in range(8): g(f"v_mul_f32 v{44+k}, v{44+k}, v40")
    for k in range(8): g(f"v_fmac_f32 v{44+k}, v{52+k}, v41")
    g.nop(1)
    for k in range(4): g(f"v_permlane16_swap_b32 v{44+k}, v{48+k}")
    g.nop(1)
    for k in range(4): g(f"v_add_f32 v{44+k}, v{44+k}, v{48+k}")
    g.nop(1)
    for k in range(2): g(f"v_permlane32_swap_b32 v{44+k}, v{46+k}")
    g.nop(1)
    for k in range(2): g(f"v_add_f32 v{44+k}, v{44+k}, v{46+k}")
    g.nop(1)
    for k in range(2): g(f"v_add_f32_dpp v{44+k}, v{44+k}, v{44+k} row_ror:8 {DPP}")
    g(f"""v_cvt_pk_bf16_f32 v44, v44, v45
          ds_write_b32 v13, v44
          s_waitcnt lgkmcnt(0)
          s_barrier""")
    ln = g.lab("N4")
    g(f"""s_cmp_ge_u32 s3, 4
          s_cbranch_scc1 {ln}
          ds_read_b128 v[24:27], v14
          ds_read_b128 v[28:31], v14 offset:64
          s_waitcnt lgkmcnt(1)""")
    for t in range(2):
        if t == 1: g("s_waitcnt lgkmcnt(0)")
        for e in range(2): g.mfma(56+4*e, 64+8*t+4*e, 24+4*t, t == 0)
    g.nop(7)
    for k in range(8): g(f"v_add_f32_dpp v{56+k}, v{56+k}, v{56+k} row_ror:4 {DPP}")
    g.mask_j4()
    g.pack8(24, 56)
    g.chk(28, 24)
    g(f"""buffer_store_dwordx4 v[24:27], v18, s[40:43], s68 offen
          buffer_store_dword v28, v19, s[40:43], s69 offen
          s_cmp_eq_u32 s72, 0
          s_cbranch_scc1 {ln}_c
          buffer_store_dwordx4 v[24:27], v18, s[56:59], s68 offen sc1
          buffer_store_dword v28, v19, s[56:59], s69 offen sc1
          {ln}_c:
          s_mov_b64 exec, -1
          s_branch {ln}_b
          {ln}:""")
    if g.ea == 0: g("s_lshl_b32 s70, s70, 1")
    if g.ea < 2: early_dma(g)
    g(f"{ln}_b:")
    g.stamp(11)
    if g.stop == "C1":
        g("s_waitcnt vmcnt(0)"); g.finish(); return
    g(f"""s_cmp_eq_u32 s72, 1
          s_cbranch_scc1 L_s6
          s_cmp_eq_u32 s72, 2
          s_cbranch_scc1 L_s7
          s_cmp_eq_u32 s72, 3
          s_cbranch_scc1 L_fin""")
    s5(g); s6(g); s7(g)
    g("L_fin:")
    g.finish()


def tr64_addr(g, dst, rowbase_sgpr):
    g(f"""v_lshrrev_b32 v{dst}, 2, v1
          v_and_b32 v{dst}, 3, v{dst}
          v_lshl_add_u32 v{dst}, v3, 3, v{dst}
          v_add_u32 v{dst}, s{rowbase_sgpr}, v{dst}
          v_lshlrev_b32 v{dst}, 6, v{dst}
          v_and_b32 v7, 3, v1
          v_lshl_add_u32 v{dst}, v7, 4, v{dst}
          v_add_u32 v{dst}, {L_WR}, v{dst}""")
def tr64_reads(g, a):
    for t in range(4):
        for e in range(2):
            r = 64 + 8*t + 4*e
            g(f"ds_read_b64_tr_b16 v[{r}:{r+1}], v{a} offset:{t*2048+e*8}")
            g(f"ds_read_b64_tr_b16 v[{r+2}:{r+3}], v{a} offset:{t*2048+256+e*8}")
def red_write(g):
    g.mask_j4()
    g("""ds_write_b128 v10, v[56:59]
         ds_write_b128 v10, v[60:63] offset:16
         s_mov_b64 exec, -1""")
def red_read(g, n, stride):
    for w in range(n): g(f"ds_read_b64 v[{24+2*w}:{25+2*w}], v11 offset:{w*stride}")
    for w in range(1, n):
        g(f"s_waitcnt lgkmcnt({n-1-w})")
        g(f"v_add_f32 v24, v24, v{24+2*w}\nv_add_f32 v25, v25, v{25+2*w}")

def s5(g):
    g(f"""v_lshrrev_b32 v12, 2, v1
          v_and_b32 v12, 3, v12
          v_and_b32 v8, 3, v1
          v_lshrrev_b32 v7, 1, v12
          v_xor_b32 v8, v8, v7
          v_and_b32 v7, 1, v3
          v_lshl_or_b32 v8, v7, 2, v8
          v_lshlrev_b32 v8, 4, v8
          v_lshl_add_u32 v8, v12, 7, v8
          v_lshl_add_u32 v8, v3, 10, v8
          s_lshr_b32 s13, s3, 2
          s_and_b32 s14, s3, 1
          s_lshl1_add_u32 s13, s13, s14
          s_lshl_b32 s13, s13, 13
          s_add_u32 s13, s13, {L_WR}
          v_add_u32 v8, s13, v8
          v_xor_b32 v9, 0x220, v8
          v_xor_b32 v12, 64, v8
          v_xor_b32 v13, 0x260, v8""")
    g(f"""v_and_b32 v10, 3, v2
          v_lshlrev_b32 v10, 7, v10
          v_lshl_add_u32 v10, v3, 5, v10
          v_and_b32 v7, 4, v2
          v_lshl_add_u32 v10, v7, 2, v10
          v_and_b32 v7, 8, v2
          v_lshl_add_u32 v10, v7, 6, v10
          s_lshl_b32 s13, s3, 10
          s_add_u32 s13, s13, {L_RED}
          v_add_u32 v10, s13, v10
          v_lshlrev_b32 v17, 3, v1
          s_and_b32 s14, s3, 1
          s_lshl_b32 s13, s14, 9
          s_add_u32 s13, s13, {L_RED}
          v_add_u32 v11, s13, v17
          v_lshlrev_b32 v15, 6, v2
          v_lshl_add_u32 v15, v3, 4, v15
          s_and_b32 s13, s73, 1
          s_lshl1_add_u32 s64, s4, s13
          s_lshl3_add_u32 s13, s64, s3
          s_lshl_b32 s65, s13, 11
          s_add_u32 s65, s65, {CP}
          s_lshr_b32 s13, s13, 1
          s_lshl_b32 s66, s13, 10
          s_lshl3_add_u32 s66, s14, s66
          s_add_u32 s66, s66, {CPC}
          s_and_b32 s13, s73, 0xfe
          s_add_u32 s13, s13, s14
          s_lshl4_add_u32 s71, s13, s64
          s_lshl_b32 s71, s71, 9
          s_add_u32 s71, s71, {AP}""")
    lf = g.lab("F5")
    g(f"s_cmp_lg_u32 s3, 5\ns_cbranch_scc1 {lf}")
    hh_addr(g, 20, 21, 16)
    g(f"""s_nop 0
          s_lshl_b32 s70, s73, 13
          s_add_u32 s70, s70, {AP}
          s_add_u32 s71, s70, 4096
          {lf}:""")
    lq = g.lab("LQ")
    g(f"s_mov_b64 s[62:63], -1\ns_cmp_lt_u32 s3, 4\ns_cbranch_scc1 {lq}\ns_waitcnt vmcnt(0)\n{lq}:\ns_barrier")
    g.stamp(5)
    for tt in range(2):
        for tpi in range(2):
            for e in range(2):
                r = 64 + 16*tt + 8*tpi + 4*e
                g(f"ds_read_b64_tr_b16 v[{r}:{r+1}], v{[8,12][tpi]} offset:{tt*4096+e*8}")
                g(f"ds_read_b64_tr_b16 v[{r+2}:{r+3}], v{[9,13][tpi]} offset:{tt*4096+e*8}")
    def cdual(cond):
        lnd = g.lab("ND")
        g(f"""{cond}
              s_cbranch_scc1 {lnd}
              s_cmp_ge_u32 s3, 4
              s_cbranch_scc1 {lnd}""")
        g.mask_j4()
        g(f"""buffer_store_dwordx4 v[24:27], v18, s[56:59], s68 offen sc1
              buffer_store_dword v28, v19, s[56:59], s69 offen sc1
              s_mov_b64 exec, -1
              {lnd}:""")
    l = g.poll_begin(dual=True)
    cdual("s_cmp_lg_u32 s61, 3")
    g("s_mov_b64 exec, s[62:63]")
    for tt in range(2):
        g(f"buffer_load_dwordx4 v[{96+4*tt}:{99+4*tt}], v15, s[52:55], s65 offen offset:{tt*1024} sc1")
    g(f"""buffer_load_dwordx2 v[112:113], v15, s[52:55], s66 offen sc1
          s_mov_b64 exec, -1
          s_waitcnt vmcnt(0) lgkmcnt(0)""")
    for tt in range(2):
        for q in range(4): g.mfma(40+4*q, 64+16*tt+4*q, 96+4*tt, tt == 0)
    for tt in range(2): g.verify(96+4*tt, 112+tt, tt == 0)
    g.poll_end(l, dual=True)
    g.stamp(1)
    g.count(7)
    for k in range(8): g(f"v_add_f32_dpp v{40+k}, v{40+k}, v{40+k} row_ror:8 row_mask:0xf bank_mask:0x3")
    for k in range(8): g(f"v_add_f32_dpp v{40+k}, v{48+k}, v{48+k} row_ror:8 row_mask:0xf bank_mask:0xc")
    for k in range(4): g(f"v_add_f32_dpp v{40+k}, v{40+k}, v{40+k} row_shl:4 row_mask:0xf bank_mask:0x5")
    for k in range(4): g(f"v_add_f32_dpp v{40+k}, v{44+k}, v{44+k} row_shr:4 row_mask:0xf bank_mask:0xa")
    lr = g.lab("R5")
    g(f"""ds_write_b128 v10, v[40:43]
          s_waitcnt lgkmcnt(0)
          s_barrier""")
    cdual("s_cmp_ge_u32 s61, 3")
    g(f"""s_cmp_eq_u32 s3, 5
          s_cbranch_scc1 {lr}
          s_cmp_lt_u32 s3, 6
          s_cbranch_scc1 L_fin""")
    red_read(g, 8, 1024)
    g(f"""v_cvt_pk_bf16_f32 v24, v24, v25
          v_mov_b32 v25, s11
          buffer_store_dwordx2 v[24:25], v17, s[40:43], s71 offen sc1""")
    g.stamp(2)
    g(f"s_branch L_fin\n{lr}:")
    g.unpack(44, 120)
    g("v_mov_b32 v50, s11\nv_mov_b32 v51, s11")
    l = g.poll_begin()
    for x in range(16):
        g(f"buffer_load_dwordx2 v[{64+2*x}:{65+2*x}], v17, s[40:43], s{70+(x>>3)} offen offset:{(x&7)*512} sc1")
    for x in range(16):
        g(f"s_waitcnt vmcnt({15-x})")
        if x == 0:
            g.unpack(46, 64)
            g("v_xor_b32 v55, s11, v65")
        else:
            g.unpack(48, 64+2*x)
            g(f"v_bitop3_b32 v55, v55, v{65+2*x}, v50 bitop3:0xf6")
            g("v_add_f32 v46, v46, v48\nv_add_f32 v47, v47, v49")
    g("v_cmp_ne_u32 s[62:63], 0, v55")
    g.poll_end(l)
    g.stamp(3)
    g.count(8)
    g("v_cvt_pk_bf16_f32 v46, v46, v47")
    g.unpack(48, 46)
    g(f"""v_add_f32 v48, v48, v44
          v_add_f32 v49, v49, v45
          v_cvt_pk_bf16_f32 v46, v48, v49
          buffer_store_dword v46, v20, s[40:43], s67 offen
          v_lshlrev_b32 v52, 16, v46
          v_add_u32_dpp v47, v46, v46 quad_perm:[1,0,3,2] {DPP}
          v_and_b32 v53, 0xffff0000, v46
          v_add_f32 v48, v52, v53
          v_add_u32_dpp v47, v47, v47 quad_perm:[2,3,0,1] {DPP}
          v_add_u32 v47, s11, v47""")
    g.mask("0x11111111")
    g(f"""buffer_store_dword v47, v21, s[40:43], s69 offen
          s_mov_b64 exec, -1""")
    g.inrow("v_add_f32", 48)
    g(f"""v_mul_f32 v54, {f32(1/32)}, v48
          v_sub_f32 v52, v52, v54
          v_sub_f32 v53, v53, v54
          v_mul_f32 v49, v52, v52
          v_fmac_f32 v49, v53, v53""")
    g.inrow("v_add_f32", 49)
    g.mask("0x00010001")
    g(f"""buffer_store_dwordx4 v[48:51], v16, s[40:43], s68 offen
          buffer_store_dwordx4 v[48:51], v16, s[56:59], s68 offen sc1""")
    g.mask("0x11111111")
    g(f"""buffer_store_dword v47, v21, s[56:59], s69 offen sc1
          s_mov_b64 exec, -1
          buffer_store_dword v46, v20, s[56:59], s67 offen sc1""")
    g.stamp(4)
    g("s_branch L_fin")

def s6(g):
    g("L_s6:\ns_barrier")
    g.srd(48, P_W1, 2211840)
    g(f"""v_lshrrev_b32 v12, 2, v1
          v_mul_u32_u24 v12, 3456, v12
          v_and_b32 v7, 3, v1
          v_lshl_add_u32 v12, v7, 4, v12
          s_add_u32 s13, s3, 16
          s_mul_i32 s64, s13, {16*3456}
          s_lshl_b32 s14, s73, 6
          s_add_u32 s64, s64, s14
          s_lshl_b32 s65, s3, 10""")
    for k in range(3):
        g(f"""s_add_u32 m0, s65, {L_WR + 16384 + k*8192}
              s_add_u32 s13, s64, {k*128*3456}
              buffer_load_dwordx4 v12, s[48:51], s13 offen nt lds""")
    g.srd(44, P_W2, 2211840)
    g(f"""v_and_b32 v13, 7, v1
          v_xor_b32 v13, v13, v3
          s_and_b32 s13, s3, 1
          s_lshl_b32 s13, s13, 2
          v_xor_b32 v13, s13, v13
          v_lshrrev_b32 v7, 3, v1
          v_mul_u32_u24 v7, 1280, v7
          v_lshl_add_u32 v13, v13, 4, v7
          s_lshl2_add_u32 s64, s73, s12
          s_mul_i32 s64, s64, {8*1280}
          s_lshr_b32 s13, s3, 2
          s_lshl_b32 s13, s13, 7
          s_add_u32 s64, s64, s13""")
    for k in range(5):
        g(f"""s_add_u32 m0, s65, {L_W2 + k*8192}
              s_add_u32 s13, s64, {k*256}
              buffer_load_dwordx4 v13, s[44:47], s13 offen nt lds""")
    g("s_min_u32 s13, s3, 4\ns_lshl_b32 s64, s13, 7")
    tr64_addr(g, 8, 64)
    g(f"""v_lshlrev_b32 v10, 7, v2
          v_lshl_add_u32 v10, v3, 5, v10
          s_lshl_b32 s13, s3, 9
          s_add_u32 s13, s13, {L_RED}
          v_add_u32 v10, s13, v10
          v_lshlrev_b32 v11, 3, v1
          v_add_u32 v11, {L_RED}, v11
          v_mul_u32_u24 v14, 1280, v2
          v_lshl_add_u32 v14, v3, 4, v14
          v_mul_u32_u24 v15, 320, v2
          v_lshl_add_u32 v15, v3, 4, v15
          s_mul_i32 s65, s4, 5120
          s_lshl_b32 s13, s3, 8
          s_add_u32 s65, s65, s13
          s_add_u32 s65, s65, {HH}
          s_mul_i32 s67, s4, 1280
          s_lshl_b32 s13, s3, 6
          s_add_u32 s66, s67, s13
          s_add_u32 s66, s66, {HHC}
          s_add_u32 s67, s67, {HS}""")
    g(f"""v_lshrrev_b32 v12, 2, v1
          v_and_b32 v12, 3, v12
          v_and_b32 v13, 3, v1
          v_lshrrev_b32 v20, 1, v13
          s_lshl_b32 s13, s12, 1
          v_or_b32 v20, s13, v20
          v_lshrrev_b32 v7, 1, v12
          v_xor_b32 v20, v20, v7
          v_and_b32 v7, 1, v3
          v_lshlrev_b32 v7, 2, v7
          v_xor_b32 v20, v20, v7
          v_lshlrev_b32 v20, 4, v20
          v_lshl_add_u32 v20, v12, 7, v20
          v_lshl_add_u32 v20, v3, 10, v20
          v_and_b32 v7, 1, v13
          v_lshl_add_u32 v20, v7, 3, v20
          s_lshr_b32 s13, s3, 2
          s_lshl_b32 s13, s13, 12
          s_add_u32 s13, s13, {L_W2}
          v_add_u32 v20, s13, v20
          v_xor_b32 v21, 0x220, v20
          v_and_b32 v22, 3, v2
          v_lshlrev_b32 v22, 6, v22
          v_lshl_add_u32 v22, v3, 4, v22
          v_add_u32 v22, {L_UL}, v22
          v_lshlrev_b32 v23, 4, v2
          s_mul_i32 s68, s73, 10240
          s_lshl_b32 s13, s3, 8
          s_add_u32 s68, s68, s13
          s_add_u32 s68, s68, {FP}
          s_add_u32 s69, s68, 4096
          s_add_u32 s70, s68, 8192""")
    for k in range(96, 112): g(f"v_mov_b32 v{k}, 0x3f803f80")
    for k in range(5): g(f"v_mov_b32 v{170+4*k}, s11\nv_mov_b32 v{171+4*k}, s11")
    lfin, lidle, lw2 = g.lab("F6"), g.lab("I6"), g.lab("W6")
    g("s_waitcnt vmcnt(0)\ns_barrier")
    g.stamp(4)
    for k in range(5):
        g(f"ds_read_b64_tr_b16 v[{128+4*k}:{129+4*k}], v20 offset:{k*8192}")
        g(f"ds_read_b64_tr_b16 v[{130+4*k}:{131+4*k}], v21 offset:{k*8192}")
    g(f"""s_cmp_eq_u32 s3, 7
          s_cbranch_scc1 {lfin}
          s_cmp_ge_u32 s3, 5
          s_cbranch_scc1 {lidle}""")
    tr64_reads(g, 8)
    g("s_waitcnt lgkmcnt(0)")
    for t in range(4):
        for e in range(2): g.mfma(56+4*e, 64+8*t+4*e, 96+4*t, t == 0)
    g.nop(6)
    red_write(g)
    g("s_waitcnt lgkmcnt(0)\ns_barrier\ns_barrier")
    g.mask_j4()
    l = g.poll_begin(dual=True)
    for t in range(4):
        g(f"buffer_load_dwordx4 v[{96+4*t}:{99+4*t}], v14, s[52:55], s65 offen offset:{t*64} sc1")
    g(f"""buffer_load_dwordx4 v[112:115], v15, s[52:55], s66 offen sc1
          s_waitcnt vmcnt(0)""")
    for t in range(4): g.verify(96+4*t, 112+t, t == 0)
    g.poll_end(l, dual=True)
    g.unmask()
    g.stamp(1)
    for t in range(4):
        for e in range(2): g.mfma(56+4*e, 64+8*t+4*e, 96+4*t, t == 0)
    g.nop(6)
    red_write(g)
    g(f"""s_waitcnt lgkmcnt(0)
          s_barrier
          s_branch {lw2}
          {lidle}:
          s_barrier
          s_barrier
          s_barrier
          s_branch {lw2}
          {lfin}:
          s_barrier""")
    red_read(g, 5, 512)
    g(f"""v_mov_b32 v40, v24
          v_mov_b32 v41, v25
          s_barrier
          v_mul_u32_u24 v16, 320, v3
          v_lshl_add_u32 v16, v2, 4, v16
          v_mov_b32 v48, 0
          v_mov_b32 v49, 0
          v_mov_b32 v50, s11
          v_cmp_gt_u32 vcc, 4, v2
          v_mov_b32 v42, 0
          v_lshlrev_b32 v17, 2, v1
          v_cndmask_b32 v42, v42, 1.0, vcc
          v_add_u32 v17, {L_UL}, v17""")
    l = g.poll_begin(dual=True)
    g(f"buffer_load_dwordx4 v[44:47], v16, s[52:55], s67 offen sc1")
    g.mask_j4()
    g(f"""buffer_load_dwordx4 v[48:51], v16, s[52:55], s67 offen offset:256 sc1
          s_mov_b64 exec, -1
          s_waitcnt vmcnt(0)""")
    g.acc_ne("s11", "v46", True)
    g.acc_ne("s11", "v50", False)
    g.poll_end(l, dual=True)
    g.stamp(1)
    g("v_add_f32 v52, v44, v48")
    g.inrow("v_add_f32", 52)
    g(f"""v_mul_f32 v52, {f32(1/640)}, v52
          v_mul_f32 v44, {f32(1/32)}, v44
          v_mul_f32 v48, {f32(1/32)}, v48
          v_sub_f32 v44, v44, v52
          v_sub_f32 v48, v48, v52
          v_mul_f32 v48, v48, v42
          v_mul_f32 v44, v44, v44
          v_fmac_f32 v44, v48, v48
          v_add_f32 v53, v45, v49
          v_fmac_f32 v53, {f32(32.0)}, v44""")
    g.inrow("v_add_f32", 53)
    g(f"""v_mov_b32 v54, {f32(1e-5)}
          v_fmac_f32 v54, {f32(1/640)}, v53
          v_rsq_f32 v54, v54
          v_mul_f32 v40, v40, v52
          v_mul_f32 v41, v41, v52
          s_barrier""")
    g.stamp(2)
    red_read(g, 5, 512)
    g(f"""v_sub_f32 v24, v24, v40
          v_sub_f32 v25, v25, v41
          v_mul_f32 v24, v24, v54
          v_mul_f32 v25, v25, v54
          v_mul_f32 v26, {f32(-LOG2E)}, v24
          v_mul_f32 v27, {f32(-LOG2E)}, v25
          v_exp_f32 v26, v26
          v_exp_f32 v27, v27
          s_nop 0
          v_add_f32 v26, 1.0, v26
          v_add_f32 v27, 1.0, v27
          v_rcp_f32 v26, v26
          v_rcp_f32 v27, v27
          s_nop 0
          v_mul_f32 v24, v24, v26
          v_mul_f32 v25, v25, v27
          v_cvt_pk_bf16_f32 v24, v24, v25
          ds_write_b32 v17, v24
          {lw2}:
          s_waitcnt lgkmcnt(0)
          s_barrier
          ds_read_b128 v[24:27], v22
          s_waitcnt lgkmcnt(0)""")
    for k in range(5): g.mfma(148+4*k, 24, 128+4*k, True)
    g.nop(3)
    g("s_mov_b64 exec, 0xffff")
    for k in range(5):
        g(f"""v_cvt_pk_bf16_f32 v{168+4*k}, v{148+4*k}, v{149+4*k}
              v_cvt_pk_bf16_f32 v{169+4*k}, v{150+4*k}, v{151+4*k}
              buffer_store_dwordx4 v[{168+4*k}:{171+4*k}], v23, s[40:43], s{68+(k>>1)} offen offset:{(k&1)*2048} sc1""")
    g.unmask()
    g.stamp(3)
    g("s_branch L_fin")

def s7(g):
    g("L_s7:")
    lh, lj = g.lab("H7"), g.lab("J7")
    g(f"""v_lshlrev_b32 v10, 2, v1
          v_add_u32 v16, {L_RED}, v10
          s_cmp_eq_u32 s3, 7
          s_cbranch_scc1 {lh}
          v_mul_u32_u24 v14, 10240, v3
          v_lshl_add_u32 v14, v2, 4, v14
          s_mul_i32 s65, s3, {8*10240}
          s_lshl_b32 s13, s73, 8
          s_add_u32 s65, s65, s13
          s_add_u32 s65, s65, {FP}
          s_add_u32 s66, s65, {4*10240}
          s_mov_b64 s[74:75], -1
          s_cmp_eq_u32 s3, 6
          s_cselect_b32 s75, 0, s75
          v_mov_b32 v100, 0
          v_mov_b32 v101, 0
          v_mov_b32 v102, s11
          s_lshl_b32 s13, s3, 8
          v_add_u32 v10, s13, v16""")
    l = g.poll_begin()
    g(f"""buffer_load_dwordx4 v[96:99], v14, s[40:43], s65 offen sc1
          s_mov_b64 exec, s[74:75]
          buffer_load_dwordx4 v[100:103], v14, s[40:43], s66 offen sc1
          s_mov_b64 exec, -1
          s_waitcnt vmcnt(0)""")
    g.acc_ne("s11", "v98", True)
    g.acc_ne("s11", "v102", False)
    g.poll_end(l)
    g.stamp(1)
    g.unpack(24, 96); g.unpack(26, 97); g.unpack(28, 100); g.unpack(30, 101)
    for k in range(4): g(f"v_add_f32 v{24+k}, v{24+k}, v{28+k}")
    g(f"""s_nop 0
          v_permlane16_swap_b32 v24, v25
          v_permlane16_swap_b32 v26, v27
          s_nop 0
          v_add_f32 v24, v24, v25
          v_add_f32 v26, v26, v27
          s_nop 1
          v_permlane32_swap_b32 v24, v26
          s_nop 0
          v_add_f32 v24, v24, v26
          ds_write_b32 v10, v24
          s_waitcnt lgkmcnt(0)
          s_barrier
          s_branch L_fin
          {lh}:""")
    g.srd(48, P_OUT, 5120)
    g(f"""v_mul_u32_u24 v13, 1280, v3
          v_and_b32 v8, 8, v2
          v_lshl_add_u32 v11, v8, 1, v13
          v_lshl_add_u32 v13, v2, 1, v13
          v_mul_u32_u24 v12, 320, v3
          v_lshl_add_u32 v12, v8, 1, v12
          s_lshl_b32 s64, s73, 5
          s_mul_i32 s65, s4, 5120
          s_add_u32 s65, s65, s64
          s_add_u32 s65, s65, {HH}
          s_mul_i32 s66, s4, 1280
          s_lshr_b32 s13, s73, 3
          s_lshl_b32 s13, s13, 6
          s_add_u32 s66, s66, s13
          s_and_b32 s13, s73, 1
          s_lshl_b32 s13, s13, 5
          s_add_u32 s66, s66, s13
          s_lshr_b32 s13, s73, 1
          s_and_b32 s13, s13, 3
          s_lshl2_add_u32 s66, s13, s66
          s_add_u32 s66, s66, {HHC}""")
    l = g.poll_begin(dual=True)
    g(f"""buffer_load_dwordx4 v[24:27], v11, s[52:55], s65 offen sc1
          buffer_load_dword v28, v12, s[52:55], s66 offen sc1
          s_waitcnt vmcnt(0)""")
    g.verify(24, 28, True)
    g.poll_end(l, dual=True)
    g(f"""v_and_b32 v8, 2, v1
          v_cmp_ne_u32 vcc, 0, v8
          v_and_b32 v9, 4, v1
          v_cmp_ne_u32 s[74:75], 0, v9
          v_cndmask_b32 v24, v24, v25, vcc
          v_cndmask_b32 v26, v26, v27, vcc
          v_and_b32 v8, 1, v1
          v_cmp_ne_u32 vcc, 0, v8
          v_cndmask_b32 v24, v24, v26, s[74:75]
          v_lshlrev_b32 v25, 16, v24
          v_and_b32 v26, 0xffff0000, v24
          v_cndmask_b32 v30, v25, v26, vcc""")
    g.stamp(1)
    g("s_barrier")
    for w in range(7): g(f"ds_read_b32 v{64+w}, v16 offset:{w*256}")
    g("""s_waitcnt lgkmcnt(4)
         v_add_f32 v64, v64, v65
         v_add_f32 v64, v64, v66
         s_waitcnt lgkmcnt(2)
         v_add_f32 v67, v67, v68
         s_waitcnt lgkmcnt(0)
         v_add_f32 v69, v69, v70
         v_add_f32 v64, v64, v67
         v_add_f32 v64, v64, v69""")
    g.rbf(64)
    g(f"""v_add_f32 v64, v64, v30
          v_cvt_pk_bf16_f32 v64, v64, v64
          buffer_store_short v64, v13, s[48:51], s64 offen
          s_cmp_lg_u32 s73, 0
          s_cbranch_scc1 {lj}
          v_mov_b32 v65, s11
          v_mov_b32 v66, {EPOCH}
          s_mov_b64 exec, 1
          buffer_store_dword v65, v66, s[40:43], 0 offen
          s_mov_b64 exec, -1
          {lj}:""")
    if g.hold < 0:
        l = g.lab("HD")
        g(f"""s_load_dword s80, s[{P_DBG}:{P_DBG+1}], 0 glc
              s_waitcnt lgkmcnt(0)
              s_not_b32 s80, s80
              {l}:
              s_memrealtime s[78:79]
              s_waitcnt lgkmcnt(0)
              s_sub_u32 s13, s78, s80
              s_cmp_lt_u32 s13, {-g.hold}
              s_cbranch_scc1 {l}""")
    g.stamp(2)

def gen(stamps=False, stop=None, W=7, we=5, wsw=16, opl=0, ea=1, npre=4, prio=1, wa=10, gb=28, dbg=0, hold=0, h3=0):
    g = G(stamps or dbg, stop)
    g.dbg = dbg
    g.hold = hold
    g.h3 = h3
    g.we, g.wsw, g.opl, g.ea = we, wsw, opl, ea
    g.npre, g.prio, g.wa, g.gb = npre, prio, wa, gb
    prologue(g); pwave(g); swave(g, W)
    if stop != "A": tail(g)
    g("L_end:")
    return g

def emit(g, path):
    hdr = open("cdna_kernels/" + NAME + ".s.ref").read().split("; Override launch")[0]
    txt = hdr + f"""; @launch grid=(256,1,1) block=(512,1,1) lds={LDS_BYTES}
.amdgcn_target "amdgcn-amd-amdhsa--gfx950"
.text
.globl {NAME}_kernel
.p2align 8
.type {NAME}_kernel,@function
{NAME}_kernel:
""" + "\n".join(g.L) + f"""
    s_endpgm
L_code_end:
.section .rodata,"a"
.p2align 6
.amdhsa_kernel {NAME}_kernel
  .amdhsa_next_free_vgpr 256
  .amdhsa_next_free_sgpr 102
  .amdhsa_accum_offset 256
  .amdhsa_group_segment_fixed_size 0
  .amdhsa_kernarg_size 96
  .amdhsa_user_sgpr_count 2
  .amdhsa_user_sgpr_kernarg_segment_ptr 1
  .amdhsa_system_sgpr_workgroup_id_x 1
.end_amdhsa_kernel
"""
    open(path, "w").write(txt)

if __name__ == "__main__":
    import argparse
    ap = argparse.ArgumentParser()
    ap.add_argument("-o", default="k.s")
    ap.add_argument("--stamps", action="store_true")
    ap.add_argument("--stop", default=None)
    ap.add_argument("-W", type=int, default=7)
    ap.add_argument("--we", type=int, default=5)
    ap.add_argument("--wsw", type=int, default=16)
    ap.add_argument("--opl", type=int, default=0)
    ap.add_argument("--ea", type=int, default=1)
    ap.add_argument("--npre", type=int, default=4)
    ap.add_argument("--prio", type=int, default=1)
    ap.add_argument("--wa", type=int, default=10)
    ap.add_argument("--gb", type=int, default=28)
    ap.add_argument("--dbg", type=int, default=0)
    ap.add_argument("--hold", type=int, default=0)
    ap.add_argument("--h3", type=int, default=0)
    a = ap.parse_args()
    emit(gen(a.stamps, a.stop, a.W, a.we, a.wsw, a.opl, a.ea, a.npre, a.prio, a.wa, a.gb, a.dbg, a.hold, a.h3), a.o)
```

```python
import sys, struct
NAME = "sequential_preLN__compressed_kv_cla__dense_activation_silu__decode"

EPOCH = 0x0
QPC, QP = 0x8000, 0x10000
QAC, QA = 0x30000, 0x40000
CPC = 0x60000
HR = 0x70000
CP = 0x80000
AP = 0xC0000
FP = 0xF0000
DUAL = 0x170000
DLEN = 0xC0000
OP = 0x240000
OBLK = 20480 + 256
STAMP = 0x1000000
STAMP2 = 0x1040000
WS_REC = 0x1100000

L_R2 = 131072
L_WQ = L_R2
L_WUK = 0
L_QA = L_R2
L_XN = L_R2 + 20480
L_P = L_R2 + 25600
L_MX = L_R2 + 29696
L_SM = L_R2 + 16384
L_CC = L_MX + 256
L_FL = L_CC + 1024
LDS_BYTES = 163840
assert L_FL + 64 <= LDS_BYTES
L_WUV = 0
L_WR = 32768
L_W2 = L_WR + 40960
L_RED = L_W2 + 40960
L_UL = L_RED + 8192
F_A, F_S2, F_QA, F_T0, F_T1, F_RD, F_SM, F_S1, F_UK, F_UR, F_MX, F_GO, F_UV, F_G2 = 0, 4, 8, 12, 16, 20, 24, 28, 32, 36, 40, 44, 48, 52

HASH_A, HASH_C = 1664525, 1013904223
SPIN_MAX = 20000
def f32(x): return "0x%08x" % struct.unpack("<I", struct.pack("<f", x))[0]
LOG2E = 1.4426950408889634
SCALE = (128 ** -0.5) * LOG2E
P_X, P_CKV, P_WQ, P_WUK, P_WUV, P_WO, P_BX, P_W1, P_W2, P_OUT, P_DBG, P_WS = 16, 18, 20, 22, 24, 26, 28, 30, 32, 34, 36, 38
DPP = "row_mask:0xf bank_mask:0xf"

class G:
    def __init__(self, stamps=False, stop=None):
        self.L = []; self.stamps = stamps; self.stop = stop; self.nlab = 0
    def __call__(self, s):
        for line in s.strip("\n").split("\n"):
            line = line.strip()
            if line:
                self.L.append("    " + line if not line.endswith(":") else line)
    def lab(self, p="L"):
        self.nlab += 1
        return f"{p}_{self.nlab}"
    def nop(self, n):
        while n > 0:
            k = min(n, 16); self(f"s_nop {k-1}"); n -= k
    def srd(self, d, ptr, size):
        self(f"""s_mov_b32 s{d}, s{ptr}
                 s_and_b32 s{d+1}, s{ptr+1}, 0xffff
                 s_mov_b32 s{d+2}, {size}
                 s_mov_b32 s{d+3}, 0x20000""")
    def ws_srds(self):
        self.srd(40, P_WS, WS_REC)
        self(f"""s_add_u32 s56, s{P_WS}, {DUAL}
                 s_addc_u32 s57, s{P_WS+1}, 0
                 s_and_b32 s57, s57, 0xffff
                 s_mov_b32 s58, {DLEN}
                 s_mov_b32 s59, 0x20000""")
    def stamp(self, idx):
        if self.stamps:
            self(f"s_memrealtime s[{76+2*idx}:{77+2*idx}]")
    def count(self, idx, reg=61):
        if self.stamps and not self.dbg: self(f"s_waitcnt lgkmcnt(0)\ns_add_u32 s{76+2*idx}, s{reg}, 1")
    def flag_add(self, off):
        self(f"""s_mov_b64 exec, 1
                 ds_add_u32 v4, v5 offset:{off}
                 s_mov_b64 exec, -1""")
    def flag_wait(self, off, val):
        l = self.lab("FW"); x = self.lab("FX")
        self(f"""s_mov_b32 s15, 0
                 {l}:
                 ds_read_b32 v6, v4 offset:{off}
                 s_add_u32 s15, s15, 1
                 s_cmp_gt_u32 s15, {SPIN_MAX*8}
                 s_cbranch_scc1 {x}
                 s_waitcnt lgkmcnt(0)
                 v_readfirstlane_b32 s14, v6
                 s_cmp_lt_u32 s14, {val}
                 s_cbranch_scc1 {l}
                 {x}:""")
    def sflag_wait(self, base, off):
        l, x, r = self.lab("SW"), self.lab("SX"), self.lab("SR")
        self(f"""s_mov_b32 s15, 0
                 {l}:
                 s_load_dwordx16 s[16:31], s[{base}:{base+1}], {off} glc
                 s_add_u32 s15, s15, 1
                 s_cmp_gt_u32 s15, {SPIN_MAX}
                 s_cbranch_scc1 {x}
                 s_waitcnt lgkmcnt(0)""")
        for k in range(8):
            self(f"s_cmp_lg_u64 s[{16+2*k}:{17+2*k}], s[100:101]\ns_cbranch_scc1 {l}")
        self(f"{x}:")
    def reload_args(self):
        self("s_waitcnt lgkmcnt(0)\ns_load_dwordx16 s[16:31], s[0:1], 0")
    def chk(self, dst, p):
        self(f"""v_add3_u32 v{dst}, v{p}, v{p+1}, s11
                 v_add3_u32 v{dst}, v{p+2}, v{p+3}, v{dst}""")
    def acc_ne(self, a, b, first):
        if first:
            self(f"v_cmp_ne_u32 s[62:63], {a}, {b}")
        else:
            self(f"""v_cmp_ne_u32 vcc, {a}, {b}
                     s_or_b64 s[62:63], s[62:63], vcc""")
    def verify(self, p, c, first, t=7):
        self.chk(t, p)
        self.acc_ne(f"v{t}", f"v{c}", first)
    def poll_begin(self, dual=False):
        l = self.lab("PL")
        if dual:
            self("""s_mov_b32 s52, s40
                    s_mov_b32 s53, s41
                    s_mov_b32 s54, %d
                    s_mov_b32 s55, 0x20000""" % DLEN)
        self(f"s_mov_b32 s61, 0\n{l}:")
        return l
    def poll_end(self, l, dual=False):
        x = self.lab("PX")
        self(f"""s_cmp_eq_u64 s[62:63], 0
                 s_cbranch_scc1 {x}
                 s_add_u32 s61, s61, 1""")
        if dual:
            self("""s_and_b32 s14, s61, 31
                    s_cmp_eq_u32 s14, 31
                    s_cselect_b32 s52, s56, s40
                    s_cselect_b32 s53, s57, s41""")
        self(f"""s_cmp_lt_u32 s61, {SPIN_MAX}
                 s_cbranch_scc1 {l}
                 {x}:""")
    def xrow(self, op, v, t):
        self(f"""v_mov_b32 v{t}, v{v}
                 s_nop 1
                 v_permlane16_swap_b32 v{v}, v{t}
                 s_nop 0
                 {op} v{v}, v{v}, v{t}
                 v_mov_b32 v{t}, v{v}
                 s_nop 1
                 v_permlane32_swap_b32 v{v}, v{t}
                 s_nop 0
                 {op} v{v}, v{v}, v{t}""")
    def inrow(self, op, v, rors=(8, 4, 2, 1)):
        for r in rors:
            self(f"s_nop 1\n{op}_dpp v{v}, v{v}, v{v} row_ror:{r} {DPP}")
    def wave_sum(self, v, t):
        self.inrow("v_add_f32", v); self.xrow("v_add_f32", v, t)
    def rbf(self, v):
        self(f"v_cvt_pk_bf16_f32 v{v}, v{v}, v{v}\nv_lshlrev_b32 v{v}, 16, v{v}")
    def unpack(self, dst, src):
        self(f"v_lshlrev_b32 v{dst}, 16, v{src}\nv_and_b32 v{dst+1}, 0xffff0000, v{src}")
    def mfma(self, d, a, b, first):
        c = "0" if first else f"v[{d}:{d+3}]"
        self(f"v_mfma_f32_16x16x32_bf16 v[{d}:{d+3}], v[{a}:{a+3}], v[{b}:{b+3}], {c}")
    def pack8(self, p, d):
        for k in range(4):
            self(f"v_cvt_pk_bf16_f32 v{p+k}, v{d+2*k}, v{d+2*k+1}")
    def mask(self, m):
        self(f"s_mov_b32 exec_lo, {m}\ns_mov_b32 exec_hi, {m}")
    def mask_j4(self): self.mask("0x000f000f")
    def unmask(self): self("s_mov_b64 exec, -1")
    def dump(self, base):
        if self.dbg:
            g = self
            g("s_waitcnt lgkmcnt(0)")
            if base == STAMP2:
                lb = g.lab("DB")
                g(f"""v_mov_b32 v239, 0
                      s_not_b32 s13, s76
                      v_writelane_b32 v239, s13, 0
                      v_writelane_b32 v239, s76, 1
                      s_cmp_lt_u32 s3, 4
                      s_cbranch_scc1 {lb}""")
                for lane, k in ((2, 2), (3, 4), (4, 6), (5, 7), (6, 8)):
                    g(f"v_writelane_b32 v239, s{76+2*k}, {lane}")
                g(f"{lb}:")
                for k in range(1, 12): g(f"s_mov_b32 s{76+2*k}, 0")
            else:
                l0, l1, le = g.lab("DB"), g.lab("DB"), g.lab("DB")
                for lane, k in ((7, 9), (8, 10), (9, 11)):
                    g(f"v_writelane_b32 v239, s{76+2*k}, {lane}")
                g(f"""s_cmp_eq_u32 s72, 0
                      s_cbranch_scc1 {l0}
                      s_cmp_eq_u32 s72, 1
                      s_cbranch_scc1 {l1}
                      v_writelane_b32 v239, s78, 14
                      v_writelane_b32 v239, s80, 15
                      s_branch {le}
                      {l0}:
                      v_writelane_b32 v239, s78, 10
                      v_writelane_b32 v239, s82, 11
                      s_branch {le}
                      {l1}:
                      v_writelane_b32 v239, s78, 12
                      v_writelane_b32 v239, s82, 13
                      {le}:""")
                g.srd(44, P_DBG, 256)
                lw, lw2, lz = g.lab("DW"), g.lab("DW"), g.lab("DZ")
                g(f"""{lw}:
                     s_sleep 100
                     s_memrealtime s[78:79]
                     s_waitcnt lgkmcnt(0)
                     s_sub_u32 s13, s78, s76
                     s_cmp_lt_u32 s13, 2600
                     s_cbranch_scc1 {lw}
                     v_lshlrev_b32 v238, 2, v1
                     s_mov_b64 exec, 0xffff
                     buffer_atomic_umax v239, v238, s[44:47], 0 offen sc1
                     s_add_u32 s13, s2, s3
                     s_cmp_lg_u32 s13, 0
                     s_cbranch_scc1 {lz}
                     {lw2}:
                     s_sleep 10
                     s_memrealtime s[78:79]
                     s_waitcnt lgkmcnt(0)
                     s_sub_u32 s13, s78, s76
                     s_cmp_lt_u32 s13, 7000
                     s_cbranch_scc1 {lw2}
                     s_load_dword s80, s[{P_DBG}:{P_DBG+1}], {4*g.dbg} glc
                     s_waitcnt lgkmcnt(0)
                     {lw2}_b:
                     s_memrealtime s[78:79]
                     s_waitcnt lgkmcnt(0)
                     s_sub_u32 s13, s78, s80
                     s_cmp_lt_u32 s13, 8000
                     s_cbranch_scc1 {lw2}_b
                     {lz}:""")
            return
        if self.stamps:
            self("s_waitcnt lgkmcnt(0)")
            for k in range(12):
                self(f"v_mov_b32 v{240+k}, s{76+2*k}")
            self(f"""s_lshl_b32 s13, s2, 3
                  s_add_u32 s13, s13, s3
                  s_lshl_b32 s13, s13, 6
                  s_add_u32 s13, s13, {base}
                  v_mov_b32 v7, 0
                  s_mov_b64 exec, 1
                  buffer_store_dwordx4 v[240:243], v7, s[40:43], s13 offen
                  buffer_store_dwordx4 v[244:247], v7, s[40:43], s13 offen offset:16
                  buffer_store_dwordx4 v[248:251], v7, s[40:43], s13 offen offset:32
                  s_mov_b64 exec, -1""")
            for k in range(1, 12): self(f"s_mov_b32 s{76+2*k}, 0")
    def finish(self):
        if self.hold < 0:
            self("s_endpgm"); return
        if self.hold:
            l = self.lab("HD")
            self(f"""{l}:
                  s_memrealtime s[78:79]
                  s_waitcnt lgkmcnt(0)
                  s_sub_u32 s13, s78, s76
                  s_cmp_lt_u32 s13, {self.hold}
                  s_cbranch_scc1 {l}
                  s_endpgm""")
            return
        self.dump(STAMP)
        self("s_endpgm")

L_ML = L_FL + 64
L_QC = L_MX
def tag_load(g): g(f"s_load_dword s11, s[{P_WS}:{P_WS+1}], {EPOCH}")
def tag_fin(g):
    g(f"""s_waitcnt lgkmcnt(0)
          s_mul_i32 s11, s11, {HASH_A}
          s_add_u32 s11, s11, {HASH_C}""")

def prologue(g):
    g(f"""s_cmp_ge_u32 s2, 256
          s_cbranch_scc1 L_end
          s_load_dwordx16 s[16:31], s[0:1], 0
          s_load_dwordx8 s[32:39], s[0:1], 64
          s_getpc_b64 s[48:49]
          L_pc:
          s_and_b32 s49, s49, 0xffff
          s_mov_b32 s50, L_code_end-L_pc
          s_mov_b32 s51, 0x20000
          v_lshlrev_b32 v1, 4, v0
          s_and_b32 s13, s2, 24
          s_lshl_b32 s13, s13, 10
          buffer_load_dwordx4 v[252:255], v1, s[48:51], s13 offen""")
    if g.stamps:
        for k in range(12): g(f"s_mov_b32 s{76+2*k}, 0")
    g.stamp(0)
    if g.hold: g("s_memrealtime s[76:77]")
    g(f"""v_lshrrev_b32 v2, 6, v0
          v_and_b32 v1, 63, v0
          s_and_b32 s4, s2, 7
          v_readfirstlane_b32 s3, v2
          s_lshr_b32 s5, s2, 3
          s_lshr_b32 s6, s5, 3
          s_lshl2_add_u32 s6, s4, s6
          s_and_b32 s7, s5, 7
          v_lshrrev_b32 v3, 4, v1
          v_and_b32 v9, 7, v1
          v_xor_b32 v9, v9, v3
          v_and_b32 v2, 1, v2
          v_lshlrev_b32 v2, 2, v2
          v_xor_b32 v9, v2, v9
          v_lshlrev_b32 v9, 4, v9
          v_lshrrev_b32 v10, 3, v1
          v_lshl_add_u32 v9, v10, 13, v9
          s_and_b32 s12, s3, 3
          v_and_b32 v2, 15, v1
          s_and_b32 s9, s5, 1
          s_cmp_ge_u32 s3, 4
          s_cbranch_scc1 L_pwave""")

def ids2(g):
    g(f"""s_lshr_b32 s8, s4, 1
          s_and_b32 s10, s4, 1
          s_lshl_b32 s10, s10, 4
          s_lshr_b32 s13, s5, 1
          s_add_u32 s10, s10, s13
          v_mov_b32 v4, {L_FL}
          v_mov_b32 v5, 1
          v_lshlrev_b32 v14, 4, v2
          v_lshl_add_u32 v14, v3, 2, v14
          v_lshlrev_b32 v15, 2, v14""")

def role_decode(g):
    l6, l7, ld, lhi = g.lab("R6"), g.lab("R7"), g.lab("RD"), g.lab("RH")
    g(f"""s_mov_b32 s72, 0
          s_mov_b32 s73, s5
          s_cmp_lt_u32 s5, 20
          s_cbranch_scc1 {ld}
          s_sub_u32 s13, s5, 20
          s_cmp_ge_u32 s4, 2
          s_cbranch_scc1 {lhi}
          s_lshl3_add_u32 s73, s4, s13
          s_cmp_lt_u32 s13, 8
          s_cbranch_scc1 {l7}
          s_lshl2_add_u32 s73, s4, s13
          s_sub_u32 s73, s73, 8
          s_branch {l6}
          {lhi}:
          s_lshl2_add_u32 s73, s4, s13
          s_add_u32 s73, s73, 8
          s_cmp_lt_u32 s13, 4
          s_cbranch_scc1 {l7}
          s_lshl3_add_u32 s73, s4, s13
          s_sub_u32 s73, s73, 12
          {l6}:
          s_mov_b32 s72, 1
          s_cmp_lt_u32 s73, 54
          s_cbranch_scc1 {ld}
          s_mov_b32 s72, 3
          s_branch {ld}
          {l7}:
          s_mov_b32 s72, 2
          {ld}:""")

def tr_lane(g, dst, t1, t2, swap=False):
    g(f"""v_lshrrev_b32 v{t1}, 2, v1
          v_and_b32 v{t1}, 3, v{t1}
          v_and_b32 v{t2}, 1, v3
          v_lshlrev_b32 v{t2}, 2, v{t2}""")
    if swap: g(f"v_or_b32 v{t1}, v{t1}, v{t2}")
    g(f"""v_and_b32 v{dst}, 3, v1
          v_xor_b32 v{dst}, v{dst}, v{t2}
          v_lshrrev_b32 v{t2}, 1, v{t1}
          v_xor_b32 v{dst}, v{dst}, v{t2}
          v_lshlrev_b32 v{dst}, 4, v{dst}
          v_lshl_add_u32 v{dst}, v{t1}, 7, v{dst}
          v_lshl_add_u32 v{dst}, v3, 10, v{dst}""")

def swave_front(g):
    g(f"""s_lshr_b32 s14, s7, 1
          s_mul_i32 s64, s14, 160
          s_lshl3_add_u32 s64, s12, s64
          s_lshl_b32 s64, s64, 13
          s_lshl_b32 s13, s6, 8
          s_add_u32 s64, s64, s13
          s_lshl_b32 s71, s9, 7
          s_add_u32 s64, s64, s71
          s_lshl_b32 s68, s14, 7
          s_lshl3_add_u32 s68, s12, s68
          s_lshl_b32 s68, s68, 13
          s_add_u32 s68, s68, s13
          s_lshl_b32 s67, s12, 10
          v_mov_b32 v6, 0
          v_lshlrev_b32 v13, 2, v1
          v_add_u32 v10, {L_FL}, v13
          s_mov_b64 exec, 0xffff
          ds_write_b32 v10, v6
          s_mov_b64 exec, -1
          s_mov_b32 s50, 5242880
          s_mov_b32 s70, s9
          s_mov_b32 s71, 0
          s_mov_b64 vcc, s[70:71]
          s_waitcnt lgkmcnt(0)
          s_mov_b32 s48, s{P_WQ}
          s_and_b32 s49, s{P_WQ+1}, 0xffff
          s_barrier""")
    for k in range(5):
        g(f"""s_add_u32 m0, s67, {L_WQ + k*4096}
              s_add_u32 s13, s64, {k*262144}
              buffer_load_dwordx4 v9, s[48:51], s13 offen nt lds""")
    ids2(g)
    g.srd(48, P_WUK, 4194304)
    g(f"""s_lshl_b32 s69, s12, 11
          s_cbranch_vccnz L_s_setup""")
    for k in range(g.wa - 5):
        kk, ch = k >> 1, k & 1
        g(f"""s_add_u32 m0, s69, {L_WUK + kk*8192 + ch*1024}
              s_add_u32 s13, s68, {kk*262144 + ch*128}
              buffer_load_dwordx4 v9, s[48:51], s13 offen nt lds""")
    g("L_s_setup:")
    tag_load(g)
    g.srd(44, P_CKV, 16777216)
    g.ws_srds()
    g(f"""s_lshl_b32 s65, s12, 15
          v_lshrrev_b32 v10, 3, v1
          v_lshrrev_b32 v11, 1, v10
          v_and_b32 v11, 1, v11
          v_and_b32 v12, 4, v10
          v_or_b32 v11, v11, v12
          v_and_b32 v12, 7, v1
          v_xor_b32 v11, v11, v12
          v_lshlrev_b32 v11, 4, v11
          v_lshl_add_u32 v7, v10, 10, v11
          v_xor_b32 v8, 32, v7
          v_add_u32 v8, 8192, v8
          s_lshl_b32 s64, s8, 22
          s_lshl_b32 s13, s10, 17
          s_add_u32 s64, s64, s13
          s_add_u32 s64, s64, s65
          v_lshrrev_b32 v11, 1, v2
          v_and_b32 v11, 1, v11
          v_lshrrev_b32 v12, 3, v2
          v_lshl_or_b32 v11, v12, 1, v11
          v_and_b32 v10, 4, v2
          v_or_b32 v11, v11, v10
          v_xor_b32 v11, v11, v3
          v_lshlrev_b32 v11, 4, v11
          v_and_b32 v10, 7, v2
          v_lshl_add_u32 v11, v10, 7, v11
          v_lshl_add_u32 v11, v12, 10, v11
          v_add_u32 v11, s65, v11
          v_xor_b32 v12, 64, v11""")
    g.stamp(1)
    g("s_cbranch_vccnz L_s_ckv")
    fa = False
    for k in range(g.wa - 5, 8):
        kk, ch = k >> 1, k & 1
        g(f"s_waitcnt vmcnt({g.wa-1})")
        if not fa and 5 + k - g.wa >= 4:
            g.flag_add(F_A); fa = True
        g(f"""s_add_u32 m0, s69, {L_WUK + kk*8192 + ch*1024}
              s_add_u32 s13, s68, {kk*262144 + ch*128}
              buffer_load_dwordx4 v9, s[48:51], s13 offen nt lds""")
    if not fa:
        g("s_waitcnt vmcnt(8)")
        g.flag_add(F_A)
    g(f"""v_add_u32 v16, {L_QC}, v13
          v_lshlrev_b32 v17, 13, v3
          v_lshl_add_u32 v17, v2, 2, v17
          s_lshr_b32 s13, s7, 1
          s_lshl2_add_u32 s69, s6, s13
          s_lshl_b32 s69, s69, 6
          s_add_u32 s69, s69, {QAC}
          s_waitcnt vmcnt(0)""")
    g.flag_add(F_UK)
    g.flag_wait(F_GO, 4)
    g(f"""s_cmp_lg_u32 s12, 0
          s_cbranch_scc1 L_s_ckv
          ds_read_b32 v18, v16
          s_waitcnt lgkmcnt(0)
          buffer_store_dword v18, v17, s[40:43], s69 offen sc1
          s_branch L_s_ckv""")

def pwave(g):
    g(f"""L_pwave:
          v_lshlrev_b32 v7, 4, v1
          v_lshlrev_b32 v8, 2, v1
          s_mul_i32 s64, s12, 1280
          s_mov_b32 s46, 5120
          s_mov_b32 s47, 0x20000
          {"s_setprio 3" if g.prio else ""}
          s_waitcnt lgkmcnt(0)
          s_mov_b32 s44, s{P_X}
          s_and_b32 s45, s{P_X+1}, 0xffff
          buffer_load_dwordx4 v[16:19], v7, s[44:47], s64 offen
          buffer_load_dword v20, v8, s[44:47], s64 offen offset:1024
          s_barrier""")
    tag_load(g)
    g.ws_srds()
    ids2(g)
    g(f"""s_lshl_b32 s68, s6, 10
          s_lshr_b32 s69, s7, 1
          s_and_b32 s14, s12, 1
          s_lshl1_add_u32 s14, s9, s14
          s_lshl2_add_u32 s14, s14, s69
          s_lshl_b32 s14, s14, 6
          s_add_u32 s66, s68, s14
          s_lshl_b32 s65, s66, 2
          s_lshl_b32 s67, s68, 2
          s_add_u32 s65, s65, {QP}
          s_add_u32 s66, s66, {QPC}
          s_add_u32 s67, s67, {QP}
          s_add_u32 s68, s68, {QPC}
          s_cmp_lt_u32 s12, 2
          s_cbranch_scc1 L_p_x0""")
    g.mask_j4()
    g(f"""buffer_load_dword v250, v15, s[40:43], s65 offen sc1
          buffer_load_dword v251, v14, s[40:43], s66 offen sc1
          s_mov_b64 exec, -1
          s_waitcnt vmcnt(2)
          s_branch L_p_x1
          L_p_x0:
          s_waitcnt vmcnt(0)
          L_p_x1:""")
    g.stamp(1)
    for k in range(5): g.unpack(24+2*k, 16+k)
    g(f"""v_add_f32 v34, v24, v25
          v_add_f32 v35, v26, v27
          v_add_f32 v36, v28, v29
          v_add_f32 v37, v30, v31
          v_add_f32 v38, v32, v33
          v_add_f32 v34, v34, v35
          v_add_f32 v36, v36, v37
          v_add_f32 v34, v34, v38
          v_add_f32 v34, v34, v36""")
    g.wave_sum(34, 35)
    g(f"v_mul_f32 v34, {f32(1/640)}, v34")
    g("v_sub_f32 v36, v24, v34\nv_mul_f32 v35, v36, v36")
    for k in range(1, 10):
        g(f"v_sub_f32 v36, v{24+k}, v34\nv_fmac_f32 v35, v36, v36")
    g.wave_sum(35, 36)
    g(f"v_mul_f32 v35, {f32(1/640)}, v35")
    g.rbf(35)
    g(f"v_add_f32 v35, {f32(1e-5)}, v35")
    g.rbf(35)
    g("v_sqrt_f32 v35, v35")
    g.rbf(34)
    g.rbf(35)
    g("v_rcp_f32 v35, v35")
    for k in range(10): g(f"v_sub_f32 v{24+k}, v{24+k}, v34")
    for k in range(5): g(f"v_cvt_pk_bf16_f32 v{16+k}, v{24+2*k}, v{25+2*k}")
    for k in range(5): g.unpack(24+2*k, 16+k)
    for k in range(10): g(f"v_mul_f32 v{24+k}, v{24+k}, v35")
    for k in range(5): g(f"v_cvt_pk_bf16_f32 v{16+k}, v{24+2*k}, v{25+2*k}")
    g(f"""s_add_u32 s13, s64, {L_XN}
          v_add_u32 v7, s13, v7
          v_add_u32 v8, s13, v8
          ds_write_b128 v7, v[16:19]
          ds_write_b32 v8, v20 offset:1024""")
    g.flag_add(F_A)
    tr_lane(g, 11, 10, 12)
    g(f"""s_and_b32 s13, s12, 1
          s_lshl_b32 s13, s13, 6
          v_xor_b32 v11, s13, v11
          v_add_u32 v11, {L_WQ}, v11
          v_xor_b32 v12, 0x220, v11
          v_and_b32 v13, 3, v2
          v_mul_u32_u24 v13, 1280, v13
          v_lshl_add_u32 v13, v3, 4, v13
          s_mul_i32 s13, s69, 320
          s_add_u32 s13, s13, {L_XN}
          v_add_u32 v13, s13, v13""")
    g(f"""v_lshlrev_b32 v24, 15, v2
          v_lshl_add_u32 v24, v3, 4, v24
          v_lshlrev_b32 v34, 6, v2
          v_lshl_add_u32 v34, v3, 2, v34
          s_lshl_b32 s13, s12, 4
          s_add_u32 s13, s13, {L_QC}
          v_add_u32 v34, s13, v34
          v_and_b32 v7, 4, v2
          s_lshl2_add_u32 s13, s69, s12
          s_lshl_b32 s13, s13, 6
          s_lshl_b32 s70, s6, 10
          s_add_u32 s70, s70, s13
          s_add_u32 s70, s70, {QA}
          v_lshrrev_b32 v26, 2, v2
          v_and_b32 v27, 3, v2
          v_lshrrev_b32 v25, 1, v27
          v_xor_b32 v25, v25, v3
          v_xor_b32 v25, v25, v7
          v_lshlrev_b32 v25, 4, v25
          v_lshl_add_u32 v25, v27, 7, v25
          v_lshl_add_u32 v25, v26, 11, v25
          s_lshl_b32 s13, s12, 13
          s_add_u32 s13, s13, {L_WUK}
          v_add_u32 v25, s13, v25
          v_xor_b32 v26, 64, v25
          v_xor_b32 v27, 0x220, v25
          v_xor_b32 v28, 0x260, v25
          s_mov_b32 s52, s40
          s_mov_b32 s53, s41
          s_mov_b32 s54, {DLEN}
          s_mov_b32 s55, 0x20000
          s_mov_b32 s61, 0""")
    tag_fin(g)
    g("s_cmp_ge_u32 s12, 2\ns_cbranch_scc1 L_p_nos1")
    g.flag_wait(F_A, 8)
    g.stamp(2)
    def s1_reads(t):
        g(f"ds_read_b128 v[{36+4*t}:{39+4*t}], v13 offset:{t*64}")
        for e in range(2):
            r = 96 + 8*t + 4*e
            g(f"ds_read_b64_tr_b16 v[{r}:{r+1}], v11 offset:{t*4096+e*8}")
            g(f"ds_read_b64_tr_b16 v[{r+2}:{r+3}], v12 offset:{t*4096+e*8}")
    s1_reads(0); s1_reads(1); s1_reads(2)
    for t in range(5):
        rem = min(5, t+3) - (t+1)
        g(f"s_waitcnt lgkmcnt({rem*5})")
        for e in range(2): g.mfma(56+4*e, 96+8*t+4*e, 36+4*t, t == 0)
        if t + 3 < 5: s1_reads(t+3)
    g.nop(6)
    g.mask_j4()
    g.pack8(16, 56)
    g.chk(20, 16)
    g(f"""buffer_store_dwordx4 v[16:19], v15, s[40:43], s65 offen
          buffer_store_dword v20, v14, s[40:43], s66 offen""")
    g.flag_add(F_S1)
    g.stamp(3)
    g("L_p_nos1:")
    def qdual():
        lq = g.lab("QD")
        g(f"s_cmp_ge_u32 s12, 2\ns_cbranch_scc1 {lq}")
        g.mask_j4()
        g(f"""buffer_store_dwordx4 v[16:19], v15, s[56:59], s65 offen sc1
              buffer_store_dword v20, v14, s[56:59], s66 offen sc1
              s_mov_b64 exec, -1
              {lq}:""")
    g("s_cmp_lg_u32 s9, 0\ns_cbranch_scc1 L_p_qd")
    g.flag_wait(F_UK, 4)
    g.stamp(9)
    for e in range(2):
        for t in range(4):
            r = 64 + 16*e + 4*t
            g(f"ds_read_b128 v[{r}:{r+3}], v{25+2*e+(t&1)} offset:{(t>>1)*1024}")
    l, lnd = g.lab("PL"), g.lab("ND")
    g(f"""s_mov_b64 s[62:63], -1
          {l}:
          s_cmp_lg_u32 s61, 3
          s_cbranch_scc1 {lnd}""")
    qdual()
    g(f"{lnd}:\ns_mov_b64 exec, s[62:63]")
    for t in range(4):
        g(f"buffer_load_dwordx4 v[{36+4*t}:{39+4*t}], v15, s[52:55], s67 offen offset:{t*1024} sc1")
    for t in range(4):
        g(f"buffer_load_dword v{52+t}, v14, s[52:55], s68 offen offset:{t*256} sc1")
    g("s_mov_b64 exec, -1\ns_waitcnt vmcnt(4) lgkmcnt(0)")
    for t in range(4):
        for e in range(2): g.mfma(56+4*e, 64+16*e+4*t, 36+4*t, t == 0)
    g("s_waitcnt vmcnt(0)")
    for t in range(4): g.verify(36+4*t, 52+t, t == 0)
    g.poll_end(l, dual=True)
    g.count(10)
    for r in (4, 8):
        for k in range(8): g(f"v_add_f32_dpp v{56+k}, v{56+k}, v{56+k} row_ror:{r} {DPP}")
    g.mask_j4()
    g.pack8(28, 56)
    g("buffer_store_dwordx4 v[28:31], v24, s[40:43], s70 offen sc1")
    g.chk(32, 28)
    g("ds_write_b32 v34, v32")
    g.flag_add(F_GO)
    g.stamp(4)
    lnd = g.lab("ND")
    g(f"s_cmp_ge_u32 s61, 3\ns_cbranch_scc1 {lnd}\nL_p_qd:")
    qdual()
    g(f"{lnd}:\ns_nop 1")
    g(f"""v_lshrrev_b32 v10, 2, v1
          v_and_b32 v10, 3, v10
          v_and_b32 v11, 3, v1
          v_lshrrev_b32 v12, 1, v10
          v_and_b32 v13, 2, v3
          v_or_b32 v12, v12, v13
          v_and_b32 v13, 1, v3
          v_lshl_or_b32 v12, v13, 2, v12
          v_xor_b32 v12, v12, v11
          v_lshlrev_b32 v12, 4, v12
          v_lshl_or_b32 v13, v13, 2, v10
          v_lshl_add_u32 v12, v13, 7, v12
          v_lshrrev_b32 v13, 1, v3
          v_lshl_add_u32 v12, v13, 10, v12
          v_and_b32 v13, 1, v11
          v_lshl_add_u32 v12, v13, 3, v12
          s_lshl_b32 s13, s12, 12
          v_add_u32 v20, s13, v12
          v_xor_b32 v21, 8, v20
          v_xor_b32 v22, 64, v20
          v_xor_b32 v23, 0x48, v20
          v_add_u32 v24, 0x10000, v20
          v_add_u32 v25, 0x10000, v21
          v_add_u32 v26, 0x10000, v22
          v_add_u32 v27, 0x10000, v23
          v_lshlrev_b32 v28, 4, v1
          v_lshlrev_b32 v33, 2, v1
          s_lshl2_add_u32 s13, s9, s12
          s_lshl3_add_u32 s13, s8, s13
          s_lshl_b32 s65, s13, 12
          s_add_u32 s65, s65, {QA}
          s_lshl_b32 s66, s13, 10
          s_add_u32 s66, s66, {QAC}""")
    for n in range(4):
        g(f"""s_lshl2_add_u32 s13, s12, {n}
              s_lshl_b32 s14, s13, 4
              v_xor_b32 v{29+n}, s14, v28
              s_lshl_b32 s13, s13, 10
              s_add_u32 s13, s13, {L_QA}
              v_add_u32 v{29+n}, s13, v{29+n}""")
    role_decode(g)
    def gather_loads():
        for n in range(4):
            g(f"buffer_load_dwordx4 v[{64+4*n}:{67+4*n}], v28, s[40:43], s65 offen offset:{n*1024} sc1")
        for n in range(4):
            g(f"buffer_load_dword v{80+n}, v33, s[40:43], s66 offen offset:{n*256} sc1")
    def pv_pre(tile):
        for sw in range(4):
            for tp in range(4):
                for e in range(2):
                    r = 128 + ((tp*2+e)*4 + sw)*4 + 2*tile
                    a = 20 + (tp & 1)*2 + e + (4 if sw >= 2 else 0)
                    off = (sw & 1)*32768 + tile*16384 + (tp >> 1)*2048
                    g(f"ds_read_b64_tr_b16 v[{r}:{r+1}], v{a} offset:{off}")
    lg2 = g.lab("GB")
    g.flag_wait(F_G2, 4)
    g.stamp(5)
    gather_loads()
    g.flag_wait(F_T0, 4)
    pv_pre(0)
    g("s_waitcnt lgkmcnt(0)")
    g.flag_add(F_RD)
    l = g.lab("PL")
    g(f"""s_mov_b32 s61, 0
          s_branch {lg2}
          {l}:
          s_mov_b64 exec, s[62:63]""")
    gather_loads()
    g(f"s_mov_b64 exec, -1\n{lg2}:\ns_waitcnt vmcnt(0)")
    for n in range(4): g.verify(64+4*n, 80+n, n == 0)
    g.poll_end(l)
    g.count(11)
    g.flag_wait(F_S1, 2)
    for n in range(4): g(f"ds_write_b128 v{29+n}, v[{64+4*n}:{67+4*n}]")
    g.flag_add(F_QA)
    if g.prio: g("s_setprio 0")
    g.stamp(6)
    g(f"""v_lshlrev_b32 v29, {7 if g.opl else 6}, v2
          v_lshl_add_u32 v29, v3, 4, v29
          s_lshl2_add_u32 s65, s9, s8
          s_lshl_b32 s65, s65, 5
          s_add_u32 s65, s65, s10
          s_mul_i32 s65, s65, {OBLK}
          s_add_u32 s65, s65, {OP}
          s_lshl_b32 s13, s12, 10
          s_add_u32 s67, s65, s13
          s_add_u32 s67, s67, 16384
          s_lshl_b32 s13, s12, 12
          s_add_u32 s65, s65, s13
          v_add_u32 v31, {L_P}, v28
          v_lshlrev_b32 v30, 4, v2
          v_add_u32 v30, {L_MX}, v30
          v_add_u32 v32, {L_SM}, v15
          s_mov_b32 s60, {f32(SCALE)}""")
    g.srd(48, P_WUV, 4194304)
    g(f"""s_lshl_b32 s69, s7, 6
          s_lshl3_add_u32 s69, s12, s69
          s_lshl_b32 s69, s69, 13
          s_lshl_b32 s13, s6, 8
          s_add_u32 s69, s69, s13
          s_lshl_b32 s70, s12, 10""")
    g.flag_wait(F_RD, 4)
    g.flag_wait(F_S2, 4)
    for k in range(2):
        for ch in range(2):
            g(f"""s_add_u32 m0, s70, {L_WUV + ch*8192 + k*4096}
                  s_add_u32 s13, s69, {k*262144 + ch*128}
                  buffer_load_dwordx4 v9, s[48:51], s13 offen nt lds""")
    lpt = g.lab("PT")
    g(f"""s_cmp_lg_u32 s72, 0
          s_cbranch_scc1 {lpt}
          v_lshlrev_b32 v116, 2, v2
          s_mul_i32 s13, s12, 1280
          s_lshl_b32 s14, s73, 6
          s_add_u32 s13, s13, s14
          buffer_load_dword v120, v116, s[44:47], s13 offen
          s_mul_i32 s13, s4, 20
          s_add_u32 s13, s13, s73
          s_mul_i32 s13, s13, 384
          s_lshl_b32 s14, s12, 7
          s_min_u32 s14, s14, 256
          s_add_u32 s13, s13, s14
          s_add_u32 s13, s13, {HR}
          buffer_load_dword v121, v116, s[40:43], s13 offen sc1
          {lpt}:""")
    early_setup(g)
    if g.e0:
        early_dma(g)
        g("""s_cmp_eq_u32 s72, 0
             s_cselect_b32 s13, 16384, 0
             s_add_u32 s71, s71, s13""")
    g.flag_wait(F_T1, 4)
    pv_pre(1)
    early_dma(g)
    g("s_waitcnt lgkmcnt(0)\ns_barrier")
    g.stamp(7)
    for sw in range(4):
        g(f"ds_read_b128 v[{36+4*sw}:{39+4*sw}], v31 offset:{sw*1024}")
    g("ds_read_b128 v[52:55], v30\nds_read_b128 v[56:59], v32")
    def pv_out(tp):
        p = 96 + 4*tp
        g.pack8(p, 64+8*tp)
        g(f"buffer_store_dwordx4 v[{p}:{p+3}], v29, s[40:43], s65 offen offset:{((tp>>1)*2048+(tp&1)*64) if g.opl else tp*1024} sc1")
        c = 114 + (tp >> 1)
        g(f"v_add3_u32 v{c}, v{p}, v{p+1}, {'v60' if tp % 2 == 0 else f'v{c}'}\nv_add3_u32 v{c}, v{p+2}, v{p+3}, v{c}")
    for tp in range(4):
        for sw in range(4):
            if tp == 0: g(f"s_waitcnt lgkmcnt({5-sw})")
            for e in range(2): g.mfma(64+8*tp+4*e, 128+((tp*2+e)*4+sw)*4, 36+4*sw, sw == 0)
            if tp == 1 and sw == 0:
                g("""s_waitcnt lgkmcnt(0)
                     v_max3_f32 v112, v52, v53, v54
                     v_add_f32 v56, v56, v57
                     v_add_f32 v58, v58, v59
                     v_max_f32 v112, v112, v55
                     v_add_f32 v113, v56, v58""")
            if tp == 1 and sw == 1:
                g("""v_mul_f32 v112, s60, v112
                     v_mov_b32 v56, v113
                     s_nop 1
                     v_permlane16_swap_b32 v113, v56""")
            if tp == 1 and sw == 2:
                g("""v_add_f32 v113, v113, v56
                     v_mov_b32 v56, v113
                     s_nop 1
                     v_permlane32_swap_b32 v113, v56""")
            if tp == 1 and sw == 3:
                g("""v_add_f32 v113, v113, v56
                     v_add3_u32 v60, v112, v113, s11""")
        if tp >= 1: pv_out(tp-1)
    g.nop(2)
    pv_out(3)
    g("buffer_store_dwordx4 v[112:115], v15, s[40:43], s67 offen sc1")
    g.stamp(8)
    if not g.e0: early_dma(g)
    g("s_branch L_s4")

def early_setup(g):
    le = g.lab("EE")
    g(f"""s_mov_b32 s70, 0
          s_lshl_b32 s71, s12, 10
          s_add_u32 s71, s71, {L_WR}""")
    g.srd(44, P_WO, 5242880)
    g(f"""v_lshrrev_b32 v119, 3, v1
          v_mul_u32_u24 v119, 1280, v119
          v_and_b32 v7, 0x70, v9
          v_add_u32 v119, v119, v7
          s_and_b32 s13, s73, 1
          s_lshl1_add_u32 s13, s4, s13
          s_lshl_b32 s13, s13, 5
          s_add_u32 s13, s13, s12
          s_mul_i32 s68, s13, {8*1280}
          s_lshr_b32 s13, s73, 1
          s_lshl_b32 s13, s13, 7
          s_add_u32 s68, s68, s13
          s_mov_b32 s69, {32*1280}
          s_cmp_ge_u32 s72, 2
          s_cbranch_scc1 {le}
          s_mov_b32 s70, 4
          s_cmp_eq_u32 s72, 0
          s_cbranch_scc1 {le}""")
    g.srd(44, P_W1, 2211840)
    g(f"""v_lshrrev_b32 v119, 2, v1
          v_mul_u32_u24 v119, 3456, v119
          v_and_b32 v7, 3, v1
          v_lshl_add_u32 v119, v7, 4, v119
          s_mul_i32 s68, s12, {16*3456}
          s_lshl_b32 s13, s73, 6
          s_add_u32 s68, s68, s13
          s_mov_b32 s69, {64*3456}
          s_mov_b32 s70, 2
          {le}:""")
def early_dma(g):
    l, le = g.lab("ED"), g.lab("EX")
    g(f"""s_mov_b32 s13, s70
          s_cmp_eq_u32 s70, 0
          s_cbranch_scc1 {le}
          {l}:
          s_mov_b32 m0, s71
          s_add_u32 s71, s71, 4096
          buffer_load_dwordx4 v119, s[44:47], s68 offen nt lds
          s_add_u32 s68, s68, s69
          s_sub_u32 s13, s13, 1
          s_cmp_lg_u32 s13, 0
          s_cbranch_scc1 {l}
          {le}:""")

def swave(g, W):
    g("L_s_ckv:")
    def areads(m):
        tile, u = m >> 3, m & 7
        for tl in range(2):
            t = 2*u + tl
            r = 64 + 64*tile + 4*t
            g(f"ds_read_b128 v[{r}:{r+3}], v{11+tl} offset:{tile*16384+u*2048}")
    done = 0
    for k in range(32):
        if k < g.wsw:
            lb = g.lab("SB")
            g(f"s_cbranch_vccz {lb}\ns_waitcnt vmcnt({g.we-1})")
            if k == g.we - 1: g.flag_add(F_A)
            g(f"{lb}:")
        if k >= W: g(f"s_waitcnt vmcnt({W-1})")
        landed = k - W
        tile, u, kh = k >> 4, (k >> 1) & 7, k & 1
        g(f"""s_add_u32 m0, s65, {k*1024}
              s_add_u32 s13, s64, {tile*16384 + u*128}
              buffer_load_dwordx4 v{7+kh}, s[44:47], s13 offen lds""")
        if k == 31: g.flag_add(F_S2)
        if k == g.ga:
            lb = g.lab("SB"); g(f"s_cbranch_vccnz {lb}"); g.flag_add(F_G2); g(f"{lb}:")
        if k == g.gb:
            lb = g.lab("SB"); g(f"s_cbranch_vccz {lb}"); g.flag_add(F_G2); g(f"{lb}:")
        while 2*done + 1 <= landed:
            areads(done); done += 1
            if done == 8:
                tag_fin(g)
                g.flag_add(F_T0)
                g.stamp(2)
    for tl in range(4):
        g(f"""v_or_b32 v13, {4*tl}, v3
              v_xor_b32 v13, v13, v2
              v_lshlrev_b32 v13, 4, v13
              v_lshl_add_u32 v13, v2, 10, v13
              v_add_u32 v{16+tl}, {L_QA}, v13""")
    g(f"""v_lshlrev_b32 v20, 4, v2
          v_add_u32 v20, {L_MX}, v20
          s_lshl_b32 s13, s12, 2
          v_add_u32 v21, s13, v20
          v_lshlrev_b32 v22, 4, v1
          s_lshl_b32 s13, s12, 10
          s_add_u32 s13, s13, {L_P}
          v_add_u32 v22, s13, v22
          s_mov_b32 s60, {f32(SCALE)}
          v_lshlrev_b32 v23, 6, v2
          v_lshl_add_u32 v23, v3, 2, v23
          s_lshl_b32 s13, s12, 4
          s_add_u32 s13, s13, {L_SM}
          v_add_u32 v23, s13, v23""")
    role_decode(g)
    if g.prio: g("s_setprio 2")
    g.stamp(3)
    def qa_reads():
        for t in range(16):
            g(f"ds_read_b128 v[{192+4*t}:{195+4*t}], v{16+(t&3)} offset:{(t>>2)*256}")
    g.flag_wait(F_QA, 4)
    g.stamp(4)
    qa_reads()
    for t in range(16):
        g(f"s_waitcnt lgkmcnt({15-t})")
        g.mfma(56, 64+4*t, 192+4*t, t == 0)
    first = True
    for m in range(8, done):
        for tl in range(2):
            t = 2*(m & 7) + tl
            g.mfma(60, 128+4*t, 192+4*t, first); first = False
    for m in range(done, 16):
        g(f"s_waitcnt vmcnt({31-(2*m+1)})")
        areads(m)
        if m == 15:
            g.flag_add(F_T1)
            g.stamp(5)
        if m > done:
            g(f"s_waitcnt lgkmcnt({3 if m == 15 else 2})")
            for tl in range(2):
                t = 2*((m-1) & 7) + tl
                g.mfma(60, 128+4*t, 192+4*t, first); first = False
    g("s_waitcnt lgkmcnt(0)")
    for tl in range(2): g.mfma(60, 128+4*(14+tl), 192+4*(14+tl), False)
    g("s_nop 5")
    g("""L_s_max:
         v_max3_f32 v24, v56, v57, v58
         v_max_f32 v24, v24, v59
         v_max3_f32 v24, v24, v60, v61
         v_max3_f32 v24, v24, v62, v63""")
    g.xrow("v_max_f32", 24, 25)
    g("ds_write_b32 v21, v24")
    g.flag_add(F_MX)
    g.flag_wait(F_MX, 4)
    g(f"""ds_read_b128 v[24:27], v20
          s_waitcnt lgkmcnt(0)
          v_max3_f32 v24, v24, v25, v26
          v_max_f32 v24, v24, v27
          v_mul_f32 v24, s60, v24""")
    for k in range(8): g(f"v_fma_f32 v{56+k}, v{56+k}, s60, -v24")
    for k in range(8): g(f"v_exp_f32 v{56+k}, v{56+k}")
    g.nop(1)
    g.pack8(28, 56)
    g(f"""ds_write_b128 v22, v[28:31]
          v_add_f32 v56, v56, v57
          v_add_f32 v58, v58, v59
          v_add_f32 v60, v60, v61
          v_add_f32 v62, v62, v63
          v_add_f32 v56, v56, v58
          v_add_f32 v60, v60, v62
          v_add_f32 v25, v56, v60
          ds_write_b32 v23, v25
          s_waitcnt lgkmcnt(0)
          s_barrier""")
    if g.prio: g("s_setprio 0")
    g.stamp(6)
    g(f"""s_lshr_b32 s13, s7, 2
          s_lshl1_add_u32 s69, s6, s13
          s_lshl2_add_u32 s69, s69, s12
          s_and_b32 s13, s7, 3
          s_lshl2_add_u32 s69, s69, s13
          s_lshl_b32 s68, s69, 8
          s_lshl_b32 s69, s69, 6
          s_add_u32 s68, s68, {CP}
          s_add_u32 s69, s69, {CPC}""")
    g.mask_j4()
    g(f"""buffer_load_dword v120, v15, s[40:43], s68 offen sc1
          buffer_load_dword v121, v14, s[40:43], s69 offen sc1
          s_mov_b64 exec, -1""")
    g.stamp(7)

def tail(g):
    g("L_s4:")
    g.dump(STAMP2)
    if g.prio: g("s_setprio 0")
    g(f"""s_mov_b32 s13, {OBLK}
          v_lshrrev_b32 v9, 3, v1
          v_mul_lo_u32 v9, v9, s13
          v_and_b32 v10, 3, v1
          v_lshl_add_u32 v9, v10, 4, v9
          v_and_b32 v10, 4, v1
          v_lshl_add_u32 v8, v10, {4 if g.opl else 8}, v9
          s_lshr_b32 s14, s6, 4
          s_lshl3_add_u32 s64, s14, s3
          s_mul_i32 s64, s64, {16*OBLK}
          s_and_b32 s14, s6, 15
          s_lshl_b32 s14, s14, 6
          s_add_u32 s64, s64, s14
          s_lshl_b32 s13, s7, 11
          s_add_u32 s65, s64, s13
          {"s_add_u32 s65, s65, s14" if g.opl else ""}
          s_add_u32 s65, s65, {OP}
          s_lshr_b32 s13, s7, 1
          s_lshl_b32 s13, s13, 10
          s_add_u32 s66, s64, s13
          s_add_u32 s66, s66, {OP+16384}
          s_add_u32 s74, s65, {8*OBLK}
          s_add_u32 s75, s66, {8*OBLK}
          s_bitcmp1_b32 s7, 0
          s_cselect_b64 s[100:101], -1, 0
          v_and_b32 v13, 7, v1
          v_lshlrev_b32 v13, 4, v13
          v_and_b32 v10, 1, v3
          v_lshl_add_u32 v13, v10, 3, v13
          v_lshrrev_b32 v10, 1, v3
          v_lshl_add_u32 v13, v10, 2, v13
          s_and_b32 s13, s3, 1
          s_lshl_b32 s13, s13, 2
          s_lshr_b32 s14, s3, 1
          s_add_u32 s13, s13, s14
          s_lshl_b32 s14, s13, 7
          s_add_u32 s14, s14, {L_CC}
          v_add_u32 v13, s14, v13
          s_lshl_b32 s13, s13, 3
          s_add_u32 s13, s13, {L_ML}
          v_mov_b32 v12, s13""")
    tr_lane(g, 16, 10, 11, swap=True)
    g(f"""s_and_b32 s13, s12, 1
          s_lshl_b32 s13, s13, 6
          v_xor_b32 v16, s13, v16
          s_lshr_b32 s13, s12, 1
          s_lshl_b32 s13, s13, 13
          s_add_u32 s13, s13, {L_WUV}
          v_add_u32 v16, s13, v16
          v_xor_b32 v17, 0x220, v16
          v_and_b32 v10, 7, v2
          v_lshlrev_b32 v18, 7, v10
          v_lshl_add_u32 v18, v3, 4, v18
          v_add_u32 v18, {L_CC}, v18
          v_lshlrev_b32 v19, 3, v10
          v_add_u32 v19, {L_ML}, v19
          v_xor_b32 v20, 32, v19""")
    s5_setup(g)
    g("s_waitcnt vmcnt(0)\ns_barrier")
    g.stamp(9)
    def oloads():
        g(f"""buffer_load_dwordx4 v[36:39], v9, s[40:43], s66 offen sc1
              buffer_load_dwordx4 v[40:43], v9, s[40:43], s75 offen sc1
              buffer_load_dwordx4 v[28:31], v8, s[40:43], s65 offen sc1
              buffer_load_dwordx4 v[32:35], v8, s[40:43], s74 offen sc1""")
    oloads()
    for t in range(2):
        for e in range(2):
            r = 64 + 8*t + 4*e
            g(f"ds_read_b64_tr_b16 v[{r}:{r+1}], v16 offset:{t*4096+e*8}")
            g(f"ds_read_b64_tr_b16 v[{r+2}:{r+3}], v17 offset:{t*4096+e*8}")
    for tt in range(2):
        for tpi in range(2):
            for e in range(2):
                r = 128 + 16*tt + 8*tpi + 4*e
                g(f"ds_read_b64_tr_b16 v[{r}:{r+1}], v{[110,112][tpi]} offset:{tt*4096+e*8}")
                g(f"ds_read_b64_tr_b16 v[{r+2}:{r+3}], v{[111,113][tpi]} offset:{tt*4096+e*8}")
    l, lsk = g.lab("PL"), g.lab("SK")
    g(f"""s_mov_b32 s61, 0
          s_branch {lsk}
          {l}:
          s_mov_b64 exec, s[62:63]""")
    oloads()
    g(f"""s_mov_b64 exec, -1
          {lsk}:
          s_waitcnt vmcnt(2)
          v_max_f32 v24, v36, v40
          v_cndmask_b32 v46, v38, v39, s[100:101]
          v_cndmask_b32 v47, v42, v43, s[100:101]
          v_max_f32_dpp v24, v24, v24 row_ror:8 {DPP}
          v_add3_u32 v48, v36, v37, s11
          v_add3_u32 v49, v40, v41, s11""")
    g.xrow("v_max_f32", 24, 25)
    g(f"""v_sub_f32 v26, v36, v24
          v_sub_f32 v27, v40, v24
          v_exp_f32 v26, v26
          v_exp_f32 v27, v27
          v_sub_u32 v46, v46, v48
          v_sub_u32 v47, v47, v49
          v_mul_f32 v25, v26, v37
          v_fmac_f32 v25, v27, v41
          s_waitcnt vmcnt(0)
          v_add3_u32 v48, v28, v29, v30
          v_add3_u32 v49, v32, v33, v34
          v_add_u32 v48, v48, v31
          v_add_u32 v49, v49, v35
          v_add_f32_dpp v25, v25, v25 row_ror:8 {DPP}
          v_add_u32_dpp v44, v48, v48 row_shl:4 row_mask:0xf bank_mask:0x5
          v_add_u32_dpp v45, v49, v49 row_shl:4 row_mask:0xf bank_mask:0x5
          v_add_u32_dpp v44, v48, v48 row_shr:4 row_mask:0xf bank_mask:0xa
          v_add_u32_dpp v45, v49, v49 row_shr:4 row_mask:0xf bank_mask:0xa
          v_cmp_ne_u32 s[62:63], v44, v46
          v_cmp_ne_u32 vcc, v45, v47
          s_or_b64 s[62:63], s[62:63], vcc""")
    g.poll_end(l)
    g.stamp(10)
    g.count(6)
    for k in range(4):
        g.unpack(44+2*k, 28+k); g.unpack(52+2*k, 32+k)
    g("v_mov_b32 v60, v25")
    for k in range(8): g(f"v_mul_f32 v{44+k}, v{44+k}, v26")
    g("v_permlane16_swap_b32 v25, v60")
    for k in range(8): g(f"v_fmac_f32 v{44+k}, v{52+k}, v27")
    g("v_add_f32 v25, v25, v60")
    for k in range(4): g(f"v_permlane16_swap_b32 v{44+k}, v{48+k}")
    g("v_mov_b32 v60, v25")
    for k in range(4): g(f"v_add_f32 v{44+k}, v{44+k}, v{48+k}")
    g("v_permlane32_swap_b32 v25, v60")
    for k in range(2): g(f"v_permlane32_swap_b32 v{44+k}, v{46+k}")
    g("v_add_f32 v25, v25, v60")
    for k in range(2): g(f"v_add_f32 v{44+k}, v{44+k}, v{46+k}")
    g("ds_write_b64 v12, v[24:25]")
    for k in range(2): g(f"v_add_f32_dpp v{44+k}, v{44+k}, v{44+k} row_ror:8 {DPP}")
    g(f"""v_cvt_pk_bf16_f32 v44, v44, v45
          ds_write_b32 v13, v44
          s_waitcnt lgkmcnt(0)
          s_barrier""")
    ln = g.lab("N4")
    g(f"""s_cmp_ge_u32 s3, 4
          s_cbranch_scc1 {ln}
          ds_read_b128 v[24:27], v18
          ds_read_b128 v[28:31], v18 offset:64
          ds_read_b64 v[32:33], v19
          ds_read_b64 v[34:35], v20
          s_waitcnt lgkmcnt(3)""")
    for t in range(2):
        if t == 1: g("s_waitcnt lgkmcnt(2)")
        for e in range(2): g.mfma(56+4*e, 64+8*t+4*e, 24+4*t, t == 0)
    g(f"""s_waitcnt lgkmcnt(0)
          v_max_f32 v36, v32, v34
          v_sub_f32 v32, v32, v36
          v_sub_f32 v34, v34, v36
          v_exp_f32 v32, v32
          v_exp_f32 v34, v34
          s_nop 0
          v_mul_f32 v33, v33, v32
          v_fmac_f32 v33, v35, v34
          v_rcp_f32 v33, v33
          s_nop 0
          v_mul_f32 v32, v32, v33""")
    for k in range(8): g(f"v_mul_f32 v{56+k}, v{56+k}, v32")
    for k in range(8): g(f"v_add_f32_dpp v{56+k}, v{56+k}, v{56+k} row_ror:4 {DPP}")
    g.mask_j4()
    g.pack8(24, 56)
    g("buffer_store_dwordx4 v[24:27], v15, s[40:43], s68 offen")
    g.chk(28, 24)
    g(f"""buffer_store_dword v28, v14, s[40:43], s69 offen
          s_cmp_eq_u32 s72, 0
          s_cbranch_scc1 {ln}
          buffer_store_dwordx4 v[24:27], v15, s[56:59], s68 offen sc1
          buffer_store_dword v28, v14, s[56:59], s69 offen sc1
          {ln}:
          s_mov_b64 exec, -1""")
    g.stamp(11)
    g(f"""s_cmp_eq_u32 s72, 1
          s_cbranch_scc1 L_s6
          s_cmp_eq_u32 s72, 2
          s_cbranch_scc1 L_s7
          s_cmp_eq_u32 s72, 3
          s_cbranch_scc1 L_fin""")
    s5(g); s6(g); s7(g)
    g("L_fin:")
    g.finish()

def s5_setup(g):
    tr_lane(g, 110, 10, 11)
    g(f"""s_lshr_b32 s13, s3, 2
          s_and_b32 s14, s3, 1
          s_lshl{2 if g.e0 else 1}_add_u32 s13, s13, s14
          s_lshl_b32 s13, s13, 13
          s_add_u32 s13, s13, {L_WR}
          v_add_u32 v110, s13, v110
          v_xor_b32 v111, 0x220, v110
          v_xor_b32 v112, 64, v110
          v_xor_b32 v113, 0x260, v110
          v_and_b32 v106, 3, v2
          v_lshlrev_b32 v106, 7, v106
          v_lshl_add_u32 v106, v3, 5, v106
          v_and_b32 v7, 4, v2
          v_lshl_add_u32 v106, v7, 2, v106
          v_and_b32 v7, 8, v2
          v_lshl_add_u32 v106, v7, 6, v106
          s_lshl_b32 s13, s3, 10
          s_add_u32 s13, s13, {L_RED}
          v_add_u32 v106, s13, v106
          v_lshlrev_b32 v108, 3, v1
          s_lshl_b32 s13, s14, 9
          s_add_u32 s13, s13, {L_RED}
          v_add_u32 v107, s13, v108
          s_and_b32 s13, s73, 1
          s_lshl1_add_u32 s64, s4, s13
          s_lshl3_add_u32 s13, s64, s3
          s_lshl_b32 s70, s13, 11
          s_add_u32 s70, s70, {CP}
          s_lshl_b32 s71, s13, 9
          s_add_u32 s71, s71, {CPC}
          s_and_b32 s13, s73, 0xfe
          s_add_u32 s13, s13, s14
          s_lshl4_add_u32 s60, s13, s64
          s_lshl_b32 s60, s60, 9
          s_lshl_b32 s13, s73, 13
          s_lshl_b32 s14, s12, 7
          s_add_u32 s13, s13, s14
          s_cmp_ge_u32 s3, 4
          s_cselect_b32 s60, s13, s60
          s_add_u32 s60, s60, {AP}
          v_lshlrev_b32 v109, 3, v2
          v_lshl_add_u32 v109, v3, 9, v109
          s_mul_i32 s67, s4, 20
          s_add_u32 s67, s67, s73
          s_mul_i32 s67, s67, 384
          s_add_u32 s67, s67, {HR}
          s_mov_b32 s52, s40
          s_mov_b32 s53, s41
          s_mov_b32 s54, {DLEN}
          s_mov_b32 s55, 0x20000""")

def red_read(g, n, stride, a):
    for w in range(n): g(f"ds_read_b64 v[{32+2*w}:{33+2*w}], v{a} offset:{w*stride}")
    for w in range(1, n):
        g(f"s_waitcnt lgkmcnt({n-1-w})")
        g(f"v_add_f32 v32, v32, v{32+2*w}\nv_add_f32 v33, v33, v{33+2*w}")

def s5(g):
    def cdual(cond):
        lnd = g.lab("ND")
        g(f"""{cond}
              s_cbranch_scc1 {lnd}
              s_cmp_ge_u32 s3, 4
              s_cbranch_scc1 {lnd}""")
        g.mask_j4()
        g(f"""buffer_store_dwordx4 v[24:27], v15, s[56:59], s68 offen sc1
              buffer_store_dword v28, v14, s[56:59], s69 offen sc1
              s_mov_b64 exec, -1
              {lnd}:""")
    g("s_mov_b64 s[62:63], -1")
    l = g.poll_begin()
    cdual("s_cmp_lg_u32 s61, 5")
    g(f"""s_mov_b64 exec, s[62:63]
          buffer_load_dwordx4 v[96:99], v15, s[52:55], s70 offen sc1
          buffer_load_dwordx4 v[100:103], v15, s[52:55], s70 offen offset:1024 sc1
          buffer_load_dword v104, v14, s[52:55], s71 offen sc1
          buffer_load_dword v105, v14, s[52:55], s71 offen offset:256 sc1
          s_mov_b64 exec, -1
          s_waitcnt vmcnt(2)""")
    for tt in range(2):
        for q in range(4): g.mfma(80+4*q, 128+16*tt+4*q, 96+4*tt, tt == 0)
    g("s_waitcnt vmcnt(0)")
    for tt in range(2): g.verify(96+4*tt, 104+tt, tt == 0)
    g.poll_end(l, dual=True)
    g.stamp(1)
    g.count(7)
    for k in range(8): g(f"v_add_f32_dpp v{80+k}, v{80+k}, v{80+k} row_ror:8 row_mask:0xf bank_mask:0x3")
    for k in range(8): g(f"v_add_f32_dpp v{80+k}, v{88+k}, v{88+k} row_ror:8 row_mask:0xf bank_mask:0xc")
    for k in range(4): g(f"v_add_f32_dpp v{80+k}, v{80+k}, v{80+k} row_shl:4 row_mask:0xf bank_mask:0x5")
    for k in range(4): g(f"v_add_f32_dpp v{80+k}, v{84+k}, v{84+k} row_shr:4 row_mask:0xf bank_mask:0xa")
    lr, lnf = g.lab("R5"), g.lab("NF")
    g(f"""ds_write_b128 v106, v[80:83]
          s_waitcnt lgkmcnt(0)
          s_barrier
          s_cmp_ge_u32 s3, 4
          s_cbranch_scc1 {lr}
          s_cmp_ge_u32 s3, 2
          s_cbranch_scc1 {lnf}""")
    red_read(g, 8, 1024, 107)
    g(f"""v_cvt_pk_bf16_f32 v32, v32, v33
          v_mov_b32 v33, s11
          buffer_store_dwordx2 v[32:33], v108, s[40:43], s60 offen sc1""")
    g.stamp(2)
    if g.apw:
        g("s_waitcnt vmcnt(0)")
        g.flag_add(F_SM)
    g(f"{lnf}:")
    lw, lx = g.lab("DW"), g.lab("DX")
    g(f"""s_mov_b32 s15, 0
          {lw}:
          s_sleep 4
          ds_read_b32 v6, v4 offset:{F_UV}
          s_add_u32 s15, s15, 1
          s_cmp_gt_u32 s15, 24
          s_cbranch_scc1 {lx}
          s_waitcnt lgkmcnt(0)
          v_readfirstlane_b32 s14, v6
          s_cmp_lt_u32 s14, 4
          s_cbranch_scc1 {lw}
          {lx}:""")
    cdual("s_cmp_ge_u32 s61, 5")
    g(f"s_branch L_fin\n{lr}:")
    g.unpack(44, 120)
    g(f"""v_mov_b32 v50, s11
          v_mov_b32 v51, s11
          s_add_u32 s64, s60, 4096
          v_lshlrev_b32 v20, 2, v2
          s_lshl_b32 s13, s12, 6
          s_add_u32 s65, s67, s13
          s_lshl_b32 s13, s12, 4
          s_add_u32 s66, s67, s13""")
    if g.apw: g.flag_wait(F_SM, 2)
    g.stamp(5)
    l = g.poll_begin()
    for k in range(4):
        g(f"buffer_load_dwordx2 v[{64+2*k}:{65+2*k}], v109, s[40:43], s{60 if k < 2 else 64} offen offset:{(k&1)*2048} sc1")
    g(f"""s_waitcnt vmcnt(0)
          v_xor_b32 v55, s11, v65
          v_bitop3_b32 v55, v55, v67, v50 bitop3:0xf6
          v_bitop3_b32 v55, v55, v69, v50 bitop3:0xf6
          v_bitop3_b32 v55, v55, v71, v50 bitop3:0xf6
          v_cmp_ne_u32 s[62:63], 0, v55""")
    g.poll_end(l)
    g.stamp(3)
    g.count(8)
    for k in range(4): g.unpack(72+2*k, 64+2*k)
    g(f"""v_add_f32 v72, v72, v74
          v_add_f32 v73, v73, v75
          v_add_f32 v76, v76, v78
          v_add_f32 v77, v77, v79
          v_add_f32 v46, v72, v76
          v_add_f32 v47, v73, v77
          v_mov_b32 v48, v46
          v_mov_b32 v49, v47
          s_nop 0
          v_permlane16_swap_b32 v46, v48
          v_permlane16_swap_b32 v47, v49
          s_nop 0
          v_add_f32 v46, v46, v48
          v_add_f32 v47, v47, v49
          v_mov_b32 v48, v46
          v_mov_b32 v49, v47
          s_nop 0
          v_permlane32_swap_b32 v46, v48
          v_permlane32_swap_b32 v47, v49
          s_nop 0
          v_add_f32 v46, v46, v48
          v_add_f32 v47, v47, v49
          v_cvt_pk_bf16_f32 v46, v46, v47
          s_mov_b64 exec, 0xffff""")
    g.unpack(48, 46)
    g(f"""v_add_f32 v48, v48, v44
          v_add_f32 v49, v49, v45
          v_cvt_pk_bf16_f32 v46, v48, v49
          buffer_store_dword v46, v20, s[40:43], s65 offen
          v_lshlrev_b32 v52, 16, v46
          v_add_u32_dpp v47, v46, v46 quad_perm:[1,0,3,2] {DPP}
          v_and_b32 v53, 0xffff0000, v46
          v_add_f32 v48, v52, v53
          v_add_u32_dpp v47, v47, v47 quad_perm:[2,3,0,1] {DPP}
          v_add_u32 v47, s11, v47
          s_mov_b64 exec, 0x1111
          buffer_store_dword v47, v2, s[40:43], s66 offen offset:256
          s_mov_b64 exec, 0xffff""")
    g.stamp(4)
    g.inrow("v_add_f32", 48)
    g(f"""v_mul_f32 v54, {f32(1/32)}, v48
          v_sub_f32 v52, v52, v54
          v_sub_f32 v53, v53, v54
          v_mul_f32 v49, v52, v52
          v_fmac_f32 v49, v53, v53""")
    g.inrow("v_add_f32", 49)
    g(f"""s_mov_b64 exec, 1
          buffer_store_dwordx4 v[48:51], v2, s[40:43], s66 offen offset:320
          ds_add_u32 v4, v5 offset:{F_UV}
          buffer_store_dwordx4 v[48:51], v2, s[56:59], s66 offen offset:320 sc1
          s_mov_b64 exec, 0x1111
          buffer_store_dword v47, v2, s[56:59], s66 offen offset:256 sc1
          s_mov_b64 exec, 0xffff
          buffer_store_dword v46, v20, s[56:59], s65 offen sc1
          s_mov_b64 exec, -1""")
    g("s_branch L_fin")

def s6(g):
    g("L_s6:\ns_barrier")
    g.srd(48, P_W1, 2211840)
    g(f"""v_lshrrev_b32 v12, 2, v1
          v_mul_u32_u24 v12, 3456, v12
          v_and_b32 v7, 3, v1
          v_lshl_add_u32 v12, v7, 4, v12
          s_add_u32 s13, s3, 16
          s_mul_i32 s64, s13, {16*3456}
          s_lshl_b32 s14, s73, 6
          s_add_u32 s64, s64, s14
          s_lshl_b32 s65, s3, 10""")
    for k in range(3):
        g(f"""s_add_u32 m0, s65, {L_WR + 16384 + k*8192}
              s_add_u32 s13, s64, {k*128*3456}
              buffer_load_dwordx4 v12, s[48:51], s13 offen nt lds""")
    g.srd(44, P_W2, 2211840)
    g(f"""v_and_b32 v13, 7, v1
          v_xor_b32 v13, v13, v3
          s_and_b32 s13, s3, 1
          s_lshl_b32 s13, s13, 2
          v_xor_b32 v13, s13, v13
          v_lshrrev_b32 v7, 3, v1
          v_mul_u32_u24 v7, 1280, v7
          v_lshl_add_u32 v13, v13, 4, v7
          s_lshl2_add_u32 s64, s73, s12
          s_mul_i32 s64, s64, {8*1280}
          s_lshr_b32 s13, s3, 2
          s_lshl_b32 s13, s13, 7
          s_add_u32 s64, s64, s13""")
    for k in range(5):
        g(f"""s_add_u32 m0, s65, {L_W2 + k*8192}
              s_add_u32 s13, s64, {k*256}
              buffer_load_dwordx4 v13, s[44:47], s13 offen nt lds""")
    g(f"""s_min_u32 s13, s3, 4
          s_lshl_b32 s64, s13, 7
          v_lshrrev_b32 v8, 2, v1
          v_and_b32 v8, 3, v8
          v_lshl_add_u32 v8, v3, 3, v8
          v_add_u32 v8, s64, v8
          v_lshlrev_b32 v8, 6, v8
          v_and_b32 v7, 3, v1
          v_lshl_add_u32 v8, v7, 4, v8
          v_add_u32 v8, {L_WR}, v8
          v_lshlrev_b32 v10, 7, v2
          v_lshl_add_u32 v10, v3, 5, v10
          s_lshl_b32 s13, s3, 9
          s_add_u32 s13, s13, {L_RED}
          v_add_u32 v10, s13, v10
          v_lshlrev_b32 v11, 3, v1
          v_add_u32 v11, {L_RED}, v11
          s_mul_i32 s67, s4, {20*384}
          s_add_u32 s67, s67, {HR}
          s_mul_i32 s65, s3, {4*384}
          s_add_u32 s65, s65, s67""")
    g(f"""v_lshrrev_b32 v12, 2, v1
          v_and_b32 v12, 3, v12
          v_and_b32 v13, 3, v1
          v_lshrrev_b32 v20, 1, v13
          s_lshl_b32 s13, s12, 1
          v_or_b32 v20, s13, v20
          v_lshrrev_b32 v7, 1, v12
          v_xor_b32 v20, v20, v7
          v_and_b32 v7, 1, v3
          v_lshlrev_b32 v7, 2, v7
          v_xor_b32 v20, v20, v7
          v_lshlrev_b32 v20, 4, v20
          v_lshl_add_u32 v20, v12, 7, v20
          v_lshl_add_u32 v20, v3, 10, v20
          v_and_b32 v7, 1, v13
          v_lshl_add_u32 v20, v7, 3, v20
          s_lshr_b32 s13, s3, 2
          s_lshl_b32 s13, s13, 12
          s_add_u32 s13, s13, {L_W2}
          v_add_u32 v20, s13, v20
          v_xor_b32 v21, 0x220, v20
          v_and_b32 v22, 3, v2
          v_lshlrev_b32 v22, 6, v22
          v_lshl_add_u32 v22, v3, 4, v22
          v_add_u32 v22, {L_UL}, v22
          v_lshlrev_b32 v23, 4, v2
          s_mul_i32 s68, s73, 10240
          s_lshl_b32 s13, s3, 8
          s_add_u32 s68, s68, s13
          s_add_u32 s68, s68, {FP}
          s_add_u32 s69, s68, 4096
          s_add_u32 s70, s68, 8192""")
    for k in range(96, 112): g(f"v_mov_b32 v{k}, 0x3f803f80")
    for k in range(5): g(f"v_mov_b32 v{170+4*k}, s11\nv_mov_b32 v{171+4*k}, s11")
    lfin, lidle, lw2 = g.lab("F6"), g.lab("I6"), g.lab("W6")
    def red_write():
        g.mask_j4()
        g("ds_write_b128 v10, v[56:59]\nds_write_b128 v10, v[60:63] offset:16\ns_mov_b64 exec, -1")
    g("s_waitcnt vmcnt(0)\ns_barrier")
    g.stamp(4)
    for k in range(5):
        g(f"ds_read_b64_tr_b16 v[{128+4*k}:{129+4*k}], v20 offset:{k*8192}")
        g(f"ds_read_b64_tr_b16 v[{130+4*k}:{131+4*k}], v21 offset:{k*8192}")
    g(f"""s_cmp_eq_u32 s3, 7
          s_cbranch_scc1 {lfin}
          s_cmp_ge_u32 s3, 5
          s_cbranch_scc1 {lidle}""")
    for t in range(4):
        for e in range(2):
            r = 64 + 8*t + 4*e
            g(f"ds_read_b64_tr_b16 v[{r}:{r+1}], v8 offset:{t*2048+e*8}")
            g(f"ds_read_b64_tr_b16 v[{r+2}:{r+3}], v8 offset:{t*2048+256+e*8}")
    g("s_waitcnt lgkmcnt(0)")
    for t in range(4):
        for e in range(2): g.mfma(56+4*e, 64+8*t+4*e, 96+4*t, t == 0)
    g.nop(6)
    red_write()
    g("s_waitcnt lgkmcnt(0)\ns_barrier\ns_barrier")
    l = g.poll_begin()
    g.mask_j4()
    for t in range(4):
        g(f"buffer_load_dwordx4 v[{96+4*t}:{99+4*t}], v15, s[52:55], s65 offen offset:{t*384} sc1")
    for t in range(4):
        g(f"buffer_load_dword v{112+t}, v14, s[52:55], s65 offen offset:{t*384+256} sc1")
    g("s_mov_b64 exec, -1\ns_waitcnt vmcnt(4)")
    for t in range(4):
        for e in range(2): g.mfma(56+4*e, 64+8*t+4*e, 96+4*t, t == 0)
    g.mask_j4()
    g("s_waitcnt vmcnt(0)")
    for t in range(4): g.verify(96+4*t, 112+t, t == 0)
    g.poll_end(l, dual=True)
    g(f"""ds_write_b128 v10, v[56:59]
          ds_write_b128 v10, v[60:63] offset:16
          s_mov_b64 exec, -1""")
    g.stamp(1)
    g(f"""s_waitcnt lgkmcnt(0)
          s_barrier
          s_branch {lw2}
          {lidle}:
          s_barrier
          s_barrier
          s_barrier
          s_branch {lw2}
          {lfin}:
          s_barrier""")
    red_read(g, 5, 512, 11)
    g(f"""v_mov_b32 v60, v32
          v_mov_b32 v61, v33
          s_barrier
          v_mul_u32_u24 v16, 384, v2
          v_lshl_add_u32 v16, v3, 4, v16
          v_mov_b32 v48, 0
          v_mov_b32 v49, 0
          v_mov_b32 v50, s11
          v_cmp_gt_u32 vcc, 4, v2
          v_mov_b32 v42, 0
          v_lshlrev_b32 v17, 2, v1
          v_cndmask_b32 v42, v42, 1.0, vcc
          v_add_u32 v17, {L_UL}, v17
          s_add_u32 s66, s67, {16*384}""")
    l = g.poll_begin()
    g(f"buffer_load_dwordx4 v[44:47], v16, s[52:55], s67 offen offset:320 sc1")
    g.mask_j4()
    g(f"""buffer_load_dwordx4 v[48:51], v16, s[52:55], s66 offen offset:320 sc1
          s_mov_b64 exec, -1
          s_waitcnt vmcnt(0)""")
    g.acc_ne("s11", "v46", True)
    g.acc_ne("s11", "v50", False)
    g.poll_end(l, dual=True)
    g.stamp(1)
    g("v_add_f32 v52, v44, v48")
    g.inrow("v_add_f32", 52)
    g(f"""v_mul_f32 v52, {f32(1/640)}, v52
          v_mul_f32 v44, {f32(1/32)}, v44
          v_mul_f32 v48, {f32(1/32)}, v48
          v_sub_f32 v44, v44, v52
          v_sub_f32 v48, v48, v52
          v_mul_f32 v48, v48, v42
          v_mul_f32 v44, v44, v44
          v_fmac_f32 v44, v48, v48
          v_add_f32 v53, v45, v49
          v_fmac_f32 v53, {f32(32.0)}, v44""")
    g.inrow("v_add_f32", 53)
    g(f"""v_mov_b32 v54, {f32(1e-5)}
          v_fmac_f32 v54, {f32(1/640)}, v53
          v_rsq_f32 v54, v54
          v_mul_f32 v60, v60, v52
          v_mul_f32 v61, v61, v52
          v_mul_f32 v55, {f32(-LOG2E)}, v54
          s_barrier""")
    g.stamp(2)
    red_read(g, 5, 512, 11)
    g(f"""v_sub_f32 v32, v32, v60
          v_sub_f32 v33, v33, v61
          v_mul_f32 v34, v32, v55
          v_mul_f32 v35, v33, v55
          v_exp_f32 v34, v34
          v_exp_f32 v35, v35
          v_mul_f32 v32, v32, v54
          v_mul_f32 v33, v33, v54
          v_add_f32 v34, 1.0, v34
          v_add_f32 v35, 1.0, v35
          v_rcp_f32 v34, v34
          v_rcp_f32 v35, v35
          s_nop 0
          v_mul_f32 v32, v32, v34
          v_mul_f32 v33, v33, v35
          v_cvt_pk_bf16_f32 v32, v32, v33
          ds_write_b32 v17, v32
          {lw2}:
          s_waitcnt lgkmcnt(0)
          s_barrier
          ds_read_b128 v[24:27], v22
          s_waitcnt lgkmcnt(0)""")
    for k in range(5): g.mfma(148+4*k, 24, 128+4*k, True)
    g.nop(3)
    g("s_mov_b64 exec, 0xffff")
    for k in range(5):
        g(f"""v_cvt_pk_bf16_f32 v{168+4*k}, v{148+4*k}, v{149+4*k}
              v_cvt_pk_bf16_f32 v{169+4*k}, v{150+4*k}, v{151+4*k}
              buffer_store_dwordx4 v[{168+4*k}:{171+4*k}], v23, s[40:43], s{68+(k>>1)} offen offset:{(k&1)*2048} sc1""")
    g.unmask()
    g.stamp(3)
    g("s_branch L_fin")

def s7(g):
    g("L_s7:")
    lh, lj = g.lab("H7"), g.lab("J7")
    g(f"""v_lshlrev_b32 v10, 2, v1
          v_add_u32 v16, {L_RED}, v10
          s_cmp_eq_u32 s3, 7
          s_cbranch_scc1 {lh}
          v_mul_u32_u24 v12, 10240, v3
          v_lshl_add_u32 v12, v2, 4, v12
          s_mul_i32 s65, s3, {8*10240}
          s_lshl_b32 s13, s73, 8
          s_add_u32 s65, s65, s13
          s_add_u32 s65, s65, {FP}
          s_add_u32 s66, s65, {4*10240}
          s_mov_b64 s[74:75], -1
          s_cmp_eq_u32 s3, 6
          s_cselect_b32 s75, 0, s75
          v_mov_b32 v100, 0
          v_mov_b32 v101, 0
          v_mov_b32 v102, s11
          s_lshl_b32 s13, s3, 8
          v_add_u32 v10, s13, v16
          s_barrier""")
    l = g.poll_begin()
    g(f"""buffer_load_dwordx4 v[96:99], v12, s[40:43], s65 offen sc1
          s_mov_b64 exec, s[74:75]
          buffer_load_dwordx4 v[100:103], v12, s[40:43], s66 offen sc1
          s_mov_b64 exec, -1
          s_waitcnt vmcnt(0)""")
    g.acc_ne("s11", "v98", True)
    g.acc_ne("s11", "v102", False)
    g.poll_end(l)
    g.stamp(1)
    g.unpack(24, 96); g.unpack(26, 97); g.unpack(28, 100); g.unpack(30, 101)
    for k in range(4): g(f"v_add_f32 v{24+k}, v{24+k}, v{28+k}")
    g(f"""s_nop 0
          v_permlane16_swap_b32 v24, v25
          v_permlane16_swap_b32 v26, v27
          s_nop 0
          v_add_f32 v24, v24, v25
          v_add_f32 v26, v26, v27
          s_nop 1
          v_permlane32_swap_b32 v24, v26
          s_nop 0
          v_add_f32 v24, v24, v26
          ds_write_b32 v10, v24
          s_waitcnt lgkmcnt(0)
          s_barrier
          s_branch L_fin
          {lh}:""")
    g.srd(48, P_OUT, 5120)
    g(f"""v_mul_u32_u24 v13, 1280, v3
          v_lshl_add_u32 v13, v2, 1, v13
          v_lshrrev_b32 v8, 3, v2
          v_lshl_add_u32 v12, v3, 2, v8
          v_lshlrev_b32 v11, 4, v12
          v_lshlrev_b32 v12, 2, v12
          s_lshl_b32 s64, s73, 5
          s_mul_i32 s65, s4, 20
          s_lshr_b32 s13, s73, 1
          s_add_u32 s65, s65, s13
          s_mul_i32 s65, s65, 384
          s_add_u32 s65, s65, {HR}
          s_and_b32 s13, s73, 1
          s_lshl3_add_u32 s66, s13, s65
          s_lshl_b32 s13, s13, 5
          s_add_u32 s65, s65, s13""")
    l = g.poll_begin()
    g(f"""buffer_load_dwordx4 v[24:27], v11, s[52:55], s65 offen sc1
          buffer_load_dword v28, v12, s[52:55], s66 offen offset:256 sc1
          s_waitcnt vmcnt(0)""")
    g.verify(24, 28, True)
    g.poll_end(l, dual=True)
    g(f"""s_barrier
          v_and_b32 v8, 2, v1
          v_cmp_ne_u32 vcc, 0, v8
          v_and_b32 v9, 4, v1
          v_cmp_ne_u32 s[74:75], 0, v9
          v_cndmask_b32 v24, v24, v25, vcc
          v_cndmask_b32 v26, v26, v27, vcc
          v_and_b32 v8, 1, v1
          v_cmp_ne_u32 vcc, 0, v8
          v_cndmask_b32 v24, v24, v26, s[74:75]
          v_lshlrev_b32 v25, 16, v24
          v_and_b32 v26, 0xffff0000, v24
          v_cndmask_b32 v30, v25, v26, vcc""")
    g.stamp(1)
    g("s_barrier")
    for w in range(7): g(f"ds_read_b32 v{64+w}, v16 offset:{w*256}")
    g("""s_waitcnt lgkmcnt(4)
         v_add_f32 v64, v64, v65
         v_add_f32 v64, v64, v66
         s_waitcnt lgkmcnt(2)
         v_add_f32 v67, v67, v68
         s_waitcnt lgkmcnt(0)
         v_add_f32 v69, v69, v70
         v_add_f32 v64, v64, v67
         v_add_f32 v64, v64, v69""")
    g.rbf(64)
    g(f"""v_add_f32 v64, v64, v30
          v_cvt_pk_bf16_f32 v64, v64, v64
          buffer_store_short v64, v13, s[48:51], s64 offen
          s_cmp_lg_u32 s73, 0
          s_cbranch_scc1 {lj}
          v_mov_b32 v65, s11
          v_mov_b32 v66, {EPOCH}
          s_mov_b64 exec, 1
          buffer_store_dword v65, v66, s[40:43], 0 offen
          s_mov_b64 exec, -1
          {lj}:""")
    g.stamp(2)

OPTS = dict(W=9, we=3, wsw=8, wa=10, opl=0, prio=1, ga=12, gb=20, apw=1, e0=0, dbg=0, hold=0)
def gen(stamps=False, **kw):
    o = dict(OPTS); o.update(kw)
    g = G(stamps or o["dbg"], None)
    for k, v in o.items(): setattr(g, k, v)
    prologue(g); swave_front(g); pwave(g); swave(g, g.W); tail(g)
    g("L_end:")
    return g

def emit(g, path):
    hdr = open("cdna_kernels/" + NAME + ".s.ref").read().split("; Override launch")[0]
    txt = hdr + f"""; @launch grid=(256,1,1) block=(512,1,1) lds={LDS_BYTES}
.amdgcn_target "amdgcn-amd-amdhsa--gfx950"
.text
.globl {NAME}_kernel
.p2align 8
.type {NAME}_kernel,@function
{NAME}_kernel:
""" + "\n".join(g.L) + f"""
    s_endpgm
L_code_end:
.section .rodata,"a"
.p2align 6
.amdhsa_kernel {NAME}_kernel
  .amdhsa_next_free_vgpr 256
  .amdhsa_next_free_sgpr 102
  .amdhsa_accum_offset 256
  .amdhsa_group_segment_fixed_size 0
  .amdhsa_kernarg_size 96
  .amdhsa_user_sgpr_count 2
  .amdhsa_user_sgpr_kernarg_segment_ptr 1
  .amdhsa_system_sgpr_workgroup_id_x 1
.end_amdhsa_kernel
"""
    open(path, "w").write(txt)

if __name__ == "__main__":
    import argparse
    ap = argparse.ArgumentParser()
    ap.add_argument("-o", default="k.s")
    ap.add_argument("--stamps", action="store_true")
    for k, v in OPTS.items(): ap.add_argument("--" + k, type=int, default=v)
    a = vars(ap.parse_args())
    out = a.pop("o"); st = a.pop("stamps")
    emit(gen(st, **a), out)
```

```python
import sys, struct
NAME = "sequential_preLN__compressed_kv_cla__dense_activation_silu__decode"

EPOCH = 0x0
QPC, QP = 0x8000, 0x10000
QAC, QA = 0x30000, 0x40000
CPC = 0x60000
HR = 0x70000
CP = 0x80000
AP = 0xC0000
FP = 0xF0000
IDT = 0x38000
DUAL = 0x170000
DLEN = 0x30000
MODE = 59
FL3 = 0x1A0000
FSTR = 4352
OP = 0x240000
OBLK = 20480 + 256
STAMP = 0x1000000
STAMP2 = 0x1040000
WS_REC = 0x1100000

L_R2 = 131072
L_WQ = L_R2
L_WUK = 0
L_QA = L_R2
L_XN = L_R2 + 20480
L_P = L_R2 + 25600
L_MX = L_R2 + 29696
L_SM = L_R2 + 16384
L_CC = L_MX + 256
L_FL = L_CC + 1024
LDS_BYTES = 163840
assert L_FL + 64 <= LDS_BYTES
L_WUV = 0
L_WR = 32768
L_W2 = L_WR + 40960
L_RED = L_W2 + 40960
L_UL = L_RED + 8192
F_A, F_S2, F_QA, F_T0, F_T1, F_RD, F_SM, F_S1, F_UK, F_UR, F_MX, F_GO, F_UV, F_G2 = 0, 4, 8, 12, 16, 20, 24, 28, 32, 36, 40, 44, 48, 52

HASH_A, HASH_C = 1664525, 1013904223
SPIN_MAX = 20000
def f32(x): return "0x%08x" % struct.unpack("<I", struct.pack("<f", x))[0]
LOG2E = 1.4426950408889634
SCALE = (128 ** -0.5) * LOG2E
P_X, P_CKV, P_WQ, P_WUK, P_WUV, P_WO, P_BX, P_W1, P_W2, P_OUT, P_DBG, P_WS = 16, 18, 20, 22, 24, 26, 28, 30, 32, 34, 36, 38
DPP = "row_mask:0xf bank_mask:0xf"

class G:
    def __init__(self, stamps=False, stop=None):
        self.L = []; self.stamps = stamps; self.stop = stop; self.nlab = 0
    def __call__(self, s):
        for line in s.strip("\n").split("\n"):
            line = line.strip()
            if line:
                self.L.append("    " + line if not line.endswith(":") else line)
    def lab(self, p="L"):
        self.nlab += 1
        return f"{p}_{self.nlab}"
    def nop(self, n):
        while n > 0:
            k = min(n, 16); self(f"s_nop {k-1}"); n -= k
    def srd(self, d, ptr, size):
        self(f"""s_mov_b32 s{d}, s{ptr}
                 s_and_b32 s{d+1}, s{ptr+1}, 0xffff
                 s_mov_b32 s{d+2}, {size}
                 s_mov_b32 s{d+3}, 0x20000""")
    def ws_srds(self):
        self.srd(40, P_WS, WS_REC)
        self(f"""s_add_u32 s56, s{P_WS}, {DUAL}
                 s_addc_u32 s57, s{P_WS+1}, 0
                 s_and_b32 s57, s57, 0xffff
                 s_mov_b32 s58, {DLEN}
                 s_mov_b32 s59, 0x20000""")
    def stamp(self, idx):
        if self.stamps:
            self(f"s_memrealtime s[{76+2*idx}:{77+2*idx}]")
    def count(self, idx, reg=61):
        if self.stamps and not self.dbg: self(f"s_waitcnt lgkmcnt(0)\ns_add_u32 s{76+2*idx}, s{reg}, 1")
    def flag_add(self, off):
        self(f"""s_mov_b64 exec, 1
                 ds_add_u32 v4, v5 offset:{off}
                 s_mov_b64 exec, -1""")
    def flag_wait(self, off, val):
        l = self.lab("FW"); x = self.lab("FX")
        self(f"""s_mov_b32 s15, 0
                 {l}:
                 ds_read_b32 v6, v4 offset:{off}
                 s_add_u32 s15, s15, 1
                 s_cmp_gt_u32 s15, {SPIN_MAX*8}
                 s_cbranch_scc1 {x}
                 s_waitcnt lgkmcnt(0)
                 v_readfirstlane_b32 s14, v6
                 s_cmp_lt_u32 s14, {val}
                 s_cbranch_scc1 {l}
                 {x}:""")
    def sflag_wait(self, base, off):
        l, x, r = self.lab("SW"), self.lab("SX"), self.lab("SR")
        self(f"""s_mov_b32 s15, 0
                 {l}:
                 s_load_dwordx16 s[16:31], s[{base}:{base+1}], {off} glc
                 s_add_u32 s15, s15, 1
                 s_cmp_gt_u32 s15, {SPIN_MAX}
                 s_cbranch_scc1 {x}
                 s_waitcnt lgkmcnt(0)""")
        for k in range(8):
            self(f"s_cmp_lg_u64 s[{16+2*k}:{17+2*k}], s[100:101]\ns_cbranch_scc1 {l}")
        self(f"{x}:")
    def reload_args(self):
        self("s_waitcnt lgkmcnt(0)\ns_load_dwordx16 s[16:31], s[0:1], 0")
    def chk(self, dst, p):
        self(f"""v_add3_u32 v{dst}, v{p}, v{p+1}, s11
                 v_add3_u32 v{dst}, v{p+2}, v{p+3}, v{dst}""")
    def acc_ne(self, a, b, first):
        if first:
            self(f"v_cmp_ne_u32 s[62:63], {a}, {b}")
        else:
            self(f"""v_cmp_ne_u32 vcc, {a}, {b}
                     s_or_b64 s[62:63], s[62:63], vcc""")
    def verify(self, p, c, first, t=7):
        self.chk(t, p)
        self.acc_ne(f"v{t}", f"v{c}", first)
    def poll_begin(self, dual=False):
        l = self.lab("PL")
        if dual:
            self("""s_mov_b32 s52, s40
                    s_mov_b32 s53, s41
                    s_mov_b32 s54, %d
                    s_mov_b32 s55, 0x20000""" % DLEN)
        self(f"s_mov_b32 s61, 0\n{l}:")
        return l
    def poll_end(self, l, dual=False):
        x = self.lab("PX")
        self(f"""s_cmp_eq_u64 s[62:63], 0
                 s_cbranch_scc1 {x}
                 s_add_u32 s61, s61, 1""")
        if dual:
            self("""s_and_b32 s14, s61, 7
                    s_cmp_eq_u32 s14, 7
                    s_cselect_b32 s52, s56, s40
                    s_cselect_b32 s53, s57, s41""")
        self(f"""s_cmp_lt_u32 s61, {SPIN_MAX}
                 s_cbranch_scc1 {l}
                 {x}:""")
    def xrow(self, op, v, t):
        self(f"""v_mov_b32 v{t}, v{v}
                 s_nop 1
                 v_permlane16_swap_b32 v{v}, v{t}
                 s_nop 0
                 {op} v{v}, v{v}, v{t}
                 v_mov_b32 v{t}, v{v}
                 s_nop 1
                 v_permlane32_swap_b32 v{v}, v{t}
                 s_nop 0
                 {op} v{v}, v{v}, v{t}""")
    def inrow(self, op, v, rors=(8, 4, 2, 1)):
        for r in rors:
            self(f"s_nop 1\n{op}_dpp v{v}, v{v}, v{v} row_ror:{r} {DPP}")
    def wave_sum(self, v, t):
        self.inrow("v_add_f32", v); self.xrow("v_add_f32", v, t)
    def rbf(self, v):
        self(f"v_cvt_pk_bf16_f32 v{v}, v{v}, v{v}\nv_lshlrev_b32 v{v}, 16, v{v}")
    def unpack(self, dst, src):
        self(f"v_lshlrev_b32 v{dst}, 16, v{src}\nv_and_b32 v{dst+1}, 0xffff0000, v{src}")
    def mfma(self, d, a, b, first):
        c = "0" if first else f"v[{d}:{d+3}]"
        self(f"v_mfma_f32_16x16x32_bf16 v[{d}:{d+3}], v[{a}:{a+3}], v[{b}:{b+3}], {c}")
    def pack8(self, p, d):
        for k in range(4):
            self(f"v_cvt_pk_bf16_f32 v{p+k}, v{d+2*k}, v{d+2*k+1}")
    def mask(self, m):
        self(f"s_mov_b32 exec_lo, {m}\ns_mov_b32 exec_hi, {m}")
    def mask_j4(self): self.mask("0x000f000f")
    def unmask(self): self("s_mov_b64 exec, -1")
    def dump(self, base):
        if self.dbg:
            g = self
            g("s_waitcnt lgkmcnt(0)")
            if base == STAMP2:
                lb = g.lab("DB")
                g(f"""v_mov_b32 v239, 0
                      s_not_b32 s13, s76
                      v_writelane_b32 v239, s13, 0
                      v_writelane_b32 v239, s76, 1
                      s_cmp_lt_u32 s3, 4
                      s_cbranch_scc1 {lb}""")
                for lane, k in ((2, 2), (3, 4), (4, 6), (5, 7), (6, 8)):
                    g(f"v_writelane_b32 v239, s{76+2*k}, {lane}")
                g(f"{lb}:")
                for k in range(1, 12): g(f"s_mov_b32 s{76+2*k}, 0")
            else:
                l0, l1, le = g.lab("DB"), g.lab("DB"), g.lab("DB")
                for lane, k in ((7, 9), (8, 10), (9, 11)):
                    g(f"v_writelane_b32 v239, s{76+2*k}, {lane}")
                g(f"""s_cmp_eq_u32 s72, 0
                      s_cbranch_scc1 {l0}
                      s_cmp_eq_u32 s72, 1
                      s_cbranch_scc1 {l1}
                      v_writelane_b32 v239, s78, 14
                      v_writelane_b32 v239, s80, 15
                      s_branch {le}
                      {l0}:
                      v_writelane_b32 v239, s78, 10
                      v_writelane_b32 v239, s82, 11
                      s_branch {le}
                      {l1}:
                      v_writelane_b32 v239, s78, 12
                      v_writelane_b32 v239, s82, 13
                      {le}:""")
                g.srd(44, P_DBG, 256)
                lw, lw2, lz = g.lab("DW"), g.lab("DW"), g.lab("DZ")
                g(f"""{lw}:
                     s_sleep 100
                     s_memrealtime s[78:79]
                     s_waitcnt lgkmcnt(0)
                     s_sub_u32 s13, s78, s76
                     s_cmp_lt_u32 s13, 2600
                     s_cbranch_scc1 {lw}
                     v_lshlrev_b32 v238, 2, v1
                     s_mov_b64 exec, 0xffff
                     buffer_atomic_umax v239, v238, s[44:47], 0 offen sc1
                     s_add_u32 s13, s2, s3
                     s_cmp_lg_u32 s13, 0
                     s_cbranch_scc1 {lz}
                     {lw2}:
                     s_sleep 10
                     s_memrealtime s[78:79]
                     s_waitcnt lgkmcnt(0)
                     s_sub_u32 s13, s78, s76
                     s_cmp_lt_u32 s13, 7000
                     s_cbranch_scc1 {lw2}
                     s_load_dword s80, s[{P_DBG}:{P_DBG+1}], {4*g.dbg} glc
                     s_waitcnt lgkmcnt(0)
                     {lw2}_b:
                     s_memrealtime s[78:79]
                     s_waitcnt lgkmcnt(0)
                     s_sub_u32 s13, s78, s80
                     s_cmp_lt_u32 s13, 8000
                     s_cbranch_scc1 {lw2}_b
                     {lz}:""")
            return
        if self.stamps:
            self("s_waitcnt lgkmcnt(0)")
            for k in range(12):
                self(f"v_mov_b32 v{240+k}, s{76+2*k}")
            self(f"""s_lshl_b32 s13, s2, 3
                  s_add_u32 s13, s13, s3
                  s_lshl_b32 s13, s13, 6
                  s_add_u32 s13, s13, {base}
                  v_mov_b32 v7, 0
                  s_mov_b64 exec, 1
                  buffer_store_dwordx4 v[240:243], v7, s[40:43], s13 offen
                  buffer_store_dwordx4 v[244:247], v7, s[40:43], s13 offen offset:16
                  buffer_store_dwordx4 v[248:251], v7, s[40:43], s13 offen offset:32
                  s_mov_b64 exec, -1""")
            for k in range(1, 12): self(f"s_mov_b32 s{76+2*k}, 0")
    def finish(self):
        if self.hold < 0:
            self("s_endpgm"); return
        if self.hold:
            l = self.lab("HD")
            self(f"""{l}:
                  s_memrealtime s[78:79]
                  s_waitcnt lgkmcnt(0)
                  s_sub_u32 s13, s78, s76
                  s_cmp_lt_u32 s13, {self.hold}
                  s_cbranch_scc1 {l}
                  s_endpgm""")
            return
        self.dump(STAMP)
        self("s_endpgm")

L_ML = L_FL + 64
L_QC = L_MX
F_MODE = 56
def lstore(g, instrs):
    lg, le = g.lab("LG"), g.lab("LE")
    g(f"s_cmp_lg_u32 s{MODE}, 1\ns_cbranch_scc1 {lg}")
    for x in instrs: g(x)
    g(f"s_branch {le}\n{lg}:")
    for x in instrs: g(x + " sc1" if x.startswith("buffer_store") else x)
    g(f"{le}:")
def tag_load(g): g(f"s_load_dword s11, s[{P_WS}:{P_WS+1}], {EPOCH}")
def tag_fin(g):
    g(f"""s_waitcnt lgkmcnt(0)
          s_mul_i32 s11, s11, {HASH_A}
          s_add_u32 s11, s11, {HASH_C}""")

def prologue(g):
    g(f"""s_cmp_ge_u32 s2, 256
          s_cbranch_scc1 L_end
          s_load_dwordx16 s[16:31], s[0:1], 0
          s_load_dwordx8 s[32:39], s[0:1], 64
          s_getpc_b64 s[48:49]
          L_pc:
          s_and_b32 s49, s49, 0xffff
          s_mov_b32 s50, L_code_end-L_pc
          s_mov_b32 s51, 0x20000
          v_lshlrev_b32 v1, 4, v0
          s_and_b32 s13, s2, 24
          s_lshl_b32 s13, s13, 10
          buffer_load_dwordx4 v[252:255], v1, s[48:51], s13 offen""")
    if g.stamps:
        for k in range(12): g(f"s_mov_b32 s{76+2*k}, 0")
    g.stamp(0)
    if g.hold: g("s_memrealtime s[76:77]")
    g(f"""v_lshrrev_b32 v2, 6, v0
          v_and_b32 v1, 63, v0
          s_and_b32 s4, s2, 7
          v_readfirstlane_b32 s3, v2
          s_lshr_b32 s5, s2, 3
          s_lshr_b32 s6, s5, 3
          s_lshl2_add_u32 s6, s4, s6
          s_and_b32 s7, s5, 7
          v_lshrrev_b32 v3, 4, v1
          v_and_b32 v9, 7, v1
          v_xor_b32 v9, v9, v3
          v_and_b32 v2, 1, v2
          v_lshlrev_b32 v2, 2, v2
          v_xor_b32 v9, v2, v9
          v_lshlrev_b32 v9, 4, v9
          v_lshrrev_b32 v10, 3, v1
          v_lshl_add_u32 v9, v10, 13, v9
          s_and_b32 s12, s3, 3
          v_and_b32 v2, 15, v1
          s_and_b32 s9, s5, 1
          s_cmp_ge_u32 s3, 4
          s_cbranch_scc1 L_pwave""")

def ids2(g):
    g(f"""s_lshr_b32 s8, s4, 1
          s_and_b32 s10, s4, 1
          s_lshl_b32 s10, s10, 4
          s_lshr_b32 s13, s5, 1
          s_add_u32 s10, s10, s13
          v_mov_b32 v4, {L_FL}
          v_mov_b32 v5, 1
          v_lshlrev_b32 v14, 4, v2
          v_lshl_add_u32 v14, v3, 2, v14
          v_lshlrev_b32 v15, 2, v14""")

def role_decode(g):
    l6, l7, ld, lhi = g.lab("R6"), g.lab("R7"), g.lab("RD"), g.lab("RH")
    g(f"""s_mov_b32 s72, 0
          s_mov_b32 s73, s5
          s_cmp_lt_u32 s5, 20
          s_cbranch_scc1 {ld}
          s_sub_u32 s13, s5, 20
          s_cmp_ge_u32 s4, 2
          s_cbranch_scc1 {lhi}
          s_lshl3_add_u32 s73, s4, s13
          s_cmp_lt_u32 s13, 8
          s_cbranch_scc1 {l7}
          s_lshl2_add_u32 s73, s4, s13
          s_sub_u32 s73, s73, 8
          s_branch {l6}
          {lhi}:
          s_lshl2_add_u32 s73, s4, s13
          s_add_u32 s73, s73, 8
          s_cmp_lt_u32 s13, 4
          s_cbranch_scc1 {l7}
          s_lshl3_add_u32 s73, s4, s13
          s_sub_u32 s73, s73, 12
          {l6}:
          s_mov_b32 s72, 1
          s_cmp_lt_u32 s73, 54
          s_cbranch_scc1 {ld}
          s_mov_b32 s72, 3
          s_branch {ld}
          {l7}:
          s_mov_b32 s72, 2
          {ld}:""")

def tr_lane(g, dst, t1, t2, swap=False):
    g(f"""v_lshrrev_b32 v{t1}, 2, v1
          v_and_b32 v{t1}, 3, v{t1}
          v_and_b32 v{t2}, 1, v3
          v_lshlrev_b32 v{t2}, 2, v{t2}""")
    if swap: g(f"v_or_b32 v{t1}, v{t1}, v{t2}")
    g(f"""v_and_b32 v{dst}, 3, v1
          v_xor_b32 v{dst}, v{dst}, v{t2}
          v_lshrrev_b32 v{t2}, 1, v{t1}
          v_xor_b32 v{dst}, v{dst}, v{t2}
          v_lshlrev_b32 v{dst}, 4, v{dst}
          v_lshl_add_u32 v{dst}, v{t1}, 7, v{dst}
          v_lshl_add_u32 v{dst}, v3, 10, v{dst}""")

def swave_front(g):
    g(f"""s_lshr_b32 s14, s7, 1
          s_mul_i32 s64, s14, 160
          s_lshl3_add_u32 s64, s12, s64
          s_lshl_b32 s64, s64, 13
          s_lshl_b32 s13, s6, 8
          s_add_u32 s64, s64, s13
          s_lshl_b32 s71, s9, 7
          s_add_u32 s64, s64, s71
          s_lshl_b32 s68, s14, 7
          s_lshl3_add_u32 s68, s12, s68
          s_lshl_b32 s68, s68, 13
          s_add_u32 s68, s68, s13
          s_lshl_b32 s67, s12, 10
          v_mov_b32 v6, 0
          v_lshlrev_b32 v13, 2, v1
          v_add_u32 v10, {L_FL}, v13
          s_mov_b64 exec, 0xffff
          ds_write_b32 v10, v6
          s_mov_b64 exec, -1
          s_mov_b32 s50, 5242880
          s_mov_b32 s70, s9
          s_mov_b32 s71, 0
          s_mov_b64 vcc, s[70:71]
          s_waitcnt lgkmcnt(0)
          s_mov_b32 s48, s{P_WQ}
          s_and_b32 s49, s{P_WQ+1}, 0xffff
          s_barrier""")
    for k in range(5):
        g(f"""s_add_u32 m0, s67, {L_WQ + k*4096}
              s_add_u32 s13, s64, {k*262144}
              buffer_load_dwordx4 v9, s[48:51], s13 offen nt lds""")
    ids2(g)
    g.srd(48, P_WUK, 4194304)
    g(f"""s_lshl_b32 s69, s12, 15
          s_cbranch_vccnz L_s_setup""")
    for k in range(g.wa - 5):
        kk, ch = k >> 1, k & 1
        g(f"""s_add_u32 m0, s69, {24576 + kk*2048 + ch*1024}
              s_add_u32 s13, s68, {kk*262144 + ch*128}
              buffer_load_dwordx4 v9, s[48:51], s13 offen nt lds""")
    g("L_s_setup:")
    tag_load(g)
    g.srd(44, P_CKV, 16777216)
    g.ws_srds()
    g(f"""s_lshl_b32 s65, s12, 15
          v_lshrrev_b32 v10, 3, v1
          v_lshrrev_b32 v11, 1, v10
          v_and_b32 v11, 1, v11
          v_and_b32 v12, 4, v10
          v_or_b32 v11, v11, v12
          v_and_b32 v12, 7, v1
          v_xor_b32 v11, v11, v12
          v_lshlrev_b32 v11, 4, v11
          v_lshl_add_u32 v7, v10, 10, v11
          v_xor_b32 v8, 32, v7
          v_add_u32 v8, 8192, v8
          s_lshl_b32 s64, s8, 22
          s_lshl_b32 s13, s10, 17
          s_add_u32 s64, s64, s13
          s_add_u32 s64, s64, s65
          v_lshrrev_b32 v11, 1, v2
          v_and_b32 v11, 1, v11
          v_lshrrev_b32 v12, 3, v2
          v_lshl_or_b32 v11, v12, 1, v11
          v_and_b32 v10, 4, v2
          v_or_b32 v11, v11, v10
          v_xor_b32 v11, v11, v3
          v_lshlrev_b32 v11, 4, v11
          v_and_b32 v10, 7, v2
          v_lshl_add_u32 v11, v10, 7, v11
          v_lshl_add_u32 v11, v12, 10, v11
          v_add_u32 v11, s65, v11
          s_cmp_eq_u32 s9, 0
          s_cselect_b32 s74, {512 if g.xr else 0}, 0
          s_lshl_b32 s13, s74, 4
          s_sub_u32 s66, s64, s74
          s_add_u32 s64, s64, s74
          s_sub_u32 s67, s65, s13
          s_add_u32 s65, s65, s13
          s_sub_u32 s14, 8192, s13
          v_add_u32 v34, s14, v11
          v_add_u32 v11, s13, v11
          v_xor_b32 v12, 64, v11
          v_xor_b32 v35, 64, v34
          v_mov_b32 v17, 0""")
    g.stamp(1)
    g("s_cbranch_vccnz L_s_ckv")
    fa = False
    for k in range(g.wa - 5, 8):
        kk, ch = k >> 1, k & 1
        g(f"s_waitcnt vmcnt({g.wa-1})")
        if not fa and 5 + k - g.wa >= 4:
            g.flag_add(F_A); fa = True
        g(f"""s_add_u32 m0, s69, {24576 + kk*2048 + ch*1024}
              s_add_u32 s13, s68, {kk*262144 + ch*128}
              buffer_load_dwordx4 v9, s[48:51], s13 offen nt lds""")
    if not fa:
        g("s_waitcnt vmcnt(8)")
        g.flag_add(F_A)
    g(f"""v_lshlrev_b32 v16, 4, v2
          v_add_u32 v16, {L_QC}, v16
          v_lshrrev_b32 v17, 2, v2
          v_lshlrev_b32 v17, 13, v17
          v_and_b32 v18, 3, v2
          v_lshl_add_u32 v17, v18, 4, v17
          s_lshr_b32 s13, s7, 1
          s_lshl2_add_u32 s69, s6, s13
          s_lshl_b32 s69, s69, 6
          s_add_u32 s69, s69, {QAC}
          s_waitcnt vmcnt({max(g.qe, 1)})""")
    g.flag_add(F_UR)
    g("s_waitcnt vmcnt(0)")
    g.flag_add(F_UK)
    g("s_branch L_s_ckv")

def pwave(g):
    g(f"""L_pwave:
          v_lshlrev_b32 v7, 4, v1
          v_lshlrev_b32 v8, 2, v1
          s_mul_i32 s64, s12, 1280
          s_mov_b32 s46, 5120
          s_mov_b32 s47, 0x20000
          {"s_setprio 3" if g.prio else ""}
          s_waitcnt lgkmcnt(0)
          s_mov_b32 s44, s{P_X}
          s_and_b32 s45, s{P_X+1}, 0xffff
          buffer_load_dwordx4 v[16:19], v7, s[44:47], s64 offen
          buffer_load_dword v20, v8, s[44:47], s64 offen offset:1024
          s_barrier""")
    tag_load(g)
    g.ws_srds()
    ids2(g)
    g(f"""s_lshl_b32 s68, s6, 10
          s_lshr_b32 s69, s7, 1
          s_and_b32 s14, s12, 1
          s_lshl1_add_u32 s14, s9, s14
          s_lshl2_add_u32 s14, s14, s69
          s_lshl_b32 s14, s14, 6
          s_add_u32 s66, s68, s14
          s_lshl_b32 s65, s66, 2
          s_lshl_b32 s67, s68, 2
          s_add_u32 s65, s65, {QP}
          s_add_u32 s66, s66, {QPC}
          s_add_u32 s67, s67, {QP}
          s_add_u32 s68, s68, {QPC}
          s_cmp_lt_u32 s12, 2
          s_cbranch_scc1 L_p_x0""")
    g.mask_j4()
    g(f"""buffer_load_dword v250, v15, s[40:43], s65 offen sc1
          buffer_load_dword v251, v14, s[40:43], s66 offen sc1
          s_mov_b64 exec, -1
          s_waitcnt vmcnt(2)
          s_branch L_p_x1
          L_p_x0:
          s_waitcnt vmcnt(0)
          L_p_x1:""")
    g.stamp(1)
    for k in range(5): g.unpack(24+2*k, 16+k)
    g(f"""v_add_f32 v34, v24, v25
          v_add_f32 v35, v26, v27
          v_add_f32 v36, v28, v29
          v_add_f32 v37, v30, v31
          v_add_f32 v38, v32, v33
          v_add_f32 v34, v34, v35
          v_add_f32 v36, v36, v37
          v_add_f32 v34, v34, v38
          v_add_f32 v34, v34, v36""")
    g.wave_sum(34, 35)
    g(f"v_mul_f32 v34, {f32(1/640)}, v34")
    g("v_sub_f32 v36, v24, v34\nv_mul_f32 v35, v36, v36")
    for k in range(1, 10):
        g(f"v_sub_f32 v36, v{24+k}, v34\nv_fmac_f32 v35, v36, v36")
    g.wave_sum(35, 36)
    g(f"v_mul_f32 v35, {f32(1/640)}, v35")
    g.rbf(35)
    g(f"v_add_f32 v35, {f32(1e-5)}, v35")
    g.rbf(35)
    g("v_sqrt_f32 v35, v35")
    g.rbf(34)
    g.rbf(35)
    g("v_rcp_f32 v35, v35")
    for k in range(10): g(f"v_sub_f32 v{24+k}, v{24+k}, v34")
    for k in range(5): g(f"v_cvt_pk_bf16_f32 v{16+k}, v{24+2*k}, v{25+2*k}")
    for k in range(5): g.unpack(24+2*k, 16+k)
    for k in range(10): g(f"v_mul_f32 v{24+k}, v{24+k}, v35")
    for k in range(5): g(f"v_cvt_pk_bf16_f32 v{16+k}, v{24+2*k}, v{25+2*k}")
    g(f"""s_add_u32 s13, s64, {L_XN}
          v_add_u32 v7, s13, v7
          v_add_u32 v8, s13, v8
          ds_write_b128 v7, v[16:19]
          ds_write_b32 v8, v20 offset:1024""")
    g.flag_add(F_A)
    tr_lane(g, 11, 10, 12)
    g(f"""s_and_b32 s13, s12, 1
          s_lshl_b32 s13, s13, 6
          v_xor_b32 v11, s13, v11
          v_add_u32 v11, {L_WQ}, v11
          v_xor_b32 v12, 0x220, v11
          v_and_b32 v13, 3, v2
          v_mul_u32_u24 v13, 1280, v13
          v_lshl_add_u32 v13, v3, 4, v13
          s_mul_i32 s13, s69, 320
          s_add_u32 s13, s13, {L_XN}
          v_add_u32 v13, s13, v13""")
    g(f"""v_lshlrev_b32 v24, 15, v2
          v_lshl_add_u32 v24, v3, 4, v24
          v_lshlrev_b32 v34, 6, v2
          v_lshl_add_u32 v34, v3, 2, v34
          s_lshl_b32 s13, s12, 4
          s_add_u32 s13, s13, {L_QC}
          v_add_u32 v34, s13, v34
          v_and_b32 v7, 4, v2
          s_lshl2_add_u32 s13, s69, s12
          s_lshl_b32 s13, s13, 6
          s_lshl_b32 s70, s6, 10
          s_add_u32 s70, s70, s13
          s_add_u32 s70, s70, {QA}
          v_lshrrev_b32 v26, 2, v2
          v_and_b32 v27, 3, v2
          v_lshrrev_b32 v25, 1, v27
          v_xor_b32 v25, v25, v3
          v_xor_b32 v25, v25, v7
          v_lshlrev_b32 v25, 4, v25
          v_lshl_add_u32 v25, v27, 7, v25
          v_lshl_add_u32 v25, v26, 15, v25
          s_lshl_b32 s13, s12, 11
          s_add_u32 s13, s13, 24576
          v_add_u32 v25, s13, v25
          v_xor_b32 v26, 64, v25
          v_xor_b32 v27, 0x220, v25
          v_xor_b32 v28, 0x260, v25
          s_mov_b32 s52, s40
          s_mov_b32 s53, s41
          s_mov_b32 s54, {DLEN}
          s_mov_b32 s55, 0x20000
          s_mov_b32 s61, 0""")
    tag_fin(g)
    g(f"""s_cmp_lt_u32 s12, 2
          s_cbranch_scc1 L_p_s1
          s_cmp_lg_u32 s12, 3
          s_cbranch_scc1 L_p_nos1
          s_getreg_b32 s13, hwreg(HW_REG_XCC_ID, 0, 4)
          s_add_u32 s13, s13, s11
          v_mov_b32 v16, s13
          v_mov_b32 v17, s13
          v_mov_b32 v18, s13
          v_mov_b32 v19, s13
          v_lshlrev_b32 v22, 4, v1
          s_lshl_b32 s13, s4, 5
          s_add_u32 s13, s13, s5
          s_lshl_b32 s13, s13, 7
          s_add_u32 s13, s13, {IDT}
          s_mov_b64 exec, 0xff
          buffer_store_dwordx4 v[16:19], v22, s[40:43], s13 offen sc1
          s_mov_b64 exec, -1
          s_branch L_p_nos1
          L_p_s1:""")
    g.flag_wait(F_A, 8)
    g.stamp(2)
    def s1_reads(t):
        g(f"ds_read_b128 v[{36+4*t}:{39+4*t}], v13 offset:{t*64}")
        for e in range(2):
            r = 96 + 8*t + 4*e
            g(f"ds_read_b64_tr_b16 v[{r}:{r+1}], v11 offset:{t*4096+e*8}")
            g(f"ds_read_b64_tr_b16 v[{r+2}:{r+3}], v12 offset:{t*4096+e*8}")
    s1_reads(0); s1_reads(1); s1_reads(2)
    for t in range(5):
        rem = min(5, t+3) - (t+1)
        g(f"s_waitcnt lgkmcnt({rem*5})")
        for e in range(2): g.mfma(56+4*e, 96+8*t+4*e, 36+4*t, t == 0)
        if t + 3 < 5: s1_reads(t+3)
    g.nop(6)
    g.mask_j4()
    g.pack8(16, 56)
    g.chk(20, 16)
    g(f"""buffer_store_dwordx4 v[16:19], v15, s[40:43], s65 offen
          buffer_store_dword v20, v14, s[40:43], s66 offen""")
    g.flag_add(F_S1)
    g.stamp(3)
    g("L_p_nos1:")
    def qdual():
        lq = g.lab("QD")
        g(f"s_cmp_ge_u32 s12, 2\ns_cbranch_scc1 {lq}")
        g.mask_j4()
        g(f"""buffer_store_dwordx4 v[16:19], v15, s[56:59], s65 offen sc1
              buffer_store_dword v20, v14, s[56:59], s66 offen sc1
              s_mov_b64 exec, -1
              {lq}:""")
    g("s_cmp_lg_u32 s9, 0\ns_cbranch_scc1 L_p_qd")
    def qloads():
        for t in range(4):
            g(f"buffer_load_dwordx4 v[{36+4*t}:{39+4*t}], v15, s[52:55], s67 offen offset:{t*1024} sc1")
        for t in range(4):
            g(f"buffer_load_dword v{52+t}, v14, s[52:55], s68 offen offset:{t*256} sc1")
    if g.qe:
        g.flag_wait(F_UR, 4)
        qloads()
    g.flag_wait(F_UK, 4)
    g.stamp(9)
    for e in range(2):
        for t in range(4):
            r = 64 + 16*e + 4*t
            g(f"ds_read_b128 v[{r}:{r+3}], v{25+2*e+(t&1)} offset:{(t>>1)*1024}")
    l, lnd, lsk = g.lab("PL"), g.lab("ND"), g.lab("SK")
    g("s_mov_b64 s[62:63], -1")
    if g.qe: g(f"s_branch {lsk}")
    g(f"""{l}:
          s_cmp_lg_u32 s61, 3
          s_cbranch_scc1 {lnd}""")
    qdual()
    g(f"{lnd}:\ns_mov_b64 exec, s[62:63]")
    qloads()
    g(f"s_mov_b64 exec, -1\n{lsk}:\ns_waitcnt vmcnt(4) lgkmcnt(0)")
    for t in range(4):
        for e in range(2): g.mfma(56+4*e, 64+16*e+4*t, 36+4*t, t == 0)
    g("s_waitcnt vmcnt(0)")
    for t in range(4): g.verify(36+4*t, 52+t, t == 0)
    g.poll_end(l, dual=True)
    g.count(10)
    for r in (4, 8):
        for k in range(8): g(f"v_add_f32_dpp v{56+k}, v{56+k}, v{56+k} row_ror:{r} {DPP}")
    g.mask_j4()
    g.pack8(28, 56)
    g("buffer_store_dwordx4 v[28:31], v24, s[40:43], s70 offen sc1")
    g.chk(32, 28)
    g("ds_write_b32 v34, v32")
    g.flag_add(F_GO)
    g.stamp(4)
    lnd, lm = g.lab("ND"), g.lab("MD")
    g(f"""L_p_qd:
          s_cmp_lg_u32 s12, 3
          s_cbranch_scc1 {lm}
          s_lshl_b32 s64, s4, 12
          s_add_u32 s64, s64, {IDT}
          s_getreg_b32 s71, hwreg(HW_REG_XCC_ID, 0, 4)
          v_lshlrev_b32 v34, 7, v1""")
    g.flag_wait(F_S1, 2)
    g("s_mov_b32 exec_hi, 0")
    l = g.poll_begin()
    g(f"""buffer_load_dword v35, v34, s[40:43], s64 offen sc1
          s_waitcnt vmcnt(0)
          v_subrev_u32 v35, s11, v35
          v_cmp_lt_u32 s[62:63], 15, v35""")
    g.poll_end(l)
    g(f"""v_cmp_ne_u32 vcc, s71, v35
          s_cmp_eq_u64 vcc, 0
          s_cselect_b32 s13, 1, 2
          v_mov_b32 v35, s13
          ds_write_b32 v4, v35 offset:{F_MODE}
          s_mov_b64 exec, -1
          {lm}:""")
    g.flag_wait(F_MODE, 1)
    g(f"""s_cmp_eq_u32 s14, 1
          s_cbranch_scc1 {lnd}""")
    qdual()
    g(f"{lnd}:\ns_mov_b32 s{MODE}, s14\ns_nop 1")
    g(f"""v_lshrrev_b32 v10, 2, v1
          v_and_b32 v10, 3, v10
          v_and_b32 v11, 3, v1
          v_lshrrev_b32 v12, 1, v10
          v_and_b32 v13, 2, v3
          v_or_b32 v12, v12, v13
          v_and_b32 v13, 1, v3
          v_lshl_or_b32 v12, v13, 2, v12
          v_xor_b32 v12, v12, v11
          v_lshlrev_b32 v12, 4, v12
          v_lshl_or_b32 v13, v13, 2, v10
          v_lshl_add_u32 v12, v13, 7, v12
          v_lshrrev_b32 v13, 1, v3
          v_lshl_add_u32 v12, v13, 10, v12
          v_and_b32 v13, 1, v11
          v_lshl_add_u32 v12, v13, 3, v12
          s_lshl_b32 s13, s12, 12
          v_add_u32 v20, s13, v12
          v_xor_b32 v21, 8, v20
          v_xor_b32 v22, 64, v20
          v_xor_b32 v23, 0x48, v20
          v_add_u32 v24, 0x10000, v20
          v_add_u32 v25, 0x10000, v21
          v_add_u32 v26, 0x10000, v22
          v_add_u32 v27, 0x10000, v23
          v_lshlrev_b32 v28, 4, v1
          v_lshlrev_b32 v33, 2, v1
          s_lshl2_add_u32 s13, s9, s12
          s_lshl3_add_u32 s13, s8, s13
          s_lshl_b32 s65, s13, 12
          s_add_u32 s65, s65, {QA}
          s_lshl_b32 s66, s13, 10
          s_add_u32 s66, s66, {QAC}""")
    for n in range(4):
        g(f"""s_lshl2_add_u32 s13, s12, {n}
              s_lshl_b32 s14, s13, 4
              v_xor_b32 v{29+n}, s14, v28
              s_lshl_b32 s13, s13, 10
              s_add_u32 s13, s13, {L_QA}
              v_add_u32 v{29+n}, s13, v{29+n}""")
    role_decode(g)
    def gather_loads():
        for n in range(4):
            g(f"buffer_load_dwordx4 v[{64+4*n}:{67+4*n}], v28, s[40:43], s65 offen offset:{n*1024} sc1")
        for n in range(4):
            g(f"buffer_load_dword v{80+n}, v33, s[40:43], s66 offen offset:{n*256} sc1")
    def pv_pre(tile):
        for sw in range(4):
            for tp in range(4):
                for e in range(2):
                    r = 128 + ((tp*2+e)*4 + sw)*4 + 2*tile
                    a = 20 + (tp & 1)*2 + e + (4 if sw >= 2 else 0)
                    off = (sw & 1)*32768 + tile*16384 + (tp >> 1)*2048
                    g(f"ds_read_b64_tr_b16 v[{r}:{r+1}], v{a} offset:{off}")
    lg2 = g.lab("GB")
    g.flag_wait(F_G2, 4)
    g.stamp(5)
    gather_loads()
    g.flag_wait(F_T0, 4)
    pv_pre(0)
    g("s_waitcnt lgkmcnt(0)")
    g.flag_add(F_RD)
    l = g.lab("PL")
    g(f"""s_mov_b32 s61, 0
          s_branch {lg2}
          {l}:
          s_mov_b64 exec, s[62:63]""")
    gather_loads()
    g(f"s_mov_b64 exec, -1\n{lg2}:\ns_waitcnt vmcnt(0)")
    for n in range(4): g.verify(64+4*n, 80+n, n == 0)
    g.poll_end(l)
    g.count(11)
    g.flag_wait(F_S1, 2)
    for n in range(4): g(f"ds_write_b128 v{29+n}, v[{64+4*n}:{67+4*n}]")
    g.flag_add(F_QA)
    if g.prio: g("s_setprio 0")
    g.stamp(6)
    g(f"""v_lshlrev_b32 v29, {7 if g.opl else 6}, v2
          v_lshl_add_u32 v29, v3, 4, v29
          s_lshl2_add_u32 s65, s9, s8
          s_lshl_b32 s65, s65, 5
          s_add_u32 s65, s65, s10
          s_mul_i32 s65, s65, {OBLK}
          s_add_u32 s65, s65, {OP}
          s_lshl_b32 s13, s12, 10
          s_add_u32 s67, s65, s13
          s_add_u32 s67, s67, 16384
          s_lshl_b32 s13, s12, 12
          s_add_u32 s65, s65, s13
          v_add_u32 v31, {L_P}, v28
          v_lshlrev_b32 v30, 4, v2
          v_add_u32 v30, {L_MX}, v30
          v_add_u32 v32, {L_SM}, v15
          s_mov_b32 s60, {f32(SCALE)}""")
    g.srd(48, P_WUV, 4194304)
    g(f"""s_lshl_b32 s69, s7, 6
          s_lshl3_add_u32 s69, s12, s69
          s_lshl_b32 s69, s69, 13
          s_lshl_b32 s13, s6, 8
          s_add_u32 s69, s69, s13
          s_lshl_b32 s70, s12, 10""")
    g("s_mov_b32 s74, s69\ns_mov_b32 s75, s70")
    def uv_dma():
        for k in range(2):
            for ch in range(2):
                g(f"""s_add_u32 m0, s75, {L_WUV + ch*8192 + k*4096}
                      s_add_u32 s13, s74, {k*262144 + ch*128}
                      buffer_load_dwordx4 v9, s[48:51], s13 offen nt lds""")
    g.flag_wait(F_RD, 4)
    g.flag_wait(F_S2, 4)
    if not g.uv: uv_dma()
    lpt = g.lab("PT")
    g(f"""s_cmp_lg_u32 s72, 0
          s_cbranch_scc1 {lpt}
          v_lshlrev_b32 v116, 2, v2
          s_mul_i32 s13, s12, 1280
          s_lshl_b32 s14, s73, 6
          s_add_u32 s13, s13, s14
          buffer_load_dword v120, v116, s[44:47], s13 offen
          s_mul_i32 s13, s4, 20
          s_add_u32 s13, s13, s73
          s_mul_i32 s13, s13, 384
          s_lshl_b32 s14, s12, 7
          s_min_u32 s14, s14, 256
          s_add_u32 s13, s13, s14
          s_add_u32 s13, s13, {HR}
          buffer_load_dword v121, v116, s[40:43], s13 offen sc1
          {lpt}:""")
    early_setup(g)
    if g.sa == 2: early_dma(g)
    g.flag_wait(F_T1, 4)
    pv_pre(1)
    if g.sa == 1: early_dma(g)
    if g.sa == 0: g("s_lshl_b32 s70, s70, 1")
    g("s_waitcnt lgkmcnt(0)\ns_barrier")
    g.stamp(7)
    for sw in range(4):
        g(f"ds_read_b128 v[{36+4*sw}:{39+4*sw}], v31 offset:{sw*1024}")
    g("ds_read_b128 v[52:55], v30\nds_read_b128 v[56:59], v32")
    def pv_out(tp):
        p = 96 + 4*tp
        g.pack8(p, 64+8*tp)
        g(f"buffer_store_dwordx4 v[{p}:{p+3}], v29, s[40:43], s65 offen offset:{((tp>>1)*2048+(tp&1)*64) if g.opl else tp*1024} sc1")
        c = 114 + (tp >> 1)
        g(f"v_add3_u32 v{c}, v{p}, v{p+1}, {'v60' if tp % 2 == 0 else f'v{c}'}\nv_add3_u32 v{c}, v{p+2}, v{p+3}, v{c}")
    for tp in range(4):
        for sw in range(4):
            if tp == 0: g(f"s_waitcnt lgkmcnt({5-sw})")
            for e in range(2): g.mfma(64+8*tp+4*e, 128+((tp*2+e)*4+sw)*4, 36+4*sw, sw == 0)
            if tp == 1 and sw == 0:
                g("""s_waitcnt lgkmcnt(0)
                     v_max3_f32 v112, v52, v53, v54
                     v_add_f32 v56, v56, v57
                     v_add_f32 v58, v58, v59
                     v_max_f32 v112, v112, v55
                     v_add_f32 v113, v56, v58""")
            if tp == 1 and sw == 1:
                g("""v_mul_f32 v112, s60, v112
                     v_mov_b32 v56, v113
                     s_nop 1
                     v_permlane16_swap_b32 v113, v56""")
            if tp == 1 and sw == 2:
                g("""v_add_f32 v113, v113, v56
                     v_mov_b32 v56, v113
                     s_nop 1
                     v_permlane32_swap_b32 v113, v56""")
            if tp == 1 and sw == 3:
                g("""v_add_f32 v113, v113, v56
                     v_add3_u32 v60, v112, v113, s11""")
        if tp >= 1: pv_out(tp-1)
    g.nop(2)
    pv_out(3)
    g("buffer_store_dwordx4 v[112:115], v15, s[40:43], s67 offen sc1")
    g.stamp(8)
    if g.uv: uv_dma()
    if not g.sb: early_dma(g)
    else: g("s_mov_b32 s52, s70\ns_mov_b32 s53, s71")
    g("s_branch L_s4")

def early_setup(g):
    le = g.lab("EE")
    g(f"""s_mov_b32 s70, 0
          s_lshl_b32 s71, s12, 10
          s_add_u32 s71, s71, {L_WR}""")
    g.srd(44, P_WO, 5242880)
    g(f"""v_lshrrev_b32 v119, 3, v1
          v_mul_u32_u24 v119, 1280, v119
          v_and_b32 v7, 0x70, v9
          v_add_u32 v119, v119, v7
          s_and_b32 s13, s73, 1
          s_lshl1_add_u32 s13, s4, s13
          s_lshl_b32 s13, s13, 5
          s_add_u32 s13, s13, s12
          s_mul_i32 s68, s13, {8*1280}
          s_lshr_b32 s13, s73, 1
          s_lshl_b32 s13, s13, 7
          s_add_u32 s68, s68, s13
          s_mov_b32 s69, {32*1280}
          s_cmp_ge_u32 s72, 2
          s_cbranch_scc1 {le}
          s_mov_b32 s70, 4
          s_cmp_eq_u32 s72, 0
          s_cbranch_scc1 {le}""")
    g.srd(44, P_W1, 2211840)
    g(f"""v_lshrrev_b32 v119, 2, v1
          v_mul_u32_u24 v119, 3456, v119
          v_and_b32 v7, 3, v1
          v_lshl_add_u32 v119, v7, 4, v119
          s_mul_i32 s68, s12, {16*3456}
          s_lshl_b32 s13, s73, 6
          s_add_u32 s68, s68, s13
          s_mov_b32 s69, {64*3456}
          s_mov_b32 s70, {g.c1}
          {le}:""")
def early_dma(g):
    l, le = g.lab("ED"), g.lab("EX")
    g(f"""s_mov_b32 s13, s70
          s_cmp_eq_u32 s70, 0
          s_cbranch_scc1 {le}
          {l}:
          s_mov_b32 m0, s71
          s_add_u32 s71, s71, 4096
          buffer_load_dwordx4 v119, s[44:47], s68 offen nt lds
          s_add_u32 s68, s68, s69
          s_sub_u32 s13, s13, 1
          s_cmp_lg_u32 s13, 0
          s_cbranch_scc1 {l}
          {le}:""")

def swave(g, W):
    g("L_s_ckv:")
    def areads(m):
        tile, u = m >> 3, m & 7
        for tl in range(2):
            t = 2*u + tl
            r = 64 + 64*tile + 4*t
            g(f"ds_read_b128 v[{r}:{r+3}], v{(11 if u < 4 else 34)+tl} offset:{tile*16384+(u&3)*2048}")
    done = 0
    for k in range(32):
        if k == g.npa:
            lb = g.lab("GO")
            g(f"s_cbranch_vccnz {lb}")
            g.flag_wait(F_GO, 4)
            g(f"""s_cmp_lg_u32 s12, 0
                  s_cbranch_scc1 {lb}
                  ds_read_b128 v[20:23], v16
                  s_mov_b64 exec, 0xffff
                  s_waitcnt vmcnt(0) lgkmcnt(0)
                  buffer_store_dwordx4 v[20:23], v17, s[40:43], s69 offen sc1
                  s_mov_b64 exec, -1
                  {lb}:""")
        if k < g.wsw:
            lb = g.lab("SB")
            g(f"s_cbranch_vccz {lb}\ns_waitcnt vmcnt({g.we-1})")
            if k == g.we - 1: g.flag_add(F_A)
            g(f"{lb}:")
        if k >= W: g(f"s_waitcnt vmcnt({W-1})")
        landed = k - W
        tile, u, kh = k >> 4, (k >> 1) & 7, k & 1
        g(f"""s_add_u32 m0, s{65 if u < 4 else 67}, {k*1024}
              s_add_u32 s13, s{64 if u < 4 else 66}, {tile*16384 + u*128}
              buffer_load_dwordx4 v{7+kh}, s[44:47], s13 offen lds""")
        if k == 31: g.flag_add(F_S2)
        if k == g.ga:
            lb = g.lab("SB"); g(f"s_cbranch_vccnz {lb}"); g.flag_add(F_G2); g(f"{lb}:")
        if k == g.gb:
            lb = g.lab("SB"); g(f"s_cbranch_vccz {lb}"); g.flag_add(F_G2); g(f"{lb}:")
        while 2*done + 1 <= landed:
            areads(done); done += 1
            if done == 8:
                tag_fin(g)
                g.flag_add(F_T0)
                g.stamp(2)
    for tl in range(4):
        g(f"""v_or_b32 v13, {4*tl}, v3
              v_xor_b32 v13, v13, v2
              v_lshlrev_b32 v13, 4, v13
              v_lshl_add_u32 v13, v2, 10, v13
              v_add_u32 v13, {L_QA}, v13
              v_add_u32 v{16+tl}, s74, v13
              v_subrev_u32 v{36+tl}, s74, v13""")
    g(f"""v_lshlrev_b32 v20, 4, v2
          v_add_u32 v20, {L_MX}, v20
          s_lshl_b32 s13, s12, 2
          v_add_u32 v21, s13, v20
          v_lshlrev_b32 v22, 4, v1
          s_lshl_b32 s13, s12, 10
          s_add_u32 s13, s13, {L_P}
          v_add_u32 v22, s13, v22
          s_mov_b32 s60, {f32(SCALE)}
          v_lshlrev_b32 v23, 6, v2
          v_lshl_add_u32 v23, v3, 2, v23
          s_lshl_b32 s13, s12, 4
          s_add_u32 s13, s13, {L_SM}
          v_add_u32 v23, s13, v23""")
    if g.fl:
        g(f"""v_mul_u32_u24 v32, {8*FSTR}, v1
              v_mov_b32 v33, s11
              s_lshl_b32 s66, s9, 5
              s_add_u32 s66, s66, s4
              s_mul_i32 s66, s66, {FSTR}
              s_lshr_b32 s13, s5, 1
              s_lshl2_add_u32 s66, s13, s66
              s_add_u32 s66, s66, {FL3}""")
    role_decode(g)
    if g.prio: g("s_setprio 2")
    g.stamp(3)
    def qa_reads():
        for t in range(16):
            g(f"ds_read_b128 v[{192+4*t}:{195+4*t}], v{(16 if t < 8 else 36)+(t&3)} offset:{(t>>2)*256}")
    g.flag_wait(F_QA, 4)
    g.stamp(4)
    qa_reads()
    for t in range(16):
        g(f"s_waitcnt lgkmcnt({15-t})")
        g.mfma(56, 64+4*t, 192+4*t, t == 0)
    first = True
    for m in range(8, done):
        for tl in range(2):
            t = 2*(m & 7) + tl
            g.mfma(60, 128+4*t, 192+4*t, first); first = False
    for m in range(done, 16):
        g(f"s_waitcnt vmcnt({31-(2*m+1)})")
        areads(m)
        if m == 15:
            g.flag_add(F_T1)
            g.stamp(5)
        if m > done:
            g(f"s_waitcnt lgkmcnt({3 if m == 15 else 2})")
            for tl in range(2):
                t = 2*((m-1) & 7) + tl
                g.mfma(60, 128+4*t, 192+4*t, first); first = False
    g("s_waitcnt lgkmcnt(0)")
    for tl in range(2): g.mfma(60, 128+4*(14+tl), 192+4*(14+tl), False)
    g("s_nop 5")
    g("""L_s_max:
         v_max3_f32 v24, v56, v57, v58
         v_max_f32 v24, v24, v59
         v_max3_f32 v24, v24, v60, v61
         v_max3_f32 v24, v24, v62, v63""")
    g.xrow("v_max_f32", 24, 25)
    g("ds_write_b32 v21, v24")
    g.flag_add(F_MX)
    if g.fl == 1:
        lf = g.lab("FL")
        g(f"""s_cmp_lg_u32 s12, 0
              s_cbranch_scc1 {lf}
              s_mov_b64 exec, 15
              buffer_store_dword v33, v32, s[40:43], s66 offen sc1
              s_mov_b64 exec, -1
              {lf}:""")
    g.flag_wait(F_MX, 4)
    g(f"""ds_read_b128 v[24:27], v20
          s_waitcnt lgkmcnt(0)
          v_max3_f32 v24, v24, v25, v26
          v_max_f32 v24, v24, v27
          v_mul_f32 v24, s60, v24""")
    for k in range(8): g(f"v_fma_f32 v{56+k}, v{56+k}, s60, -v24")
    for k in range(8): g(f"v_exp_f32 v{56+k}, v{56+k}")
    g.nop(1)
    g.pack8(28, 56)
    g(f"""ds_write_b128 v22, v[28:31]
          v_add_f32 v56, v56, v57
          v_add_f32 v58, v58, v59
          v_add_f32 v60, v60, v61
          v_add_f32 v62, v62, v63
          v_add_f32 v56, v56, v58
          v_add_f32 v60, v60, v62
          v_add_f32 v25, v56, v60
          ds_write_b32 v23, v25
          s_waitcnt lgkmcnt(0)
          s_barrier""")
    if g.prio: g("s_setprio 0")
    if g.fl == 2:
        lf = g.lab("FL")
        g(f"""s_cmp_lg_u32 s12, 0
              s_cbranch_scc1 {lf}
              s_mov_b64 exec, 15
              buffer_store_dword v33, v32, s[40:43], s66 offen sc1
              s_mov_b64 exec, -1
              {lf}:""")
    g.stamp(6)
    g(f"""s_lshr_b32 s13, s7, 2
          s_lshl1_add_u32 s69, s6, s13
          s_lshl2_add_u32 s69, s69, s12
          s_and_b32 s13, s7, 3
          s_lshl2_add_u32 s69, s69, s13
          s_lshl_b32 s68, s69, 8
          s_lshr_b32 s69, s69, 3
          s_lshl2_add_u32 s69, s69, s13
          s_lshl_b32 s69, s69, 7
          s_and_b32 s13, s12, 1
          s_lshl2_add_u32 s69, s13, s69
          s_add_u32 s68, s68, {CP}
          s_add_u32 s69, s69, {CPC}
          v_lshlrev_b32 v21, 1, v14
          ds_read_b32 v6, v4 offset:{F_MODE}
          s_waitcnt lgkmcnt(0)
          v_readfirstlane_b32 s{MODE}, v6""")
    g.mask_j4()
    g(f"""buffer_load_dword v120, v15, s[40:43], s68 offen sc1
          buffer_load_dword v121, v21, s[40:43], s69 offen sc1
          s_mov_b64 exec, -1""")
    g.stamp(7)

def tail(g):
    g("L_s4:")
    g.dump(STAMP2)
    if g.prio: g("s_setprio 0")
    g(f"""s_mov_b32 s13, {OBLK}
          v_lshrrev_b32 v9, 3, v1
          v_mul_lo_u32 v9, v9, s13
          v_and_b32 v10, 3, v1
          v_lshl_add_u32 v9, v10, 4, v9
          v_and_b32 v10, 4, v1
          v_lshl_add_u32 v8, v10, {4 if g.opl else 8}, v9
          s_lshr_b32 s14, s6, 4
          s_lshl3_add_u32 s64, s14, s3
          s_mul_i32 s64, s64, {16*OBLK}
          s_and_b32 s14, s6, 15
          s_lshl_b32 s14, s14, 6
          s_add_u32 s64, s64, s14
          s_lshl_b32 s13, s7, 11
          s_add_u32 s65, s64, s13
          {"s_add_u32 s65, s65, s14" if g.opl else ""}
          s_add_u32 s65, s65, {OP}
          s_lshr_b32 s13, s7, 1
          s_lshl_b32 s13, s13, 10
          s_add_u32 s66, s64, s13
          s_add_u32 s66, s66, {OP+16384}
          s_add_u32 s74, s65, {8*OBLK}
          s_add_u32 s75, s66, {8*OBLK}
          s_bitcmp1_b32 s7, 0
          s_cselect_b64 s[56:57], -1, 0
          v_and_b32 v13, 7, v1
          v_lshlrev_b32 v13, 4, v13
          v_and_b32 v10, 1, v3
          v_lshl_add_u32 v13, v10, 3, v13
          v_lshrrev_b32 v10, 1, v3
          v_lshl_add_u32 v13, v10, 2, v13
          s_and_b32 s13, s3, 1
          s_lshl_b32 s13, s13, 2
          s_lshr_b32 s14, s3, 1
          s_add_u32 s13, s13, s14
          s_lshl_b32 s14, s13, 7
          s_add_u32 s14, s14, {L_CC}
          v_add_u32 v13, s14, v13
          s_lshl_b32 s13, s13, 3
          s_add_u32 s13, s13, {L_ML}
          v_mov_b32 v12, s13""")
    tr_lane(g, 16, 10, 11, swap=True)
    g(f"""s_and_b32 s13, s12, 1
          s_lshl_b32 s13, s13, 6
          v_xor_b32 v16, s13, v16
          s_lshr_b32 s13, s12, 1
          s_lshl_b32 s13, s13, 13
          s_add_u32 s13, s13, {L_WUV}
          v_add_u32 v16, s13, v16
          v_xor_b32 v17, 0x220, v16
          v_and_b32 v10, 7, v2
          v_lshlrev_b32 v18, 7, v10
          v_lshl_add_u32 v18, v3, 4, v18
          v_add_u32 v18, {L_CC}, v18
          v_lshlrev_b32 v19, 3, v10
          v_add_u32 v19, {L_ML}, v19
          v_xor_b32 v20, 32, v19
          v_lshlrev_b32 v21, 1, v14""")
    s5_setup(g)
    if g.fl:
        g(f"""s_lshl3_add_u32 s13, s4, s3
              s_mul_i32 s13, s13, {FSTR}
              s_add_u32 s13, s13, {FL3}
              s_add_u32 s62, s{P_WS}, s13
              s_addc_u32 s63, s{P_WS+1}, 0
              s_mov_b32 s100, s11
              s_mov_b32 s101, s11
              s_waitcnt vmcnt(5)
              s_barrier""")
        g.sflag_wait(62, 0)
        g.reload_args()
    else:
        g("s_waitcnt vmcnt(0)\ns_barrier")
    g.stamp(9)
    def oloads():
        g(f"""buffer_load_dwordx4 v[36:39], v9, s[40:43], s66 offen sc1
              buffer_load_dwordx4 v[40:43], v9, s[40:43], s75 offen sc1
              buffer_load_dwordx4 v[28:31], v8, s[40:43], s65 offen sc1
              buffer_load_dwordx4 v[32:35], v8, s[40:43], s74 offen sc1""")
    oloads()
    for t in range(2):
        for e in range(2):
            r = 64 + 8*t + 4*e
            g(f"ds_read_b64_tr_b16 v[{r}:{r+1}], v16 offset:{t*4096+e*8}")
            g(f"ds_read_b64_tr_b16 v[{r+2}:{r+3}], v17 offset:{t*4096+e*8}")
    lq = g.lab("LQ")
    g(f"s_cmp_ge_u32 s3, 4\ns_cbranch_scc1 {lq}")
    wo_frags(g)
    g(f"{lq}:")
    l, lsk = g.lab("PL"), g.lab("SK")
    g(f"""s_mov_b32 s61, 0
          s_branch {lsk}
          {l}:
          s_mov_b64 exec, s[62:63]""")
    oloads()
    g(f"""s_mov_b64 exec, -1
          {lsk}:
          s_waitcnt vmcnt(2)
          v_max_f32 v24, v36, v40
          v_cndmask_b32 v46, v38, v39, s[56:57]
          v_cndmask_b32 v47, v42, v43, s[56:57]
          v_max_f32_dpp v24, v24, v24 row_ror:8 {DPP}
          v_add3_u32 v48, v36, v37, s11
          v_add3_u32 v49, v40, v41, s11""")
    g.xrow("v_max_f32", 24, 25)
    g(f"""v_sub_f32 v26, v36, v24
          v_sub_f32 v27, v40, v24
          v_exp_f32 v26, v26
          v_exp_f32 v27, v27
          v_sub_u32 v46, v46, v48
          v_sub_u32 v47, v47, v49
          v_mul_f32 v25, v26, v37
          v_fmac_f32 v25, v27, v41
          s_waitcnt vmcnt(0)
          v_add3_u32 v48, v28, v29, v30
          v_add3_u32 v49, v32, v33, v34
          v_add_u32 v48, v48, v31
          v_add_u32 v49, v49, v35
          v_add_f32_dpp v25, v25, v25 row_ror:8 {DPP}
          v_add_u32_dpp v44, v48, v48 row_shl:4 row_mask:0xf bank_mask:0x5
          v_add_u32_dpp v45, v49, v49 row_shl:4 row_mask:0xf bank_mask:0x5
          v_add_u32_dpp v44, v48, v48 row_shr:4 row_mask:0xf bank_mask:0xa
          v_add_u32_dpp v45, v49, v49 row_shr:4 row_mask:0xf bank_mask:0xa
          v_cmp_ne_u32 s[62:63], v44, v46
          v_cmp_ne_u32 vcc, v45, v47
          s_or_b64 s[62:63], s[62:63], vcc""")
    g.poll_end(l)
    g.stamp(10)
    g.count(6)
    if g.sb:
        l1, l2 = g.lab("SB"), g.lab("SB")
        g(f"""s_cmp_lt_u32 s3, 4
              s_cbranch_scc1 {l2}
              s_cmp_eq_u32 s52, 0
              s_cbranch_scc1 {l2}
              {l1}:
              s_mov_b32 m0, s53
              s_add_u32 s53, s53, 4096
              buffer_load_dwordx4 v119, s[44:47], s68 offen nt lds
              s_add_u32 s68, s68, s69
              s_sub_u32 s52, s52, 1
              s_cmp_lg_u32 s52, 0
              s_cbranch_scc1 {l1}
              {l2}:""")
    for k in range(4):
        g.unpack(44+2*k, 28+k); g.unpack(52+2*k, 32+k)
    g("v_mov_b32 v60, v25")
    for k in range(4): g(f"v_pk_mul_f32 v[{44+2*k}:{45+2*k}], v[{44+2*k}:{45+2*k}], v[26:27] op_sel_hi:[1,0]")
    g("v_permlane16_swap_b32 v25, v60")
    for k in range(4): g(f"v_pk_fma_f32 v[{44+2*k}:{45+2*k}], v[{52+2*k}:{53+2*k}], v[26:27], v[{44+2*k}:{45+2*k}] op_sel:[0,1,0] op_sel_hi:[1,1,1]")
    g("v_add_f32 v25, v25, v60")
    for k in range(4): g(f"v_permlane16_swap_b32 v{44+k}, v{48+k}")
    g("v_mov_b32 v60, v25")
    for k in range(4): g(f"v_add_f32 v{44+k}, v{44+k}, v{48+k}")
    g("v_permlane32_swap_b32 v25, v60")
    for k in range(2): g(f"v_permlane32_swap_b32 v{44+k}, v{46+k}")
    g("v_add_f32 v25, v25, v60")
    for k in range(2): g(f"v_add_f32 v{44+k}, v{44+k}, v{46+k}")
    g("ds_write_b64 v12, v[24:25]")
    for k in range(2): g(f"v_add_f32_dpp v{44+k}, v{44+k}, v{44+k} row_ror:8 {DPP}")
    g(f"""v_cvt_pk_bf16_f32 v44, v44, v45
          ds_write_b32 v13, v44
          s_waitcnt lgkmcnt(0)
          s_barrier""")
    ln = g.lab("N4")
    g(f"""s_cmp_ge_u32 s3, 4
          s_cbranch_scc1 {ln}
          ds_read_b128 v[24:27], v18
          ds_read_b128 v[28:31], v18 offset:64
          ds_read_b64 v[32:33], v19
          ds_read_b64 v[34:35], v20
          s_waitcnt lgkmcnt(3)""")
    for t in range(2):
        if t == 1: g("s_waitcnt lgkmcnt(2)")
        for e in range(2): g.mfma(56+4*e, 64+8*t+4*e, 24+4*t, t == 0)
    g(f"""s_waitcnt lgkmcnt(0)
          v_max_f32 v36, v32, v34
          v_sub_f32 v32, v32, v36
          v_sub_f32 v34, v34, v36
          v_exp_f32 v32, v32
          v_exp_f32 v34, v34
          s_nop 0
          v_mul_f32 v33, v33, v32
          v_fmac_f32 v33, v35, v34
          v_rcp_f32 v33, v33
          s_nop 0
          v_mul_f32 v32, v32, v33""")
    for k in range(4): g(f"v_pk_mul_f32 v[{56+2*k}:{57+2*k}], v[{56+2*k}:{57+2*k}], v[32:33] op_sel_hi:[1,0]")
    for k in range(8): g(f"v_add_f32_dpp v{56+k}, v{56+k}, v{56+k} row_ror:4 {DPP}")
    g.mask_j4()
    g.pack8(24, 56)
    g.chk(28, 24)
    lstore(g, ["buffer_store_dwordx4 v[24:27], v15, s[40:43], s68 offen", "buffer_store_dword v28, v21, s[40:43], s69 offen"])
    g(f"{ln}:\ns_mov_b64 exec, -1")
    g.stamp(11)
    g(f"""s_cmp_eq_u32 s72, 1
          s_cbranch_scc1 L_s6
          s_cmp_eq_u32 s72, 2
          s_cbranch_scc1 L_s7
          s_cmp_eq_u32 s72, 3
          s_cbranch_scc1 L_fin""")
    s5(g); s6(g); s7(g)
    g("L_fin:")
    g.finish()

def wo_frags(g):
    for tt in range(2):
        for tpi in range(2):
            for e in range(2):
                r = 128 + 16*tt + 8*tpi + 4*e
                g(f"ds_read_b64_tr_b16 v[{r}:{r+1}], v{[110,112][tpi]} offset:{tt*4096+e*8}")
                g(f"ds_read_b64_tr_b16 v[{r+2}:{r+3}], v{[111,113][tpi]} offset:{tt*4096+e*8}")

def s5_setup(g):
    tr_lane(g, 110, 10, 11)
    g(f"""s_lshr_b32 s13, s3, 2
          s_and_b32 s14, s3, 1
          s_lshl1_add_u32 s13, s13, s14
          s_lshl_b32 s13, s13, 13
          s_add_u32 s13, s13, {L_WR}
          v_add_u32 v110, s13, v110
          v_xor_b32 v111, 0x220, v110
          v_xor_b32 v112, 64, v110
          v_xor_b32 v113, 0x260, v110
          v_and_b32 v106, 3, v2
          v_lshlrev_b32 v106, 7, v106
          v_lshl_add_u32 v106, v3, 5, v106
          v_and_b32 v7, 4, v2
          v_lshl_add_u32 v106, v7, 2, v106
          v_and_b32 v7, 8, v2
          v_lshl_add_u32 v106, v7, 6, v106
          s_lshl_b32 s13, s3, 10
          s_add_u32 s13, s13, {L_RED}
          v_add_u32 v106, s13, v106
          v_lshlrev_b32 v108, 3, v1
          s_lshl_b32 s13, s14, 9
          s_add_u32 s13, s13, {L_RED}
          v_add_u32 v107, s13, v108
          s_and_b32 s13, s73, 1
          s_lshl1_add_u32 s64, s4, s13
          s_lshl3_add_u32 s13, s64, s3
          s_lshl_b32 s70, s13, 11
          s_add_u32 s70, s70, {CP}
          s_lshl_b32 s71, s13, 9
          s_add_u32 s71, s71, {CPC}
          s_and_b32 s13, s73, 0xfe
          s_add_u32 s13, s13, s14
          s_lshl4_add_u32 s60, s13, s64
          s_lshl_b32 s60, s60, 9
          s_lshl_b32 s13, s73, 13
          s_lshl_b32 s14, s12, 7
          s_add_u32 s13, s13, s14
          s_cmp_ge_u32 s3, 4
          s_cselect_b32 s60, s13, s60
          s_add_u32 s60, s60, {AP}
          v_lshlrev_b32 v108, 4, v2
          v_lshl_add_u32 v108, v3, 7, v108
          v_and_b32 v109, 7, v1
          v_lshlrev_b32 v109, 4, v109
          v_lshrrev_b32 v7, 3, v1
          v_lshl_add_u32 v109, v7, 9, v109
          s_mul_i32 s67, s4, 5
          s_lshr_b32 s13, s73, 2
          s_add_u32 s67, s67, s13
          s_mul_i32 s67, s67, 1536
          s_add_u32 s67, s67, {HR}""")

def red_read(g, n, stride, a):
    for w in range(n): g(f"ds_read_b64 v[{32+2*w}:{33+2*w}], v{a} offset:{w*stride}")
    for w in range(1, n):
        g(f"s_waitcnt lgkmcnt({n-1-w})")
        g(f"v_add_f32 v32, v32, v{32+2*w}\nv_add_f32 v33, v33, v{33+2*w}")

def s5(g):
    lq = g.lab("LQ")
    g(f"s_cmp_lt_u32 s3, 4\ns_cbranch_scc1 {lq}\ns_waitcnt vmcnt(0)")
    g.flag_add(F_UV)
    g.flag_wait(F_UV, 4)
    wo_frags(g)
    g(f"{lq}:")
    g("s_mov_b64 s[62:63], -1")
    l = g.poll_begin()
    g(f"""s_mov_b64 exec, s[62:63]
          buffer_load_dwordx4 v[96:99], v15, s[40:43], s70 offen sc1
          buffer_load_dwordx4 v[100:103], v15, s[40:43], s70 offen offset:1024 sc1
          buffer_load_dwordx2 v[104:105], v21, s[40:43], s71 offen sc1
          s_mov_b64 exec, -1
          s_waitcnt vmcnt(1) lgkmcnt(0)""")
    for tt in range(2):
        for q in range(4): g.mfma(80+4*q, 128+16*tt+4*q, 96+4*tt, tt == 0)
    g("s_waitcnt vmcnt(0)")
    for tt in range(2): g.verify(96+4*tt, 104+tt, tt == 0)
    g.poll_end(l)
    g.stamp(1)
    g.count(7)
    for k in range(8): g(f"v_add_f32_dpp v{80+k}, v{80+k}, v{80+k} row_ror:8 row_mask:0xf bank_mask:0x3")
    for k in range(8): g(f"v_add_f32_dpp v{80+k}, v{88+k}, v{88+k} row_ror:8 row_mask:0xf bank_mask:0xc")
    for k in range(4): g(f"v_add_f32_dpp v{80+k}, v{80+k}, v{80+k} row_shl:4 row_mask:0xf bank_mask:0x5")
    for k in range(4): g(f"v_add_f32_dpp v{80+k}, v{84+k}, v{84+k} row_shr:4 row_mask:0xf bank_mask:0xa")
    lr, lnf = g.lab("R5"), g.lab("NF")
    g(f"""ds_write_b128 v106, v[80:83]
          s_waitcnt lgkmcnt(0)
          s_barrier
          s_cmp_ge_u32 s3, 4
          s_cbranch_scc1 {lr}
          s_cmp_ge_u32 s3, 2
          s_cbranch_scc1 L_fin""")
    red_read(g, 8, 1024, 107)
    g(f"""v_cvt_pk_bf16_f32 v32, v32, v33
          v_mov_b32 v34, s11
          v_mov_b32 v35, s11
          v_mov_b32_dpp v33, v32 row_ror:8 {DPP}""")
    g.mask("0x00ff00ff")
    g("buffer_store_dwordx4 v[32:35], v108, s[40:43], s60 offen sc1\ns_mov_b64 exec, -1")
    g.stamp(2)
    if g.apw:
        g("s_waitcnt vmcnt(0)")
        g.flag_add(F_SM)
    g(f"s_branch L_fin\n{lr}:")
    g.unpack(44, 120)
    g(f"""v_mov_b32 v50, s11
          v_mov_b32 v51, s11
          s_add_u32 s64, s60, 4096
          v_lshlrev_b32 v20, 2, v2
          s_and_b32 s14, s73, 3
          s_lshl2_add_u32 s13, s14, s12
          s_lshl4_add_u32 s70, s13, s67
          s_lshl_b32 s13, s13, 6
          s_add_u32 s65, s67, s13
          s_lshl_b32 s13, s12, 6
          s_lshl2_add_u32 s13, s14, s13
          s_add_u32 s66, s67, s13""")
    if g.apw: g.flag_wait(F_SM, 2)
    g.stamp(5)
    l = g.poll_begin()
    g(f"""buffer_load_dwordx4 v[64:67], v109, s[40:43], s60 offen sc1
          buffer_load_dwordx4 v[68:71], v109, s[40:43], s64 offen sc1
          s_waitcnt vmcnt(0)""")
    g.acc_ne("s11", "v66", True)
    g.acc_ne("s11", "v70", False)
    g.poll_end(l)
    g.stamp(3)
    g.count(8)
    g.unpack(72, 64); g.unpack(74, 65); g.unpack(76, 68); g.unpack(78, 69)
    g(f"""v_add_f32 v72, v72, v76
          v_add_f32 v73, v73, v77
          v_add_f32 v74, v74, v78
          v_add_f32 v75, v75, v79
          v_add_f32_dpp v46, v72, v72 row_ror:8 row_mask:0xf bank_mask:0x3
          v_add_f32_dpp v47, v73, v73 row_ror:8 row_mask:0xf bank_mask:0x3
          v_add_f32_dpp v46, v74, v74 row_ror:8 row_mask:0xf bank_mask:0xc
          v_add_f32_dpp v47, v75, v75 row_ror:8 row_mask:0xf bank_mask:0xc
          v_mov_b32 v48, v46
          v_mov_b32 v49, v47
          s_nop 0
          v_permlane16_swap_b32 v46, v48
          v_permlane16_swap_b32 v47, v49
          s_nop 0
          v_add_f32 v46, v46, v48
          v_add_f32 v47, v47, v49
          v_mov_b32 v48, v46
          v_mov_b32 v49, v47
          s_nop 0
          v_permlane32_swap_b32 v46, v48
          v_permlane32_swap_b32 v47, v49
          s_nop 0
          v_add_f32 v46, v46, v48
          v_add_f32 v47, v47, v49
          v_cvt_pk_bf16_f32 v46, v46, v47
          s_mov_b64 exec, 0xffff""")
    g.unpack(48, 46)
    g(f"""v_add_f32 v48, v48, v44
          v_add_f32 v49, v49, v45
          v_cvt_pk_bf16_f32 v46, v48, v49
          v_lshlrev_b32 v52, 16, v46
          v_and_b32 v53, 0xffff0000, v46
          v_add_u32_dpp v47, v46, v46 quad_perm:[1,0,3,2] {DPP}
          v_add_f32 v48, v52, v53
          s_nop 0
          v_add_u32_dpp v47, v47, v47 quad_perm:[2,3,0,1] {DPP}
          v_add_u32 v47, s11, v47""")
    lstore(g, ["buffer_store_dword v46, v20, s[40:43], s65 offen", "s_mov_b64 exec, 0x1111",
               "buffer_store_dword v47, v20, s[40:43], s66 offen offset:1024", "s_mov_b64 exec, 0xffff"])
    g.stamp(4)
    g.inrow("v_add_f32", 48)
    g(f"""v_mul_f32 v54, {f32(1/32)}, v48
          v_sub_f32 v52, v52, v54
          v_sub_f32 v53, v53, v54
          v_mul_f32 v49, v52, v52
          v_fmac_f32 v49, v53, v53""")
    g.inrow("v_add_f32", 49)
    g("s_mov_b64 exec, 1")
    lstore(g, ["buffer_store_dwordx4 v[48:51], v2, s[40:43], s70 offen offset:1280"])
    g("s_mov_b64 exec, -1")
    if g.wb == 1:
        g("""s_add_u32 s13, s5, s12
             s_cmp_lg_u32 s13, 0
             s_cbranch_scc1 L_fin
             buffer_wbl2 sc1""")
    g("s_branch L_fin")

def s6(g):
    g("L_s6:\ns_barrier")
    g.srd(48, P_W1, 2211840)
    g(f"""v_lshrrev_b32 v12, 2, v1
          v_mul_u32_u24 v12, 3456, v12
          v_and_b32 v7, 3, v1
          v_lshl_add_u32 v12, v7, 4, v12
          s_add_u32 s13, s3, {8*g.c1}
          s_mul_i32 s64, s13, {16*3456}
          s_lshl_b32 s14, s73, 6
          s_add_u32 s64, s64, s14
          s_lshl_b32 s65, s3, 10""")
    for k in range(5 - g.c1):
        g(f"""s_add_u32 m0, s65, {L_WR + 8192*g.c1 + k*8192}
              s_add_u32 s13, s64, {k*128*3456}
              buffer_load_dwordx4 v12, s[48:51], s13 offen nt lds""")
    g.srd(44, P_W2, 2211840)
    g(f"""v_and_b32 v13, 7, v1
          v_xor_b32 v13, v13, v3
          s_and_b32 s13, s3, 1
          s_lshl_b32 s13, s13, 2
          v_xor_b32 v13, s13, v13
          v_lshrrev_b32 v7, 3, v1
          v_mul_u32_u24 v7, 1280, v7
          v_lshl_add_u32 v13, v13, 4, v7
          s_lshl2_add_u32 s64, s73, s12
          s_mul_i32 s64, s64, {8*1280}
          s_lshr_b32 s13, s3, 2
          s_lshl_b32 s13, s13, 7
          s_add_u32 s64, s64, s13""")
    for k in range(5):
        g(f"""s_add_u32 m0, s65, {L_W2 + k*8192}
              s_add_u32 s13, s64, {k*256}
              buffer_load_dwordx4 v13, s[44:47], s13 offen nt lds""")
    g(f"""s_min_u32 s13, s3, 4
          s_lshl_b32 s64, s13, 7
          v_lshrrev_b32 v8, 2, v1
          v_and_b32 v8, 3, v8
          v_lshl_add_u32 v8, v3, 3, v8
          v_add_u32 v8, s64, v8
          v_lshlrev_b32 v8, 6, v8
          v_and_b32 v7, 3, v1
          v_lshl_add_u32 v8, v7, 4, v8
          v_add_u32 v8, {L_WR}, v8
          v_lshlrev_b32 v10, 7, v2
          v_lshl_add_u32 v10, v3, 5, v10
          s_lshl_b32 s13, s3, 9
          s_add_u32 s13, s13, {L_RED}
          v_add_u32 v10, s13, v10
          v_lshlrev_b32 v11, 3, v1
          v_add_u32 v11, {L_RED}, v11
          s_mul_i32 s67, s4, {20*384}
          s_add_u32 s67, s67, {HR}
          s_mul_i32 s65, s3, {4*384}
          s_add_u32 s65, s65, s67""")
    g(f"""v_lshrrev_b32 v12, 2, v1
          v_and_b32 v12, 3, v12
          v_and_b32 v13, 3, v1
          v_lshrrev_b32 v20, 1, v13
          s_lshl_b32 s13, s12, 1
          v_or_b32 v20, s13, v20
          v_lshrrev_b32 v7, 1, v12
          v_xor_b32 v20, v20, v7
          v_and_b32 v7, 1, v3
          v_lshlrev_b32 v7, 2, v7
          v_xor_b32 v20, v20, v7
          v_lshlrev_b32 v20, 4, v20
          v_lshl_add_u32 v20, v12, 7, v20
          v_lshl_add_u32 v20, v3, 10, v20
          v_and_b32 v7, 1, v13
          v_lshl_add_u32 v20, v7, 3, v20
          s_lshr_b32 s13, s3, 2
          s_lshl_b32 s13, s13, 12
          s_add_u32 s13, s13, {L_W2}
          v_add_u32 v20, s13, v20
          v_xor_b32 v21, 0x220, v20
          v_and_b32 v22, 3, v2
          v_lshlrev_b32 v22, 6, v22
          v_lshl_add_u32 v22, v3, 4, v22
          v_add_u32 v22, {L_UL}, v22
          v_lshlrev_b32 v23, 4, v2
          v_lshl_add_u32 v29, v3, 11, v23
          v_lshrrev_b32 v7, 2, v2
          v_mov_b32 v28, {L_UL+256}
          v_cmp_eq_u32 vcc, 0, v7
          v_cmp_eq_u32 s[74:75], 1, v7
          v_cmp_eq_u32 s[100:101], 2, v7
          v_cndmask_b32 v24, v28, v22, vcc
          v_cndmask_b32 v25, v28, v22, s[74:75]
          v_cmp_eq_u32 vcc, 3, v7
          v_cndmask_b32 v26, v28, v22, s[100:101]
          v_mov_b32 v30, 0
          v_mov_b32 v31, 0
          v_cndmask_b32 v27, v28, v22, vcc
          ds_write_b64 v28, v[30:31]
          ds_write_b64 v28, v[30:31] offset:8
          s_mul_i32 s68, s73, 10240
          s_lshl_b32 s13, s3, 8
          s_add_u32 s68, s68, s13
          s_add_u32 s68, s68, {FP}
          s_add_u32 s69, s68, 4096
          s_add_u32 s70, s68, 8192""")
    for k in range(96, 112): g(f"v_mov_b32 v{k}, 0x3f803f80")
    for k in range(2): g(f"v_mov_b32 v{170+4*k}, s11\nv_mov_b32 v{171+4*k}, s11")
    lfin, lidle, lw2 = g.lab("F6"), g.lab("I6"), g.lab("W6")
    def red_write():
        g.mask_j4()
        g("ds_write_b128 v10, v[56:59]\nds_write_b128 v10, v[60:63] offset:16\ns_mov_b64 exec, -1")
    def w2_frags():
        for k in range(5):
            g(f"ds_read_b64_tr_b16 v[{128+4*k}:{129+4*k}], v20 offset:{k*8192}")
            g(f"ds_read_b64_tr_b16 v[{130+4*k}:{131+4*k}], v21 offset:{k*8192}")
    g("s_waitcnt vmcnt(5)\ns_barrier")
    g(f"""s_cmp_eq_u32 s3, 7
          s_cbranch_scc1 {lfin}
          s_cmp_ge_u32 s3, 5
          s_cbranch_scc1 {lidle}""")
    for t in range(4):
        for e in range(2):
            r = 64 + 8*t + 4*e
            g(f"ds_read_b64_tr_b16 v[{r}:{r+1}], v8 offset:{t*2048+e*8}")
            g(f"ds_read_b64_tr_b16 v[{r+2}:{r+3}], v8 offset:{t*2048+256+e*8}")
    g("s_waitcnt lgkmcnt(0)")
    for t in range(4):
        for e in range(2): g.mfma(56+4*e, 64+8*t+4*e, 96+4*t, t == 0)
    g.nop(6)
    red_write()
    g("s_waitcnt lgkmcnt(0)\ns_barrier\ns_waitcnt vmcnt(0)\ns_barrier")
    g.stamp(4)
    w2_frags()
    l = g.poll_begin()
    g.mask_j4()
    for t in range(4):
        g(f"buffer_load_dwordx4 v[{96+4*t}:{99+4*t}], v15, s[40:43], s65 offen offset:{t*256} sc1")
    g("buffer_load_dwordx4 v[112:115], v15, s[40:43], s65 offen offset:1024 sc1")
    g("s_mov_b64 exec, -1\ns_waitcnt vmcnt(1)")
    for t in range(4):
        for e in range(2): g.mfma(56+4*e, 64+8*t+4*e, 96+4*t, t == 0)
    g.mask_j4()
    g("s_waitcnt vmcnt(0)")
    for t in range(4): g.verify(96+4*t, 112+t, t == 0)
    g.poll_end(l)
    g(f"""ds_write_b128 v10, v[56:59]
          ds_write_b128 v10, v[60:63] offset:16
          s_mov_b64 exec, -1""")
    g.stamp(1)
    g(f"""s_waitcnt lgkmcnt(0)
          s_barrier
          s_branch {lw2}
          {lidle}:
          s_barrier
          s_waitcnt vmcnt(0)
          s_barrier""")
    w2_frags()
    g(f"""s_barrier
          s_branch {lw2}
          {lfin}:
          s_barrier""")
    red_read(g, 5, 512, 11)
    g(f"""v_mov_b32 v60, v32
          v_mov_b32 v61, v33
          s_waitcnt vmcnt(0)
          s_barrier""")
    w2_frags()
    g(f"""s_nop 0
          v_lshrrev_b32 v16, 2, v2
          v_mul_u32_u24 v16, 1536, v16
          v_and_b32 v17, 3, v2
          v_lshl_add_u32 v16, v17, 6, v16
          v_lshl_add_u32 v16, v3, 4, v16
          v_mov_b32 v48, 0
          v_mov_b32 v49, 0
          v_mov_b32 v50, s11
          v_cmp_gt_u32 vcc, 4, v2
          v_mov_b32 v42, 0
          v_lshlrev_b32 v17, 2, v1
          v_cndmask_b32 v42, v42, 1.0, vcc
          v_add_u32 v17, {L_UL}, v17
          s_add_u32 s66, s67, {16*384}""")
    l = g.poll_begin()
    g(f"buffer_load_dwordx4 v[44:47], v16, s[40:43], s67 offen offset:1280 sc1")
    g.mask_j4()
    g(f"""buffer_load_dwordx4 v[48:51], v16, s[40:43], s66 offen offset:1280 sc1
          s_mov_b64 exec, -1
          s_waitcnt vmcnt(0)""")
    g.acc_ne("s11", "v46", True)
    g.acc_ne("s11", "v50", False)
    g.poll_end(l)
    g.stamp(1)
    g("v_add_f32 v52, v44, v48")
    g.inrow("v_add_f32", 52)
    g(f"""v_mul_f32 v52, {f32(1/640)}, v52
          v_mul_f32 v44, {f32(1/32)}, v44
          v_mul_f32 v48, {f32(1/32)}, v48
          v_sub_f32 v44, v44, v52
          v_sub_f32 v48, v48, v52
          v_mul_f32 v48, v48, v42
          v_mul_f32 v44, v44, v44
          v_fmac_f32 v44, v48, v48
          v_add_f32 v53, v45, v49
          v_fmac_f32 v53, {f32(32.0)}, v44""")
    g.inrow("v_add_f32", 53)
    g(f"""v_mov_b32 v54, {f32(1e-5)}
          v_fmac_f32 v54, {f32(1/640)}, v53
          v_rsq_f32 v54, v54
          v_mul_f32 v60, v60, v52
          v_mul_f32 v61, v61, v52
          v_mul_f32 v55, {f32(-LOG2E)}, v54
          s_barrier""")
    g.stamp(2)
    red_read(g, 5, 512, 11)
    g(f"""v_sub_f32 v32, v32, v60
          v_sub_f32 v33, v33, v61
          v_mul_f32 v34, v32, v55
          v_mul_f32 v35, v33, v55
          v_exp_f32 v34, v34
          v_exp_f32 v35, v35
          v_mul_f32 v32, v32, v54
          v_mul_f32 v33, v33, v54
          v_add_f32 v34, 1.0, v34
          v_add_f32 v35, 1.0, v35
          v_rcp_f32 v34, v34
          v_rcp_f32 v35, v35
          s_nop 0
          v_mul_f32 v32, v32, v34
          v_mul_f32 v33, v33, v35
          v_cvt_pk_bf16_f32 v32, v32, v33
          ds_write_b32 v17, v32
          {lw2}:
          s_waitcnt lgkmcnt(0)
          s_barrier
          ds_read_b128 v[180:183], v24
          ds_read_b128 v[184:187], v25
          ds_read_b128 v[188:191], v26
          ds_read_b128 v[192:195], v27
          s_waitcnt lgkmcnt(3)""")
    g.mfma(152, 180, 144, True)
    for k in range(4):
        if k: g(f"s_waitcnt lgkmcnt({3-k})")
        g.mfma(148, 180+4*k, 128+4*k, k == 0)
    g(f"""s_nop 1
          s_mov_b64 exec, 0xffff
          v_cvt_pk_bf16_f32 v172, v152, v153
          v_cvt_pk_bf16_f32 v173, v154, v155
          buffer_store_dwordx4 v[172:175], v23, s[40:43], s70 offen sc1
          s_mov_b64 exec, -1
          s_nop 0
          v_cvt_pk_bf16_f32 v168, v148, v149
          v_cvt_pk_bf16_f32 v169, v150, v151
          buffer_store_dwordx4 v[168:171], v29, s[40:43], s68 offen sc1""")
    g.stamp(3)
    if g.wb == 2:
        g("""s_cmp_lg_u32 s3, 0
             s_cbranch_scc1 L_fin
             s_cmp_lg_u32 s5, 28
             s_cbranch_scc1 L_fin
             buffer_wbl2 sc1""")
    g("s_branch L_fin")

def s7(g):
    g("L_s7:")
    lh, lj = g.lab("H7"), g.lab("J7")
    g(f"""v_lshlrev_b32 v10, 2, v1
          v_add_u32 v16, {L_RED}, v10
          s_cmp_eq_u32 s3, 7
          s_cbranch_scc1 {lh}
          v_mul_u32_u24 v12, 10240, v3
          v_lshl_add_u32 v12, v2, 4, v12
          s_mul_i32 s65, s3, {8*10240}
          s_lshl_b32 s13, s73, 8
          s_add_u32 s65, s65, s13
          s_add_u32 s65, s65, {FP}
          s_add_u32 s66, s65, {4*10240}
          s_mov_b64 s[74:75], -1
          s_cmp_eq_u32 s3, 6
          s_cselect_b32 s75, 0, s75
          v_mov_b32 v100, 0
          v_mov_b32 v101, 0
          v_mov_b32 v102, s11
          s_lshl_b32 s13, s3, 8
          v_add_u32 v10, s13, v16
          s_barrier""")
    l = g.poll_begin()
    g(f"""buffer_load_dwordx4 v[96:99], v12, s[40:43], s65 offen sc1
          s_mov_b64 exec, s[74:75]
          buffer_load_dwordx4 v[100:103], v12, s[40:43], s66 offen sc1
          s_mov_b64 exec, -1
          s_waitcnt vmcnt(0)""")
    g.acc_ne("s11", "v98", True)
    g.acc_ne("s11", "v102", False)
    g.poll_end(l)
    g.stamp(1)
    g.unpack(24, 96); g.unpack(26, 97); g.unpack(28, 100); g.unpack(30, 101)
    for k in range(4): g(f"v_add_f32 v{24+k}, v{24+k}, v{28+k}")
    g(f"""s_nop 0
          v_permlane16_swap_b32 v24, v25
          v_permlane16_swap_b32 v26, v27
          s_nop 0
          v_add_f32 v24, v24, v25
          v_add_f32 v26, v26, v27
          s_nop 1
          v_permlane32_swap_b32 v24, v26
          s_nop 0
          v_add_f32 v24, v24, v26
          ds_write_b32 v10, v24
          s_waitcnt lgkmcnt(0)
          s_barrier
          s_branch L_fin
          {lh}:""")
    g.srd(48, P_OUT, 5120)
    g(f"""v_mul_u32_u24 v13, 1280, v3
          v_lshl_add_u32 v13, v2, 1, v13
          v_lshrrev_b32 v8, 3, v2
          v_lshl_add_u32 v12, v3, 2, v8
          v_lshlrev_b32 v11, 4, v12
          s_lshl_b32 s64, s73, 5
          s_mul_i32 s65, s4, 5
          s_lshr_b32 s13, s73, 3
          s_add_u32 s65, s65, s13
          s_mul_i32 s65, s65, 1536
          s_add_u32 s65, s65, {HR}
          s_and_b32 s13, s73, 1
          s_lshl_b32 s13, s13, 5
          s_add_u32 s65, s65, s13
          s_lshr_b32 s13, s73, 1
          s_and_b32 s13, s13, 3
          s_lshl2_add_u32 s66, s13, s65
          s_lshl_b32 s13, s13, 8
          s_add_u32 s65, s65, s13""")
    if g.po: g("buffer_load_ushort v40, v13, s[48:51], s64 offen sc1")
    l = g.poll_begin()
    g(f"""buffer_load_dwordx4 v[24:27], v11, s[40:43], s65 offen sc1
          buffer_load_dword v28, v11, s[40:43], s66 offen offset:1024 sc1
          s_waitcnt vmcnt(0)""")
    g.verify(24, 28, True)
    g.poll_end(l)
    g(f"""s_barrier
          v_and_b32 v8, 2, v1
          v_cmp_ne_u32 vcc, 0, v8
          v_and_b32 v9, 4, v1
          v_cmp_ne_u32 s[74:75], 0, v9
          v_cndmask_b32 v24, v24, v25, vcc
          v_cndmask_b32 v26, v26, v27, vcc
          v_and_b32 v8, 1, v1
          v_cmp_ne_u32 vcc, 0, v8
          v_cndmask_b32 v24, v24, v26, s[74:75]
          v_lshlrev_b32 v25, 16, v24
          v_and_b32 v26, 0xffff0000, v24
          v_cndmask_b32 v30, v25, v26, vcc""")
    g.stamp(1)
    g("s_barrier")
    for w in range(7): g(f"ds_read_b32 v{64+w}, v16 offset:{w*256}")
    g("""s_waitcnt lgkmcnt(4)
         v_add_f32 v64, v64, v65
         v_add_f32 v64, v64, v66
         s_waitcnt lgkmcnt(2)
         v_add_f32 v67, v67, v68
         s_waitcnt lgkmcnt(0)
         v_add_f32 v69, v69, v70
         v_add_f32 v64, v64, v67
         v_add_f32 v64, v64, v69""")
    g.rbf(64)
    g(f"""v_add_f32 v64, v64, v30
          v_cvt_pk_bf16_f32 v64, v64, v64
          buffer_store_short v64, v13, s[48:51], s64 offen
          s_cmp_lg_u32 s73, 0
          s_cbranch_scc1 {lj}
          v_mov_b32 v65, s11
          v_mov_b32 v66, {EPOCH}
          s_mov_b64 exec, 1
          buffer_store_dword v65, v66, s[40:43], 0 offen
          s_mov_b64 exec, -1
          {lj}:""")
    g.stamp(2)

OPTS = dict(W=9, we=3, wsw=8, wa=8, opl=0, prio=1, ga=14, gb=22, fp2=1, ap8=1, apw=1, sa=2, uv=1, sb=1, fl=0, xr=0, qe=0, npa=0, c1=2, wb=0, po=0, dbg=0, hold=0)
def gen(stamps=False, **kw):
    o = dict(OPTS); o.update(kw)
    g = G(stamps or o["dbg"], None)
    for k, v in o.items(): setattr(g, k, v)
    prologue(g); swave_front(g); pwave(g); swave(g, g.W); tail(g)
    g("L_end:")
    return g

def emit(g, path):
    hdr = open("cdna_kernels/" + NAME + ".s.ref").read().split("; Override launch")[0]
    txt = hdr + f"""; @launch grid=(256,1,1) block=(512,1,1) lds={LDS_BYTES}
.amdgcn_target "amdgcn-amd-amdhsa--gfx950"
.text
.globl {NAME}_kernel
.p2align 8
.type {NAME}_kernel,@function
{NAME}_kernel:
""" + "\n".join(g.L) + f"""
    s_endpgm
L_code_end:
.section .rodata,"a"
.p2align 6
.amdhsa_kernel {NAME}_kernel
  .amdhsa_next_free_vgpr 256
  .amdhsa_next_free_sgpr 102
  .amdhsa_accum_offset 256
  .amdhsa_group_segment_fixed_size 0
  .amdhsa_kernarg_size 96
  .amdhsa_user_sgpr_count 2
  .amdhsa_user_sgpr_kernarg_segment_ptr 1
  .amdhsa_system_sgpr_workgroup_id_x 1
.end_amdhsa_kernel
"""
    open(path, "w").write(txt)

if __name__ == "__main__":
    import argparse
    ap = argparse.ArgumentParser()
    ap.add_argument("-o", default="k.s")
    ap.add_argument("--stamps", action="store_true")
    for k, v in OPTS.items(): ap.add_argument("--" + k, type=int, default=v)
    a = vars(ap.parse_args())
    out = a.pop("o"); st = a.pop("stamps")
    emit(gen(st, **a), out)
```

```python
import sys, struct
NAME = "sequential_preLN__compressed_kv_cla__dense_activation_silu__decode"

EPOCH = 0x0
QPC, QP = 0x8000, 0x10000
QAC, QA = 0x30000, 0x40000
CPC = 0x60000
HR = 0x70000
CP = 0x80000
AP = 0xC0000
FP = 0xF0000
IDT = 0x38000
DUAL = 0x170000
DLEN = 0x30000
MODE = 59
XF = 0x1000
FL3 = 0x1A0000
FSTR = 4352
OP = 0x240000
OBLK = 20480 + 256
STAMP = 0x1000000
STAMP2 = 0x1040000
WS_REC = 0x1100000

L_R2 = 131072
L_WQ = L_R2
L_WUK = 0
L_QA = L_R2
L_XN = L_R2 + 20480
L_P = L_R2 + 25600
L_MX = L_R2 + 29696
L_SM = L_R2 + 16384
L_CC = L_MX + 256
L_FL = L_CC + 1024
LDS_BYTES = 163840
assert L_FL + 64 <= LDS_BYTES
L_WUV = 0
L_WR = 32768
L_W2 = L_WR + 40960
L_RED = L_W2 + 40960
L_UL = L_RED + 8192
F_A, F_S2, F_QA, F_T0, F_T1, F_RD, F_SM, F_S1, F_UK, F_UR, F_MX, F_GO, F_UV, F_G2 = 0, 4, 8, 12, 16, 20, 24, 28, 32, 36, 40, 44, 48, 52

HASH_A, HASH_C = 1664525, 1013904223
SPIN_MAX = 200000
def f32(x): return "0x%08x" % struct.unpack("<I", struct.pack("<f", x))[0]
LOG2E = 1.4426950408889634
SCALE = (128 ** -0.5) * LOG2E
P_X, P_CKV, P_WQ, P_WUK, P_WUV, P_WO, P_BX, P_W1, P_W2, P_OUT, P_DBG, P_WS = 16, 18, 20, 22, 24, 26, 28, 30, 32, 34, 36, 38
DPP = "row_mask:0xf bank_mask:0xf"

class G:
    def __init__(self, stamps=False, stop=None):
        self.L = []; self.stamps = stamps; self.stop = stop; self.nlab = 0
    def __call__(self, s):
        for line in s.strip("\n").split("\n"):
            line = line.strip()
            if line:
                self.L.append("    " + line if not line.endswith(":") else line)
    def lab(self, p="L"):
        self.nlab += 1
        return f"{p}_{self.nlab}"
    def nop(self, n):
        while n > 0:
            k = min(n, 16); self(f"s_nop {k-1}"); n -= k
    def srd(self, d, ptr, size):
        self(f"""s_mov_b32 s{d}, s{ptr}
                 s_and_b32 s{d+1}, s{ptr+1}, 0xffff
                 s_mov_b32 s{d+2}, {size}
                 s_mov_b32 s{d+3}, 0x20000""")
    def ws_srds(self):
        self.srd(40, P_WS, WS_REC)
        self(f"""s_add_u32 s56, s{P_WS}, {DUAL}
                 s_addc_u32 s57, s{P_WS+1}, 0
                 s_and_b32 s57, s57, 0xffff
                 s_mov_b32 s58, {DLEN}
                 s_mov_b32 s59, 0x20000""")
    def stamp(self, idx):
        if self.stamps:
            self(f"s_memrealtime s[{76+2*idx}:{77+2*idx}]")
    def count(self, idx, reg=61):
        if self.stamps and not self.dbg: self(f"s_waitcnt lgkmcnt(0)\ns_add_u32 s{76+2*idx}, s{reg}, 1")
    def flag_add(self, off):
        self(f"""s_mov_b64 exec, 1
                 ds_add_u32 v4, v5 offset:{off}
                 s_mov_b64 exec, -1""")
    def flag_wait(self, off, val):
        l = self.lab("FW"); x = self.lab("FX")
        self(f"""s_mov_b32 s15, 0
                 {l}:
                 ds_read_b32 v6, v4 offset:{off}
                 s_add_u32 s15, s15, 1
                 s_cmp_gt_u32 s15, {SPIN_MAX*8}
                 s_cbranch_scc1 {x}
                 s_waitcnt lgkmcnt(0)
                 v_readfirstlane_b32 s14, v6
                 s_cmp_lt_u32 s14, {val}
                 s_cbranch_scc1 {l}
                 {x}:""")
    def sflag_wait(self, base, off):
        l, x, r = self.lab("SW"), self.lab("SX"), self.lab("SR")
        self(f"""s_mov_b32 s15, 0
                 {l}:
                 s_load_dwordx16 s[16:31], s[{base}:{base+1}], {off} glc
                 s_add_u32 s15, s15, 1
                 s_cmp_gt_u32 s15, {SPIN_MAX}
                 s_cbranch_scc1 {x}
                 s_waitcnt lgkmcnt(0)""")
        for k in range(8):
            self(f"s_cmp_lg_u64 s[{16+2*k}:{17+2*k}], s[100:101]\ns_cbranch_scc1 {l}")
        self(f"{x}:")
    def reload_args(self):
        self("s_waitcnt lgkmcnt(0)\ns_load_dwordx16 s[16:31], s[0:1], 0")
    def chk(self, dst, p):
        self(f"""v_add3_u32 v{dst}, v{p}, v{p+1}, s11
                 v_add3_u32 v{dst}, v{p+2}, v{p+3}, v{dst}""")
    def acc_ne(self, a, b, first):
        if first:
            self(f"v_cmp_ne_u32 s[62:63], {a}, {b}")
        else:
            self(f"""v_cmp_ne_u32 vcc, {a}, {b}
                     s_or_b64 s[62:63], s[62:63], vcc""")
    def verify(self, p, c, first, t=7):
        self.chk(t, p)
        self.acc_ne(f"v{t}", f"v{c}", first)
    def poll_begin(self, dual=False):
        l = self.lab("PL")
        if dual:
            self("""s_mov_b32 s52, s40
                    s_mov_b32 s53, s41
                    s_mov_b32 s54, %d
                    s_mov_b32 s55, 0x20000""" % DLEN)
        self(f"s_mov_b32 s61, 0\n{l}:")
        return l
    def poll_end(self, l, dual=False):
        x = self.lab("PX")
        self(f"""s_cmp_eq_u64 s[62:63], 0
                 s_cbranch_scc1 {x}
                 s_add_u32 s61, s61, 1""")
        if dual:
            self("""s_and_b32 s14, s61, 7
                    s_cmp_eq_u32 s14, 7
                    s_cselect_b32 s52, s56, s40
                    s_cselect_b32 s53, s57, s41""")
        self(f"""s_cmp_lt_u32 s61, {SPIN_MAX}
                 s_cbranch_scc1 {l}
                 {x}:""")
    def xrow(self, op, v, t):
        self(f"""v_mov_b32 v{t}, v{v}
                 s_nop 1
                 v_permlane16_swap_b32 v{v}, v{t}
                 s_nop 0
                 {op} v{v}, v{v}, v{t}
                 v_mov_b32 v{t}, v{v}
                 s_nop 1
                 v_permlane32_swap_b32 v{v}, v{t}
                 s_nop 0
                 {op} v{v}, v{v}, v{t}""")
    def inrow(self, op, v, rors=(8, 4, 2, 1)):
        for r in rors:
            self(f"s_nop 1\n{op}_dpp v{v}, v{v}, v{v} row_ror:{r} {DPP}")
    def wave_sum(self, v, t):
        self.inrow("v_add_f32", v); self.xrow("v_add_f32", v, t)
    def rbf(self, v):
        self(f"v_cvt_pk_bf16_f32 v{v}, v{v}, v{v}\nv_lshlrev_b32 v{v}, 16, v{v}")
    def unpack(self, dst, src):
        self(f"v_lshlrev_b32 v{dst}, 16, v{src}\nv_and_b32 v{dst+1}, 0xffff0000, v{src}")
    def mfma(self, d, a, b, first):
        c = "0" if first else f"v[{d}:{d+3}]"
        self(f"v_mfma_f32_16x16x32_bf16 v[{d}:{d+3}], v[{a}:{a+3}], v[{b}:{b+3}], {c}")
    def pack8(self, p, d):
        for k in range(4):
            self(f"v_cvt_pk_bf16_f32 v{p+k}, v{d+2*k}, v{d+2*k+1}")
    def mask(self, m):
        self(f"s_mov_b32 exec_lo, {m}\ns_mov_b32 exec_hi, {m}")
    def mask_j4(self): self.mask("0x000f000f")
    def unmask(self): self("s_mov_b64 exec, -1")
    def dump(self, base):
        if self.dbg:
            g = self
            g("s_waitcnt lgkmcnt(0)")
            if base == STAMP2:
                lb = g.lab("DB")
                g(f"""v_mov_b32 v239, 0
                      s_not_b32 s13, s76
                      v_writelane_b32 v239, s13, 0
                      v_writelane_b32 v239, s76, 1
                      s_cmp_lt_u32 s3, 4
                      s_cbranch_scc1 {lb}""")
                for lane, k in ((2, 2), (3, 4), (4, 6), (5, 7), (6, 8)):
                    g(f"v_writelane_b32 v239, s{76+2*k}, {lane}")
                g(f"{lb}:")
                for k in range(1, 12): g(f"s_mov_b32 s{76+2*k}, 0")
            else:
                l0, l1, le = g.lab("DB"), g.lab("DB"), g.lab("DB")
                for lane, k in ((7, 9), (8, 10), (9, 11)):
                    g(f"v_writelane_b32 v239, s{76+2*k}, {lane}")
                g(f"""s_cmp_eq_u32 s72, 0
                      s_cbranch_scc1 {l0}
                      s_cmp_eq_u32 s72, 1
                      s_cbranch_scc1 {l1}
                      v_writelane_b32 v239, s78, 14
                      v_writelane_b32 v239, s80, 15
                      s_branch {le}
                      {l0}:
                      v_writelane_b32 v239, s78, 10
                      v_writelane_b32 v239, s82, 11
                      s_branch {le}
                      {l1}:
                      v_writelane_b32 v239, s78, 12
                      v_writelane_b32 v239, s82, 13
                      {le}:""")
                g.srd(44, P_DBG, 256)
                lw, lw2, lz = g.lab("DW"), g.lab("DW"), g.lab("DZ")
                g(f"""{lw}:
                     s_sleep 100
                     s_memrealtime s[78:79]
                     s_waitcnt lgkmcnt(0)
                     s_sub_u32 s13, s78, s76
                     s_cmp_lt_u32 s13, 2600
                     s_cbranch_scc1 {lw}
                     v_lshlrev_b32 v238, 2, v1
                     s_mov_b64 exec, 0xffff
                     buffer_atomic_umax v239, v238, s[44:47], 0 offen sc1
                     s_add_u32 s13, s2, s3
                     s_cmp_lg_u32 s13, 0
                     s_cbranch_scc1 {lz}
                     {lw2}:
                     s_sleep 10
                     s_memrealtime s[78:79]
                     s_waitcnt lgkmcnt(0)
                     s_sub_u32 s13, s78, s76
                     s_cmp_lt_u32 s13, 7000
                     s_cbranch_scc1 {lw2}
                     s_load_dword s80, s[{P_DBG}:{P_DBG+1}], {4*g.dbg} glc
                     s_waitcnt lgkmcnt(0)
                     {lw2}_b:
                     s_memrealtime s[78:79]
                     s_waitcnt lgkmcnt(0)
                     s_sub_u32 s13, s78, s80
                     s_cmp_lt_u32 s13, 8000
                     s_cbranch_scc1 {lw2}_b
                     {lz}:""")
            return
        if self.stamps:
            self("s_waitcnt lgkmcnt(0)")
            for k in range(12):
                self(f"v_mov_b32 v{240+k}, s{76+2*k}")
            self(f"""s_lshl_b32 s13, s2, 3
                  s_add_u32 s13, s13, s3
                  s_lshl_b32 s13, s13, 6
                  s_add_u32 s13, s13, {base}
                  v_mov_b32 v7, 0
                  s_mov_b64 exec, 1
                  buffer_store_dwordx4 v[240:243], v7, s[40:43], s13 offen
                  buffer_store_dwordx4 v[244:247], v7, s[40:43], s13 offen offset:16
                  buffer_store_dwordx4 v[248:251], v7, s[40:43], s13 offen offset:32
                  s_mov_b64 exec, -1""")
            for k in range(1, 12): self(f"s_mov_b32 s{76+2*k}, 0")
    def finish(self):
        if self.hold < 0:
            self("s_endpgm"); return
        if self.hold:
            l = self.lab("HD")
            self(f"""{l}:
                  s_memrealtime s[78:79]
                  s_waitcnt lgkmcnt(0)
                  s_sub_u32 s13, s78, s76
                  s_cmp_lt_u32 s13, {self.hold}
                  s_cbranch_scc1 {l}
                  s_endpgm""")
            return
        self.dump(STAMP)
        self("s_endpgm")

L_ML = L_FL + 128
L_QC = L_ML + 64
F_Q1 = 64
assert L_QC + 256 <= LDS_BYTES
F_LT = 60
F_MODE = 56
def lstore(g, instrs):
    lg, le = g.lab("LG"), g.lab("LE")
    g(f"s_cmp_lg_u32 s{MODE}, 1\ns_cbranch_scc1 {lg}")
    for x in instrs: g(x)
    g(f"s_branch {le}\n{lg}:")
    for x in instrs: g(x + " sc1" if x.startswith("buffer_store") else x)
    g(f"{le}:")
def tag_load(g): g(f"s_load_dword s11, s[{P_WS}:{P_WS+1}], {EPOCH}")
def tag_fin(g):
    g(f"""s_waitcnt lgkmcnt(0)
          s_mul_i32 s11, s11, {HASH_A}
          s_add_u32 s11, s11, {HASH_C}""")

def prologue(g):
    g(f"""s_cmp_ge_u32 s2, 256
          s_cbranch_scc1 L_end
          s_load_dwordx16 s[16:31], s[0:1], 0
          s_load_dwordx8 s[32:39], s[0:1], 64
          s_getpc_b64 s[48:49]
          L_pc:
          s_and_b32 s49, s49, 0xffff
          s_mov_b32 s50, L_code_end-L_pc
          s_mov_b32 s51, 0x20000
          v_lshlrev_b32 v1, 4, v0
          s_and_b32 s13, s2, 24
          s_lshl_b32 s13, s13, 10
          buffer_load_dwordx4 v[252:255], v1, s[48:51], s13 offen""")
    if g.stamps:
        for k in range(12): g(f"s_mov_b32 s{76+2*k}, 0")
    g.stamp(0)
    if g.hold: g("s_memrealtime s[76:77]")
    g(f"""v_lshrrev_b32 v2, 6, v0
          v_and_b32 v1, 63, v0
          s_and_b32 s4, s2, 7
          v_readfirstlane_b32 s3, v2
          s_lshr_b32 s5, s2, 3
          s_lshr_b32 s6, s5, 3
          s_lshl2_add_u32 s6, s4, s6
          s_and_b32 s7, s5, 7
          v_lshrrev_b32 v3, 4, v1
          v_and_b32 v9, 7, v1
          v_xor_b32 v9, v9, v3
          v_and_b32 v2, 1, v2
          v_lshlrev_b32 v2, 2, v2
          v_xor_b32 v9, v2, v9
          v_lshlrev_b32 v9, 4, v9
          v_lshrrev_b32 v10, 3, v1
          v_lshl_add_u32 v9, v10, 13, v9
          s_and_b32 s12, s3, 3
          v_and_b32 v2, 15, v1
          s_and_b32 s9, s5, 1
          s_cmp_ge_u32 s3, 4
          s_cbranch_scc1 L_pwave""")

def ids2(g):
    g(f"""s_lshr_b32 s8, s4, 1
          s_and_b32 s10, s4, 1
          s_lshl_b32 s10, s10, 4
          s_lshr_b32 s13, s5, 1
          s_add_u32 s10, s10, s13
          v_mov_b32 v4, {L_FL}
          v_mov_b32 v5, 1
          v_lshlrev_b32 v14, 4, v2
          v_lshl_add_u32 v14, v3, 2, v14
          v_lshlrev_b32 v15, 2, v14""")

def role_decode(g):
    l6, l7, ld, lhi = g.lab("R6"), g.lab("R7"), g.lab("RD"), g.lab("RH")
    g(f"""s_mov_b32 s72, 0
          s_mov_b32 s73, s5
          s_cmp_lt_u32 s5, 20
          s_cbranch_scc1 {ld}
          s_sub_u32 s13, s5, 20
          s_cmp_ge_u32 s4, 2
          s_cbranch_scc1 {lhi}
          s_lshl3_add_u32 s73, s4, s13
          s_cmp_lt_u32 s13, 8
          s_cbranch_scc1 {l7}
          s_lshl2_add_u32 s73, s4, s13
          s_sub_u32 s73, s73, 8
          s_branch {l6}
          {lhi}:
          s_lshl2_add_u32 s73, s4, s13
          s_add_u32 s73, s73, 8
          s_cmp_lt_u32 s13, 4
          s_cbranch_scc1 {l7}
          s_lshl3_add_u32 s73, s4, s13
          s_sub_u32 s73, s73, 12
          {l6}:
          s_mov_b32 s72, 1
          s_cmp_lt_u32 s73, 54
          s_cbranch_scc1 {ld}
          s_mov_b32 s72, 3
          s_branch {ld}
          {l7}:
          s_mov_b32 s72, 2
          {ld}:""")

def tr_lane(g, dst, t1, t2, swap=False):
    g(f"""v_lshrrev_b32 v{t1}, 2, v1
          v_and_b32 v{t1}, 3, v{t1}
          v_and_b32 v{t2}, 1, v3
          v_lshlrev_b32 v{t2}, 2, v{t2}""")
    if swap: g(f"v_or_b32 v{t1}, v{t1}, v{t2}")
    g(f"""v_and_b32 v{dst}, 3, v1
          v_xor_b32 v{dst}, v{dst}, v{t2}
          v_lshrrev_b32 v{t2}, 1, v{t1}
          v_xor_b32 v{dst}, v{dst}, v{t2}
          v_lshlrev_b32 v{dst}, 4, v{dst}
          v_lshl_add_u32 v{dst}, v{t1}, 7, v{dst}
          v_lshl_add_u32 v{dst}, v3, 10, v{dst}""")

def swave_front(g):
    g(f"""s_lshr_b32 s14, s7, 1
          s_mul_i32 s64, s14, 160
          s_lshl3_add_u32 s64, s12, s64
          s_lshl_b32 s64, s64, 13
          s_lshl_b32 s13, s6, 8
          s_add_u32 s64, s64, s13
          s_lshl_b32 s71, s9, 7
          s_add_u32 s64, s64, s71
          s_lshl_b32 s68, s14, 7
          s_lshl3_add_u32 s68, s12, s68
          s_lshl_b32 s68, s68, 13
          s_add_u32 s68, s68, s13
          s_lshl_b32 s67, s12, 10
          v_mov_b32 v6, 0
          v_lshlrev_b32 v13, 2, v1
          v_add_u32 v10, {L_MX}, v13
          v_mov_b32 v11, -1
          ds_write_b32 v10, v11 offset:{(L_MX - L_FL) % 65536 if False else 0}
          s_mov_b32 exec_hi, 0
          ds_write_b32 v10, v6 offset:{L_FL - L_MX}
          s_mov_b64 exec, -1
          s_mov_b32 s50, 5242880
          s_mov_b32 s70, s9
          s_mov_b32 s71, 0
          s_mov_b64 vcc, s[70:71]
          s_waitcnt lgkmcnt(0)
          s_mov_b32 s48, s{P_WQ}
          s_and_b32 s49, s{P_WQ+1}, 0xffff
          s_barrier""")
    for k in range(5):
        g(f"""s_add_u32 m0, s67, {L_WQ + k*4096}
              s_add_u32 s13, s64, {k*262144}
              buffer_load_dwordx4 v9, s[48:51], s13 offen nt lds""")
    ids2(g)
    g.srd(48, P_WUK, 4194304)
    g(f"""s_lshl_b32 s69, s12, 15
          s_cbranch_vccnz L_s_setup""")
    for k in range(g.wa - 5):
        kk, ch = k >> 1, k & 1
        g(f"""s_add_u32 m0, s69, {24576 + kk*2048 + ch*1024}
              s_add_u32 s13, s68, {kk*262144 + ch*128}
              buffer_load_dwordx4 v9, s[48:51], s13 offen nt lds""")
    g("L_s_setup:")
    tag_load(g)
    g.srd(44, P_CKV, 16777216)
    g.ws_srds()
    g(f"""s_lshl_b32 s65, s12, 15
          v_lshrrev_b32 v10, 3, v1
          v_lshrrev_b32 v11, 1, v10
          v_and_b32 v11, 1, v11
          v_and_b32 v12, 4, v10
          v_or_b32 v11, v11, v12
          v_and_b32 v12, 7, v1
          v_xor_b32 v11, v11, v12
          v_lshlrev_b32 v11, 4, v11
          v_lshl_add_u32 v7, v10, 10, v11
          v_xor_b32 v8, 32, v7
          v_add_u32 v8, 8192, v8
          s_lshl_b32 s64, s8, 22
          s_lshl_b32 s13, s10, 17
          s_add_u32 s64, s64, s13
          s_add_u32 s64, s64, s65
          v_lshrrev_b32 v11, 1, v2
          v_and_b32 v11, 1, v11
          v_lshrrev_b32 v12, 3, v2
          v_lshl_or_b32 v11, v12, 1, v11
          v_and_b32 v10, 4, v2
          v_or_b32 v11, v11, v10
          v_xor_b32 v11, v11, v3
          v_lshlrev_b32 v11, 4, v11
          v_and_b32 v10, 7, v2
          v_lshl_add_u32 v11, v10, 7, v11
          v_lshl_add_u32 v11, v12, 10, v11
          v_add_u32 v11, s65, v11
          s_cmp_eq_u32 s9, 0
          s_cselect_b32 s74, {512 if g.xr else 0}, 0
          s_lshl_b32 s13, s74, 4
          s_sub_u32 s66, s64, s74
          s_add_u32 s64, s64, s74
          s_sub_u32 s67, s65, s13
          s_add_u32 s65, s65, s13
          s_sub_u32 s14, 8192, s13
          v_add_u32 v34, s14, v11
          v_add_u32 v11, s13, v11
          v_xor_b32 v12, 64, v11
          v_xor_b32 v35, 64, v34
          v_mov_b32 v17, 0""")
    g.stamp(1)
    g("s_cbranch_vccnz L_s_ckv")
    fa = False
    for k in range(g.wa - 5, 8):
        kk, ch = k >> 1, k & 1
        g(f"s_waitcnt vmcnt({g.wa-1})")
        if not fa and 5 + k - g.wa >= 4:
            g.flag_add(F_A); fa = True
        g(f"""s_add_u32 m0, s69, {24576 + kk*2048 + ch*1024}
              s_add_u32 s13, s68, {kk*262144 + ch*128}
              buffer_load_dwordx4 v9, s[48:51], s13 offen nt lds""")
    if not fa:
        g("s_waitcnt vmcnt(8)")
        g.flag_add(F_A)
    g(f"""v_lshlrev_b32 v16, 4, v2
          v_add_u32 v16, {L_QC}, v16
          v_lshrrev_b32 v17, 2, v2
          v_lshlrev_b32 v17, 13, v17
          v_and_b32 v18, 3, v2
          v_lshl_add_u32 v17, v18, 4, v17
          s_lshr_b32 s13, s7, 1
          s_lshl2_add_u32 s69, s6, s13
          s_lshl_b32 s69, s69, 6
          s_add_u32 s69, s69, {QAC}
          s_waitcnt vmcnt({max(g.qe, 1)})""")
    g.flag_add(F_UR)
    g("s_waitcnt vmcnt(0)")
    g.flag_add(F_UK)
    g("s_branch L_s_ckv")

def pwave(g):
    g(f"""L_pwave:
          v_lshlrev_b32 v7, 4, v1
          v_lshlrev_b32 v8, 2, v1
          s_mul_i32 s64, s12, 1280
          s_mov_b32 s46, 5120
          s_mov_b32 s47, 0x20000
          {"s_setprio 3" if g.prio else ""}
          s_waitcnt lgkmcnt(0)
          s_mov_b32 s44, s{P_X}
          s_and_b32 s45, s{P_X+1}, 0xffff
          buffer_load_dwordx4 v[16:19], v7, s[44:47], s64 offen
          buffer_load_dword v20, v8, s[44:47], s64 offen offset:1024
          s_barrier""")
    tag_load(g)
    g.ws_srds()
    ids2(g)
    g(f"""s_lshl_b32 s68, s6, 10
          s_lshr_b32 s69, s7, 1
          s_and_b32 s14, s12, 1
          s_lshl1_add_u32 s14, s9, s14
          s_lshl2_add_u32 s14, s14, s69
          s_lshl_b32 s14, s14, 6
          s_add_u32 s66, s68, s14
          s_lshl_b32 s65, s66, 2
          s_lshl_b32 s67, s68, 2
          s_add_u32 s65, s65, {QP}
          s_add_u32 s66, s66, {QPC}
          s_add_u32 s67, s67, {QP}
          s_add_u32 s68, s68, {QPC}
          s_cmp_lt_u32 s12, 2
          s_cbranch_scc1 L_p_x0""")
    g.mask_j4()
    g(f"""buffer_load_dword v250, v15, s[40:43], s65 offen sc1
          buffer_load_dword v251, v14, s[40:43], s66 offen sc1
          s_mov_b64 exec, -1
          s_waitcnt vmcnt(2)
          s_branch L_p_x1
          L_p_x0:
          s_waitcnt vmcnt(0)
          L_p_x1:""")
    g.stamp(1)
    for k in range(5): g.unpack(24+2*k, 16+k)
    g(f"""v_add_f32 v34, v24, v25
          v_add_f32 v35, v26, v27
          v_add_f32 v36, v28, v29
          v_add_f32 v37, v30, v31
          v_add_f32 v38, v32, v33
          v_add_f32 v34, v34, v35
          v_add_f32 v36, v36, v37
          v_add_f32 v34, v34, v38
          v_add_f32 v34, v34, v36""")
    g.wave_sum(34, 35)
    g(f"v_mul_f32 v34, {f32(1/640)}, v34")
    g("v_sub_f32 v36, v24, v34\nv_mul_f32 v35, v36, v36")
    for k in range(1, 10):
        g(f"v_sub_f32 v36, v{24+k}, v34\nv_fmac_f32 v35, v36, v36")
    g.wave_sum(35, 36)
    g(f"v_mul_f32 v35, {f32(1/640)}, v35")
    g.rbf(35)
    g(f"v_add_f32 v35, {f32(1e-5)}, v35")
    g.rbf(35)
    g("v_sqrt_f32 v35, v35")
    g.rbf(34)
    g.rbf(35)
    g("v_rcp_f32 v35, v35")
    for k in range(10): g(f"v_sub_f32 v{24+k}, v{24+k}, v34")
    for k in range(5): g(f"v_cvt_pk_bf16_f32 v{16+k}, v{24+2*k}, v{25+2*k}")
    for k in range(5): g.unpack(24+2*k, 16+k)
    for k in range(10): g(f"v_mul_f32 v{24+k}, v{24+k}, v35")
    for k in range(5): g(f"v_cvt_pk_bf16_f32 v{16+k}, v{24+2*k}, v{25+2*k}")
    g(f"""s_add_u32 s13, s64, {L_XN}
          v_add_u32 v7, s13, v7
          v_add_u32 v8, s13, v8
          ds_write_b128 v7, v[16:19]
          ds_write_b32 v8, v20 offset:1024""")
    g.flag_add(F_A)
    tr_lane(g, 11, 10, 12)
    g(f"""s_and_b32 s13, s12, 1
          s_lshl_b32 s13, s13, 6
          v_xor_b32 v11, s13, v11
          v_add_u32 v11, {L_WQ}, v11
          v_xor_b32 v12, 0x220, v11
          v_and_b32 v13, 3, v2
          v_mul_u32_u24 v13, 1280, v13
          v_lshl_add_u32 v13, v3, 4, v13
          s_mul_i32 s13, s69, 320
          s_add_u32 s13, s13, {L_XN}
          v_add_u32 v13, s13, v13""")
    g(f"""v_lshlrev_b32 v24, 15, v2
          v_lshl_add_u32 v24, v3, 4, v24
          v_lshlrev_b32 v34, 6, v2
          v_lshl_add_u32 v34, v3, 2, v34
          s_lshl_b32 s13, s12, 4
          s_add_u32 s13, s13, {L_QC}
          v_add_u32 v34, s13, v34
          v_and_b32 v7, 4, v2
          s_lshl2_add_u32 s13, s69, s12
          s_lshl_b32 s13, s13, 6
          s_lshl_b32 s70, s6, 10
          s_add_u32 s70, s70, s13
          s_add_u32 s70, s70, {QA}
          v_lshrrev_b32 v26, 2, v2
          v_and_b32 v27, 3, v2
          v_lshrrev_b32 v25, 1, v27
          v_xor_b32 v25, v25, v3
          v_xor_b32 v25, v25, v7
          v_lshlrev_b32 v25, 4, v25
          v_lshl_add_u32 v25, v27, 7, v25
          v_lshl_add_u32 v25, v26, 15, v25
          s_lshl_b32 s13, s12, 11
          s_add_u32 s13, s13, 24576
          v_add_u32 v25, s13, v25
          v_xor_b32 v26, 64, v25
          v_xor_b32 v27, 0x220, v25
          v_xor_b32 v28, 0x260, v25
          s_mov_b32 s52, s40
          s_mov_b32 s53, s41
          s_mov_b32 s54, {DLEN}
          s_mov_b32 s55, 0x20000
          s_mov_b32 s61, 0""")
    tag_fin(g)
    g(f"""s_cmp_lt_u32 s12, 2
          s_cbranch_scc1 L_p_s1
          s_cmp_lg_u32 s12, 3
          s_cbranch_scc1 L_p_nos1
          s_getreg_b32 s13, hwreg(HW_REG_XCC_ID, 0, 4)
          s_add_u32 s13, s13, s11
          v_mov_b32 v16, s13
          v_mov_b32 v17, s13
          v_mov_b32 v18, s13
          v_mov_b32 v19, s13
          v_lshlrev_b32 v22, 4, v1
          s_lshl_b32 s13, s4, 5
          s_add_u32 s13, s13, s5
          s_lshl_b32 s13, s13, 7
          s_add_u32 s13, s13, {IDT}
          s_mov_b64 exec, 0xff
          buffer_store_dwordx4 v[16:19], v22, s[40:43], s13 offen sc1
          s_mov_b64 exec, -1
          s_branch L_p_nos1
          L_p_s1:""")
    g.flag_wait(F_A, 8)
    g.stamp(2)
    def s1_reads(t):
        g(f"ds_read_b128 v[{36+4*t}:{39+4*t}], v13 offset:{t*64}")
        for e in range(2):
            r = 96 + 8*t + 4*e
            g(f"ds_read_b64_tr_b16 v[{r}:{r+1}], v11 offset:{t*4096+e*8}")
            g(f"ds_read_b64_tr_b16 v[{r+2}:{r+3}], v12 offset:{t*4096+e*8}")
    s1_reads(0); s1_reads(1); s1_reads(2)
    for t in range(5):
        rem = min(5, t+3) - (t+1)
        g(f"s_waitcnt lgkmcnt({rem*5})")
        for e in range(2): g.mfma(56+4*e, 96+8*t+4*e, 36+4*t, t == 0)
        if t + 3 < 5: s1_reads(t+3)
    g.nop(6)
    g.mask_j4()
    g.pack8(16, 56)
    g.chk(20, 16)
    g(f"""buffer_store_dwordx4 v[16:19], v15, s[40:43], s65 offen
          buffer_store_dword v20, v14, s[40:43], s66 offen""")
    g.flag_add(F_S1)
    g.stamp(3)
    g("L_p_nos1:")
    def qdual():
        lq = g.lab("QD")
        g(f"s_cmp_ge_u32 s12, 2\ns_cbranch_scc1 {lq}")
        g.mask_j4()
        g(f"""buffer_store_dwordx4 v[16:19], v15, s[56:59], s65 offen sc1
              buffer_store_dword v20, v14, s[56:59], s66 offen sc1
              s_mov_b64 exec, -1
              {lq}:""")
    g("s_cmp_lg_u32 s9, 0\ns_cbranch_scc1 L_p_qd")
    def qloads():
        for t in range(4):
            g(f"buffer_load_dwordx4 v[{36+4*t}:{39+4*t}], v15, s[52:55], s67 offen offset:{t*1024} sc1")
        for t in range(4):
            g(f"buffer_load_dword v{52+t}, v14, s[52:55], s68 offen offset:{t*256} sc1")
    if g.qe:
        g.flag_wait(F_UR, 4)
        qloads()
    g.flag_wait(F_UK, 4)
    g.stamp(9)
    for e in range(2):
        for t in range(4):
            r = 64 + 16*e + 4*t
            g(f"ds_read_b128 v[{r}:{r+3}], v{25+2*e+(t&1)} offset:{(t>>1)*1024}")
    l, lnd, lsk = g.lab("PL"), g.lab("ND"), g.lab("SK")
    g("s_mov_b64 s[62:63], -1")
    if g.qe: g(f"s_branch {lsk}")
    g(f"""{l}:
          s_cmp_lg_u32 s61, 3
          s_cbranch_scc1 {lnd}""")
    qdual()
    g(f"{lnd}:\ns_mov_b64 exec, s[62:63]")
    qloads()
    g(f"s_mov_b64 exec, -1\n{lsk}:\ns_waitcnt vmcnt(4) lgkmcnt(0)")
    for t in range(4):
        for e in range(2): g.mfma(56+4*e, 64+16*e+4*t, 36+4*t, t == 0)
    g("s_waitcnt vmcnt(0)")
    for t in range(4): g.verify(36+4*t, 52+t, t == 0)
    g.poll_end(l, dual=True)
    g.count(10)
    for r in (4, 8):
        for k in range(8): g(f"v_add_f32_dpp v{56+k}, v{56+k}, v{56+k} row_ror:{r} {DPP}")
    g.mask_j4()
    g.pack8(28, 56)
    g("buffer_store_dwordx4 v[28:31], v24, s[40:43], s70 offen sc1")
    g.chk(32, 28)
    g("ds_write_b32 v34, v32")
    g.flag_add(F_GO)
    g.stamp(4)
    lnd, lm = g.lab("ND"), g.lab("MD")
    g(f"""L_p_qd:
          s_cmp_lg_u32 s12, 3
          s_cbranch_scc1 {lm}
          s_lshl_b32 s64, s4, 12
          s_add_u32 s64, s64, {IDT}
          s_getreg_b32 s71, hwreg(HW_REG_XCC_ID, 0, 4)
          v_lshlrev_b32 v34, 7, v1""")
    g.flag_wait(F_S1, 2)
    g("s_mov_b32 exec_hi, 0")
    l = g.poll_begin()
    g(f"""buffer_load_dword v35, v34, s[40:43], s64 offen sc1
          s_waitcnt vmcnt(0)
          v_subrev_u32 v35, s11, v35
          v_cmp_lt_u32 s[62:63], 15, v35""")
    g.poll_end(l)
    g(f"""v_cmp_ne_u32 vcc, s71, v35
          s_cmp_eq_u64 vcc, 0
          s_cselect_b32 s13, 1, 2
          v_mov_b32 v35, s13
          ds_write_b32 v4, v35 offset:{F_MODE}
          s_mov_b64 exec, -1
          {lm}:""")
    g.flag_wait(F_MODE, 1)
    g(f"""s_cmp_eq_u32 s14, 1
          s_cbranch_scc1 {lnd}""")
    qdual()
    g(f"{lnd}:\ns_mov_b32 s{MODE}, s14\ns_nop 1")
    g(f"""v_lshrrev_b32 v10, 2, v1
          v_and_b32 v10, 3, v10
          v_and_b32 v11, 3, v1
          v_lshrrev_b32 v12, 1, v10
          v_and_b32 v13, 2, v3
          v_or_b32 v12, v12, v13
          v_and_b32 v13, 1, v3
          v_lshl_or_b32 v12, v13, 2, v12
          v_xor_b32 v12, v12, v11
          v_lshlrev_b32 v12, 4, v12
          v_lshl_or_b32 v13, v13, 2, v10
          v_lshl_add_u32 v12, v13, 7, v12
          v_lshrrev_b32 v13, 1, v3
          v_lshl_add_u32 v12, v13, 10, v12
          v_and_b32 v13, 1, v11
          v_lshl_add_u32 v12, v13, 3, v12
          s_lshl_b32 s13, s12, 12
          v_add_u32 v20, s13, v12
          v_xor_b32 v21, 8, v20
          v_xor_b32 v22, 64, v20
          v_xor_b32 v23, 0x48, v20
          v_add_u32 v24, 0x10000, v20
          v_add_u32 v25, 0x10000, v21
          v_add_u32 v26, 0x10000, v22
          v_add_u32 v27, 0x10000, v23
          v_lshlrev_b32 v28, 4, v1
          v_lshlrev_b32 v33, 2, v1
          s_lshl2_add_u32 s13, s9, s12
          s_lshl3_add_u32 s13, s8, s13
          s_lshl_b32 s65, s13, 12
          s_add_u32 s65, s65, {QA}
          s_lshl_b32 s66, s13, 10
          s_add_u32 s66, s66, {QAC}""")
    for n in range(4):
        g(f"""s_lshl2_add_u32 s13, s12, {n}
              s_lshl_b32 s14, s13, 4
              v_xor_b32 v{29+n}, s14, v28
              s_lshl_b32 s13, s13, 10
              s_add_u32 s13, s13, {L_QA}
              v_add_u32 v{29+n}, s13, v{29+n}""")
    role_decode(g)
    def gather_loads():
        for n in range(4):
            g(f"buffer_load_dwordx4 v[{64+4*n}:{67+4*n}], v28, s[40:43], s65 offen offset:{n*1024} sc1")
        for n in range(4):
            g(f"buffer_load_dword v{80+n}, v33, s[40:43], s66 offen offset:{n*256} sc1")
    def pv_pre(tile):
        for sw in range(4):
            for tp in range(4):
                for e in range(2):
                    r = 128 + ((tp*2+e)*4 + sw)*4 + 2*tile
                    a = 20 + (tp & 1)*2 + e + (4 if sw >= 2 else 0)
                    off = (sw & 1)*32768 + tile*16384 + (tp >> 1)*2048
                    g(f"ds_read_b64_tr_b16 v[{r}:{r+1}], v{a} offset:{off}")
    lg2 = g.lab("GB")
    g.flag_wait(F_G2, 4)
    g.stamp(5)
    gather_loads()
    g.flag_wait(F_T0, 4)
    pv_pre(0)
    g("s_waitcnt lgkmcnt(0)")
    g.flag_add(F_RD)
    l = g.lab("PL")
    g(f"""s_mov_b32 s61, 0
          s_branch {lg2}
          {l}:
          s_mov_b64 exec, s[62:63]""")
    gather_loads()
    g(f"s_mov_b64 exec, -1\n{lg2}:\ns_waitcnt vmcnt(0)")
    for n in range(4): g.verify(64+4*n, 80+n, n == 0)
    g.poll_end(l)
    g.count(11)
    g.flag_wait(F_S1, 2)
    for n in range(4): g(f"ds_write_b128 v{29+n}, v[{64+4*n}:{67+4*n}]")
    g.flag_add(F_QA)
    if g.prio: g("s_setprio 0")
    g.stamp(6)
    g(f"""v_lshlrev_b32 v29, {7 if g.opl else 6}, v2
          v_lshl_add_u32 v29, v3, 4, v29
          s_lshl2_add_u32 s65, s9, s8
          s_lshl_b32 s65, s65, 5
          s_add_u32 s65, s65, s10
          s_mul_i32 s65, s65, {OBLK}
          s_add_u32 s65, s65, {OP}
          s_lshl_b32 s13, s12, 10
          s_add_u32 s67, s65, s13
          s_add_u32 s67, s67, 16384
          s_lshl_b32 s13, s12, 12
          s_add_u32 s65, s65, s13
          v_add_u32 v31, {L_P}, v28
          v_lshlrev_b32 v30, 4, v2
          v_add_u32 v30, {L_MX}, v30
          v_add_u32 v32, {L_SM}, v15
          s_mov_b32 s60, {f32(SCALE)}""")
    g.srd(48, P_WUV, 4194304)
    g(f"""s_lshl_b32 s69, s7, 6
          s_lshl3_add_u32 s69, s12, s69
          s_lshl_b32 s69, s69, 13
          s_lshl_b32 s13, s6, 8
          s_add_u32 s69, s69, s13
          s_lshl_b32 s70, s12, 10""")
    g("s_mov_b32 s74, s69\ns_mov_b32 s75, s70")
    def uv_dma():
        for k in range(2):
            for ch in range(2):
                g(f"""s_add_u32 m0, s75, {L_WUV + ch*8192 + k*4096}
                      s_add_u32 s13, s74, {k*262144 + ch*128}
                      buffer_load_dwordx4 v9, s[48:51], s13 offen nt lds""")
    g.flag_wait(F_RD, 4)
    g.flag_wait(F_S2, 4)
    if not g.uv: uv_dma()
    lpt = g.lab("PT")
    g(f"""s_cmp_lg_u32 s72, 0
          s_cbranch_scc1 {lpt}
          v_lshlrev_b32 v116, 2, v2
          s_mul_i32 s13, s12, 1280
          s_lshl_b32 s14, s73, 6
          s_add_u32 s13, s13, s14
          buffer_load_dword v120, v116, s[44:47], s13 offen
          s_mul_i32 s13, s4, 20
          s_add_u32 s13, s13, s73
          s_mul_i32 s13, s13, 384
          s_lshl_b32 s14, s12, 7
          s_min_u32 s14, s14, 256
          s_add_u32 s13, s13, s14
          s_add_u32 s13, s13, {HR}
          buffer_load_dword v121, v116, s[40:43], s13 offen sc1
          {lpt}:""")
    early_setup(g)
    if g.sa == 2: early_dma(g)
    g("s_lshl_b32 s13, s12, 2\nv_add_u32 v4, s13, v4")
    g.flag_wait(F_Q1, 0x01010101)
    g("v_subrev_u32 v4, s13, v4")
    pv_pre(1)
    if g.sa == 1: early_dma(g)
    if g.sa == 0: g("s_lshl_b32 s70, s70, 1")
    g("s_waitcnt lgkmcnt(0)")
    if g.prio: g("s_setprio 3")
    g("s_barrier")
    g.stamp(7)
    for sw in range(4):
        g(f"ds_read_b128 v[{36+4*sw}:{39+4*sw}], v31 offset:{sw*1024}")
    g("ds_read_b128 v[52:55], v30\nds_read_b128 v[56:59], v32")
    def pv_out(tp):
        p = 96 + 4*tp; d = 64 + 8*tp; c = 114 + (tp >> 1)
        return [f"v_cvt_pk_bf16_f32 v{p+k}, v{d+2*k}, v{d+2*k+1}" for k in range(4)] + [
            f"buffer_store_dwordx4 v[{p}:{p+3}], v29, s[40:43], s65 offen offset:{((tp>>1)*2048+(tp&1)*64) if g.opl else tp*1024} sc1",
            f"v_add3_u32 v{c}, v{p}, v{p+1}, {'v60' if tp % 2 == 0 else f'v{c}'}",
            f"v_add3_u32 v{c}, v{p+2}, v{p+3}, v{c}"]
    stats = ["s_waitcnt lgkmcnt(0)", "v_max3_f32 v112, v52, v53, v54", "v_add_f32 v56, v56, v57", "v_add_f32 v58, v58, v59",
             "v_max_f32 v112, v112, v55", "v_add_f32 v113, v56, v58", "v_mul_f32 v112, s60, v112", "v_mov_b32 v56, v113",
             "s_nop 0", "v_permlane16_swap_b32 v113, v56", "s_nop 0", "v_add_f32 v113, v113, v56", "v_mov_b32 v56, v113",
             "s_nop 1", "v_permlane32_swap_b32 v113, v56", "s_nop 0", "v_add_f32 v113, v113, v56", "v_add3_u32 v60, v112, v113, s11"]
    fill = {k: [] for k in range(32)}
    for n, x in enumerate(stats): fill[5 + n//2].append(x)
    for tp in range(3):
        o = pv_out(tp); base = 8*(tp+1)
        pos = [4, 4, 5, 5, 6, 7, 7]
        if tp == 0: pos = [6, 6, 7, 7, 8, 9, 9]
        for x, q in zip(o, pos): fill[base + q].append(x)
    n = 0
    for tp in range(4):
        for sw in range(4):
            if tp == 0: g(f"s_waitcnt lgkmcnt({5-sw})")
            for e in range(2):
                g.mfma(64+8*tp+4*e, 128+((tp*2+e)*4+sw)*4, 36+4*sw, sw == 0)
                for x in fill[n]: g(x)
                n += 1
    g.nop(4)
    for x in pv_out(3): g(x)
    g("buffer_store_dwordx4 v[112:115], v15, s[40:43], s67 offen sc1")
    g.stamp(8)
    g("s_waitcnt vmcnt(5)")
    if g.xf:
        lx = g.lab("XF")
        g(f"""s_cmp_lg_u32 s12, 3
              s_cbranch_scc1 {lx}
              s_lshl_b32 s13, s4, 7
              s_lshl2_add_u32 s13, s5, s13
              s_add_u32 s13, s13, {XF}
              v_mov_b32 v61, s11
              v_mov_b32 v62, 0
              s_mov_b64 exec, 1""")
        lstore(g, ["buffer_store_dword v61, v62, s[40:43], s13 offen"])
        g(f"s_mov_b64 exec, -1\n{lx}:")
    if g.xf == 2:
        g.flag_wait(F_LT, 1)
        lx = g.lab("LT")
        g(f"s_mov_b32 s54, s74\ns_mov_b32 s55, s75\nv_mov_b32 v118, v9\ns_cmp_eq_u32 s14, 2\ns_cbranch_scc1 {lx}")
        uv_dma()
        g(f"{lx}:")
    elif g.uv: uv_dma()
    if not g.sb: early_dma(g)
    else: g("s_mov_b32 s52, s70\ns_mov_b32 s53, s71")
    g("s_branch L_s4")

def early_setup(g):
    le = g.lab("EE")
    g(f"""s_mov_b32 s70, 0
          s_lshl_b32 s71, s12, 10
          s_add_u32 s71, s71, {L_WR}""")
    g.srd(44, P_WO, 5242880)
    g(f"""v_lshrrev_b32 v119, 3, v1
          v_mul_u32_u24 v119, 1280, v119
          v_and_b32 v7, 0x70, v9
          v_add_u32 v119, v119, v7
          s_and_b32 s13, s73, 1
          s_lshl1_add_u32 s13, s4, s13
          s_lshl_b32 s13, s13, 5
          s_add_u32 s13, s13, s12
          s_mul_i32 s68, s13, {8*1280}
          s_lshr_b32 s13, s73, 1
          s_lshl_b32 s13, s13, 7
          s_add_u32 s68, s68, s13
          s_mov_b32 s69, {32*1280}
          s_cmp_ge_u32 s72, 2
          s_cbranch_scc1 {le}
          s_mov_b32 s70, 4
          s_cmp_eq_u32 s72, 0
          s_cbranch_scc1 {le}""")
    g.srd(44, P_W1, 2211840)
    g(f"""v_lshrrev_b32 v119, 2, v1
          v_mul_u32_u24 v119, 3456, v119
          v_and_b32 v7, 3, v1
          v_lshl_add_u32 v119, v7, 4, v119
          s_mul_i32 s68, s12, {16*3456}
          s_lshl_b32 s13, s73, 6
          s_add_u32 s68, s68, s13
          s_mov_b32 s69, {64*3456}
          s_mov_b32 s70, {g.c1}
          {le}:""")
def early_dma(g):
    l, le = g.lab("ED"), g.lab("EX")
    g(f"""s_mov_b32 s13, s70
          s_cmp_eq_u32 s70, 0
          s_cbranch_scc1 {le}
          {l}:
          s_mov_b32 m0, s71
          s_add_u32 s71, s71, 4096
          buffer_load_dwordx4 v119, s[44:47], s68 offen nt lds
          s_add_u32 s68, s68, s69
          s_sub_u32 s13, s13, 1
          s_cmp_lg_u32 s13, 0
          s_cbranch_scc1 {l}
          {le}:""")

def swave(g, W):
    g("L_s_ckv:")
    def areads(m):
        tile, u = m >> 3, m & 7
        for tl in range(2):
            t = 2*u + tl
            r = 64 + 64*tile + 4*t
            g(f"ds_read_b128 v[{r}:{r+3}], v{(11 if u < 4 else 34)+tl} offset:{tile*16384+(u&3)*2048}")
    def qflag(m):
        g(f"ds_write_b8 v40, v5 offset:{F_Q1 + 2*(m-9)}")
    g("v_add_u32 v40, s12, v4")
    done = 0
    for k in range(32):
        if k == g.npa:
            lb = g.lab("GO")
            g(f"s_cbranch_vccnz {lb}")
            g.flag_wait(F_GO, 4)
            g(f"""s_cmp_lg_u32 s12, 0
                  s_cbranch_scc1 {lb}
                  ds_read_b128 v[20:23], v16
                  s_mov_b64 exec, 0xffff
                  s_waitcnt vmcnt(0) lgkmcnt(0)
                  buffer_store_dwordx4 v[20:23], v17, s[40:43], s69 offen sc1
                  s_mov_b64 exec, -1
                  {lb}:""")
        if k < g.wsw:
            lb = g.lab("SB")
            g(f"s_cbranch_vccz {lb}\ns_waitcnt vmcnt({g.we-1})")
            if k == g.we - 1: g.flag_add(F_A)
            g(f"{lb}:")
        if k >= W: g(f"s_waitcnt vmcnt({W-1})")
        landed = k - W
        tile, u, kh = k >> 4, (k >> 1) & 7, k & 1
        g(f"""s_add_u32 m0, s{65 if u < 4 else 67}, {k*1024}
              s_add_u32 s13, s{64 if u < 4 else 66}, {tile*16384 + u*128}
              buffer_load_dwordx4 v{7+kh}, s[44:47], s13 offen lds""")
        if k == 31: g.flag_add(F_S2)
        if k == g.ga:
            lb = g.lab("SB"); g(f"s_cbranch_vccnz {lb}"); g.flag_add(F_G2); g(f"{lb}:")
        if k == g.gb:
            lb = g.lab("SB"); g(f"s_cbranch_vccz {lb}"); g.flag_add(F_G2); g(f"{lb}:")
        while 2*done + 1 <= landed:
            areads(done); done += 1
            if done > 8 and done % 2 == 0: qflag(done-1)
            if done == 8:
                tag_fin(g)
                g.flag_add(F_T0)
                g.stamp(2)
    for tl in range(4):
        g(f"""v_or_b32 v13, {4*tl}, v3
              v_xor_b32 v13, v13, v2
              v_lshlrev_b32 v13, 4, v13
              v_lshl_add_u32 v13, v2, 10, v13
              v_add_u32 v13, {L_QA}, v13
              v_add_u32 v{16+tl}, s74, v13
              v_subrev_u32 v{36+tl}, s74, v13""")
    g(f"""v_lshlrev_b32 v20, 4, v2
          v_add_u32 v20, {L_MX}, v20
          s_lshl_b32 s13, s12, 2
          v_add_u32 v21, s13, v20
          v_lshlrev_b32 v22, 4, v1
          s_lshl_b32 s13, s12, 10
          s_add_u32 s13, s13, {L_P}
          v_add_u32 v22, s13, v22
          s_mov_b32 s60, {f32(SCALE)}
          v_lshlrev_b32 v23, 6, v2
          v_lshl_add_u32 v23, v3, 2, v23
          s_lshl_b32 s13, s12, 4
          s_add_u32 s13, s13, {L_SM}
          v_add_u32 v23, s13, v23""")
    if g.fl:
        g(f"""v_mul_u32_u24 v32, {8*FSTR}, v1
              v_mov_b32 v33, s11
              s_lshl_b32 s66, s9, 5
              s_add_u32 s66, s66, s4
              s_mul_i32 s66, s66, {FSTR}
              s_lshr_b32 s13, s5, 1
              s_lshl2_add_u32 s66, s13, s66
              s_add_u32 s66, s66, {FL3}""")
    role_decode(g)
    if g.prio: g("s_setprio 2")
    g.stamp(3)
    def qa_reads():
        for t in range(16):
            g(f"ds_read_b128 v[{192+4*t}:{195+4*t}], v{(16 if t < 8 else 36)+(t&3)} offset:{(t>>2)*256}")
    if g.ad:
        for m in range(done, 16):
            g(f"""ds_read_b32 v6, v4 offset:{F_QA}
                  s_waitcnt lgkmcnt(0)
                  v_readfirstlane_b32 s14, v6
                  s_cmp_ge_u32 s14, 4
                  s_cbranch_scc1 L_s_early
                  s_waitcnt vmcnt({31-(2*m+1)})""")
            areads(m)
            if m % 2 == 1: qflag(m)
        g.stamp(5)
        g.flag_wait(F_QA, 4)
        g.stamp(4)
        qa_reads()
        for t in range(16):
            g(f"s_waitcnt lgkmcnt({15-t})")
            g.mfma(56, 64+4*t, 192+4*t, t == 0)
            g.mfma(60, 128+4*t, 192+4*t, t == 0)
        g("s_nop 5\ns_branch L_s_max\nL_s_early:")
    else:
        g.flag_wait(F_QA, 4)
    g.stamp(4)
    assert done == 11
    q = []
    def qa(t):
        g(f"ds_read_b128 v[{192+4*t}:{195+4*t}], v{(16 if t < 8 else 36)+(t&3)} offset:{(t>>2)*256}"); q.append(("qa", t))
    def drain(m):
        g(f"s_waitcnt vmcnt({31-(2*m+1)})")
        areads(m); q.extend([("a", m)]*2)
        if m % 2 == 1: qflag(m); q.append(("f", m))
    def need(key):
        last = max(i for i, x in enumerate(q) if x == key)
        g(f"s_waitcnt lgkmcnt({len(q)-1-last})")
    def t1(m):
        need(("a", m))
        for tl in range(2):
            t = 2*(m & 7) + tl
            g.mfma(60, 128+4*t, 192+4*t, False)
    AH = 5
    for t in range(AH): qa(t)
    for t in range(16):
        need(("qa", t))
        g.mfma(56, 64+4*t, 192+4*t, t == 0)
        if t + AH < 16: qa(t + AH)
        if t < 6: g.mfma(60, 128+4*t, 192+4*t, t == 0)
        if t in (5, 7, 9, 11): drain(11 + (t-5)//2)
        if t in (9, 11, 13): t1(11 + (t-9)//2)
        if t == 13:
            drain(15); g.stamp(5)
    t1(14); t1(15)
    g("s_nop 5")
    g("""L_s_max:
         v_max3_f32 v24, v56, v57, v58
         v_max_f32 v24, v24, v59
         v_max3_f32 v24, v24, v60, v61
         v_max3_f32 v24, v24, v62, v63""")
    g.stamp(9)
    g.xrow("v_max_f32", 24, 25)
    g("ds_write_b32 v21, v24")
    g.stamp(10)
    l, lx = g.lab("MX"), g.lab("MZ")
    g(f"""s_mov_b32 s15, 0
          {l}:
          ds_read_b128 v[24:27], v20
          s_add_u32 s15, s15, 1
          s_cmp_gt_u32 s15, {SPIN_MAX*8}
          s_cbranch_scc1 {lx}
          s_waitcnt lgkmcnt(0)
          v_max3_u32 v28, v24, v25, v26
          v_max_u32 v28, v28, v27
          v_cmp_eq_u32 vcc, -1, v28
          s_cbranch_vccnz {l}
          {lx}:
          s_waitcnt lgkmcnt(0)
          v_max3_f32 v24, v24, v25, v26
          v_max_f32 v24, v24, v27
          v_mul_f32 v24, s60, v24""")
    g.stamp(11)
    for k in range(8): g(f"v_fma_f32 v{56+k}, v{56+k}, s60, -v24")
    for k in range(8): g(f"v_exp_f32 v{56+k}, v{56+k}")
    g.nop(1)
    g.pack8(28, 56)
    g(f"""ds_write_b128 v22, v[28:31]
          v_add_f32 v56, v56, v57
          v_add_f32 v58, v58, v59
          v_add_f32 v60, v60, v61
          v_add_f32 v62, v62, v63
          v_add_f32 v56, v56, v58
          v_add_f32 v60, v60, v62
          v_add_f32 v25, v56, v60
          ds_write_b32 v23, v25
          s_waitcnt lgkmcnt(0)""")
    g.stamp(8)
    g("s_barrier")
    if g.prio: g("s_setprio 0")
    if g.fl == 2:
        lf = g.lab("FL")
        g(f"""s_cmp_lg_u32 s12, 0
              s_cbranch_scc1 {lf}
              s_mov_b64 exec, 15
              buffer_store_dword v33, v32, s[40:43], s66 offen sc1
              s_mov_b64 exec, -1
              {lf}:""")
    g.stamp(6)
    if g.xf == 2:
        lx = g.lab("XF")
        g(f"""s_cmp_lg_u32 s12, 0
              s_cbranch_scc1 {lx}
              s_lshl_b32 s13, s4, 7
              s_add_u32 s13, s13, {XF}
              v_and_b32 v61, 31, v1
              v_lshlrev_b32 v61, 2, v61
              buffer_load_dword v62, v61, s[40:43], s13 offen sc1
              s_waitcnt vmcnt(0)
              v_cmp_eq_u32 vcc, s11, v62
              s_bcnt1_i32_b32 s13, vcc_lo
              s_cmp_ge_u32 s13, {g.thr}
              s_cselect_b32 s13, 2, 1
              v_mov_b32 v62, s13
              ds_write_b32 v4, v62 offset:{F_LT}
              {lx}:""")
    g(f"""s_lshr_b32 s13, s7, 2
          s_lshl1_add_u32 s69, s6, s13
          s_lshl2_add_u32 s69, s69, s12
          s_and_b32 s13, s7, 3
          s_lshl2_add_u32 s69, s69, s13
          s_lshl_b32 s68, s69, 8
          s_lshr_b32 s69, s69, 3
          s_lshl2_add_u32 s69, s69, s13
          s_lshl_b32 s69, s69, 7
          s_and_b32 s13, s12, 1
          s_lshl2_add_u32 s69, s13, s69
          s_add_u32 s68, s68, {CP}
          s_add_u32 s69, s69, {CPC}
          v_lshlrev_b32 v21, 1, v14
          ds_read_b32 v6, v4 offset:{F_MODE}
          s_waitcnt lgkmcnt(0)
          v_readfirstlane_b32 s{MODE}, v6""")
    g.mask_j4()
    g(f"""buffer_load_dword v120, v15, s[40:43], s68 offen sc1
          buffer_load_dword v121, v21, s[40:43], s69 offen sc1
          s_mov_b64 exec, -1""")
    g.stamp(7)

def tail(g):
    g("L_s4:")
    g.dump(STAMP2)
    if g.prio: g("s_setprio 0")
    g(f"""s_mov_b32 s13, {OBLK}
          v_lshrrev_b32 v9, 3, v1
          v_mul_lo_u32 v9, v9, s13
          v_and_b32 v10, 3, v1
          v_lshl_add_u32 v9, v10, 4, v9
          v_and_b32 v10, 4, v1
          v_lshl_add_u32 v8, v10, {4 if g.opl else 8}, v9
          s_lshr_b32 s14, s6, 4
          s_lshl3_add_u32 s64, s14, s3
          s_mul_i32 s64, s64, {16*OBLK}
          s_and_b32 s14, s6, 15
          s_lshl_b32 s14, s14, 6
          s_add_u32 s64, s64, s14
          s_lshl_b32 s13, s7, 11
          s_add_u32 s65, s64, s13
          {"s_add_u32 s65, s65, s14" if g.opl else ""}
          s_add_u32 s65, s65, {OP}
          s_lshr_b32 s13, s7, 1
          s_lshl_b32 s13, s13, 10
          s_add_u32 s66, s64, s13
          s_add_u32 s66, s66, {OP+16384}
          s_add_u32 s74, s65, {8*OBLK}
          s_add_u32 s75, s66, {8*OBLK}
          s_bitcmp1_b32 s7, 0
          s_cselect_b64 s[56:57], -1, 0
          v_and_b32 v13, 7, v1
          v_lshlrev_b32 v13, 4, v13
          v_and_b32 v10, 1, v3
          v_lshl_add_u32 v13, v10, 3, v13
          v_lshrrev_b32 v10, 1, v3
          v_lshl_add_u32 v13, v10, 2, v13
          s_and_b32 s13, s3, 1
          s_lshl_b32 s13, s13, 2
          s_lshr_b32 s14, s3, 1
          s_add_u32 s13, s13, s14
          s_lshl_b32 s14, s13, 7
          s_add_u32 s14, s14, {L_CC}
          v_add_u32 v13, s14, v13
          s_lshl_b32 s13, s13, 3
          s_add_u32 s13, s13, {L_ML}
          v_mov_b32 v12, s13""")
    tr_lane(g, 16, 10, 11, swap=True)
    g(f"""s_and_b32 s13, s12, 1
          s_lshl_b32 s13, s13, 6
          v_xor_b32 v16, s13, v16
          s_lshr_b32 s13, s12, 1
          s_lshl_b32 s13, s13, 13
          s_add_u32 s13, s13, {L_WUV}
          v_add_u32 v16, s13, v16
          v_xor_b32 v17, 0x220, v16
          v_and_b32 v10, 7, v2
          v_lshlrev_b32 v18, 7, v10
          v_lshl_add_u32 v18, v3, 4, v18
          v_add_u32 v18, {L_CC}, v18
          v_lshlrev_b32 v19, 3, v10
          v_add_u32 v19, {L_ML}, v19
          v_xor_b32 v20, 32, v19
          v_lshlrev_b32 v21, 1, v14""")
    s5_setup(g)
    if g.fl:
        g(f"""s_lshl3_add_u32 s13, s4, s3
              s_mul_i32 s13, s13, {FSTR}
              s_add_u32 s13, s13, {FL3}
              s_add_u32 s62, s{P_WS}, s13
              s_addc_u32 s63, s{P_WS+1}, 0
              s_mov_b32 s100, s11
              s_mov_b32 s101, s11
              s_waitcnt vmcnt(5)
              s_barrier""")
        g.sflag_wait(62, 0)
        g.reload_args()
    else:
        llate = g.lab("LT")
        if g.xf == 2:
            g.flag_wait(F_LT, 1)
            g(f"s_mov_b32 s58, s14\ns_cmp_eq_u32 s14, 2\ns_cbranch_scc1 {llate}")
        if g.xf:
            lx = g.lab("XF")
            g(f"""s_cmp_lg_u32 s3, 0
                  s_cbranch_scc1 {lx}
                  s_lshl_b32 s13, s4, 7
                  s_add_u32 s13, s13, {XF}
                  v_and_b32 v61, 31, v1
                  v_lshlrev_b32 v61, 2, v61""")
            l = g.poll_begin()
            g(f"""buffer_load_dword v62, v61, s[40:43], s13 offen sc1
                  s_waitcnt vmcnt(0)
                  v_cmp_ne_u32 s[62:63], s11, v62""")
            g.poll_end(l)
            g(f"{lx}:")
        g(f"s_waitcnt vmcnt(0)\n{llate}:\ns_barrier")
    g.stamp(9)
    def oloads():
        g(f"""buffer_load_dwordx4 v[36:39], v9, s[40:43], s66 offen sc1
              buffer_load_dwordx4 v[40:43], v9, s[40:43], s75 offen sc1
              buffer_load_dwordx4 v[28:31], v8, s[40:43], s65 offen sc1
              buffer_load_dwordx4 v[32:35], v8, s[40:43], s74 offen sc1""")
    oloads()
    def uv_frags():
        for t in range(2):
            for e in range(2):
                r = 64 + 8*t + 4*e
                g(f"ds_read_b64_tr_b16 v[{r}:{r+1}], v16 offset:{t*4096+e*8}")
                g(f"ds_read_b64_tr_b16 v[{r+2}:{r+3}], v17 offset:{t*4096+e*8}")
    if g.xf == 2:
        lx, ly = g.lab("LT"), g.lab("LT")
        g(f"s_cmp_lg_u32 s58, 2\ns_cbranch_scc1 {lx}\ns_cmp_lt_u32 s3, 4\ns_cbranch_scc1 {ly}")
        for k in range(2):
            for ch in range(2):
                g(f"""s_add_u32 m0, s55, {L_WUV + ch*8192 + k*4096}
                      s_add_u32 s13, s54, {k*262144 + ch*128}
                      buffer_load_dwordx4 v118, s[48:51], s13 offen nt lds""")
        g(f"s_branch {ly}\n{lx}:")
        uv_frags()
        g(f"{ly}:")
    else:
        uv_frags()
    lq = g.lab("LQ")
    g(f"s_cmp_ge_u32 s3, 4\ns_cbranch_scc1 {lq}")
    wo_frags(g)
    g(f"{lq}:")
    l, lsk = g.lab("PL"), g.lab("SK")
    g(f"""s_mov_b32 s61, 0
          s_branch {lsk}
          {l}:
          s_mov_b64 exec, s[62:63]""")
    oloads()
    g(f"""s_mov_b64 exec, -1
          {lsk}:
          s_waitcnt vmcnt(2)
          v_max_f32 v24, v36, v40
          v_cndmask_b32 v46, v38, v39, s[56:57]
          v_cndmask_b32 v47, v42, v43, s[56:57]
          v_max_f32_dpp v24, v24, v24 row_ror:8 {DPP}
          v_add3_u32 v48, v36, v37, s11
          v_add3_u32 v49, v40, v41, s11""")
    g.xrow("v_max_f32", 24, 25)
    g(f"""v_sub_f32 v26, v36, v24
          v_sub_f32 v27, v40, v24
          v_exp_f32 v26, v26
          v_exp_f32 v27, v27
          v_sub_u32 v46, v46, v48
          v_sub_u32 v47, v47, v49
          v_mul_f32 v25, v26, v37
          v_fmac_f32 v25, v27, v41
          s_waitcnt vmcnt(0)
          v_add3_u32 v48, v28, v29, v30
          v_add3_u32 v49, v32, v33, v34
          v_add_u32 v48, v48, v31
          v_add_u32 v49, v49, v35
          v_add_f32_dpp v25, v25, v25 row_ror:8 {DPP}
          v_add_u32_dpp v44, v48, v48 row_shl:4 row_mask:0xf bank_mask:0x5
          v_add_u32_dpp v45, v49, v49 row_shl:4 row_mask:0xf bank_mask:0x5
          v_add_u32_dpp v44, v48, v48 row_shr:4 row_mask:0xf bank_mask:0xa
          v_add_u32_dpp v45, v49, v49 row_shr:4 row_mask:0xf bank_mask:0xa
          v_cmp_ne_u32 s[62:63], v44, v46
          v_cmp_ne_u32 vcc, v45, v47
          s_or_b64 s[62:63], s[62:63], vcc""")
    g.poll_end(l)
    g.stamp(10)
    g.count(6)
    if g.sb:
        l1, l2 = g.lab("SB"), g.lab("SB")
        g(f"""s_cmp_lt_u32 s3, 4
              s_cbranch_scc1 {l2}
              s_cmp_eq_u32 s52, 0
              s_cbranch_scc1 {l2}
              {l1}:
              s_mov_b32 m0, s53
              s_add_u32 s53, s53, 4096
              buffer_load_dwordx4 v119, s[44:47], s68 offen nt lds
              s_add_u32 s68, s68, s69
              s_sub_u32 s52, s52, 1
              s_cmp_lg_u32 s52, 0
              s_cbranch_scc1 {l1}
              {l2}:""")
    for k in range(4):
        g.unpack(44+2*k, 28+k); g.unpack(52+2*k, 32+k)
    g("v_mov_b32 v60, v25")
    for k in range(4): g(f"v_pk_mul_f32 v[{44+2*k}:{45+2*k}], v[{44+2*k}:{45+2*k}], v[26:27] op_sel_hi:[1,0]")
    g("v_permlane16_swap_b32 v25, v60")
    for k in range(4): g(f"v_pk_fma_f32 v[{44+2*k}:{45+2*k}], v[{52+2*k}:{53+2*k}], v[26:27], v[{44+2*k}:{45+2*k}] op_sel:[0,1,0] op_sel_hi:[1,1,1]")
    g("v_add_f32 v25, v25, v60")
    for k in range(4): g(f"v_permlane16_swap_b32 v{44+k}, v{48+k}")
    g("v_mov_b32 v60, v25")
    for k in range(4): g(f"v_add_f32 v{44+k}, v{44+k}, v{48+k}")
    g("v_permlane32_swap_b32 v25, v60")
    for k in range(2): g(f"v_permlane32_swap_b32 v{44+k}, v{46+k}")
    g("v_add_f32 v25, v25, v60")
    for k in range(2): g(f"v_add_f32 v{44+k}, v{44+k}, v{46+k}")
    g("ds_write_b64 v12, v[24:25]")
    for k in range(2): g(f"v_add_f32_dpp v{44+k}, v{44+k}, v{44+k} row_ror:8 {DPP}")
    g(f"""v_cvt_pk_bf16_f32 v44, v44, v45
          ds_write_b32 v13, v44
          s_waitcnt lgkmcnt(0)
          s_barrier""")
    ln = g.lab("N4")
    g(f"""s_cmp_ge_u32 s3, 4
          s_cbranch_scc1 {ln}""")
    if g.xf == 2:
        lx = g.lab("LT")
        g(f"s_cmp_lg_u32 s58, 2\ns_cbranch_scc1 {lx}")
        uv_frags()
        g(f"{lx}:")
    g(f"""ds_read_b128 v[24:27], v18
          ds_read_b128 v[28:31], v18 offset:64
          ds_read_b64 v[32:33], v19
          ds_read_b64 v[34:35], v20
          s_waitcnt lgkmcnt(3)""")
    for t in range(2):
        if t == 1: g("s_waitcnt lgkmcnt(2)")
        for e in range(2): g.mfma(56+4*e, 64+8*t+4*e, 24+4*t, t == 0)
    g(f"""s_waitcnt lgkmcnt(0)
          v_max_f32 v36, v32, v34
          v_sub_f32 v32, v32, v36
          v_sub_f32 v34, v34, v36
          v_exp_f32 v32, v32
          v_exp_f32 v34, v34
          s_nop 0
          v_mul_f32 v33, v33, v32
          v_fmac_f32 v33, v35, v34
          v_rcp_f32 v33, v33
          s_nop 0
          v_mul_f32 v32, v32, v33""")
    for k in range(4): g(f"v_pk_mul_f32 v[{56+2*k}:{57+2*k}], v[{56+2*k}:{57+2*k}], v[32:33] op_sel_hi:[1,0]")
    for k in range(8): g(f"v_add_f32_dpp v{56+k}, v{56+k}, v{56+k} row_ror:4 {DPP}")
    g.mask_j4()
    g.pack8(24, 56)
    g.chk(28, 24)
    lstore(g, ["buffer_store_dwordx4 v[24:27], v15, s[40:43], s68 offen", "buffer_store_dword v28, v21, s[40:43], s69 offen"])
    g(f"{ln}:\ns_mov_b64 exec, -1")
    g.stamp(11)
    g(f"""s_cmp_eq_u32 s72, 1
          s_cbranch_scc1 L_s6
          s_cmp_eq_u32 s72, 2
          s_cbranch_scc1 L_s7
          s_cmp_eq_u32 s72, 3
          s_cbranch_scc1 L_fin""")
    s5(g); s6(g); s7(g)
    g("L_fin:")
    g.finish()

def wo_frags(g):
    for tt in range(2):
        for tpi in range(2):
            for e in range(2):
                r = 128 + 16*tt + 8*tpi + 4*e
                g(f"ds_read_b64_tr_b16 v[{r}:{r+1}], v{[110,112][tpi]} offset:{tt*4096+e*8}")
                g(f"ds_read_b64_tr_b16 v[{r+2}:{r+3}], v{[111,113][tpi]} offset:{tt*4096+e*8}")

def s5_setup(g):
    tr_lane(g, 110, 10, 11)
    g(f"""s_lshr_b32 s13, s3, 2
          s_and_b32 s14, s3, 1
          s_lshl1_add_u32 s13, s13, s14
          s_lshl_b32 s13, s13, 13
          s_add_u32 s13, s13, {L_WR}
          v_add_u32 v110, s13, v110
          v_xor_b32 v111, 0x220, v110
          v_xor_b32 v112, 64, v110
          v_xor_b32 v113, 0x260, v110
          v_and_b32 v106, 3, v2
          v_lshlrev_b32 v106, 7, v106
          v_lshl_add_u32 v106, v3, 5, v106
          v_and_b32 v7, 4, v2
          v_lshl_add_u32 v106, v7, 2, v106
          v_and_b32 v7, 8, v2
          v_lshl_add_u32 v106, v7, 6, v106
          s_lshl_b32 s13, s3, 10
          s_add_u32 s13, s13, {L_RED}
          v_add_u32 v106, s13, v106
          v_lshlrev_b32 v108, 3, v1
          s_lshl_b32 s13, s14, 9
          s_add_u32 s13, s13, {L_RED}
          v_add_u32 v107, s13, v108
          s_and_b32 s13, s73, 1
          s_lshl1_add_u32 s64, s4, s13
          s_lshl3_add_u32 s13, s64, s3
          s_lshl_b32 s70, s13, 11
          s_add_u32 s70, s70, {CP}
          s_lshl_b32 s71, s13, 9
          s_add_u32 s71, s71, {CPC}
          s_and_b32 s13, s73, 0xfe
          s_add_u32 s13, s13, s14
          s_lshl4_add_u32 s60, s13, s64
          s_lshl_b32 s60, s60, 9
          s_lshl_b32 s13, s73, 13
          s_lshl_b32 s14, s12, 7
          s_add_u32 s13, s13, s14
          s_cmp_ge_u32 s3, 4
          s_cselect_b32 s60, s13, s60
          s_add_u32 s60, s60, {AP}
          v_lshlrev_b32 v108, 4, v2
          v_lshl_add_u32 v108, v3, 7, v108
          v_and_b32 v109, 7, v1
          v_lshlrev_b32 v109, 4, v109
          v_lshrrev_b32 v7, 3, v1
          v_lshl_add_u32 v109, v7, 9, v109
          s_mul_i32 s67, s4, 5
          s_lshr_b32 s13, s73, 2
          s_add_u32 s67, s67, s13
          s_mul_i32 s67, s67, 1536
          s_add_u32 s67, s67, {HR}""")

def red_read(g, n, stride, a):
    for w in range(n): g(f"ds_read_b64 v[{32+2*w}:{33+2*w}], v{a} offset:{w*stride}")
    for w in range(1, n):
        g(f"s_waitcnt lgkmcnt({n-1-w})")
        g(f"v_add_f32 v32, v32, v{32+2*w}\nv_add_f32 v33, v33, v{33+2*w}")

def s5(g):
    lq = g.lab("LQ")
    g(f"s_cmp_lt_u32 s3, 4\ns_cbranch_scc1 {lq}\ns_waitcnt vmcnt(0)")
    g.flag_add(F_UV)
    g.flag_wait(F_UV, 4)
    wo_frags(g)
    g(f"{lq}:")
    g("s_mov_b64 s[62:63], -1")
    l = g.poll_begin()
    g(f"""s_mov_b64 exec, s[62:63]
          buffer_load_dwordx4 v[96:99], v15, s[40:43], s70 offen sc1
          buffer_load_dwordx4 v[100:103], v15, s[40:43], s70 offen offset:1024 sc1
          buffer_load_dwordx2 v[104:105], v21, s[40:43], s71 offen sc1
          s_mov_b64 exec, -1
          s_waitcnt vmcnt(1) lgkmcnt(0)""")
    for tt in range(2):
        for q in range(4): g.mfma(80+4*q, 128+16*tt+4*q, 96+4*tt, tt == 0)
    g("s_waitcnt vmcnt(0)")
    for tt in range(2): g.verify(96+4*tt, 104+tt, tt == 0)
    g.poll_end(l)
    g.stamp(1)
    g.count(7)
    for k in range(8): g(f"v_add_f32_dpp v{80+k}, v{80+k}, v{80+k} row_ror:8 row_mask:0xf bank_mask:0x3")
    for k in range(8): g(f"v_add_f32_dpp v{80+k}, v{88+k}, v{88+k} row_ror:8 row_mask:0xf bank_mask:0xc")
    for k in range(4): g(f"v_add_f32_dpp v{80+k}, v{80+k}, v{80+k} row_shl:4 row_mask:0xf bank_mask:0x5")
    for k in range(4): g(f"v_add_f32_dpp v{80+k}, v{84+k}, v{84+k} row_shr:4 row_mask:0xf bank_mask:0xa")
    lr, lnf = g.lab("R5"), g.lab("NF")
    g(f"""ds_write_b128 v106, v[80:83]
          s_waitcnt lgkmcnt(0)
          s_barrier
          s_cmp_ge_u32 s3, 4
          s_cbranch_scc1 {lr}
          s_cmp_ge_u32 s3, 2
          s_cbranch_scc1 L_fin""")
    g("s_setprio 3")
    red_read(g, 8, 1024, 107)
    g(f"""v_cvt_pk_bf16_f32 v32, v32, v33
          v_mov_b32 v34, s11
          v_mov_b32 v35, s11
          v_mov_b32_dpp v33, v32 row_ror:8 {DPP}""")
    g.mask("0x00ff00ff")
    g("buffer_store_dwordx4 v[32:35], v108, s[40:43], s60 offen sc1\ns_mov_b64 exec, -1")
    g.stamp(2)
    if g.apw:
        g("s_waitcnt vmcnt(0)")
        g.flag_add(F_SM)
    g(f"s_branch L_fin\n{lr}:")
    g.unpack(44, 120)
    g(f"""v_mov_b32 v50, s11
          v_mov_b32 v51, s11
          s_add_u32 s64, s60, 4096
          v_lshlrev_b32 v20, 2, v2
          s_and_b32 s14, s73, 3
          s_lshl2_add_u32 s13, s14, s12
          s_lshl4_add_u32 s70, s13, s67
          s_lshl_b32 s13, s13, 6
          s_add_u32 s65, s67, s13
          s_lshl_b32 s13, s12, 6
          s_lshl2_add_u32 s13, s14, s13
          s_add_u32 s66, s67, s13""")
    if g.apw: g.flag_wait(F_SM, 2)
    g.stamp(5)
    l = g.poll_begin()
    g(f"""buffer_load_dwordx4 v[64:67], v109, s[40:43], s60 offen sc1
          buffer_load_dwordx4 v[68:71], v109, s[40:43], s64 offen sc1
          s_waitcnt vmcnt(0)""")
    g.acc_ne("s11", "v66", True)
    g.acc_ne("s11", "v70", False)
    g.poll_end(l)
    g.stamp(3)
    g.count(8)
    g.unpack(72, 64); g.unpack(74, 65); g.unpack(76, 68); g.unpack(78, 69)
    g(f"""v_add_f32 v72, v72, v76
          v_add_f32 v73, v73, v77
          v_add_f32 v74, v74, v78
          v_add_f32 v75, v75, v79
          v_add_f32_dpp v46, v72, v72 row_ror:8 row_mask:0xf bank_mask:0x3
          v_add_f32_dpp v47, v73, v73 row_ror:8 row_mask:0xf bank_mask:0x3
          v_add_f32_dpp v46, v74, v74 row_ror:8 row_mask:0xf bank_mask:0xc
          v_add_f32_dpp v47, v75, v75 row_ror:8 row_mask:0xf bank_mask:0xc
          v_mov_b32 v48, v46
          v_mov_b32 v49, v47
          s_nop 0
          v_permlane16_swap_b32 v46, v48
          v_permlane16_swap_b32 v47, v49
          s_nop 0
          v_add_f32 v46, v46, v48
          v_add_f32 v47, v47, v49
          v_mov_b32 v48, v46
          v_mov_b32 v49, v47
          s_nop 0
          v_permlane32_swap_b32 v46, v48
          v_permlane32_swap_b32 v47, v49
          s_nop 0
          v_add_f32 v46, v46, v48
          v_add_f32 v47, v47, v49
          v_cvt_pk_bf16_f32 v46, v46, v47
          s_mov_b64 exec, 0xffff""")
    g.unpack(48, 46)
    g(f"""v_add_f32 v48, v48, v44
          v_add_f32 v49, v49, v45
          v_cvt_pk_bf16_f32 v46, v48, v49
          v_lshlrev_b32 v52, 16, v46
          v_and_b32 v53, 0xffff0000, v46
          v_add_u32_dpp v47, v46, v46 quad_perm:[1,0,3,2] {DPP}
          v_add_f32 v48, v52, v53
          s_nop 0
          v_add_u32_dpp v47, v47, v47 quad_perm:[2,3,0,1] {DPP}
          v_add_u32 v47, s11, v47""")
    lstore(g, ["buffer_store_dword v46, v20, s[40:43], s65 offen", "s_mov_b64 exec, 0x1111",
               "buffer_store_dword v47, v20, s[40:43], s66 offen offset:1024", "s_mov_b64 exec, 0xffff"])
    g.stamp(4)
    g.inrow("v_add_f32", 48)
    g(f"""v_mul_f32 v54, {f32(1/32)}, v48
          v_sub_f32 v52, v52, v54
          v_sub_f32 v53, v53, v54
          v_mul_f32 v49, v52, v52
          v_fmac_f32 v49, v53, v53""")
    g.inrow("v_add_f32", 49)
    g("s_mov_b64 exec, 1")
    lstore(g, ["buffer_store_dwordx4 v[48:51], v2, s[40:43], s70 offen offset:1280"])
    g("s_mov_b64 exec, -1")
    if g.wb == 1:
        g("""s_add_u32 s13, s5, s12
             s_cmp_lg_u32 s13, 0
             s_cbranch_scc1 L_fin
             buffer_wbl2 sc1""")
    g("s_branch L_fin")

def s6(g):
    g("L_s6:\ns_barrier")
    g.srd(48, P_W1, 2211840)
    g(f"""v_lshrrev_b32 v12, 2, v1
          v_mul_u32_u24 v12, 3456, v12
          v_and_b32 v7, 3, v1
          v_lshl_add_u32 v12, v7, 4, v12
          s_add_u32 s13, s3, {8*g.c1}
          s_mul_i32 s64, s13, {16*3456}
          s_lshl_b32 s14, s73, 6
          s_add_u32 s64, s64, s14
          s_lshl_b32 s65, s3, 10""")
    for k in range(5 - g.c1):
        g(f"""s_add_u32 m0, s65, {L_WR + 8192*g.c1 + k*8192}
              s_add_u32 s13, s64, {k*128*3456}
              buffer_load_dwordx4 v12, s[48:51], s13 offen nt lds""")
    g.srd(44, P_W2, 2211840)
    g(f"""v_and_b32 v13, 7, v1
          v_xor_b32 v13, v13, v3
          s_and_b32 s13, s3, 1
          s_lshl_b32 s13, s13, 2
          v_xor_b32 v13, s13, v13
          v_lshrrev_b32 v7, 3, v1
          v_mul_u32_u24 v7, 1280, v7
          v_lshl_add_u32 v13, v13, 4, v7
          s_lshl2_add_u32 s64, s73, s12
          s_mul_i32 s64, s64, {8*1280}
          s_lshr_b32 s13, s3, 2
          s_lshl_b32 s13, s13, 7
          s_add_u32 s64, s64, s13""")
    for k in range(5):
        g(f"""s_add_u32 m0, s65, {L_W2 + k*8192}
              s_add_u32 s13, s64, {k*256}
              buffer_load_dwordx4 v13, s[44:47], s13 offen nt lds""")
    g(f"""s_min_u32 s13, s3, 4
          s_lshl_b32 s64, s13, 7
          v_lshrrev_b32 v8, 2, v1
          v_and_b32 v8, 3, v8
          v_lshl_add_u32 v8, v3, 3, v8
          v_add_u32 v8, s64, v8
          v_lshlrev_b32 v8, 6, v8
          v_and_b32 v7, 3, v1
          v_lshl_add_u32 v8, v7, 4, v8
          v_add_u32 v8, {L_WR}, v8
          v_lshlrev_b32 v10, 7, v2
          v_lshl_add_u32 v10, v3, 5, v10
          s_lshl_b32 s13, s3, 9
          s_add_u32 s13, s13, {L_RED}
          v_add_u32 v10, s13, v10
          v_lshlrev_b32 v11, 3, v1
          v_add_u32 v11, {L_RED}, v11
          s_mul_i32 s67, s4, {20*384}
          s_add_u32 s67, s67, {HR}
          s_mul_i32 s65, s3, {4*384}
          s_add_u32 s65, s65, s67""")
    g(f"""v_lshrrev_b32 v12, 2, v1
          v_and_b32 v12, 3, v12
          v_and_b32 v13, 3, v1
          v_lshrrev_b32 v20, 1, v13
          s_lshl_b32 s13, s12, 1
          v_or_b32 v20, s13, v20
          v_lshrrev_b32 v7, 1, v12
          v_xor_b32 v20, v20, v7
          v_and_b32 v7, 1, v3
          v_lshlrev_b32 v7, 2, v7
          v_xor_b32 v20, v20, v7
          v_lshlrev_b32 v20, 4, v20
          v_lshl_add_u32 v20, v12, 7, v20
          v_lshl_add_u32 v20, v3, 10, v20
          v_and_b32 v7, 1, v13
          v_lshl_add_u32 v20, v7, 3, v20
          s_lshr_b32 s13, s3, 2
          s_lshl_b32 s13, s13, 12
          s_add_u32 s13, s13, {L_W2}
          v_add_u32 v20, s13, v20
          v_xor_b32 v21, 0x220, v20
          v_and_b32 v22, 3, v2
          v_lshlrev_b32 v22, 6, v22
          v_lshl_add_u32 v22, v3, 4, v22
          v_add_u32 v22, {L_UL}, v22
          v_lshlrev_b32 v23, 4, v2
          v_lshl_add_u32 v29, v3, 11, v23
          v_lshrrev_b32 v7, 2, v2
          v_mov_b32 v28, {L_UL+256}
          v_cmp_eq_u32 vcc, 0, v7
          v_cmp_eq_u32 s[74:75], 1, v7
          v_cmp_eq_u32 s[100:101], 2, v7
          v_cndmask_b32 v24, v28, v22, vcc
          v_cndmask_b32 v25, v28, v22, s[74:75]
          v_cmp_eq_u32 vcc, 3, v7
          v_cndmask_b32 v26, v28, v22, s[100:101]
          v_mov_b32 v30, 0
          v_mov_b32 v31, 0
          v_cndmask_b32 v27, v28, v22, vcc
          ds_write_b64 v28, v[30:31]
          ds_write_b64 v28, v[30:31] offset:8
          s_mul_i32 s68, s73, 10240
          s_lshl_b32 s13, s3, 8
          s_add_u32 s68, s68, s13
          s_add_u32 s68, s68, {FP}
          s_add_u32 s69, s68, 4096
          s_add_u32 s70, s68, 8192""")
    for k in range(96, 112): g(f"v_mov_b32 v{k}, 0x3f803f80")
    for k in range(2): g(f"v_mov_b32 v{170+4*k}, s11\nv_mov_b32 v{171+4*k}, s11")
    lfin, lidle, lw2 = g.lab("F6"), g.lab("I6"), g.lab("W6")
    def red_write():
        g.mask_j4()
        g("ds_write_b128 v10, v[56:59]\nds_write_b128 v10, v[60:63] offset:16\ns_mov_b64 exec, -1")
    def w2_frags():
        for k in range(5):
            g(f"ds_read_b64_tr_b16 v[{128+4*k}:{129+4*k}], v20 offset:{k*8192}")
            g(f"ds_read_b64_tr_b16 v[{130+4*k}:{131+4*k}], v21 offset:{k*8192}")
    g("s_waitcnt vmcnt(5)\ns_barrier")
    g(f"""s_cmp_eq_u32 s3, 7
          s_cbranch_scc1 {lfin}
          s_cmp_ge_u32 s3, 5
          s_cbranch_scc1 {lidle}""")
    for t in range(4):
        for e in range(2):
            r = 64 + 8*t + 4*e
            g(f"ds_read_b64_tr_b16 v[{r}:{r+1}], v8 offset:{t*2048+e*8}")
            g(f"ds_read_b64_tr_b16 v[{r+2}:{r+3}], v8 offset:{t*2048+256+e*8}")
    g("s_waitcnt lgkmcnt(0)")
    for t in range(4):
        for e in range(2): g.mfma(56+4*e, 64+8*t+4*e, 96+4*t, t == 0)
    g.nop(6)
    red_write()
    g("s_waitcnt lgkmcnt(0)\ns_barrier\ns_waitcnt vmcnt(0)\ns_barrier")
    g.stamp(4)
    w2_frags()
    l = g.poll_begin()
    g.mask_j4()
    for t in range(4):
        g(f"buffer_load_dwordx4 v[{96+4*t}:{99+4*t}], v15, s[40:43], s65 offen offset:{t*256} sc1")
    g("buffer_load_dwordx4 v[112:115], v15, s[40:43], s65 offen offset:1024 sc1")
    g("s_mov_b64 exec, -1\ns_waitcnt vmcnt(1)")
    for t in range(4):
        for e in range(2): g.mfma(56+4*e, 64+8*t+4*e, 96+4*t, t == 0)
    g.mask_j4()
    g("s_waitcnt vmcnt(0)")
    for t in range(4): g.verify(96+4*t, 112+t, t == 0)
    g.poll_end(l)
    g(f"""ds_write_b128 v10, v[56:59]
          ds_write_b128 v10, v[60:63] offset:16
          s_mov_b64 exec, -1""")
    g.stamp(1)
    g(f"""s_waitcnt lgkmcnt(0)
          s_barrier
          s_branch {lw2}
          {lidle}:
          s_barrier
          s_waitcnt vmcnt(0)
          s_barrier""")
    w2_frags()
    g(f"""s_barrier
          s_branch {lw2}
          {lfin}:
          s_barrier""")
    red_read(g, 5, 512, 11)
    g(f"""v_mov_b32 v60, v32
          v_mov_b32 v61, v33
          s_waitcnt vmcnt(0)
          s_barrier""")
    w2_frags()
    g(f"""s_nop 0
          v_lshrrev_b32 v16, 2, v2
          v_mul_u32_u24 v16, 1536, v16
          v_and_b32 v17, 3, v2
          v_lshl_add_u32 v16, v17, 6, v16
          v_lshl_add_u32 v16, v3, 4, v16
          v_mov_b32 v48, 0
          v_mov_b32 v49, 0
          v_mov_b32 v50, s11
          v_cmp_gt_u32 vcc, 4, v2
          v_mov_b32 v42, 0
          v_lshlrev_b32 v17, 2, v1
          v_cndmask_b32 v42, v42, 1.0, vcc
          v_add_u32 v17, {L_UL}, v17
          s_add_u32 s66, s67, {16*384}""")
    l = g.poll_begin()
    g(f"buffer_load_dwordx4 v[44:47], v16, s[40:43], s67 offen offset:1280 sc1")
    g.mask_j4()
    g(f"""buffer_load_dwordx4 v[48:51], v16, s[40:43], s66 offen offset:1280 sc1
          s_mov_b64 exec, -1
          s_waitcnt vmcnt(0)""")
    g.acc_ne("s11", "v46", True)
    g.acc_ne("s11", "v50", False)
    g.poll_end(l)
    g.stamp(1)
    g("v_add_f32 v52, v44, v48")
    g.inrow("v_add_f32", 52)
    g(f"""v_mul_f32 v52, {f32(1/640)}, v52
          v_mul_f32 v44, {f32(1/32)}, v44
          v_mul_f32 v48, {f32(1/32)}, v48
          v_sub_f32 v44, v44, v52
          v_sub_f32 v48, v48, v52
          v_mul_f32 v48, v48, v42
          v_mul_f32 v44, v44, v44
          v_fmac_f32 v44, v48, v48
          v_add_f32 v53, v45, v49
          v_fmac_f32 v53, {f32(32.0)}, v44""")
    g.inrow("v_add_f32", 53)
    g(f"""v_mov_b32 v54, {f32(1e-5)}
          v_fmac_f32 v54, {f32(1/640)}, v53
          v_rsq_f32 v54, v54
          v_mul_f32 v60, v60, v52
          v_mul_f32 v61, v61, v52
          v_mul_f32 v55, {f32(-LOG2E)}, v54
          s_barrier""")
    g.stamp(2)
    red_read(g, 5, 512, 11)
    g(f"""v_sub_f32 v32, v32, v60
          v_sub_f32 v33, v33, v61
          v_mul_f32 v34, v32, v55
          v_mul_f32 v35, v33, v55
          v_exp_f32 v34, v34
          v_exp_f32 v35, v35
          v_mul_f32 v32, v32, v54
          v_mul_f32 v33, v33, v54
          v_add_f32 v34, 1.0, v34
          v_add_f32 v35, 1.0, v35
          v_rcp_f32 v34, v34
          v_rcp_f32 v35, v35
          s_nop 0
          v_mul_f32 v32, v32, v34
          v_mul_f32 v33, v33, v35
          v_cvt_pk_bf16_f32 v32, v32, v33
          ds_write_b32 v17, v32
          {lw2}:
          s_waitcnt lgkmcnt(0)
          s_barrier
          ds_read_b128 v[180:183], v24
          ds_read_b128 v[184:187], v25
          ds_read_b128 v[188:191], v26
          ds_read_b128 v[192:195], v27
          s_waitcnt lgkmcnt(3)""")
    g.mfma(152, 180, 144, True)
    for k in range(4):
        if k: g(f"s_waitcnt lgkmcnt({3-k})")
        g.mfma(148, 180+4*k, 128+4*k, k == 0)
    g(f"""s_nop 1
          s_mov_b64 exec, 0xffff
          v_cvt_pk_bf16_f32 v172, v152, v153
          v_cvt_pk_bf16_f32 v173, v154, v155
          buffer_store_dwordx4 v[172:175], v23, s[40:43], s70 offen sc1
          s_mov_b64 exec, -1
          s_nop 0
          v_cvt_pk_bf16_f32 v168, v148, v149
          v_cvt_pk_bf16_f32 v169, v150, v151
          buffer_store_dwordx4 v[168:171], v29, s[40:43], s68 offen sc1""")
    g.stamp(3)
    if g.wb == 2:
        g("""s_cmp_lg_u32 s3, 0
             s_cbranch_scc1 L_fin
             s_cmp_lg_u32 s5, 28
             s_cbranch_scc1 L_fin
             buffer_wbl2 sc1""")
    g("s_branch L_fin")

def s7(g):
    g("L_s7:")
    lh, lj = g.lab("H7"), g.lab("J7")
    g(f"""v_lshlrev_b32 v10, 2, v1
          v_add_u32 v16, {L_RED}, v10
          s_cmp_eq_u32 s3, 7
          s_cbranch_scc1 {lh}
          v_mul_u32_u24 v12, 10240, v3
          v_lshl_add_u32 v12, v2, 4, v12
          s_mul_i32 s65, s3, {8*10240}
          s_lshl_b32 s13, s73, 8
          s_add_u32 s65, s65, s13
          s_add_u32 s65, s65, {FP}
          s_add_u32 s66, s65, {4*10240}
          s_mov_b64 s[74:75], -1
          s_cmp_eq_u32 s3, 6
          s_cselect_b32 s75, 0, s75
          v_mov_b32 v100, 0
          v_mov_b32 v101, 0
          v_mov_b32 v102, s11
          s_lshl_b32 s13, s3, 8
          v_add_u32 v10, s13, v16
          s_barrier""")
    l = g.poll_begin()
    g(f"""buffer_load_dwordx4 v[96:99], v12, s[40:43], s65 offen sc1
          s_mov_b64 exec, s[74:75]
          buffer_load_dwordx4 v[100:103], v12, s[40:43], s66 offen sc1
          s_mov_b64 exec, -1
          s_waitcnt vmcnt(0)""")
    g.acc_ne("s11", "v98", True)
    g.acc_ne("s11", "v102", False)
    g.poll_end(l)
    g.stamp(1)
    g.unpack(24, 96); g.unpack(26, 97); g.unpack(28, 100); g.unpack(30, 101)
    for k in range(4): g(f"v_add_f32 v{24+k}, v{24+k}, v{28+k}")
    g(f"""s_nop 0
          v_permlane16_swap_b32 v24, v25
          v_permlane16_swap_b32 v26, v27
          s_nop 0
          v_add_f32 v24, v24, v25
          v_add_f32 v26, v26, v27
          s_nop 1
          v_permlane32_swap_b32 v24, v26
          s_nop 0
          v_add_f32 v24, v24, v26
          ds_write_b32 v10, v24
          s_waitcnt lgkmcnt(0)
          s_barrier
          s_branch L_fin
          {lh}:""")
    g.srd(48, P_OUT, 5120)
    g(f"""v_mul_u32_u24 v13, 1280, v3
          v_lshl_add_u32 v13, v2, 1, v13
          v_lshrrev_b32 v8, 3, v2
          v_lshl_add_u32 v12, v3, 2, v8
          v_lshlrev_b32 v11, 4, v12
          s_lshl_b32 s64, s73, 5
          s_mul_i32 s65, s4, 5
          s_lshr_b32 s13, s73, 3
          s_add_u32 s65, s65, s13
          s_mul_i32 s65, s65, 1536
          s_add_u32 s65, s65, {HR}
          s_and_b32 s13, s73, 1
          s_lshl_b32 s13, s13, 5
          s_add_u32 s65, s65, s13
          s_lshr_b32 s13, s73, 1
          s_and_b32 s13, s13, 3
          s_lshl2_add_u32 s66, s13, s65
          s_lshl_b32 s13, s13, 8
          s_add_u32 s65, s65, s13""")
    if g.po: g("buffer_load_ushort v40, v13, s[48:51], s64 offen sc1")
    l = g.poll_begin()
    g(f"""buffer_load_dwordx4 v[24:27], v11, s[40:43], s65 offen sc1
          buffer_load_dword v28, v11, s[40:43], s66 offen offset:1024 sc1
          s_waitcnt vmcnt(0)""")
    g.verify(24, 28, True)
    g.poll_end(l)
    g(f"""s_barrier
          v_and_b32 v8, 2, v1
          v_cmp_ne_u32 vcc, 0, v8
          v_and_b32 v9, 4, v1
          v_cmp_ne_u32 s[74:75], 0, v9
          v_cndmask_b32 v24, v24, v25, vcc
          v_cndmask_b32 v26, v26, v27, vcc
          v_and_b32 v8, 1, v1
          v_cmp_ne_u32 vcc, 0, v8
          v_cndmask_b32 v24, v24, v26, s[74:75]
          v_lshlrev_b32 v25, 16, v24
          v_and_b32 v26, 0xffff0000, v24
          v_cndmask_b32 v30, v25, v26, vcc""")
    g.stamp(1)
    g("s_barrier")
    for w in range(7): g(f"ds_read_b32 v{64+w}, v16 offset:{w*256}")
    g("""s_waitcnt lgkmcnt(4)
         v_add_f32 v64, v64, v65
         v_add_f32 v64, v64, v66
         s_waitcnt lgkmcnt(2)
         v_add_f32 v67, v67, v68
         s_waitcnt lgkmcnt(0)
         v_add_f32 v69, v69, v70
         v_add_f32 v64, v64, v67
         v_add_f32 v64, v64, v69""")
    g.rbf(64)
    g(f"""v_add_f32 v64, v64, v30
          v_cvt_pk_bf16_f32 v64, v64, v64
          buffer_store_short v64, v13, s[48:51], s64 offen
          s_cmp_lg_u32 s73, 0
          s_cbranch_scc1 {lj}
          v_mov_b32 v65, s11
          v_mov_b32 v66, {EPOCH}
          s_mov_b64 exec, 1
          buffer_store_dword v65, v66, s[40:43], 0 offen
          s_mov_b64 exec, -1
          {lj}:""")
    g.stamp(2)

OPTS = dict(W=9, we=3, wsw=8, wa=8, opl=0, prio=1, ga=14, gb=22, fp2=1, ap8=1, apw=1, sa=2, uv=1, sb=1, fl=0, xr=0, qe=0, npa=0, c1=2, wb=0, po=0, xf=0, thr=24, ad=0, dbg=0, hold=0)
def gen(stamps=False, **kw):
    o = dict(OPTS); o.update(kw)
    g = G(stamps or o["dbg"], None)
    for k, v in o.items(): setattr(g, k, v)
    prologue(g); swave_front(g); pwave(g); swave(g, g.W); tail(g)
    g("L_end:")
    return g

DOC = """; ---------------------------------------------------------------------------------------------
; ---------------------------------------------------------------------------------------------"""
def emit(g, path):
    hdr = open("cdna_kernels/" + NAME + ".s.ref").read().split("; Override launch")[0]
    txt = hdr + f"""; @launch grid=(256,1,1) block=(512,1,1) lds={LDS_BYTES}
.amdgcn_target "amdgcn-amd-amdhsa--gfx950"
{DOC}
.text
.globl {NAME}_kernel
.p2align 8
.type {NAME}_kernel,@function
{NAME}_kernel:
""" + "\n".join(g.L) + f"""
    s_endpgm
L_code_end:
.section .rodata,"a"
.p2align 6
.amdhsa_kernel {NAME}_kernel
  .amdhsa_next_free_vgpr 256
  .amdhsa_next_free_sgpr 102
  .amdhsa_accum_offset 256
  .amdhsa_group_segment_fixed_size 0
  .amdhsa_kernarg_size 96
  .amdhsa_user_sgpr_count 2
  .amdhsa_user_sgpr_kernarg_segment_ptr 1
  .amdhsa_system_sgpr_workgroup_id_x 1
.end_amdhsa_kernel
"""
    open(path, "w").write(txt)

if __name__ == "__main__":
    import argparse
    ap = argparse.ArgumentParser()
    ap.add_argument("-o", default="k.s")
    ap.add_argument("--stamps", action="store_true")
    for k, v in OPTS.items(): ap.add_argument("--" + k, type=int, default=v)
    a = vars(ap.parse_args())
    out = a.pop("o"); st = a.pop("stamps")
    emit(gen(st, **a), out)
```

```python
import sys, struct
NAME = "sequential_preLN__compressed_kv_cla__dense_activation_silu__decode"

EPOCH = 0x0
QPC, QP = 0x8000, 0x10000
QAC, QA = 0x30000, 0x40000
CPC = 0x60000
HR = 0x70000
CP = 0x80000
AP = 0xC0000
FP = 0xF0000
IDT = 0x38000
DUAL = 0x170000
DLEN = 0x30000
MODE = 59
XF = 0x1000
FL3 = 0x1A0000
FSTR = 4352
OP = 0x240000
OBLK = 20480 + 256
STAMP = 0x1000000
STAMP2 = 0x1040000
WS_REC = 0x1100000

L_R2 = 131072
L_WQ = L_R2
L_WUK = 0
L_QA = L_R2
L_XN = L_R2 + 20480
L_P = L_R2 + 25600
L_MX = L_R2 + 29696
L_SM = L_R2 + 16384
L_CC = L_MX + 256
L_FL = L_CC + 1024
LDS_BYTES = 163840
assert L_FL + 64 <= LDS_BYTES
L_WUV = 0
L_WR = 32768
L_W2 = L_WR + 40960
L_RED = L_W2 + 40960
L_UL = L_RED + 8192
F_A, F_S2, F_QA, F_T0, F_T1, F_RD, F_SM, F_S1, F_UK, F_UR, F_MX, F_GO, F_UV, F_G2 = 0, 4, 8, 12, 16, 20, 24, 28, 32, 36, 40, 44, 48, 52

HASH_A, HASH_C = 1664525, 1013904223
SPIN_MAX = 200000
def f32(x): return "0x%08x" % struct.unpack("<I", struct.pack("<f", x))[0]
LOG2E = 1.4426950408889634
SCALE = (128 ** -0.5) * LOG2E
P_X, P_CKV, P_WQ, P_WUK, P_WUV, P_WO, P_BX, P_W1, P_W2, P_OUT, P_DBG, P_WS = 16, 18, 20, 22, 24, 26, 28, 30, 32, 34, 36, 38
DPP = "row_mask:0xf bank_mask:0xf"

class G:
    def __init__(self, stamps=False, stop=None):
        self.L = []; self.stamps = stamps; self.stop = stop; self.nlab = 0
    def __call__(self, s):
        for line in s.strip("\n").split("\n"):
            line = line.strip()
            if line:
                self.L.append("    " + line if not line.endswith(":") else line)
    def lab(self, p="L"):
        self.nlab += 1
        return f"{p}_{self.nlab}"
    def nop(self, n):
        while n > 0:
            k = min(n, 16); self(f"s_nop {k-1}"); n -= k
    def srd(self, d, ptr, size):
        self(f"""s_mov_b32 s{d}, s{ptr}
                 s_and_b32 s{d+1}, s{ptr+1}, 0xffff
                 s_mov_b32 s{d+2}, {size}
                 s_mov_b32 s{d+3}, 0x20000""")
    def ws_srds(self):
        self.srd(40, P_WS, WS_REC)
        self(f"""s_add_u32 s56, s{P_WS}, {DUAL}
                 s_addc_u32 s57, s{P_WS+1}, 0
                 s_and_b32 s57, s57, 0xffff
                 s_mov_b32 s58, {DLEN}
                 s_mov_b32 s59, 0x20000""")
    def stamp(self, idx):
        if self.stamps:
            self(f"s_memrealtime s[{76+2*idx}:{77+2*idx}]")
    def count(self, idx, reg=61):
        if self.stamps and not self.dbg: self(f"s_waitcnt lgkmcnt(0)\ns_add_u32 s{76+2*idx}, s{reg}, 1")
    def flag_add(self, off):
        self(f"""s_mov_b64 exec, 1
                 ds_add_u32 v4, v5 offset:{off}
                 s_mov_b64 exec, -1""")
    def flag_wait(self, off, val):
        l = self.lab("FW"); x = self.lab("FX")
        self(f"""s_mov_b32 s15, 0
                 {l}:
                 ds_read_b32 v6, v4 offset:{off}
                 s_add_u32 s15, s15, 1
                 s_cmp_gt_u32 s15, {SPIN_MAX*8}
                 s_cbranch_scc1 {x}
                 s_waitcnt lgkmcnt(0)
                 v_readfirstlane_b32 s14, v6
                 s_cmp_lt_u32 s14, {val}
                 s_cbranch_scc1 {l}
                 {x}:""")
    def sflag_wait(self, base, off):
        l, x, r = self.lab("SW"), self.lab("SX"), self.lab("SR")
        self(f"""s_mov_b32 s15, 0
                 {l}:
                 s_load_dwordx16 s[16:31], s[{base}:{base+1}], {off} glc
                 s_add_u32 s15, s15, 1
                 s_cmp_gt_u32 s15, {SPIN_MAX}
                 s_cbranch_scc1 {x}
                 s_waitcnt lgkmcnt(0)""")
        for k in range(8):
            self(f"s_cmp_lg_u64 s[{16+2*k}:{17+2*k}], s[100:101]\ns_cbranch_scc1 {l}")
        self(f"{x}:")
    def reload_args(self):
        self("s_waitcnt lgkmcnt(0)\ns_load_dwordx16 s[16:31], s[0:1], 0")
    def chk(self, dst, p):
        self(f"""v_add3_u32 v{dst}, v{p}, v{p+1}, s11
                 v_add3_u32 v{dst}, v{p+2}, v{p+3}, v{dst}""")
    def acc_ne(self, a, b, first):
        if first:
            self(f"v_cmp_ne_u32 s[62:63], {a}, {b}")
        else:
            self(f"""v_cmp_ne_u32 vcc, {a}, {b}
                     s_or_b64 s[62:63], s[62:63], vcc""")
    def verify(self, p, c, first, t=7):
        self.chk(t, p)
        self.acc_ne(f"v{t}", f"v{c}", first)
    def poll_begin(self, dual=False):
        l = self.lab("PL")
        if dual:
            self("""s_mov_b32 s52, s40
                    s_mov_b32 s53, s41
                    s_mov_b32 s54, %d
                    s_mov_b32 s55, 0x20000""" % DLEN)
        self(f"s_mov_b32 s61, 0\n{l}:")
        return l
    def poll_end(self, l, dual=False):
        x = self.lab("PX")
        self(f"""s_cmp_eq_u64 s[62:63], 0
                 s_cbranch_scc1 {x}
                 s_add_u32 s61, s61, 1""")
        if dual:
            self("""s_and_b32 s14, s61, 7
                    s_cmp_eq_u32 s14, 7
                    s_cselect_b32 s52, s56, s40
                    s_cselect_b32 s53, s57, s41""")
        self(f"""s_cmp_lt_u32 s61, {SPIN_MAX}
                 s_cbranch_scc1 {l}
                 {x}:""")
    def xrow(self, op, v, t):
        self(f"""v_mov_b32 v{t}, v{v}
                 s_nop 1
                 v_permlane16_swap_b32 v{v}, v{t}
                 s_nop 0
                 {op} v{v}, v{v}, v{t}
                 v_mov_b32 v{t}, v{v}
                 s_nop 1
                 v_permlane32_swap_b32 v{v}, v{t}
                 s_nop 0
                 {op} v{v}, v{v}, v{t}""")
    def inrow(self, op, v, rors=(8, 4, 2, 1)):
        for r in rors:
            self(f"s_nop 1\n{op}_dpp v{v}, v{v}, v{v} row_ror:{r} {DPP}")
    def wave_sum(self, v, t):
        self.inrow("v_add_f32", v); self.xrow("v_add_f32", v, t)
    def rbf(self, v):
        self(f"v_cvt_pk_bf16_f32 v{v}, v{v}, v{v}\nv_lshlrev_b32 v{v}, 16, v{v}")
    def unpack(self, dst, src):
        self(f"v_lshlrev_b32 v{dst}, 16, v{src}\nv_and_b32 v{dst+1}, 0xffff0000, v{src}")
    def mfma(self, d, a, b, first):
        c = "0" if first else f"v[{d}:{d+3}]"
        self(f"v_mfma_f32_16x16x32_bf16 v[{d}:{d+3}], v[{a}:{a+3}], v[{b}:{b+3}], {c}")
    def pack8(self, p, d):
        for k in range(4):
            self(f"v_cvt_pk_bf16_f32 v{p+k}, v{d+2*k}, v{d+2*k+1}")
    def mask(self, m):
        self(f"s_mov_b32 exec_lo, {m}\ns_mov_b32 exec_hi, {m}")
    def mask_j4(self): self.mask("0x000f000f")
    def unmask(self): self("s_mov_b64 exec, -1")
    def dump(self, base):
        if self.dbg:
            g = self
            g("s_waitcnt lgkmcnt(0)")
            if base == STAMP2:
                lb = g.lab("DB")
                g(f"""v_mov_b32 v239, 0
                      s_not_b32 s13, s76
                      v_writelane_b32 v239, s13, 0
                      v_writelane_b32 v239, s76, 1
                      s_cmp_lt_u32 s3, 4
                      s_cbranch_scc1 {lb}""")
                for lane, k in ((2, 2), (3, 4), (4, 6), (5, 7), (6, 8)):
                    g(f"v_writelane_b32 v239, s{76+2*k}, {lane}")
                g(f"{lb}:")
                for k in range(1, 12): g(f"s_mov_b32 s{76+2*k}, 0")
            else:
                l0, l1, le = g.lab("DB"), g.lab("DB"), g.lab("DB")
                for lane, k in ((7, 9), (8, 10), (9, 11)):
                    g(f"v_writelane_b32 v239, s{76+2*k}, {lane}")
                g(f"""s_cmp_eq_u32 s72, 0
                      s_cbranch_scc1 {l0}
                      s_cmp_eq_u32 s72, 1
                      s_cbranch_scc1 {l1}
                      v_writelane_b32 v239, s78, 14
                      v_writelane_b32 v239, s80, 15
                      s_branch {le}
                      {l0}:
                      v_writelane_b32 v239, s78, 10
                      v_writelane_b32 v239, s82, 11
                      s_branch {le}
                      {l1}:
                      v_writelane_b32 v239, s78, 12
                      v_writelane_b32 v239, s82, 13
                      {le}:""")
                g.srd(44, P_DBG, 256)
                lw, lw2, lz = g.lab("DW"), g.lab("DW"), g.lab("DZ")
                g(f"""{lw}:
                     s_sleep 100
                     s_memrealtime s[78:79]
                     s_waitcnt lgkmcnt(0)
                     s_sub_u32 s13, s78, s76
                     s_cmp_lt_u32 s13, 2600
                     s_cbranch_scc1 {lw}
                     v_lshlrev_b32 v238, 2, v1
                     s_mov_b64 exec, 0xffff
                     buffer_atomic_umax v239, v238, s[44:47], 0 offen sc1
                     s_add_u32 s13, s2, s3
                     s_cmp_lg_u32 s13, 0
                     s_cbranch_scc1 {lz}
                     {lw2}:
                     s_sleep 10
                     s_memrealtime s[78:79]
                     s_waitcnt lgkmcnt(0)
                     s_sub_u32 s13, s78, s76
                     s_cmp_lt_u32 s13, 7000
                     s_cbranch_scc1 {lw2}
                     s_load_dword s80, s[{P_DBG}:{P_DBG+1}], {4*g.dbg} glc
                     s_waitcnt lgkmcnt(0)
                     {lw2}_b:
                     s_memrealtime s[78:79]
                     s_waitcnt lgkmcnt(0)
                     s_sub_u32 s13, s78, s80
                     s_cmp_lt_u32 s13, 8000
                     s_cbranch_scc1 {lw2}_b
                     {lz}:""")
            return
        if self.stamps:
            self("s_waitcnt lgkmcnt(0)")
            for k in range(12):
                self(f"v_mov_b32 v{240+k}, s{76+2*k}")
            self(f"""s_lshl_b32 s13, s2, 3
                  s_add_u32 s13, s13, s3
                  s_lshl_b32 s13, s13, 6
                  s_add_u32 s13, s13, {base}
                  v_mov_b32 v7, 0
                  s_mov_b64 exec, 1
                  buffer_store_dwordx4 v[240:243], v7, s[40:43], s13 offen
                  buffer_store_dwordx4 v[244:247], v7, s[40:43], s13 offen offset:16
                  buffer_store_dwordx4 v[248:251], v7, s[40:43], s13 offen offset:32
                  s_mov_b64 exec, -1""")
            for k in range(1, 12): self(f"s_mov_b32 s{76+2*k}, 0")
    def finish(self):
        if self.hold < 0:
            self("s_endpgm"); return
        if self.hold:
            l = self.lab("HD")
            self(f"""{l}:
                  s_memrealtime s[78:79]
                  s_waitcnt lgkmcnt(0)
                  s_sub_u32 s13, s78, s76
                  s_cmp_lt_u32 s13, {self.hold}
                  s_cbranch_scc1 {l}
                  s_endpgm""")
            return
        self.dump(STAMP)
        self("s_endpgm")

L_ML = L_FL + 128
L_QC = L_ML + 64
F_Q1 = 64
assert L_QC + 256 <= LDS_BYTES
F_LT = 60
F_MODE = 56
def lstore(g, instrs):
    lg, le = g.lab("LG"), g.lab("LE")
    g(f"s_cmp_lg_u32 s{MODE}, 1\ns_cbranch_scc1 {lg}")
    for x in instrs: g(x)
    g(f"s_branch {le}\n{lg}:")
    for x in instrs: g(x + " sc1" if x.startswith("buffer_store") else x)
    g(f"{le}:")
def tag_load(g): g(f"s_load_dword s11, s[{P_WS}:{P_WS+1}], {EPOCH}")
def tag_fin(g):
    g(f"""s_waitcnt lgkmcnt(0)
          s_mul_i32 s11, s11, {HASH_A}
          s_add_u32 s11, s11, {HASH_C}""")

def prologue(g):
    g(f"""s_cmp_ge_u32 s2, 256
          s_cbranch_scc1 L_end
          s_load_dwordx16 s[16:31], s[0:1], 0
          s_load_dwordx8 s[32:39], s[0:1], 64
          s_getpc_b64 s[48:49]
          L_pc:
          s_and_b32 s49, s49, 0xffff
          s_mov_b32 s50, L_code_end-L_pc
          s_mov_b32 s51, 0x20000
          v_lshlrev_b32 v1, 4, v0
          s_and_b32 s13, s2, 24
          s_lshl_b32 s13, s13, 10
          buffer_load_dwordx4 v[252:255], v1, s[48:51], s13 offen""")
    if g.stamps:
        for k in range(12): g(f"s_mov_b32 s{76+2*k}, 0")
    g.stamp(0)
    if g.hold: g("s_memrealtime s[76:77]")
    g(f"""v_lshrrev_b32 v2, 6, v0
          v_and_b32 v1, 63, v0
          s_and_b32 s4, s2, 7
          v_readfirstlane_b32 s3, v2
          s_lshr_b32 s5, s2, 3
          s_lshr_b32 s6, s5, 3
          s_lshl2_add_u32 s6, s4, s6
          s_and_b32 s7, s5, 7
          v_lshrrev_b32 v3, 4, v1
          v_and_b32 v9, 7, v1
          v_xor_b32 v9, v9, v3
          v_and_b32 v2, 1, v2
          v_lshlrev_b32 v2, 2, v2
          v_xor_b32 v9, v2, v9
          v_lshlrev_b32 v9, 4, v9
          v_lshrrev_b32 v10, 3, v1
          v_lshl_add_u32 v9, v10, 13, v9
          s_and_b32 s12, s3, 3
          v_and_b32 v2, 15, v1
          s_and_b32 s9, s5, 1
          s_cmp_ge_u32 s3, 4
          s_cbranch_scc1 L_pwave""")

def ids2(g):
    g(f"""s_lshr_b32 s8, s4, 1
          s_and_b32 s10, s4, 1
          s_lshl_b32 s10, s10, 4
          s_lshr_b32 s13, s5, 1
          s_add_u32 s10, s10, s13
          v_mov_b32 v4, {L_FL}
          v_mov_b32 v5, 1
          v_lshlrev_b32 v14, 4, v2
          v_lshl_add_u32 v14, v3, 2, v14
          v_lshlrev_b32 v15, 2, v14""")

def role_decode(g):
    l6, l7, ld, lhi = g.lab("R6"), g.lab("R7"), g.lab("RD"), g.lab("RH")
    g(f"""s_mov_b32 s72, 0
          s_mov_b32 s73, s5
          s_cmp_lt_u32 s5, 20
          s_cbranch_scc1 {ld}
          s_sub_u32 s13, s5, 20
          s_cmp_ge_u32 s4, 2
          s_cbranch_scc1 {lhi}
          s_lshl3_add_u32 s73, s4, s13
          s_cmp_lt_u32 s13, 8
          s_cbranch_scc1 {l7}
          s_lshl2_add_u32 s73, s4, s13
          s_sub_u32 s73, s73, 8
          s_branch {l6}
          {lhi}:
          s_lshl2_add_u32 s73, s4, s13
          s_add_u32 s73, s73, 8
          s_cmp_lt_u32 s13, 4
          s_cbranch_scc1 {l7}
          s_lshl3_add_u32 s73, s4, s13
          s_sub_u32 s73, s73, 12
          {l6}:
          s_mov_b32 s72, 1
          s_cmp_lt_u32 s73, 54
          s_cbranch_scc1 {ld}
          s_mov_b32 s72, 3
          s_branch {ld}
          {l7}:
          s_mov_b32 s72, 2
          {ld}:""")

def tr_lane(g, dst, t1, t2, swap=False):
    g(f"""v_lshrrev_b32 v{t1}, 2, v1
          v_and_b32 v{t1}, 3, v{t1}
          v_and_b32 v{t2}, 1, v3
          v_lshlrev_b32 v{t2}, 2, v{t2}""")
    if swap: g(f"v_or_b32 v{t1}, v{t1}, v{t2}")
    g(f"""v_and_b32 v{dst}, 3, v1
          v_xor_b32 v{dst}, v{dst}, v{t2}
          v_lshrrev_b32 v{t2}, 1, v{t1}
          v_xor_b32 v{dst}, v{dst}, v{t2}
          v_lshlrev_b32 v{dst}, 4, v{dst}
          v_lshl_add_u32 v{dst}, v{t1}, 7, v{dst}
          v_lshl_add_u32 v{dst}, v3, 10, v{dst}""")

def swave_front(g):
    g(f"""s_lshr_b32 s14, s7, 1
          s_mul_i32 s64, s14, 160
          s_lshl3_add_u32 s64, s12, s64
          s_lshl_b32 s64, s64, 13
          s_lshl_b32 s13, s6, 8
          s_add_u32 s64, s64, s13
          s_lshl_b32 s71, s9, 7
          s_add_u32 s64, s64, s71
          s_lshl_b32 s68, s14, 7
          s_lshl3_add_u32 s68, s12, s68
          s_lshl_b32 s68, s68, 13
          s_add_u32 s68, s68, s13
          s_lshl_b32 s67, s12, 10
          v_mov_b32 v6, 0
          v_lshlrev_b32 v13, 2, v1
          v_add_u32 v10, {L_MX}, v13
          v_mov_b32 v11, -1
          ds_write_b32 v10, v11 offset:{(L_MX - L_FL) % 65536 if False else 0}
          s_mov_b32 exec_hi, 0
          ds_write_b32 v10, v6 offset:{L_FL - L_MX}
          s_mov_b64 exec, -1
          s_mov_b32 s50, 5242880
          s_mov_b32 s70, s9
          s_mov_b32 s71, 0
          s_mov_b64 vcc, s[70:71]
          s_waitcnt lgkmcnt(0)
          s_mov_b32 s48, s{P_WQ}
          s_and_b32 s49, s{P_WQ+1}, 0xffff
          s_barrier""")
    for k in range(5):
        g(f"""s_add_u32 m0, s67, {L_WQ + k*4096}
              s_add_u32 s13, s64, {k*262144}
              buffer_load_dwordx4 v9, s[48:51], s13 offen nt lds""")
    ids2(g)
    g.srd(48, P_WUK, 4194304)
    g(f"""s_lshl_b32 s69, s12, 15
          s_cbranch_vccnz L_s_setup""")
    for k in range(g.wa - 5):
        kk, ch = k >> 1, k & 1
        g(f"""s_add_u32 m0, s69, {24576 + kk*2048 + ch*1024}
              s_add_u32 s13, s68, {kk*262144 + ch*128}
              buffer_load_dwordx4 v9, s[48:51], s13 offen nt lds""")
    g("L_s_setup:")
    tag_load(g)
    g.srd(44, P_CKV, 16777216)
    g.ws_srds()
    g(f"""s_lshl_b32 s65, s12, 15
          v_lshrrev_b32 v10, 3, v1
          v_lshrrev_b32 v11, 1, v10
          v_and_b32 v11, 1, v11
          v_and_b32 v12, 4, v10
          v_or_b32 v11, v11, v12
          v_and_b32 v12, 7, v1
          v_xor_b32 v11, v11, v12
          v_lshlrev_b32 v11, 4, v11
          v_lshl_add_u32 v7, v10, 10, v11
          v_xor_b32 v8, 32, v7
          v_add_u32 v8, 8192, v8
          s_lshl_b32 s64, s8, 22
          s_lshl_b32 s13, s10, 17
          s_add_u32 s64, s64, s13
          s_add_u32 s64, s64, s65
          v_lshrrev_b32 v11, 1, v2
          v_and_b32 v11, 1, v11
          v_lshrrev_b32 v12, 3, v2
          v_lshl_or_b32 v11, v12, 1, v11
          v_and_b32 v10, 4, v2
          v_or_b32 v11, v11, v10
          v_xor_b32 v11, v11, v3
          v_lshlrev_b32 v11, 4, v11
          v_and_b32 v10, 7, v2
          v_lshl_add_u32 v11, v10, 7, v11
          v_lshl_add_u32 v11, v12, 10, v11
          v_add_u32 v11, s65, v11
          s_cmp_eq_u32 s9, 0
          s_cselect_b32 s74, {512 if g.xr else 0}, 0
          s_lshl_b32 s13, s74, 4
          s_sub_u32 s66, s64, s74
          s_add_u32 s64, s64, s74
          s_sub_u32 s67, s65, s13
          s_add_u32 s65, s65, s13
          s_sub_u32 s14, 8192, s13
          v_add_u32 v34, s14, v11
          v_add_u32 v11, s13, v11
          v_xor_b32 v12, 64, v11
          v_xor_b32 v35, 64, v34
          v_mov_b32 v17, 0""")
    g.stamp(1)
    g("s_cbranch_vccnz L_s_ckv")
    fa = False
    for k in range(g.wa - 5, 8):
        kk, ch = k >> 1, k & 1
        g(f"s_waitcnt vmcnt({g.wa-1})")
        if not fa and 5 + k - g.wa >= 4:
            g.flag_add(F_A); fa = True
        g(f"""s_add_u32 m0, s69, {24576 + kk*2048 + ch*1024}
              s_add_u32 s13, s68, {kk*262144 + ch*128}
              buffer_load_dwordx4 v9, s[48:51], s13 offen nt lds""")
    if not fa:
        g("s_waitcnt vmcnt(8)")
        g.flag_add(F_A)
    g(f"""v_lshlrev_b32 v16, 4, v2
          v_add_u32 v16, {L_QC}, v16
          v_lshrrev_b32 v17, 2, v2
          v_lshlrev_b32 v17, 13, v17
          v_and_b32 v18, 3, v2
          v_lshl_add_u32 v17, v18, 4, v17
          s_lshr_b32 s13, s7, 1
          s_lshl2_add_u32 s69, s6, s13
          s_lshl_b32 s69, s69, 6
          s_add_u32 s69, s69, {QAC}
          s_waitcnt vmcnt({max(g.qe, 1)})""")
    g.flag_add(F_UR)
    g("s_waitcnt vmcnt(0)")
    g.flag_add(F_UK)
    g("s_branch L_s_ckv")

def pwave(g):
    g(f"""L_pwave:
          v_lshlrev_b32 v7, 4, v1
          v_lshlrev_b32 v8, 2, v1
          s_mul_i32 s64, s12, 1280
          s_mov_b32 s46, 5120
          s_mov_b32 s47, 0x20000
          {"s_setprio 3" if g.prio else ""}
          s_waitcnt lgkmcnt(0)
          s_mov_b32 s44, s{P_X}
          s_and_b32 s45, s{P_X+1}, 0xffff
          buffer_load_dwordx4 v[16:19], v7, s[44:47], s64 offen
          buffer_load_dword v20, v8, s[44:47], s64 offen offset:1024
          s_barrier""")
    tag_load(g)
    g.ws_srds()
    ids2(g)
    g(f"""s_lshl_b32 s68, s6, 10
          s_lshr_b32 s69, s7, 1
          s_and_b32 s14, s12, 1
          s_lshl1_add_u32 s14, s9, s14
          s_lshl2_add_u32 s14, s14, s69
          s_lshl_b32 s14, s14, 6
          s_add_u32 s66, s68, s14
          s_lshl_b32 s65, s66, 2
          s_lshl_b32 s67, s68, 2
          s_add_u32 s65, s65, {QP}
          s_add_u32 s66, s66, {QPC}
          s_add_u32 s67, s67, {QP}
          s_add_u32 s68, s68, {QPC}
          s_cmp_lt_u32 s12, 2
          s_cbranch_scc1 L_p_x0""")
    g.mask_j4()
    g(f"""buffer_load_dword v250, v15, s[40:43], s65 offen sc1
          buffer_load_dword v251, v14, s[40:43], s66 offen sc1
          s_mov_b64 exec, -1
          s_waitcnt vmcnt(2)
          s_branch L_p_x1
          L_p_x0:
          s_waitcnt vmcnt(0)
          L_p_x1:""")
    g.stamp(1)
    for k in range(5): g.unpack(24+2*k, 16+k)
    g(f"""v_add_f32 v34, v24, v25
          v_add_f32 v35, v26, v27
          v_add_f32 v36, v28, v29
          v_add_f32 v37, v30, v31
          v_add_f32 v38, v32, v33
          v_add_f32 v34, v34, v35
          v_add_f32 v36, v36, v37
          v_add_f32 v34, v34, v38
          v_add_f32 v34, v34, v36""")
    g.wave_sum(34, 35)
    g(f"v_mul_f32 v34, {f32(1/640)}, v34")
    g("v_sub_f32 v36, v24, v34\nv_mul_f32 v35, v36, v36")
    for k in range(1, 10):
        g(f"v_sub_f32 v36, v{24+k}, v34\nv_fmac_f32 v35, v36, v36")
    g.wave_sum(35, 36)
    g(f"v_mul_f32 v35, {f32(1/640)}, v35")
    g.rbf(35)
    g(f"v_add_f32 v35, {f32(1e-5)}, v35")
    g.rbf(35)
    g("v_sqrt_f32 v35, v35")
    g.rbf(34)
    g.rbf(35)
    g("v_rcp_f32 v35, v35")
    for k in range(10): g(f"v_sub_f32 v{24+k}, v{24+k}, v34")
    for k in range(5): g(f"v_cvt_pk_bf16_f32 v{16+k}, v{24+2*k}, v{25+2*k}")
    for k in range(5): g.unpack(24+2*k, 16+k)
    for k in range(10): g(f"v_mul_f32 v{24+k}, v{24+k}, v35")
    for k in range(5): g(f"v_cvt_pk_bf16_f32 v{16+k}, v{24+2*k}, v{25+2*k}")
    g(f"""s_add_u32 s13, s64, {L_XN}
          v_add_u32 v7, s13, v7
          v_add_u32 v8, s13, v8
          ds_write_b128 v7, v[16:19]
          ds_write_b32 v8, v20 offset:1024""")
    g.flag_add(F_A)
    tr_lane(g, 11, 10, 12)
    g(f"""s_and_b32 s13, s12, 1
          s_lshl_b32 s13, s13, 6
          v_xor_b32 v11, s13, v11
          v_add_u32 v11, {L_WQ}, v11
          v_xor_b32 v12, 0x220, v11
          v_and_b32 v13, 3, v2
          v_mul_u32_u24 v13, 1280, v13
          v_lshl_add_u32 v13, v3, 4, v13
          s_mul_i32 s13, s69, 320
          s_add_u32 s13, s13, {L_XN}
          v_add_u32 v13, s13, v13""")
    g(f"""v_lshlrev_b32 v24, 15, v2
          v_lshl_add_u32 v24, v3, 4, v24
          v_lshlrev_b32 v34, 6, v2
          v_lshl_add_u32 v34, v3, 2, v34
          s_lshl_b32 s13, s12, 4
          s_add_u32 s13, s13, {L_QC}
          v_add_u32 v34, s13, v34
          v_and_b32 v7, 4, v2
          s_lshl2_add_u32 s13, s69, s12
          s_lshl_b32 s13, s13, 6
          s_lshl_b32 s70, s6, 10
          s_add_u32 s70, s70, s13
          s_add_u32 s70, s70, {QA}
          v_lshrrev_b32 v26, 2, v2
          v_and_b32 v27, 3, v2
          v_lshrrev_b32 v25, 1, v27
          v_xor_b32 v25, v25, v3
          v_xor_b32 v25, v25, v7
          v_lshlrev_b32 v25, 4, v25
          v_lshl_add_u32 v25, v27, 7, v25
          v_lshl_add_u32 v25, v26, 15, v25
          s_lshl_b32 s13, s12, 11
          s_add_u32 s13, s13, 24576
          v_add_u32 v25, s13, v25
          v_xor_b32 v26, 64, v25
          v_xor_b32 v27, 0x220, v25
          v_xor_b32 v28, 0x260, v25
          s_mov_b32 s52, s40
          s_mov_b32 s53, s41
          s_mov_b32 s54, {DLEN}
          s_mov_b32 s55, 0x20000
          s_mov_b32 s61, 0""")
    tag_fin(g)
    g(f"""s_cmp_lt_u32 s12, 2
          s_cbranch_scc1 L_p_s1
          s_cmp_lg_u32 s12, 3
          s_cbranch_scc1 L_p_nos1
          s_getreg_b32 s13, hwreg(HW_REG_XCC_ID, 0, 4)
          s_add_u32 s13, s13, s11
          v_mov_b32 v16, s13
          v_mov_b32 v17, s13
          v_mov_b32 v18, s13
          v_mov_b32 v19, s13
          v_lshlrev_b32 v22, 4, v1
          s_lshl_b32 s13, s4, 5
          s_add_u32 s13, s13, s5
          s_lshl_b32 s13, s13, 7
          s_add_u32 s13, s13, {IDT}
          s_mov_b64 exec, 0xff
          buffer_store_dwordx4 v[16:19], v22, s[40:43], s13 offen sc1
          s_mov_b64 exec, -1
          s_branch L_p_nos1
          L_p_s1:""")
    g.flag_wait(F_A, 8)
    g.stamp(2)
    def s1_reads(t):
        g(f"ds_read_b128 v[{36+4*t}:{39+4*t}], v13 offset:{t*64}")
        for e in range(2):
            r = 96 + 8*t + 4*e
            g(f"ds_read_b64_tr_b16 v[{r}:{r+1}], v11 offset:{t*4096+e*8}")
            g(f"ds_read_b64_tr_b16 v[{r+2}:{r+3}], v12 offset:{t*4096+e*8}")
    s1_reads(0); s1_reads(1); s1_reads(2)
    for t in range(5):
        rem = min(5, t+3) - (t+1)
        g(f"s_waitcnt lgkmcnt({rem*5})")
        for e in range(2): g.mfma(56+4*e, 96+8*t+4*e, 36+4*t, t == 0)
        if t + 3 < 5: s1_reads(t+3)
    g.nop(6)
    g.mask_j4()
    g.pack8(16, 56)
    g.chk(20, 16)
    g(f"""buffer_store_dwordx4 v[16:19], v15, s[40:43], s65 offen
          buffer_store_dword v20, v14, s[40:43], s66 offen""")
    g.flag_add(F_S1)
    g.stamp(3)
    g("L_p_nos1:")
    def qdual():
        lq = g.lab("QD")
        g(f"s_cmp_ge_u32 s12, 2\ns_cbranch_scc1 {lq}")
        g.mask_j4()
        g(f"""buffer_store_dwordx4 v[16:19], v15, s[56:59], s65 offen sc1
              buffer_store_dword v20, v14, s[56:59], s66 offen sc1
              s_mov_b64 exec, -1
              {lq}:""")
    g("s_cmp_lg_u32 s9, 0\ns_cbranch_scc1 L_p_qd")
    def qloads():
        for t in range(4):
            g(f"buffer_load_dwordx4 v[{36+4*t}:{39+4*t}], v15, s[52:55], s67 offen offset:{t*1024} sc1")
        for t in range(4):
            g(f"buffer_load_dword v{52+t}, v14, s[52:55], s68 offen offset:{t*256} sc1")
    if g.qe:
        g.flag_wait(F_UR, 4)
        qloads()
    g.flag_wait(F_UK, 4)
    g.stamp(9)
    for e in range(2):
        for t in range(4):
            r = 64 + 16*e + 4*t
            g(f"ds_read_b128 v[{r}:{r+3}], v{25+2*e+(t&1)} offset:{(t>>1)*1024}")
    l, lnd, lsk = g.lab("PL"), g.lab("ND"), g.lab("SK")
    g("s_mov_b64 s[62:63], -1")
    if g.qe: g(f"s_branch {lsk}")
    g(f"""{l}:
          s_cmp_lg_u32 s61, 3
          s_cbranch_scc1 {lnd}""")
    qdual()
    g(f"{lnd}:\ns_mov_b64 exec, s[62:63]")
    qloads()
    g(f"s_mov_b64 exec, -1\n{lsk}:\ns_waitcnt vmcnt(4) lgkmcnt(0)")
    for t in range(4):
        for e in range(2): g.mfma(56+4*e, 64+16*e+4*t, 36+4*t, t == 0)
    g("s_waitcnt vmcnt(0)")
    for t in range(4): g.verify(36+4*t, 52+t, t == 0)
    g.poll_end(l, dual=True)
    g.count(10)
    for r in (4, 8):
        for k in range(8): g(f"v_add_f32_dpp v{56+k}, v{56+k}, v{56+k} row_ror:{r} {DPP}")
    g.mask_j4()
    g.pack8(28, 56)
    g("buffer_store_dwordx4 v[28:31], v24, s[40:43], s70 offen sc1")
    g.chk(32, 28)
    g("ds_write_b32 v34, v32")
    g.flag_add(F_GO)
    g.stamp(4)
    lnd, lm = g.lab("ND"), g.lab("MD")
    g(f"""L_p_qd:
          s_cmp_lg_u32 s12, 3
          s_cbranch_scc1 {lm}
          s_lshl_b32 s64, s4, 12
          s_add_u32 s64, s64, {IDT}
          s_getreg_b32 s71, hwreg(HW_REG_XCC_ID, 0, 4)
          v_lshlrev_b32 v34, 7, v1""")
    g.flag_wait(F_S1, 2)
    g("s_mov_b32 exec_hi, 0")
    l = g.poll_begin()
    g(f"""buffer_load_dword v35, v34, s[40:43], s64 offen sc1
          s_waitcnt vmcnt(0)
          v_subrev_u32 v35, s11, v35
          v_cmp_lt_u32 s[62:63], 15, v35""")
    g.poll_end(l)
    g(f"""v_cmp_ne_u32 vcc, s71, v35
          s_cmp_eq_u64 vcc, 0
          s_cselect_b32 s13, 1, 2
          v_mov_b32 v35, s13
          ds_write_b32 v4, v35 offset:{F_MODE}
          s_mov_b64 exec, -1
          {lm}:""")
    g.flag_wait(F_MODE, 1)
    g(f"""s_cmp_eq_u32 s14, 1
          s_cbranch_scc1 {lnd}""")
    qdual()
    g(f"{lnd}:\ns_mov_b32 s{MODE}, s14\ns_nop 1")
    g(f"""v_lshrrev_b32 v10, 2, v1
          v_and_b32 v10, 3, v10
          v_and_b32 v11, 3, v1
          v_lshrrev_b32 v12, 1, v10
          v_and_b32 v13, 2, v3
          v_or_b32 v12, v12, v13
          v_and_b32 v13, 1, v3
          v_lshl_or_b32 v12, v13, 2, v12
          v_xor_b32 v12, v12, v11
          v_lshlrev_b32 v12, 4, v12
          v_lshl_or_b32 v13, v13, 2, v10
          v_lshl_add_u32 v12, v13, 7, v12
          v_lshrrev_b32 v13, 1, v3
          v_lshl_add_u32 v12, v13, 10, v12
          v_and_b32 v13, 1, v11
          v_lshl_add_u32 v12, v13, 3, v12
          s_lshl_b32 s13, s12, 12
          v_add_u32 v20, s13, v12
          v_xor_b32 v21, 8, v20
          v_xor_b32 v22, 64, v20
          v_xor_b32 v23, 0x48, v20
          v_add_u32 v24, 0x10000, v20
          v_add_u32 v25, 0x10000, v21
          v_add_u32 v26, 0x10000, v22
          v_add_u32 v27, 0x10000, v23
          v_lshlrev_b32 v28, 4, v1
          v_lshlrev_b32 v33, 2, v1
          s_lshl2_add_u32 s13, s9, s12
          s_lshl3_add_u32 s13, s8, s13
          s_lshl_b32 s65, s13, 12
          s_add_u32 s65, s65, {QA}
          s_lshl_b32 s66, s13, 10
          s_add_u32 s66, s66, {QAC}""")
    for n in range(4):
        g(f"""s_lshl2_add_u32 s13, s12, {n}
              s_lshl_b32 s14, s13, 4
              v_xor_b32 v{29+n}, s14, v28
              s_lshl_b32 s13, s13, 10
              s_add_u32 s13, s13, {L_QA}
              v_add_u32 v{29+n}, s13, v{29+n}""")
    role_decode(g)
    def gather_loads():
        for n in range(4):
            g(f"buffer_load_dwordx4 v[{64+4*n}:{67+4*n}], v28, s[40:43], s65 offen offset:{n*1024} sc1")
        for n in range(4):
            g(f"buffer_load_dword v{80+n}, v33, s[40:43], s66 offen offset:{n*256} sc1")
    def pv_pre(tile):
        for sw in range(4):
            for tp in range(4):
                for e in range(2):
                    r = 128 + ((tp*2+e)*4 + sw)*4 + 2*tile
                    a = 20 + (tp & 1)*2 + e + (4 if sw >= 2 else 0)
                    off = (sw & 1)*32768 + tile*16384 + (tp >> 1)*2048
                    g(f"ds_read_b64_tr_b16 v[{r}:{r+1}], v{a} offset:{off}")
    lg2 = g.lab("GB")
    g.flag_wait(F_G2, 4)
    g.stamp(5)
    gather_loads()
    g.flag_wait(F_T0, 4)
    pv_pre(0)
    g("s_waitcnt lgkmcnt(0)")
    g.flag_add(F_RD)
    l = g.lab("PL")
    g(f"""s_mov_b32 s61, 0
          s_branch {lg2}
          {l}:
          s_mov_b64 exec, s[62:63]""")
    gather_loads()
    g(f"s_mov_b64 exec, -1\n{lg2}:\ns_waitcnt vmcnt(0)")
    for n in range(4): g.verify(64+4*n, 80+n, n == 0)
    g.poll_end(l)
    g.count(11)
    g.flag_wait(F_S1, 2)
    for n in range(4): g(f"ds_write_b128 v{29+n}, v[{64+4*n}:{67+4*n}]")
    g.flag_add(F_QA)
    if g.prio: g("s_setprio 0")
    g.stamp(6)
    g(f"""v_lshlrev_b32 v29, {7 if g.opl else 6}, v2
          v_lshl_add_u32 v29, v3, 4, v29
          s_lshl2_add_u32 s65, s9, s8
          s_lshl_b32 s65, s65, 5
          s_add_u32 s65, s65, s10
          s_mul_i32 s65, s65, {OBLK}
          s_add_u32 s65, s65, {OP}
          s_lshl_b32 s13, s12, 10
          s_add_u32 s67, s65, s13
          s_add_u32 s67, s67, 16384
          s_lshl_b32 s13, s12, 12
          s_add_u32 s65, s65, s13
          v_add_u32 v31, {L_P}, v28
          v_lshlrev_b32 v30, 4, v2
          v_add_u32 v30, {L_MX}, v30
          v_add_u32 v32, {L_SM}, v15
          s_mov_b32 s60, {f32(SCALE)}""")
    g.srd(48, P_WUV, 4194304)
    g(f"""s_lshl_b32 s69, s7, 6
          s_lshl3_add_u32 s69, s12, s69
          s_lshl_b32 s69, s69, 13
          s_lshl_b32 s13, s6, 8
          s_add_u32 s69, s69, s13
          s_lshl_b32 s70, s12, 10""")
    g("s_mov_b32 s74, s69\ns_mov_b32 s75, s70")
    def uv_dma():
        for k in range(2):
            for ch in range(2):
                g(f"""s_add_u32 m0, s75, {L_WUV + ch*8192 + k*4096}
                      s_add_u32 s13, s74, {k*262144 + ch*128}
                      buffer_load_dwordx4 v9, s[48:51], s13 offen nt lds""")
    g.flag_wait(F_RD, 4)
    g.flag_wait(F_S2, 4)
    if not g.uv: uv_dma()
    lpt = g.lab("PT")
    g(f"""s_cmp_lg_u32 s72, 0
          s_cbranch_scc1 {lpt}
          v_lshlrev_b32 v116, 2, v2
          s_mul_i32 s13, s12, 1280
          s_lshl_b32 s14, s73, 6
          s_add_u32 s13, s13, s14
          buffer_load_dword v120, v116, s[44:47], s13 offen
          s_mul_i32 s13, s4, 20
          s_add_u32 s13, s13, s73
          s_mul_i32 s13, s13, 384
          s_lshl_b32 s14, s12, 7
          s_min_u32 s14, s14, 256
          s_add_u32 s13, s13, s14
          s_add_u32 s13, s13, {HR}
          buffer_load_dword v121, v116, s[40:43], s13 offen sc1
          {lpt}:""")
    early_setup(g)
    if g.sa == 2: early_dma(g)
    g("s_lshl_b32 s13, s12, 2\nv_add_u32 v4, s13, v4")
    g.flag_wait(F_Q1, 0x01010101)
    g("v_subrev_u32 v4, s13, v4")
    pv_pre(1)
    if g.sa == 1: early_dma(g)
    if g.sa == 0: g("s_lshl_b32 s70, s70, 1")
    g("s_waitcnt lgkmcnt(0)")
    if g.prio: g("s_setprio 3")
    g("s_barrier")
    g.stamp(7)
    for sw in range(4):
        g(f"ds_read_b128 v[{36+4*sw}:{39+4*sw}], v31 offset:{sw*1024}")
    g("ds_read_b128 v[52:55], v30\nds_read_b128 v[56:59], v32")
    def pv_out(tp):
        p = 96 + 4*tp; d = 64 + 8*tp; c = 114 + (tp >> 1)
        return [f"v_cvt_pk_bf16_f32 v{p+k}, v{d+2*k}, v{d+2*k+1}" for k in range(4)] + [
            f"buffer_store_dwordx4 v[{p}:{p+3}], v29, s[40:43], s65 offen offset:{((tp>>1)*2048+(tp&1)*64) if g.opl else tp*1024} sc1",
            f"v_add3_u32 v{c}, v{p}, v{p+1}, {'v60' if tp % 2 == 0 else f'v{c}'}",
            f"v_add3_u32 v{c}, v{p+2}, v{p+3}, v{c}"]
    stats = ["s_waitcnt lgkmcnt(0)", "v_max3_f32 v112, v52, v53, v54", "v_add_f32 v56, v56, v57", "v_add_f32 v58, v58, v59",
             "v_max_f32 v112, v112, v55", "v_add_f32 v113, v56, v58", "v_mul_f32 v112, s60, v112", "v_mov_b32 v56, v113",
             "s_nop 0", "v_permlane16_swap_b32 v113, v56", "s_nop 0", "v_add_f32 v113, v113, v56", "v_mov_b32 v56, v113",
             "s_nop 1", "v_permlane32_swap_b32 v113, v56", "s_nop 0", "v_add_f32 v113, v113, v56", "v_add3_u32 v60, v112, v113, s11"]
    fill = {k: [] for k in range(32)}
    for n, x in enumerate(stats): fill[5 + n//2].append(x)
    for tp in range(3):
        o = pv_out(tp); base = 8*(tp+1)
        pos = [4, 4, 5, 5, 6, 7, 7]
        if tp == 0: pos = [6, 6, 7, 7, 8, 9, 9]
        for x, q in zip(o, pos): fill[base + q].append(x)
    n = 0
    for tp in range(4):
        for sw in range(4):
            if tp == 0: g(f"s_waitcnt lgkmcnt({5-sw})")
            for e in range(2):
                g.mfma(64+8*tp+4*e, 128+((tp*2+e)*4+sw)*4, 36+4*sw, sw == 0)
                for x in fill[n]: g(x)
                n += 1
    g.nop(4)
    for x in pv_out(3): g(x)
    g("buffer_store_dwordx4 v[112:115], v15, s[40:43], s67 offen sc1")
    g.stamp(8)
    g("s_waitcnt vmcnt(5)")
    if g.xf:
        lx = g.lab("XF")
        g(f"""s_cmp_lg_u32 s12, 3
              s_cbranch_scc1 {lx}
              s_lshl_b32 s13, s4, 7
              s_lshl2_add_u32 s13, s5, s13
              s_add_u32 s13, s13, {XF}
              v_mov_b32 v61, s11
              v_mov_b32 v62, 0
              s_mov_b64 exec, 1""")
        lstore(g, ["buffer_store_dword v61, v62, s[40:43], s13 offen"])
        g(f"s_mov_b64 exec, -1\n{lx}:")
    if g.xf == 2:
        g.flag_wait(F_LT, 1)
        lx = g.lab("LT")
        g(f"s_mov_b32 s54, s74\ns_mov_b32 s55, s75\nv_mov_b32 v118, v9\ns_cmp_eq_u32 s14, 2\ns_cbranch_scc1 {lx}")
        uv_dma()
        g(f"{lx}:")
    elif g.uv: uv_dma()
    if not g.sb: early_dma(g)
    else: g("s_mov_b32 s52, s70\ns_mov_b32 s53, s71")
    g("s_branch L_s4")

def early_setup(g):
    le = g.lab("EE")
    g(f"""s_mov_b32 s70, 0
          s_lshl_b32 s71, s12, 10
          s_add_u32 s71, s71, {L_WR}""")
    g.srd(44, P_WO, 5242880)
    g(f"""v_lshrrev_b32 v119, 3, v1
          v_mul_u32_u24 v119, 1280, v119
          v_and_b32 v7, 0x70, v9
          v_add_u32 v119, v119, v7
          s_and_b32 s13, s73, 1
          s_lshl1_add_u32 s13, s4, s13
          s_lshl_b32 s13, s13, 5
          s_add_u32 s13, s13, s12
          s_mul_i32 s68, s13, {8*1280}
          s_lshr_b32 s13, s73, 1
          s_lshl_b32 s13, s13, 7
          s_add_u32 s68, s68, s13
          s_mov_b32 s69, {32*1280}
          s_cmp_ge_u32 s72, 2
          s_cbranch_scc1 {le}
          s_mov_b32 s70, 4
          s_cmp_eq_u32 s72, 0
          s_cbranch_scc1 {le}""")
    g.srd(44, P_W1, 2211840)
    g(f"""v_lshrrev_b32 v119, 2, v1
          v_mul_u32_u24 v119, 3456, v119
          v_and_b32 v7, 3, v1
          v_lshl_add_u32 v119, v7, 4, v119
          s_mul_i32 s68, s12, {16*3456}
          s_lshl_b32 s13, s73, 6
          s_add_u32 s68, s68, s13
          s_mov_b32 s69, {64*3456}
          s_mov_b32 s70, {g.c1}
          {le}:""")
def early_dma(g):
    l, le = g.lab("ED"), g.lab("EX")
    g(f"""s_mov_b32 s13, s70
          s_cmp_eq_u32 s70, 0
          s_cbranch_scc1 {le}
          {l}:
          s_mov_b32 m0, s71
          s_add_u32 s71, s71, 4096
          buffer_load_dwordx4 v119, s[44:47], s68 offen nt lds
          s_add_u32 s68, s68, s69
          s_sub_u32 s13, s13, 1
          s_cmp_lg_u32 s13, 0
          s_cbranch_scc1 {l}
          {le}:""")

def swave(g, W):
    g("L_s_ckv:")
    def areads(m):
        tile, u = m >> 3, m & 7
        for tl in range(2):
            t = 2*u + tl
            r = 64 + 64*tile + 4*t
            g(f"ds_read_b128 v[{r}:{r+3}], v{(11 if u < 4 else 34)+tl} offset:{tile*16384+(u&3)*2048}")
    def qflag(m):
        g(f"ds_write_b8 v40, v5 offset:{F_Q1 + 2*(m-9)}")
    g("v_add_u32 v40, s12, v4")
    done = 0
    for k in range(32):
        if k == g.npa:
            lb = g.lab("GO")
            g(f"s_cbranch_vccnz {lb}")
            g.flag_wait(F_GO, 4)
            g(f"""s_cmp_lg_u32 s12, 0
                  s_cbranch_scc1 {lb}
                  ds_read_b128 v[20:23], v16
                  s_mov_b64 exec, 0xffff
                  s_waitcnt vmcnt(0) lgkmcnt(0)
                  buffer_store_dwordx4 v[20:23], v17, s[40:43], s69 offen sc1
                  s_mov_b64 exec, -1
                  {lb}:""")
        if k < g.wsw:
            lb = g.lab("SB")
            g(f"s_cbranch_vccz {lb}\ns_waitcnt vmcnt({g.we-1})")
            if k == g.we - 1: g.flag_add(F_A)
            g(f"{lb}:")
        if k >= W: g(f"s_waitcnt vmcnt({W-1})")
        landed = k - W
        tile, u, kh = k >> 4, (k >> 1) & 7, k & 1
        g(f"""s_add_u32 m0, s{65 if u < 4 else 67}, {k*1024}
              s_add_u32 s13, s{64 if u < 4 else 66}, {tile*16384 + u*128}
              buffer_load_dwordx4 v{7+kh}, s[44:47], s13 offen lds""")
        if k == 31: g.flag_add(F_S2)
        if k == g.ga:
            lb = g.lab("SB"); g(f"s_cbranch_vccnz {lb}"); g.flag_add(F_G2); g(f"{lb}:")
        if k == g.gb:
            lb = g.lab("SB"); g(f"s_cbranch_vccz {lb}"); g.flag_add(F_G2); g(f"{lb}:")
        while 2*done + 1 <= landed:
            areads(done); done += 1
            if done > 8 and done % 2 == 0: qflag(done-1)
            if done == 8:
                tag_fin(g)
                g.flag_add(F_T0)
                g.stamp(2)
    for tl in range(4):
        g(f"""v_or_b32 v13, {4*tl}, v3
              v_xor_b32 v13, v13, v2
              v_lshlrev_b32 v13, 4, v13
              v_lshl_add_u32 v13, v2, 10, v13
              v_add_u32 v13, {L_QA}, v13
              v_add_u32 v{16+tl}, s74, v13
              v_subrev_u32 v{36+tl}, s74, v13""")
    g(f"""v_lshlrev_b32 v20, 4, v2
          v_add_u32 v20, {L_MX}, v20
          s_lshl_b32 s13, s12, 2
          v_add_u32 v21, s13, v20
          v_lshlrev_b32 v22, 4, v1
          s_lshl_b32 s13, s12, 10
          s_add_u32 s13, s13, {L_P}
          v_add_u32 v22, s13, v22
          s_mov_b32 s60, {f32(SCALE)}
          v_lshlrev_b32 v23, 6, v2
          v_lshl_add_u32 v23, v3, 2, v23
          s_lshl_b32 s13, s12, 4
          s_add_u32 s13, s13, {L_SM}
          v_add_u32 v23, s13, v23""")
    if g.fl:
        g(f"""v_mul_u32_u24 v32, {8*FSTR}, v1
              v_mov_b32 v33, s11
              s_lshl_b32 s66, s9, 5
              s_add_u32 s66, s66, s4
              s_mul_i32 s66, s66, {FSTR}
              s_lshr_b32 s13, s5, 1
              s_lshl2_add_u32 s66, s13, s66
              s_add_u32 s66, s66, {FL3}""")
    role_decode(g)
    if g.prio: g("s_setprio 2")
    g.stamp(3)
    def qa_reads():
        for t in range(16):
            g(f"ds_read_b128 v[{192+4*t}:{195+4*t}], v{(16 if t < 8 else 36)+(t&3)} offset:{(t>>2)*256}")
    if g.ad:
        for m in range(done, 16):
            g(f"""ds_read_b32 v6, v4 offset:{F_QA}
                  s_waitcnt lgkmcnt(0)
                  v_readfirstlane_b32 s14, v6
                  s_cmp_ge_u32 s14, 4
                  s_cbranch_scc1 L_s_early
                  s_waitcnt vmcnt({31-(2*m+1)})""")
            areads(m)
            if m % 2 == 1: qflag(m)
        g.stamp(5)
        g.flag_wait(F_QA, 4)
        g.stamp(4)
        qa_reads()
        for t in range(16):
            g(f"s_waitcnt lgkmcnt({15-t})")
            g.mfma(56, 64+4*t, 192+4*t, t == 0)
            g.mfma(60, 128+4*t, 192+4*t, t == 0)
        g("s_nop 5\ns_branch L_s_max\nL_s_early:")
    else:
        g.flag_wait(F_QA, 4)
    g.stamp(4)
    assert done == 11
    q = []
    def qa(t):
        g(f"ds_read_b128 v[{192+4*t}:{195+4*t}], v{(16 if t < 8 else 36)+(t&3)} offset:{(t>>2)*256}"); q.append(("qa", t))
    def drain(m):
        g(f"s_waitcnt vmcnt({31-(2*m+1)})")
        areads(m); q.extend([("a", m)]*2)
        if m % 2 == 1: qflag(m); q.append(("f", m))
    def need(key):
        last = max(i for i, x in enumerate(q) if x == key)
        g(f"s_waitcnt lgkmcnt({len(q)-1-last})")
    def t1(m):
        need(("a", m))
        for tl in range(2):
            t = 2*(m & 7) + tl
            g.mfma(60, 128+4*t, 192+4*t, False)
    AH = 5
    for t in range(AH): qa(t)
    for t in range(16):
        need(("qa", t))
        g.mfma(56, 64+4*t, 192+4*t, t == 0)
        if t + AH < 16: qa(t + AH)
        if t < 6: g.mfma(60, 128+4*t, 192+4*t, t == 0)
        if t in (5, 7, 9, 11): drain(11 + (t-5)//2)
        if t in (9, 11, 13): t1(11 + (t-9)//2)
        if t == 13:
            drain(15); g.stamp(5)
    t1(14); t1(15)
    g("s_nop 5")
    g("""L_s_max:
         v_max3_f32 v24, v56, v57, v58
         v_max_f32 v24, v24, v59
         v_max3_f32 v24, v24, v60, v61
         v_max3_f32 v24, v24, v62, v63""")
    g.stamp(9)
    g.xrow("v_max_f32", 24, 25)
    g("ds_write_b32 v21, v24")
    g.stamp(10)
    l, lx = g.lab("MX"), g.lab("MZ")
    g(f"""s_mov_b32 s15, 0
          {l}:
          ds_read_b128 v[24:27], v20
          s_add_u32 s15, s15, 1
          s_cmp_gt_u32 s15, {SPIN_MAX*8}
          s_cbranch_scc1 {lx}
          s_waitcnt lgkmcnt(0)
          v_max3_u32 v28, v24, v25, v26
          v_max_u32 v28, v28, v27
          v_cmp_eq_u32 vcc, -1, v28
          s_cbranch_vccnz {l}
          {lx}:
          s_waitcnt lgkmcnt(0)
          v_max3_f32 v24, v24, v25, v26
          v_max_f32 v24, v24, v27
          v_mul_f32 v24, s60, v24""")
    g.stamp(11)
    for k in range(8): g(f"v_fma_f32 v{56+k}, v{56+k}, s60, -v24")
    for k in range(8): g(f"v_exp_f32 v{56+k}, v{56+k}")
    g.nop(1)
    g.pack8(28, 56)
    g(f"""ds_write_b128 v22, v[28:31]
          v_add_f32 v56, v56, v57
          v_add_f32 v58, v58, v59
          v_add_f32 v60, v60, v61
          v_add_f32 v62, v62, v63
          v_add_f32 v56, v56, v58
          v_add_f32 v60, v60, v62
          v_add_f32 v25, v56, v60
          ds_write_b32 v23, v25
          s_waitcnt lgkmcnt(0)""")
    g.stamp(8)
    g("s_barrier")
    if g.prio: g("s_setprio 0")
    if g.fl == 2:
        lf = g.lab("FL")
        g(f"""s_cmp_lg_u32 s12, 0
              s_cbranch_scc1 {lf}
              s_mov_b64 exec, 15
              buffer_store_dword v33, v32, s[40:43], s66 offen sc1
              s_mov_b64 exec, -1
              {lf}:""")
    g.stamp(6)
    if g.xf == 2:
        lx = g.lab("XF")
        g(f"""s_cmp_lg_u32 s12, 0
              s_cbranch_scc1 {lx}
              s_lshl_b32 s13, s4, 7
              s_add_u32 s13, s13, {XF}
              v_and_b32 v61, 31, v1
              v_lshlrev_b32 v61, 2, v61
              buffer_load_dword v62, v61, s[40:43], s13 offen sc1
              s_waitcnt vmcnt(0)
              v_cmp_eq_u32 vcc, s11, v62
              s_bcnt1_i32_b32 s13, vcc_lo
              s_cmp_ge_u32 s13, {g.thr}
              s_cselect_b32 s13, 2, 1
              v_mov_b32 v62, s13
              ds_write_b32 v4, v62 offset:{F_LT}
              {lx}:""")
    g(f"""s_lshr_b32 s13, s7, 2
          s_lshl1_add_u32 s69, s6, s13
          s_lshl2_add_u32 s69, s69, s12
          s_and_b32 s13, s7, 3
          s_lshl2_add_u32 s69, s69, s13
          s_lshl_b32 s68, s69, 8
          s_lshr_b32 s69, s69, 3
          s_lshl2_add_u32 s69, s69, s13
          s_lshl_b32 s69, s69, 7
          s_and_b32 s13, s12, 1
          s_lshl2_add_u32 s69, s13, s69
          s_add_u32 s68, s68, {CP}
          s_add_u32 s69, s69, {CPC}
          v_lshlrev_b32 v21, 1, v14
          ds_read_b32 v6, v4 offset:{F_MODE}
          s_waitcnt lgkmcnt(0)
          v_readfirstlane_b32 s{MODE}, v6""")
    g.mask_j4()
    g(f"""buffer_load_dword v120, v15, s[40:43], s68 offen sc1
          buffer_load_dword v121, v21, s[40:43], s69 offen sc1
          s_mov_b64 exec, -1""")
    g.stamp(7)

def tail(g):
    g("L_s4:")
    g.dump(STAMP2)
    if g.prio: g("s_setprio 0")
    g(f"""s_mov_b32 s13, {OBLK}
          v_lshrrev_b32 v9, 3, v1
          v_mul_lo_u32 v9, v9, s13
          v_and_b32 v10, 3, v1
          v_lshl_add_u32 v9, v10, 4, v9
          v_and_b32 v10, 4, v1
          v_lshl_add_u32 v8, v10, {4 if g.opl else 8}, v9
          s_lshr_b32 s14, s6, 4
          s_lshl3_add_u32 s64, s14, s3
          s_mul_i32 s64, s64, {16*OBLK}
          s_and_b32 s14, s6, 15
          s_lshl_b32 s14, s14, 6
          s_add_u32 s64, s64, s14
          s_lshl_b32 s13, s7, 11
          s_add_u32 s65, s64, s13
          {"s_add_u32 s65, s65, s14" if g.opl else ""}
          s_add_u32 s65, s65, {OP}
          s_lshr_b32 s13, s7, 1
          s_lshl_b32 s13, s13, 10
          s_add_u32 s66, s64, s13
          s_add_u32 s66, s66, {OP+16384}
          s_add_u32 s74, s65, {8*OBLK}
          s_add_u32 s75, s66, {8*OBLK}
          s_bitcmp1_b32 s7, 0
          s_cselect_b64 s[56:57], -1, 0
          v_and_b32 v13, 7, v1
          v_lshlrev_b32 v13, 4, v13
          v_and_b32 v10, 1, v3
          v_lshl_add_u32 v13, v10, 3, v13
          v_lshrrev_b32 v10, 1, v3
          v_lshl_add_u32 v13, v10, 2, v13
          s_and_b32 s13, s3, 1
          s_lshl_b32 s13, s13, 2
          s_lshr_b32 s14, s3, 1
          s_add_u32 s13, s13, s14
          s_lshl_b32 s14, s13, 7
          s_add_u32 s14, s14, {L_CC}
          v_add_u32 v13, s14, v13
          s_lshl_b32 s13, s13, 3
          s_add_u32 s13, s13, {L_ML}
          v_mov_b32 v12, s13""")
    tr_lane(g, 16, 10, 11, swap=True)
    g(f"""s_and_b32 s13, s12, 1
          s_lshl_b32 s13, s13, 6
          v_xor_b32 v16, s13, v16
          s_lshr_b32 s13, s12, 1
          s_lshl_b32 s13, s13, 13
          s_add_u32 s13, s13, {L_WUV}
          v_add_u32 v16, s13, v16
          v_xor_b32 v17, 0x220, v16
          v_and_b32 v10, 7, v2
          v_lshlrev_b32 v18, 7, v10
          v_lshl_add_u32 v18, v3, 4, v18
          v_add_u32 v18, {L_CC}, v18
          v_lshlrev_b32 v19, 3, v10
          v_add_u32 v19, {L_ML}, v19
          v_xor_b32 v20, 32, v19
          v_lshlrev_b32 v21, 1, v14""")
    s5_setup(g)
    if g.fl:
        g(f"""s_lshl3_add_u32 s13, s4, s3
              s_mul_i32 s13, s13, {FSTR}
              s_add_u32 s13, s13, {FL3}
              s_add_u32 s62, s{P_WS}, s13
              s_addc_u32 s63, s{P_WS+1}, 0
              s_mov_b32 s100, s11
              s_mov_b32 s101, s11
              s_waitcnt vmcnt(5)
              s_barrier""")
        g.sflag_wait(62, 0)
        g.reload_args()
    else:
        llate = g.lab("LT")
        if g.xf == 2:
            g.flag_wait(F_LT, 1)
            g(f"s_mov_b32 s58, s14\ns_cmp_eq_u32 s14, 2\ns_cbranch_scc1 {llate}")
        if g.xf:
            lx = g.lab("XF")
            g(f"""s_cmp_lg_u32 s3, 0
                  s_cbranch_scc1 {lx}
                  s_lshl_b32 s13, s4, 7
                  s_add_u32 s13, s13, {XF}
                  v_and_b32 v61, 31, v1
                  v_lshlrev_b32 v61, 2, v61""")
            l = g.poll_begin()
            g(f"""buffer_load_dword v62, v61, s[40:43], s13 offen sc1
                  s_waitcnt vmcnt(0)
                  v_cmp_ne_u32 s[62:63], s11, v62""")
            g.poll_end(l)
            g(f"{lx}:")
        g(f"s_waitcnt vmcnt(0)\n{llate}:\ns_barrier")
    g.stamp(9)
    def oloads():
        g(f"""buffer_load_dwordx4 v[36:39], v9, s[40:43], s66 offen sc1
              buffer_load_dwordx4 v[40:43], v9, s[40:43], s75 offen sc1
              buffer_load_dwordx4 v[28:31], v8, s[40:43], s65 offen sc1
              buffer_load_dwordx4 v[32:35], v8, s[40:43], s74 offen sc1""")
    oloads()
    def uv_frags():
        for t in range(2):
            for e in range(2):
                r = 64 + 8*t + 4*e
                g(f"ds_read_b64_tr_b16 v[{r}:{r+1}], v16 offset:{t*4096+e*8}")
                g(f"ds_read_b64_tr_b16 v[{r+2}:{r+3}], v17 offset:{t*4096+e*8}")
    if g.xf == 2:
        lx, ly = g.lab("LT"), g.lab("LT")
        g(f"s_cmp_lg_u32 s58, 2\ns_cbranch_scc1 {lx}\ns_cmp_lt_u32 s3, 4\ns_cbranch_scc1 {ly}")
        for k in range(2):
            for ch in range(2):
                g(f"""s_add_u32 m0, s55, {L_WUV + ch*8192 + k*4096}
                      s_add_u32 s13, s54, {k*262144 + ch*128}
                      buffer_load_dwordx4 v118, s[48:51], s13 offen nt lds""")
        g(f"s_branch {ly}\n{lx}:")
        uv_frags()
        g(f"{ly}:")
    else:
        uv_frags()
    lq = g.lab("LQ")
    g(f"s_cmp_ge_u32 s3, 4\ns_cbranch_scc1 {lq}")
    wo_frags(g)
    g(f"{lq}:")
    l, lsk = g.lab("PL"), g.lab("SK")
    g(f"""s_mov_b32 s61, 0
          s_branch {lsk}
          {l}:
          s_mov_b64 exec, s[62:63]""")
    oloads()
    g(f"""s_mov_b64 exec, -1
          {lsk}:
          s_waitcnt vmcnt(2)
          v_max_f32 v24, v36, v40
          v_cndmask_b32 v46, v38, v39, s[56:57]
          v_cndmask_b32 v47, v42, v43, s[56:57]
          v_max_f32_dpp v24, v24, v24 row_ror:8 {DPP}
          v_add3_u32 v48, v36, v37, s11
          v_add3_u32 v49, v40, v41, s11""")
    g.xrow("v_max_f32", 24, 25)
    g(f"""v_sub_f32 v26, v36, v24
          v_sub_f32 v27, v40, v24
          v_exp_f32 v26, v26
          v_exp_f32 v27, v27
          v_sub_u32 v46, v46, v48
          v_sub_u32 v47, v47, v49
          v_mul_f32 v25, v26, v37
          v_fmac_f32 v25, v27, v41
          s_waitcnt vmcnt(0)
          v_add3_u32 v48, v28, v29, v30
          v_add3_u32 v49, v32, v33, v34
          v_add_u32 v48, v48, v31
          v_add_u32 v49, v49, v35
          v_add_f32_dpp v25, v25, v25 row_ror:8 {DPP}
          v_add_u32_dpp v44, v48, v48 row_shl:4 row_mask:0xf bank_mask:0x5
          v_add_u32_dpp v45, v49, v49 row_shl:4 row_mask:0xf bank_mask:0x5
          v_add_u32_dpp v44, v48, v48 row_shr:4 row_mask:0xf bank_mask:0xa
          v_add_u32_dpp v45, v49, v49 row_shr:4 row_mask:0xf bank_mask:0xa
          v_cmp_ne_u32 s[62:63], v44, v46
          v_cmp_ne_u32 vcc, v45, v47
          s_or_b64 s[62:63], s[62:63], vcc""")
    g.poll_end(l)
    g.stamp(10)
    g.count(6)
    if g.sb:
        l1, l2 = g.lab("SB"), g.lab("SB")
        g(f"""s_cmp_lt_u32 s3, 4
              s_cbranch_scc1 {l2}
              s_cmp_eq_u32 s52, 0
              s_cbranch_scc1 {l2}
              {l1}:
              s_mov_b32 m0, s53
              s_add_u32 s53, s53, 4096
              buffer_load_dwordx4 v119, s[44:47], s68 offen nt lds
              s_add_u32 s68, s68, s69
              s_sub_u32 s52, s52, 1
              s_cmp_lg_u32 s52, 0
              s_cbranch_scc1 {l1}
              {l2}:""")
    for k in range(4):
        g.unpack(44+2*k, 28+k); g.unpack(52+2*k, 32+k)
    g("v_mov_b32 v60, v25")
    for k in range(4): g(f"v_pk_mul_f32 v[{44+2*k}:{45+2*k}], v[{44+2*k}:{45+2*k}], v[26:27] op_sel_hi:[1,0]")
    g("v_permlane16_swap_b32 v25, v60")
    for k in range(4): g(f"v_pk_fma_f32 v[{44+2*k}:{45+2*k}], v[{52+2*k}:{53+2*k}], v[26:27], v[{44+2*k}:{45+2*k}] op_sel:[0,1,0] op_sel_hi:[1,1,1]")
    g("v_add_f32 v25, v25, v60")
    for k in range(4): g(f"v_permlane16_swap_b32 v{44+k}, v{48+k}")
    g("v_mov_b32 v60, v25")
    for k in range(4): g(f"v_add_f32 v{44+k}, v{44+k}, v{48+k}")
    g("v_permlane32_swap_b32 v25, v60")
    for k in range(2): g(f"v_permlane32_swap_b32 v{44+k}, v{46+k}")
    g("v_add_f32 v25, v25, v60")
    for k in range(2): g(f"v_add_f32 v{44+k}, v{44+k}, v{46+k}")
    g("ds_write_b64 v12, v[24:25]")
    for k in range(2): g(f"v_add_f32_dpp v{44+k}, v{44+k}, v{44+k} row_ror:8 {DPP}")
    g(f"""v_cvt_pk_bf16_f32 v44, v44, v45
          ds_write_b32 v13, v44
          s_waitcnt lgkmcnt(0)
          s_barrier""")
    ln = g.lab("N4")
    g(f"""s_cmp_ge_u32 s3, 4
          s_cbranch_scc1 {ln}""")
    if g.xf == 2:
        lx = g.lab("LT")
        g(f"s_cmp_lg_u32 s58, 2\ns_cbranch_scc1 {lx}")
        uv_frags()
        g(f"{lx}:")
    g(f"""ds_read_b128 v[24:27], v18
          ds_read_b128 v[28:31], v18 offset:64
          ds_read_b64 v[32:33], v19
          ds_read_b64 v[34:35], v20
          s_waitcnt lgkmcnt(3)""")
    for t in range(2):
        if t == 1: g("s_waitcnt lgkmcnt(2)")
        for e in range(2): g.mfma(56+4*e, 64+8*t+4*e, 24+4*t, t == 0)
    g(f"""s_waitcnt lgkmcnt(0)
          v_max_f32 v36, v32, v34
          v_sub_f32 v32, v32, v36
          v_sub_f32 v34, v34, v36
          v_exp_f32 v32, v32
          v_exp_f32 v34, v34
          s_nop 0
          v_mul_f32 v33, v33, v32
          v_fmac_f32 v33, v35, v34
          v_rcp_f32 v33, v33
          s_nop 0
          v_mul_f32 v32, v32, v33""")
    for k in range(4): g(f"v_pk_mul_f32 v[{56+2*k}:{57+2*k}], v[{56+2*k}:{57+2*k}], v[32:33] op_sel_hi:[1,0]")
    for k in range(8): g(f"v_add_f32_dpp v{56+k}, v{56+k}, v{56+k} row_ror:4 {DPP}")
    g.mask_j4()
    g.pack8(24, 56)
    g.chk(28, 24)
    lstore(g, ["buffer_store_dwordx4 v[24:27], v15, s[40:43], s68 offen", "buffer_store_dword v28, v21, s[40:43], s69 offen"])
    g(f"{ln}:\ns_mov_b64 exec, -1")
    g.stamp(11)
    g(f"""s_cmp_eq_u32 s72, 1
          s_cbranch_scc1 L_s6
          s_cmp_eq_u32 s72, 2
          s_cbranch_scc1 L_s7
          s_cmp_eq_u32 s72, 3
          s_cbranch_scc1 L_fin""")
    s5(g); s6(g); s7(g)
    g("L_fin:")
    g.finish()

def wo_frags(g):
    for tt in range(2):
        for tpi in range(2):
            for e in range(2):
                r = 128 + 16*tt + 8*tpi + 4*e
                g(f"ds_read_b64_tr_b16 v[{r}:{r+1}], v{[110,112][tpi]} offset:{tt*4096+e*8}")
                g(f"ds_read_b64_tr_b16 v[{r+2}:{r+3}], v{[111,113][tpi]} offset:{tt*4096+e*8}")

def s5_setup(g):
    tr_lane(g, 110, 10, 11)
    g(f"""s_lshr_b32 s13, s3, 2
          s_and_b32 s14, s3, 1
          s_lshl1_add_u32 s13, s13, s14
          s_lshl_b32 s13, s13, 13
          s_add_u32 s13, s13, {L_WR}
          v_add_u32 v110, s13, v110
          v_xor_b32 v111, 0x220, v110
          v_xor_b32 v112, 64, v110
          v_xor_b32 v113, 0x260, v110
          v_and_b32 v106, 3, v2
          v_lshlrev_b32 v106, 7, v106
          v_lshl_add_u32 v106, v3, 5, v106
          v_and_b32 v7, 4, v2
          v_lshl_add_u32 v106, v7, 2, v106
          v_and_b32 v7, 8, v2
          v_lshl_add_u32 v106, v7, 6, v106
          s_lshl_b32 s13, s3, 10
          s_add_u32 s13, s13, {L_RED}
          v_add_u32 v106, s13, v106
          v_lshlrev_b32 v108, 3, v1
          s_lshl_b32 s13, s14, 9
          s_add_u32 s13, s13, {L_RED}
          v_add_u32 v107, s13, v108
          s_and_b32 s13, s73, 1
          s_lshl1_add_u32 s64, s4, s13
          s_lshl3_add_u32 s13, s64, s3
          s_lshl_b32 s70, s13, 11
          s_add_u32 s70, s70, {CP}
          s_lshl_b32 s71, s13, 9
          s_add_u32 s71, s71, {CPC}
          s_and_b32 s13, s73, 0xfe
          s_add_u32 s13, s13, s14
          s_lshl4_add_u32 s60, s13, s64
          s_lshl_b32 s60, s60, 9
          s_lshl_b32 s13, s73, 13
          s_lshl_b32 s14, s12, 7
          s_add_u32 s13, s13, s14
          s_cmp_ge_u32 s3, 4
          s_cselect_b32 s60, s13, s60
          s_add_u32 s60, s60, {AP}
          v_lshlrev_b32 v108, 4, v2
          v_lshl_add_u32 v108, v3, 7, v108
          v_and_b32 v109, 7, v1
          v_lshlrev_b32 v109, 4, v109
          v_lshrrev_b32 v7, 3, v1
          v_lshl_add_u32 v109, v7, 9, v109
          s_mul_i32 s67, s4, 5
          s_lshr_b32 s13, s73, 2
          s_add_u32 s67, s67, s13
          s_mul_i32 s67, s67, 1536
          s_add_u32 s67, s67, {HR}""")

def red_read(g, n, stride, a):
    for w in range(n): g(f"ds_read_b64 v[{32+2*w}:{33+2*w}], v{a} offset:{w*stride}")
    for w in range(1, n):
        g(f"s_waitcnt lgkmcnt({n-1-w})")
        g(f"v_add_f32 v32, v32, v{32+2*w}\nv_add_f32 v33, v33, v{33+2*w}")

def s5(g):
    lq = g.lab("LQ")
    g(f"s_cmp_lt_u32 s3, 4\ns_cbranch_scc1 {lq}\ns_waitcnt vmcnt(0)")
    g.flag_add(F_UV)
    g.flag_wait(F_UV, 4)
    wo_frags(g)
    g(f"{lq}:")
    g("s_mov_b64 s[62:63], -1")
    l = g.poll_begin()
    g(f"""s_mov_b64 exec, s[62:63]
          buffer_load_dwordx4 v[96:99], v15, s[40:43], s70 offen sc1
          buffer_load_dwordx4 v[100:103], v15, s[40:43], s70 offen offset:1024 sc1
          buffer_load_dwordx2 v[104:105], v21, s[40:43], s71 offen sc1
          s_mov_b64 exec, -1
          s_waitcnt vmcnt(1) lgkmcnt(0)""")
    for tt in range(2):
        for q in range(4): g.mfma(80+4*q, 128+16*tt+4*q, 96+4*tt, tt == 0)
    g("s_waitcnt vmcnt(0)")
    for tt in range(2): g.verify(96+4*tt, 104+tt, tt == 0)
    g.poll_end(l)
    g.stamp(1)
    g.count(7)
    for k in range(8): g(f"v_add_f32_dpp v{80+k}, v{80+k}, v{80+k} row_ror:8 row_mask:0xf bank_mask:0x3")
    for k in range(8): g(f"v_add_f32_dpp v{80+k}, v{88+k}, v{88+k} row_ror:8 row_mask:0xf bank_mask:0xc")
    for k in range(4): g(f"v_add_f32_dpp v{80+k}, v{80+k}, v{80+k} row_shl:4 row_mask:0xf bank_mask:0x5")
    for k in range(4): g(f"v_add_f32_dpp v{80+k}, v{84+k}, v{84+k} row_shr:4 row_mask:0xf bank_mask:0xa")
    lr, lnf = g.lab("R5"), g.lab("NF")
    g(f"""ds_write_b128 v106, v[80:83]
          s_waitcnt lgkmcnt(0)
          s_barrier
          s_cmp_ge_u32 s3, 4
          s_cbranch_scc1 {lr}
          s_cmp_ge_u32 s3, 2
          s_cbranch_scc1 L_fin""")
    g("s_setprio 3")
    red_read(g, 8, 1024, 107)
    g(f"""v_cvt_pk_bf16_f32 v32, v32, v33
          v_mov_b32 v34, s11
          v_mov_b32 v35, s11
          v_mov_b32_dpp v33, v32 row_ror:8 {DPP}""")
    g.mask("0x00ff00ff")
    g("buffer_store_dwordx4 v[32:35], v108, s[40:43], s60 offen sc1\ns_mov_b64 exec, -1")
    g.stamp(2)
    if g.apw:
        g("s_waitcnt vmcnt(0)")
        g.flag_add(F_SM)
    g(f"s_branch L_fin\n{lr}:")
    g.unpack(44, 120)
    g(f"""v_mov_b32 v50, s11
          v_mov_b32 v51, s11
          s_add_u32 s64, s60, 4096
          v_lshlrev_b32 v20, 2, v2
          s_and_b32 s14, s73, 3
          s_lshl2_add_u32 s13, s14, s12
          s_lshl4_add_u32 s70, s13, s67
          s_lshl_b32 s13, s13, 6
          s_add_u32 s65, s67, s13
          s_lshl_b32 s13, s12, 6
          s_lshl2_add_u32 s13, s14, s13
          s_add_u32 s66, s67, s13""")
    if g.apw: g.flag_wait(F_SM, 2)
    g.stamp(5)
    l = g.poll_begin()
    g(f"""buffer_load_dwordx4 v[64:67], v109, s[40:43], s60 offen sc1
          buffer_load_dwordx4 v[68:71], v109, s[40:43], s64 offen sc1
          s_waitcnt vmcnt(0)""")
    g.acc_ne("s11", "v66", True)
    g.acc_ne("s11", "v70", False)
    g.poll_end(l)
    g.stamp(3)
    g.count(8)
    g.unpack(72, 64); g.unpack(74, 65); g.unpack(76, 68); g.unpack(78, 69)
    g(f"""v_add_f32 v72, v72, v76
          v_add_f32 v73, v73, v77
          v_add_f32 v74, v74, v78
          v_add_f32 v75, v75, v79
          v_add_f32_dpp v46, v72, v72 row_ror:8 row_mask:0xf bank_mask:0x3
          v_add_f32_dpp v47, v73, v73 row_ror:8 row_mask:0xf bank_mask:0x3
          v_add_f32_dpp v46, v74, v74 row_ror:8 row_mask:0xf bank_mask:0xc
          v_add_f32_dpp v47, v75, v75 row_ror:8 row_mask:0xf bank_mask:0xc
          v_mov_b32 v48, v46
          v_mov_b32 v49, v47
          s_nop 0
          v_permlane16_swap_b32 v46, v48
          v_permlane16_swap_b32 v47, v49
          s_nop 0
          v_add_f32 v46, v46, v48
          v_add_f32 v47, v47, v49
          v_mov_b32 v48, v46
          v_mov_b32 v49, v47
          s_nop 0
          v_permlane32_swap_b32 v46, v48
          v_permlane32_swap_b32 v47, v49
          s_nop 0
          v_add_f32 v46, v46, v48
          v_add_f32 v47, v47, v49
          v_cvt_pk_bf16_f32 v46, v46, v47
          s_mov_b64 exec, 0xffff""")
    g.unpack(48, 46)
    g(f"""v_add_f32 v48, v48, v44
          v_add_f32 v49, v49, v45
          v_cvt_pk_bf16_f32 v46, v48, v49
          v_lshlrev_b32 v52, 16, v46
          v_and_b32 v53, 0xffff0000, v46
          v_add_u32_dpp v47, v46, v46 quad_perm:[1,0,3,2] {DPP}
          v_add_f32 v48, v52, v53
          s_nop 0
          v_add_u32_dpp v47, v47, v47 quad_perm:[2,3,0,1] {DPP}
          v_add_u32 v47, s11, v47""")
    lstore(g, ["buffer_store_dword v46, v20, s[40:43], s65 offen", "s_mov_b64 exec, 0x1111",
               "buffer_store_dword v47, v20, s[40:43], s66 offen offset:1024", "s_mov_b64 exec, 0xffff"])
    g.stamp(4)
    g.inrow("v_add_f32", 48)
    g(f"""v_mul_f32 v54, {f32(1/32)}, v48
          v_sub_f32 v52, v52, v54
          v_sub_f32 v53, v53, v54
          v_mul_f32 v49, v52, v52
          v_fmac_f32 v49, v53, v53""")
    g.inrow("v_add_f32", 49)
    g("s_mov_b64 exec, 1")
    lstore(g, ["buffer_store_dwordx4 v[48:51], v2, s[40:43], s70 offen offset:1280"])
    lep = g.lab("EP")
    g(f"""s_add_u32 s13, s2, s12
          s_cmp_lg_u32 s13, 0
          s_cbranch_scc1 {lep}
          buffer_store_dword v50, v2, s[40:43], 0 offen sc1
          {lep}:
          s_mov_b64 exec, -1""")
    if g.wb == 1:
        g("""s_add_u32 s13, s5, s12
             s_cmp_lg_u32 s13, 0
             s_cbranch_scc1 L_fin
             buffer_wbl2 sc1""")
    g("s_branch L_fin")

def s6(g):
    g("L_s6:\ns_barrier")
    g.srd(48, P_W1, 2211840)
    g(f"""v_lshrrev_b32 v12, 2, v1
          v_mul_u32_u24 v12, 3456, v12
          v_and_b32 v7, 3, v1
          v_lshl_add_u32 v12, v7, 4, v12
          s_add_u32 s13, s3, {8*g.c1}
          s_mul_i32 s64, s13, {16*3456}
          s_lshl_b32 s14, s73, 6
          s_add_u32 s64, s64, s14
          s_lshl_b32 s65, s3, 10""")
    for k in range(5 - g.c1):
        g(f"""s_add_u32 m0, s65, {L_WR + 8192*g.c1 + k*8192}
              s_add_u32 s13, s64, {k*128*3456}
              buffer_load_dwordx4 v12, s[48:51], s13 offen nt lds""")
    g.srd(44, P_W2, 2211840)
    g(f"""v_and_b32 v13, 7, v1
          v_xor_b32 v13, v13, v3
          s_and_b32 s13, s3, 1
          s_lshl_b32 s13, s13, 2
          v_xor_b32 v13, s13, v13
          v_lshrrev_b32 v7, 3, v1
          v_mul_u32_u24 v7, 1280, v7
          v_lshl_add_u32 v13, v13, 4, v7
          s_lshl2_add_u32 s64, s73, s12
          s_mul_i32 s64, s64, {8*1280}
          s_lshr_b32 s13, s3, 2
          s_lshl_b32 s13, s13, 7
          s_add_u32 s64, s64, s13""")
    for k in range(5):
        g(f"""s_add_u32 m0, s65, {L_W2 + k*8192}
              s_add_u32 s13, s64, {k*256}
              buffer_load_dwordx4 v13, s[44:47], s13 offen nt lds""")
    g(f"""s_min_u32 s13, s3, 4
          s_lshl_b32 s64, s13, 7
          v_lshrrev_b32 v8, 2, v1
          v_and_b32 v8, 3, v8
          v_lshl_add_u32 v8, v3, 3, v8
          v_add_u32 v8, s64, v8
          v_lshlrev_b32 v8, 6, v8
          v_and_b32 v7, 3, v1
          v_lshl_add_u32 v8, v7, 4, v8
          v_add_u32 v8, {L_WR}, v8
          v_lshlrev_b32 v10, 7, v2
          v_lshl_add_u32 v10, v3, 5, v10
          s_lshl_b32 s13, s3, 9
          s_add_u32 s13, s13, {L_RED}
          v_add_u32 v10, s13, v10
          v_lshlrev_b32 v11, 3, v1
          v_add_u32 v11, {L_RED}, v11
          s_mul_i32 s67, s4, {20*384}
          s_add_u32 s67, s67, {HR}
          s_mul_i32 s65, s3, {4*384}
          s_add_u32 s65, s65, s67""")
    g(f"""v_lshrrev_b32 v12, 2, v1
          v_and_b32 v12, 3, v12
          v_and_b32 v13, 3, v1
          v_lshrrev_b32 v20, 1, v13
          s_lshl_b32 s13, s12, 1
          v_or_b32 v20, s13, v20
          v_lshrrev_b32 v7, 1, v12
          v_xor_b32 v20, v20, v7
          v_and_b32 v7, 1, v3
          v_lshlrev_b32 v7, 2, v7
          v_xor_b32 v20, v20, v7
          v_lshlrev_b32 v20, 4, v20
          v_lshl_add_u32 v20, v12, 7, v20
          v_lshl_add_u32 v20, v3, 10, v20
          v_and_b32 v7, 1, v13
          v_lshl_add_u32 v20, v7, 3, v20
          s_lshr_b32 s13, s3, 2
          s_lshl_b32 s13, s13, 12
          s_add_u32 s13, s13, {L_W2}
          v_add_u32 v20, s13, v20
          v_xor_b32 v21, 0x220, v20
          v_and_b32 v22, 3, v2
          v_lshlrev_b32 v22, 6, v22
          v_lshl_add_u32 v22, v3, 4, v22
          v_add_u32 v22, {L_UL}, v22
          v_lshlrev_b32 v23, 4, v2
          v_lshl_add_u32 v29, v3, 11, v23
          v_lshrrev_b32 v7, 2, v2
          v_mov_b32 v28, {L_UL+256}
          v_cmp_eq_u32 vcc, 0, v7
          v_cmp_eq_u32 s[74:75], 1, v7
          v_cmp_eq_u32 s[100:101], 2, v7
          v_cndmask_b32 v24, v28, v22, vcc
          v_cndmask_b32 v25, v28, v22, s[74:75]
          v_cmp_eq_u32 vcc, 3, v7
          v_cndmask_b32 v26, v28, v22, s[100:101]
          v_mov_b32 v30, 0
          v_mov_b32 v31, 0
          v_cndmask_b32 v27, v28, v22, vcc
          ds_write_b64 v28, v[30:31]
          ds_write_b64 v28, v[30:31] offset:8
          s_mul_i32 s68, s73, 10240
          s_lshl_b32 s13, s3, 8
          s_add_u32 s68, s68, s13
          s_add_u32 s68, s68, {FP}
          s_add_u32 s69, s68, 4096
          s_add_u32 s70, s68, 8192""")
    for k in range(96, 112): g(f"v_mov_b32 v{k}, 0x3f803f80")
    for k in range(2): g(f"v_mov_b32 v{170+4*k}, s11\nv_mov_b32 v{171+4*k}, s11")
    lfin, lidle, lw2 = g.lab("F6"), g.lab("I6"), g.lab("W6")
    def red_write():
        g.mask_j4()
        g("ds_write_b128 v10, v[56:59]\nds_write_b128 v10, v[60:63] offset:16\ns_mov_b64 exec, -1")
    def w2_frags():
        for k in range(5):
            g(f"ds_read_b64_tr_b16 v[{128+4*k}:{129+4*k}], v20 offset:{k*8192}")
            g(f"ds_read_b64_tr_b16 v[{130+4*k}:{131+4*k}], v21 offset:{k*8192}")
    g("s_waitcnt vmcnt(5)\ns_barrier")
    g(f"""s_cmp_eq_u32 s3, 7
          s_cbranch_scc1 {lfin}
          s_cmp_ge_u32 s3, 5
          s_cbranch_scc1 {lidle}""")
    for t in range(4):
        for e in range(2):
            r = 64 + 8*t + 4*e
            g(f"ds_read_b64_tr_b16 v[{r}:{r+1}], v8 offset:{t*2048+e*8}")
            g(f"ds_read_b64_tr_b16 v[{r+2}:{r+3}], v8 offset:{t*2048+256+e*8}")
    g("s_waitcnt lgkmcnt(0)")
    for t in range(4):
        for e in range(2): g.mfma(56+4*e, 64+8*t+4*e, 96+4*t, t == 0)
    g.nop(6)
    red_write()
    g("s_waitcnt lgkmcnt(0)\ns_barrier\ns_waitcnt vmcnt(0)\ns_barrier")
    g.stamp(4)
    w2_frags()
    l = g.poll_begin()
    g.mask_j4()
    for t in range(4):
        g(f"buffer_load_dwordx4 v[{96+4*t}:{99+4*t}], v15, s[40:43], s65 offen offset:{t*256} sc1")
    g("buffer_load_dwordx4 v[112:115], v15, s[40:43], s65 offen offset:1024 sc1")
    g("s_mov_b64 exec, -1\ns_waitcnt vmcnt(1)")
    for t in range(4):
        for e in range(2): g.mfma(56+4*e, 64+8*t+4*e, 96+4*t, t == 0)
    g.mask_j4()
    g("s_waitcnt vmcnt(0)")
    for t in range(4): g.verify(96+4*t, 112+t, t == 0)
    g.poll_end(l)
    g(f"""ds_write_b128 v10, v[56:59]
          ds_write_b128 v10, v[60:63] offset:16
          s_mov_b64 exec, -1""")
    g.stamp(1)
    g(f"""s_waitcnt lgkmcnt(0)
          s_barrier
          s_branch {lw2}
          {lidle}:
          s_barrier
          s_waitcnt vmcnt(0)
          s_barrier""")
    w2_frags()
    g(f"""s_barrier
          s_branch {lw2}
          {lfin}:
          s_barrier""")
    red_read(g, 5, 512, 11)
    g(f"""v_mov_b32 v60, v32
          v_mov_b32 v61, v33
          s_waitcnt vmcnt(0)
          s_barrier""")
    w2_frags()
    g(f"""s_nop 0
          v_lshrrev_b32 v16, 2, v2
          v_mul_u32_u24 v16, 1536, v16
          v_and_b32 v17, 3, v2
          v_lshl_add_u32 v16, v17, 6, v16
          v_lshl_add_u32 v16, v3, 4, v16
          v_mov_b32 v48, 0
          v_mov_b32 v49, 0
          v_mov_b32 v50, s11
          v_cmp_gt_u32 vcc, 4, v2
          v_mov_b32 v42, 0
          v_lshlrev_b32 v17, 2, v1
          v_cndmask_b32 v42, v42, 1.0, vcc
          v_add_u32 v17, {L_UL}, v17
          s_add_u32 s66, s67, {16*384}""")
    l = g.poll_begin()
    g(f"buffer_load_dwordx4 v[44:47], v16, s[40:43], s67 offen offset:1280 sc1")
    g.mask_j4()
    g(f"""buffer_load_dwordx4 v[48:51], v16, s[40:43], s66 offen offset:1280 sc1
          s_mov_b64 exec, -1
          s_waitcnt vmcnt(0)""")
    g.acc_ne("s11", "v46", True)
    g.acc_ne("s11", "v50", False)
    g.poll_end(l)
    g.stamp(1)
    g("v_add_f32 v52, v44, v48")
    g.inrow("v_add_f32", 52)
    g(f"""v_mul_f32 v52, {f32(1/640)}, v52
          v_mul_f32 v44, {f32(1/32)}, v44
          v_mul_f32 v48, {f32(1/32)}, v48
          v_sub_f32 v44, v44, v52
          v_sub_f32 v48, v48, v52
          v_mul_f32 v48, v48, v42
          v_mul_f32 v44, v44, v44
          v_fmac_f32 v44, v48, v48
          v_add_f32 v53, v45, v49
          v_fmac_f32 v53, {f32(32.0)}, v44""")
    g.inrow("v_add_f32", 53)
    g(f"""v_mov_b32 v54, {f32(1e-5)}
          v_fmac_f32 v54, {f32(1/640)}, v53
          v_rsq_f32 v54, v54
          v_mul_f32 v60, v60, v52
          v_mul_f32 v61, v61, v52
          v_mul_f32 v55, {f32(-LOG2E)}, v54
          s_barrier""")
    g.stamp(2)
    red_read(g, 5, 512, 11)
    g(f"""v_sub_f32 v32, v32, v60
          v_sub_f32 v33, v33, v61
          v_mul_f32 v34, v32, v55
          v_mul_f32 v35, v33, v55
          v_exp_f32 v34, v34
          v_exp_f32 v35, v35
          v_mul_f32 v32, v32, v54
          v_mul_f32 v33, v33, v54
          v_add_f32 v34, 1.0, v34
          v_add_f32 v35, 1.0, v35
          v_rcp_f32 v34, v34
          v_rcp_f32 v35, v35
          s_nop 0
          v_mul_f32 v32, v32, v34
          v_mul_f32 v33, v33, v35
          v_cvt_pk_bf16_f32 v32, v32, v33
          ds_write_b32 v17, v32
          {lw2}:
          s_waitcnt lgkmcnt(0)
          s_barrier
          ds_read_b128 v[180:183], v24
          ds_read_b128 v[184:187], v25
          ds_read_b128 v[188:191], v26
          ds_read_b128 v[192:195], v27
          s_waitcnt lgkmcnt(3)""")
    g.mfma(152, 180, 144, True)
    for k in range(4):
        if k: g(f"s_waitcnt lgkmcnt({3-k})")
        g.mfma(148, 180+4*k, 128+4*k, k == 0)
    g(f"""s_nop 1
          s_mov_b64 exec, 0xffff
          v_cvt_pk_bf16_f32 v172, v152, v153
          v_cvt_pk_bf16_f32 v173, v154, v155
          buffer_store_dwordx4 v[172:175], v23, s[40:43], s70 offen sc1
          s_mov_b64 exec, -1
          s_nop 0
          v_cvt_pk_bf16_f32 v168, v148, v149
          v_cvt_pk_bf16_f32 v169, v150, v151
          buffer_store_dwordx4 v[168:171], v29, s[40:43], s68 offen sc1""")
    g.stamp(3)
    if g.wb == 2:
        g("""s_cmp_lg_u32 s3, 0
             s_cbranch_scc1 L_fin
             s_cmp_lg_u32 s5, 28
             s_cbranch_scc1 L_fin
             buffer_wbl2 sc1""")
    g("s_branch L_fin")

def s7(g):
    g("L_s7:")
    lh, lj = g.lab("H7"), g.lab("J7")
    g(f"""v_lshlrev_b32 v10, 2, v1
          v_add_u32 v16, {L_RED}, v10
          s_cmp_eq_u32 s3, 7
          s_cbranch_scc1 {lh}
          v_mul_u32_u24 v12, 10240, v3
          v_lshl_add_u32 v12, v2, 4, v12
          s_mul_i32 s65, s3, {8*10240}
          s_lshl_b32 s13, s73, 8
          s_add_u32 s65, s65, s13
          s_add_u32 s65, s65, {FP}
          s_add_u32 s66, s65, {4*10240}
          s_mov_b64 s[74:75], -1
          s_cmp_eq_u32 s3, 6
          s_cselect_b32 s75, 0, s75
          v_mov_b32 v100, 0
          v_mov_b32 v101, 0
          v_mov_b32 v102, s11
          s_lshl_b32 s13, s3, 8
          v_add_u32 v10, s13, v16
          s_barrier""")
    l = g.poll_begin()
    g(f"""buffer_load_dwordx4 v[96:99], v12, s[40:43], s65 offen sc1
          s_mov_b64 exec, s[74:75]
          buffer_load_dwordx4 v[100:103], v12, s[40:43], s66 offen sc1
          s_mov_b64 exec, -1
          s_waitcnt vmcnt(0)""")
    g.acc_ne("s11", "v98", True)
    g.acc_ne("s11", "v102", False)
    g.poll_end(l)
    g.stamp(1)
    g.unpack(24, 96); g.unpack(26, 97); g.unpack(28, 100); g.unpack(30, 101)
    for k in range(4): g(f"v_add_f32 v{24+k}, v{24+k}, v{28+k}")
    g(f"""s_nop 0
          v_permlane16_swap_b32 v24, v25
          v_permlane16_swap_b32 v26, v27
          s_nop 0
          v_add_f32 v24, v24, v25
          v_add_f32 v26, v26, v27
          s_nop 1
          v_permlane32_swap_b32 v24, v26
          s_nop 0
          v_add_f32 v24, v24, v26
          ds_write_b32 v10, v24
          s_waitcnt lgkmcnt(0)
          s_barrier
          s_branch L_fin
          {lh}:""")
    g.srd(48, P_OUT, 5120)
    g(f"""v_mul_u32_u24 v13, 1280, v3
          v_lshl_add_u32 v13, v2, 1, v13
          v_lshrrev_b32 v8, 3, v2
          v_lshl_add_u32 v12, v3, 2, v8
          v_lshlrev_b32 v11, 4, v12
          s_lshl_b32 s64, s73, 5
          s_mul_i32 s65, s4, 5
          s_lshr_b32 s13, s73, 3
          s_add_u32 s65, s65, s13
          s_mul_i32 s65, s65, 1536
          s_add_u32 s65, s65, {HR}
          s_and_b32 s13, s73, 1
          s_lshl_b32 s13, s13, 5
          s_add_u32 s65, s65, s13
          s_lshr_b32 s13, s73, 1
          s_and_b32 s13, s13, 3
          s_lshl2_add_u32 s66, s13, s65
          s_lshl_b32 s13, s13, 8
          s_add_u32 s65, s65, s13""")
    if g.po: g("buffer_load_ushort v40, v13, s[48:51], s64 offen sc1")
    l = g.poll_begin()
    g(f"""buffer_load_dwordx4 v[24:27], v11, s[40:43], s65 offen sc1
          buffer_load_dword v28, v11, s[40:43], s66 offen offset:1024 sc1
          s_waitcnt vmcnt(0)""")
    g.verify(24, 28, True)
    g.poll_end(l)
    g(f"""s_barrier
          v_and_b32 v8, 2, v1
          v_cmp_ne_u32 vcc, 0, v8
          v_and_b32 v9, 4, v1
          v_cmp_ne_u32 s[74:75], 0, v9
          v_cndmask_b32 v24, v24, v25, vcc
          v_cndmask_b32 v26, v26, v27, vcc
          v_and_b32 v8, 1, v1
          v_cmp_ne_u32 vcc, 0, v8
          v_cndmask_b32 v24, v24, v26, s[74:75]
          v_lshlrev_b32 v25, 16, v24
          v_and_b32 v26, 0xffff0000, v24
          v_cndmask_b32 v30, v25, v26, vcc""")
    g.stamp(1)
    g("s_barrier")
    for w in range(7): g(f"ds_read_b32 v{64+w}, v16 offset:{w*256}")
    g("""s_waitcnt lgkmcnt(4)
         v_add_f32 v64, v64, v65
         v_add_f32 v64, v64, v66
         s_waitcnt lgkmcnt(2)
         v_add_f32 v67, v67, v68
         s_waitcnt lgkmcnt(0)
         v_add_f32 v69, v69, v70
         v_add_f32 v64, v64, v67
         v_add_f32 v64, v64, v69""")
    g.rbf(64)
    g(f"""v_add_f32 v64, v64, v30
          v_cvt_pk_bf16_f32 v64, v64, v64
          buffer_store_short v64, v13, s[48:51], s64 offen
          """)
    g.stamp(2)

OPTS = dict(W=9, we=3, wsw=8, wa=8, opl=0, prio=1, ga=14, gb=22, fp2=1, ap8=1, apw=1, sa=2, uv=1, sb=1, fl=0, xr=0, qe=0, npa=0, c1=2, wb=0, po=0, xf=0, thr=24, ad=0, dbg=0, hold=0)
def gen(stamps=False, **kw):
    o = dict(OPTS); o.update(kw)
    g = G(stamps or o["dbg"], None)
    for k, v in o.items(): setattr(g, k, v)
    prologue(g); swave_front(g); pwave(g); swave(g, g.W); tail(g)
    g("L_end:")
    return g

DOC = """; ---------------------------------------------------------------------------------------------
; ---------------------------------------------------------------------------------------------"""
def emit(g, path):
    hdr = open("cdna_kernels/" + NAME + ".s.ref").read().split("; Override launch")[0]
    txt = hdr + f"""; @launch grid=(256,1,1) block=(512,1,1) lds={LDS_BYTES}
.amdgcn_target "amdgcn-amd-amdhsa--gfx950"
{DOC}
.text
.globl {NAME}_kernel
.p2align 8
.type {NAME}_kernel,@function
{NAME}_kernel:
""" + "\n".join(g.L) + f"""
    s_endpgm
L_code_end:
.section .rodata,"a"
.p2align 6
.amdhsa_kernel {NAME}_kernel
  .amdhsa_next_free_vgpr 256
  .amdhsa_next_free_sgpr 102
  .amdhsa_accum_offset 256
  .amdhsa_group_segment_fixed_size 0
  .amdhsa_kernarg_size 96
  .amdhsa_user_sgpr_count 2
  .amdhsa_user_sgpr_kernarg_segment_ptr 1
  .amdhsa_system_sgpr_workgroup_id_x 1
.end_amdhsa_kernel
"""
    open(path, "w").write(txt)

if __name__ == "__main__":
    import argparse
    ap = argparse.ArgumentParser()
    ap.add_argument("-o", default="k.s")
    ap.add_argument("--stamps", action="store_true")
    for k, v in OPTS.items(): ap.add_argument("--" + k, type=int, default=v)
    a = vars(ap.parse_args())
    out = a.pop("o"); st = a.pop("stamps")
    emit(gen(st, **a), out)
```
